```python
import torch

def _softmax(x, axis=-1):
    return torch.softmax(x, dim=axis)
def _gelu(x):
    return torch.nn.functional.gelu(x, approximate="tanh")
def _silu(x):
    return torch.nn.functional.silu(x)
def _sigmoid(x):
    return torch.sigmoid(x)
def _layernorm(x, axis=-1, eps=1e-5):
    m = x.mean(dim=axis, keepdim=True)
    v = x.var(dim=axis, keepdim=True, unbiased=False)
    return (x - m) / torch.sqrt(v + eps)
def _scatter_add(tgt, idx, src, axis=0):
    return tgt.clone().index_add_(axis, idx, src)
def _segment_sum(src, seg, n):
    out = torch.zeros((n,) + src.shape[1:], dtype=src.dtype)
    return out.index_add_(0, seg, src)
def _pad(x, pw):
    flat = tuple(v for pair in reversed(pw) for v in pair)
    return torch.nn.functional.pad(x, flat)

kernel_name = 'sequential_preLN__grouped_kv_mqa__moe_arch_mod__prompt'

def setup_inputs():

    _w = (lambda a: (lambda t: t.to(torch.bfloat16) if t.is_floating_point() else t)(torch.as_tensor(a)))
    def _A_setup():
        B, S, D, H = 1, 2048, 576, 32
        Dh = D // H
        return {
            "x": _w((lambda *s: torch.randn(*s, dtype=torch.bfloat16) * 0.05)(B, S, D)),
            "wq": _w((lambda *s: torch.randn(*s, dtype=torch.bfloat16) * 0.05)(D, H * Dh)),
            "wk": _w((lambda *s: torch.randn(*s, dtype=torch.bfloat16) * 0.05)(D, Dh)),
            "wv": _w((lambda *s: torch.randn(*s, dtype=torch.bfloat16) * 0.05)(D, Dh)),
            "wo": _w((lambda *s: torch.randn(*s, dtype=torch.bfloat16) * 0.05)(H * Dh, D)),
        }
    _A_in = _A_setup()

    def _B_setup():
        B, S, D, F, C = 1, 2048, 576, 4608, 1
        return {
            "x": _w((lambda *s: torch.randn(*s, dtype=torch.bfloat16) * 0.05)(B, S, D)),
            "w_r": _w((lambda *s: torch.randn(*s, dtype=torch.bfloat16) * 0.05)(D)),
            "w_gate": _w((lambda *s: torch.randn(*s, dtype=torch.bfloat16) * 0.05)(D, F)),
            "w_up": _w((lambda *s: torch.randn(*s, dtype=torch.bfloat16) * 0.05)(D, F)),
            "w_down": _w((lambda *s: torch.randn(*s, dtype=torch.bfloat16) * 0.05)(F, D)),
        }
    _B_in = _B_setup()

    return {
        "A_x": _A_in["x"],
        "A_wq": _A_in["wq"],
        "A_wk": _A_in["wk"],
        "A_wv": _A_in["wv"],
        "A_wo": _A_in["wo"],
        "B_x": _B_in["x"],
        "B_w_r": _B_in["w_r"],
        "B_w_gate": _B_in["w_gate"],
        "B_w_up": _B_in["w_up"],
        "B_w_down": _B_in["w_down"],
    }

def reference(A_x, A_wq, A_wk, A_wv, A_wo, B_x, B_w_r, B_w_gate, B_w_up, B_w_down):
    def _A_ref(x, wq, wk, wv, wo):
        B, S, D = x.shape
        H = 32
        Dh = D // H
        q = (lambda x, *d: x.permute(*d))((x @ wq).reshape(B, S, H, Dh), 0, 2, 1, 3)
        k = x @ wk
        v = x @ wv
        scores = torch.einsum("bhqd,bkd->bhqk", q, k) * (Dh ** -0.5)
        p = _softmax(scores, axis=-1)
        o = torch.einsum("bhqk,bkd->bhqd", p, v)
        return (lambda x, *d: x.permute(*d))(o, 0, 2, 1, 3).reshape(B, S, H * Dh) @ wo

    def _B_ref(x, w_r, w_gate, w_up, w_down):
        B, S, D = x.shape
        C = 1
        r = x @ w_r
        idx = torch.argsort(-r, axis=-1)[:, :C]
        idx_e = (lambda x, n, axis: torch.repeat_interleave(x, n, dim=axis))(idx.reshape(B, C, 1), D, axis=2)
        x_sel = (lambda x, i, axis: torch.take_along_dim(x, i, dim=axis))(x, idx_e, axis=1)
        g = _silu(x_sel @ w_gate)
        u = x_sel @ w_up
        y = (g * u) @ w_down
        r_sel = _sigmoid((lambda x, i, axis: torch.take_along_dim(x, i, dim=axis))(r, idx, axis=1))
        y = y * r_sel.reshape(B, C, 1)
        b_off = (torch.arange(B) * S).reshape(B, 1)
        flat_idx = (idx + b_off).reshape(B * C)
        zero = (x * 0.0).reshape(B * S, D)
        upd = _scatter_add(zero, flat_idx, y.reshape(B * C, D), axis=0)
        return x + upd.reshape(B, S, D)

    x = A_x
    h = x + _A_ref(_layernorm(x, axis=-1), A_wq, A_wk, A_wv, A_wo)
    h2 = h + _B_ref(_layernorm(h, axis=-1), B_w_r, B_w_gate, B_w_up, B_w_down)
    return h2
```

```python
S, D, H, DH, F = 2048, 576, 32, 18, 4608
ROWB = D * 2

KA_X, KA_WQ, KA_WK, KA_WV, KA_WO, KA_BX, KA_WR, KA_WG, KA_WU, KA_WD, KA_OUT, KA_DBG, KA_WS = [8 * i for i in range(13)]

WS_Q    = 0x000000; SZ_Q  = S * ROWB
WS_KM   = 0x240000; SZ_KM = S * 32
WS_KX   = 0x250000; SZ_KX = 8 * 32 * 16 * 4
WS_VT   = 0x254000; SZ_VT = 256 * 288
WS_KMAX = 0x266000; SZ_KMAX = 176 * 4
WS_WO   = 0x268000; SZ_WO = 9 * 36 * 2048
WS_GRAN = 0x310000; GRAN_SP = 128; GRAN_REP = 256 * GRAN_SP + 256
WS_ROWS = 0x360000; SZ_ROWS = 256 * 2304
WS_PART = WS_ROWS + SZ_ROWS; SZ_PART = 72 * 144 * 32
WS_STAMP = 0x500000
WS_USED = 0x600000

import math
CQ = DH ** -0.5 * math.log2(math.e)

import struct
def f32(x): return struct.unpack('<I', struct.pack('<f', x))[0]
def hx(x): return hex(x & 0xffffffff)

class Asm:
    def __init__(self): self.l = []
    def __call__(self, s):
        for line in s.strip('\n').split('\n'):
            line = line.strip()
            if not line: continue
            if line.endswith(':') or line.startswith('.'): self.l.append(line)
            else: self.l.append('    ' + line)
    def text(self): return '\n'.join(self.l) + '\n'

def vr(b, n=1, k='v'): return f'{k}{b}' if n == 1 else f'{k}[{b}:{b+n-1}]'
def ar(b, n=1): return vr(b, n, 'a')
def sr(b, n=1): return vr(b, n, 's')

def srd(a, d, base, off, size):
    if off:
        a(f's_add_u32 s{d}, s{base}, {hex(off)}\ns_addc_u32 s{d+1}, s{base+1}, 0')
    elif d != base:
        a(f's_mov_b32 s{d}, s{base}\ns_mov_b32 s{d+1}, s{base+1}')
    a(f's_mov_b32 s{d+2}, {hex(size)}\ns_mov_b32 s{d+3}, 0x20000')

def kdesc(name, vgpr, acc, sgpr=96):
    return f'''.p2align 6
.amdhsa_kernel {name}
  .amdhsa_next_free_vgpr {vgpr}
  .amdhsa_next_free_sgpr {sgpr}
  .amdhsa_accum_offset {acc}
  .amdhsa_group_segment_fixed_size 0
  .amdhsa_kernarg_size 104
  .amdhsa_user_sgpr_count 2
  .amdhsa_user_sgpr_kernarg_segment_ptr 1
  .amdhsa_system_sgpr_workgroup_id_x 1
  .amdhsa_float_denorm_mode_32 3
.end_amdhsa_kernel
'''

class Lgkm:
    def __init__(self, a): self.a, self.q = a, []
    def issue(self, tag, ins):
        self.a(ins); self.q.append(tag)
    def need(self, *tags):
        last = max((i for i, t in enumerate(self.q) if t in tags), default=-1)
        if last >= 0:
            n = len(self.q) - 1 - last
            self.a(f's_waitcnt lgkmcnt({min(n, 15)})')
            if n <= 15: self.q = self.q[last + 1:]
            else: self.q = self.q[-15:]
    def drain(self):
        self.a('s_waitcnt lgkmcnt(0)'); self.q = []

def weave(main, fill):
    out, n, m, k = [], len(main), len(fill), 0
    for i, x in enumerate(main):
        out.append(x)
        while k < m and (k + 1) * n <= (i + 1) * m + (n - 1) * 0: out.append(fill[k]); k += 1
    out += fill[k:]
    return out

class Vm:
    def __init__(self, a): self.a, self.q = a, []
    def issue(self, tag, ins):
        self.a(ins); self.q.append(tag)
    def count(self, *tags):
        last = max((i for i, t in enumerate(self.q) if t in tags), default=-1)
        if last < 0: return None
        n = len(self.q) - 1 - last
        assert n <= 63
        self.q = self.q[last + 1:]
        return n
    def need(self, *tags):
        n = self.count(*tags)
        if n is not None: self.a(f's_waitcnt vmcnt({n})')
```

```python
from common import *

K1_LDS = 162816
TQ, TKV = 79, 95
ONES = 0x3f803f80
STAGES = [2, 4, 8, 12, 14, 16, 18]
LOOK = 2
KV_VM, KV_KE, KV_VE = 16384, 32768, 32768 + 9216 + 64
XOFF = {'q': 65536, 'kv': 51328}
EX_OFF = 161920
DIAG = set()

def bf_round(a, dst, src):
    a(f'v_cvt_pk_bf16_f32 v{dst}, v{src}, v{src}\nv_and_b32 v{dst}, 0xffff0000, v{dst}')

def rot_next(a, s, step, lim):
    a(f's_add_u32 s{s}, s{s}, {step}\ns_cmp_ge_u32 s{s}, {lim}\ns_cselect_b32 s{s}, 0, s{s}')

def mf16(d, x, y, first): return f'v_mfma_f32_16x16x32_bf16 v[{d}:{d+3}], v[{x}:{x+3}], v[{y}:{y+3}], ' + ('0' if first else f'v[{d}:{d+3}]')
def smf16(d, x, y, idx): return f'v_smfmac_f32_16x16x64_bf16 v[{d}:{d+3}], v[{x}:{x+3}], v[{y}:{y+7}], v{idx}'

def kloop(a, reads, mfmas, vm_wait, after_barrier=None):
    L = Lgkm(a)
    def stage(t):
        if t == 0 or t in STAGES:
            nb = STAGES[0] if t == 0 else STAGES[STAGES.index(t) + 1]
            bi = STAGES.index(nb)
            if 'nodata' not in DIAG: a(f's_waitcnt vmcnt({vm_wait(bi, nb)})')
            a('s_barrier')
            if after_barrier: after_barrier(bi)
    for t in range(LOOK):
        stage(t)
        for tag, ins in reads(t): L.issue(tag, ins)
    for t in range(18):
        R = []
        if t + LOOK < 18:
            stage(t + LOOK)
            R = [('r', x) for x in reads(t + LOOK)]
        for kind, x in weave([('m', x) for x in mfmas(t)], R):
            if kind == 'r': L.issue(*x)
            else:
                L.need(*x[0]); a(x[1])

def stats_raw(a, GR, SX, V, M, T0):
    a(f'''
    v_cndmask_b32 v{V}, 0, v{GR}, s[36:37]
    v_cndmask_b32 v{V}, v{V}, v{GR+1}, s[38:39]
    v_cndmask_b32 v{V}, v{V}, v{GR+2}, s[40:41]
    v_cndmask_b32 v{V}, v{V}, v{GR+3}, s[42:43]
    v_mov_b32 v{M}, v{SX}
    v_mov_b32 v{T0}, v{V}
    s_nop 1
    v_permlane32_swap_b32 v{SX}, v{M}
    v_permlane32_swap_b32 v{V}, v{T0}
    v_add_f32 v{M}, v{SX}, v{M}
    v_add_f32 v{V}, v{V}, v{T0}
    v_mov_b32 v{T0}, v{V}
    v_mul_f32 v{M}, {hx(f32(1.0/D))}, v{M}
    s_nop 0
    v_permlane16_swap_b32 v{V}, v{T0}
    v_add_f32 v{V}, v{V}, v{T0}
    ''')

def stats_fin(a, V, M, T0, mul):
    a(f'''
    v_mul_f32 v{T0}, v{M}, v{M}
    v_fma_f32 v{V}, v{V}, s58, -v{T0}
    v_max_f32 v{V}, 0, v{V}
    ''')
    bf_round(a, V, V)
    a(f'v_add_f32 v{V}, {hx(f32(1e-5))}, v{V}')
    bf_round(a, V, V)
    a(f'v_sqrt_f32 v{V}, v{V}')
    bf_round(a, M, M)
    bf_round(a, V, V)
    a(f'v_rcp_f32 v{V}, v{V}\ns_nop 0')
    if mul != 1.0: a(f'v_mul_f32 v{V}, {hx(f32(mul))}, v{V}')

def stat_consts(a, ONE, IDX, sx):
    for i in range(4): a(f'v_mov_b32 v{ONE+i}, {hx(ONES)}')
    for r in sx:
        for i in range(4): a(f'v_mov_b32 v{r+i}, 0')
    a(f'''
    v_mov_b32 v{IDX}, 0x4444
    v_mov_b32 v12, 0xeeee
    v_cmp_lt_u32 vcc, 7, v2
    s_mov_b32 s36, 0x00100001
    s_mov_b32 s37, 0x10000100
    v_cndmask_b32 v{IDX}, v{IDX}, v12, vcc
    s_lshl_b64 s[38:39], s[36:37], 1
    s_lshl_b64 s[40:41], s[36:37], 2
    s_lshl_b64 s[42:43], s[36:37], 3
    s_mov_b32 s58, {hx(f32(1.0/D))}
    ''')

def ones_row(a, ONE, base):
    a(f'''
    v_lshlrev_b32 v12, 4, v10
    v_add_u32 v12, s{base}, v12
    v_lshl_add_u32 v13, v9, 11, v12
    ds_write_b128 v13, v[{ONE}:{ONE+3}] offset:1920
    ds_write_b128 v12, v[{ONE}:{ONE+3}] offset:{8*2048+1920}
    s_waitcnt lgkmcnt(0)
    ''')

def x_read_addr(a, XRA, base):
    a(f'''
    v_lshrrev_b32 v11, 1, v2
    v_xor_b32 v11, v11, v3
    v_lshlrev_b32 v11, 4, v11
    v_lshl_add_u32 v11, v2, 7, v11
    v_add_u32 v{XRA}, s{base}, v11
    v_xor_b32 v{XRA+1}, 64, v{XRA}
    ''')

def clears(a, hs):
    a(f'''
    v_mov_b32 v20, -1
    v_mov_b32 v21, -1
    v_mov_b32 v22, -1
    v_mov_b32 v23, -1
    s_lshl_b32 s46, s{hs}, 7
    v_add_u32 v24, s46, v1
    v_lshlrev_b32 v25, 4, v24
    v_add_u32 v26, 64, v24
    s_mul_i32 s47, s2, 3600
    s_add_u32 s47, s47, {WS_ROWS}
    buffer_store_dwordx4 v[20:23], v25, s[32:35], s47 offen
    v_cmp_gt_u32 vcc, 225, v26
    s_and_saveexec_b64 s[48:49], vcc
    buffer_store_dwordx4 v[20:23], v25, s[32:35], s47 offen offset:1024
    s_mov_b64 exec, 0xff
    s_mov_b32 s50, {GRAN_REP}
    v_mul_lo_u32 v27, s50, v1
    s_lshl_b32 s47, s2, 7
    s_add_u32 s47, s47, {WS_GRAN}
    buffer_store_dword v20, v27, s[32:35], s47 offen
    s_mov_b64 exec, -1
    ''')
    return 3

def q_common(a):
    a(f'''
    v_lshrrev_b32 v9, 3, v1
    v_and_b32 v10, 7, v1
    v_mul_u32_u24 v5, {ROWB}, v9
    s_and_b32 s24, s16, 1
    s_lshl_b32 s25, s24, 2
    v_and_b32 v11, 2, v9
    v_xor_b32 v11, v11, v10
    v_xor_b32 v11, s25, v11
    v_lshl_add_u32 v6, v11, 4, v5
    v_lshrrev_b32 v11, 1, v9
    v_xor_b32 v11, v11, v10
    v_xor_b32 v11, s25, v11
    v_lshl_add_u32 v7, v11, 4, v5
    s_mul_i32 s20, s17, {TQ}
    s_lshl_b32 s23, s16, 3
    s_add_u32 s23, s23, s20
    s_mul_i32 s23, s23, {ROWB}
    s_lshl_b32 s22, s19, 6
    s_mul_i32 s27, s16, {8*ROWB}
    s_lshl_b32 s44, s18, 7
    s_add_u32 s27, s27, s44
    s_lshl_b32 s21, s16, 10
    s_lshr_b32 s56, s16, 1
    s_mul_i32 s56, s56, 18432
    s_lshl_b32 s24, s24, 10
    s_add_u32 s56, s56, s24
    s_add_u32 s56, s56, {XOFF['q']}
    ''')

def q_dma_w(a, u):
    a(f'''
    s_mul_i32 s57, s22, {64*ROWB//128}
    s_{'add' if u < 8 else 'add'}_u32 m0, s21, {(u % 8) * 8192}
    s_add_u32 s57, s57, s27
    buffer_load_dwordx4 v6, s[60:63], s57 offen lds
    ''')

def q_tra(a, TRA, first_tile_sgpr_shift):
    a(f'''
    v_bfe_u32 v7, v1, 2, 2
    v_and_b32 v8, 3, v1
    v_lshl_add_u32 v9, v3, 3, v7
    v_lshlrev_b32 v9, 7, v9
    v_lshl_add_u32 v9, v8, 3, v9
    v_lshrrev_b32 v10, 1, v7
    v_and_b32 v11, 1, v3
    v_lshl_add_u32 v10, v11, 1, v10
    v_lshl_add_u32 v{TRA}, v10, 5, v9
    v_xor_b32 v{TRA}, s45, v{TRA}
    ''')

def q_big(a, stamp):
    ACC, WB, XB, TRA, XRA = 16, 32, 56, 80, 82
    a('s_waitcnt lgkmcnt(0)')
    srd(a, 28, 4, 0, S * ROWB); srd(a, 60, 6, 0, D * ROWB)
    for u in range(9):
        a(f's_add_u32 m0, s56, {u*2048}\ns_add_u32 s57, s22, s23\nbuffer_load_dwordx4 v7, s[28:31], s57 offen lds')
        if u < 8:
            q_dma_w(a, u); rot_next(a, 22, 128, ROWB)
    if stamp: stamp(a, 1)
    a(f'''
    v_and_b32 v2, 15, v1
    v_lshrrev_b32 v3, 4, v1
    s_lshr_b32 s46, s16, 1
    s_mul_i32 s47, s46, {2*18432}
    s_add_u32 s47, s47, {XOFF['q']}
    s_and_b32 s45, s16, 1
    s_lshl_b32 s45, s45, 6
    ''')
    x_read_addr(a, XRA, 47)
    q_tra(a, TRA, 0)
    a(f'''
    v_xor_b32 v{TRA+1}, 32, v{TRA}
    s_lshl_b32 s46, s46, 5
    s_add_u32 s48, s46, s20
    v_add_u32 v4, s48, v2
    v_mul_u32_u24 v5, {ROWB}, v4
    v_and_b32 v12, 1, v3
    v_lshrrev_b32 v13, 1, v3
    v_lshlrev_b32 v13, 4, v13
    v_lshl_add_u32 v12, v12, 5, v13
    v_add_u32 v5, v5, v12
    s_add_u32 s44, s44, s45
    s_lshl_b32 s45, s45, 1
    s_add_u32 s45, s45, {EX_OFF}
    v_lshl_add_u32 v14, v3, 4, s45
    s_lshl_b32 s46, s46, 3
    s_add_u32 s46, s46, {EX_OFF + 256}
    v_lshl_add_u32 v15, v2, 3, s46
    ''')
    srd(a, 32, 14, WS_Q, SZ_Q)
    def reads(t):
        w, x, o = WB + 8 * (t % 3), XB + 8 * (t % 3), (t % 16) * 4096
        r = []
        for j in range(2):
            r.append(((t, 'x', j), f'ds_read_b128 v[{x+4*j}:{x+4*j+3}], v{XRA + t % 2} offset:{(t // 2) * 2048 + 18432 * j}'))
            r.append(((t, 'w', j), f'ds_read_b64_tr_b16 v[{w+4*j}:{w+4*j+1}], v{TRA+j} offset:{o}'))
            r.append(((t, 'w', j), f'ds_read_b64_tr_b16 v[{w+4*j+2}:{w+4*j+3}], v{TRA+j} offset:{o+512}'))
        return r
    def mfmas(t):
        w, x = WB + 8 * (t % 3), XB + 8 * (t % 3)
        return [([(t, 'x', i), (t, 'w', j)], mf16(ACC + 8 * i + 4 * j, w + 4 * j, x + 4 * i, t == 0)) for i, j in ((0, 0), (1, 0), (0, 1), (1, 1))]
    def vm(bi, nb):
        u = nb // 2
        if u == 9: return 0
        return 2 * (8 - u) + 1 + (1 if bi > 2 else 0)
    kloop(a, reads, mfmas, vm, lambda bi: q_dma_w(a, 8) if bi == 2 else None)
    if stamp: stamp(a, 2)
    CS, ST, P = 32, 40, 44
    a(f'''
    s_barrier
    ds_read_b128 v[{CS}:{CS+3}], v14
    ds_read_b128 v[{CS+4}:{CS+7}], v14 offset:64
    ds_read_b64 v[{ST}:{ST+1}], v15
    ds_read_b64 v[{ST+2}:{ST+3}], v15 offset:128
    s_waitcnt lgkmcnt(1)
    ''')
    for i in range(2):
        if i: a('s_waitcnt lgkmcnt(0)')
        for r in range(8): a(f'v_fma_f32 v{ACC+8*i+r}, -v{ST+2*i}, v{CS+r}, v{ACC+8*i+r}')
        for r in range(8): a(f'v_mul_f32 v{ACC+8*i+r}, v{ST+2*i+1}, v{ACC+8*i+r}')
        for r in range(4): a(f'v_cvt_pk_bf16_f32 v{P+4*i+r}, v{ACC+8*i+2*r}, v{ACC+8*i+2*r+1}')
        a(f'''
        s_nop 1
        v_permlane16_swap_b32 v{P+4*i}, v{P+4*i+2}
        v_permlane16_swap_b32 v{P+4*i+1}, v{P+4*i+3}
        buffer_store_dwordx4 v[{P+4*i}:{P+4*i+3}], v5, s[32:35], s44 offen
        ''')
        if i == 0: a(f's_add_u32 s44, s44, {16*ROWB}')
    if stamp: stamp(a, 3, end=True)
    a('s_endpgm')

def q_small(a, stamp):
    ACC, GJ, G4, SJ, S4, ONE, IDX, WB, XJ, X4, TRA, XRA, XR4 = 16, 20, 24, 28, 32, 36, 40, 44, 56, 72, 88, 90, 92
    a(f'''
    s_sub_u32 s59, s16, 4
    s_lshl_b32 s24, s59, 1
    v_lshrrev_b32 v11, 1, v9
    v_add_u32 v11, s24, v11
    v_xor_b32 v11, v11, v10
    v_lshl_add_u32 v8, v11, 4, v5
    s_lshl_b32 s24, s59, 2
    s_add_u32 s24, s24, s20
    s_add_u32 s24, s24, 64
    s_mul_i32 s24, s24, {ROWB}
    s_lshl_b32 s25, s59, 9
    s_add_u32 s25, s25, {XOFF['q'] + 4*18432}
    s_cmp_eq_u32 s59, 3
    s_cselect_b32 s64, 0x00ffffff, -1
    s_mov_b32 s65, 0
    s_waitcnt lgkmcnt(0)
    ''')
    srd(a, 28, 4, 0, S * ROWB); srd(a, 60, 6, 0, D * ROWB)
    for u in range(9):
        a(f's_add_u32 m0, s56, {u*2048}\ns_add_u32 s57, s22, s23\nbuffer_load_dwordx4 v7, s[28:31], s57 offen lds')
        a(f's_add_u32 m0, s25, {u*2048}\ns_add_u32 s57, s22, s24\ns_mov_b64 exec, s[64:65]\nbuffer_load_dwordx4 v8, s[28:31], s57 offen lds\ns_mov_b64 exec, -1')
        if u < 8:
            q_dma_w(a, u); rot_next(a, 22, 128, ROWB)
    if stamp: stamp(a, 1)
    srd(a, 32, 14, 0, WS_USED)
    srd(a, 68, 12, 0, D * ROWB)
    a(f'''
    s_lshl_b32 s66, s26, 2
    s_add_u32 s66, s66, s59
    s_and_b32 s41, s66, 1
    s_lshr_b32 s42, s66, 1
    s_mul_i32 s43, s42, 57
    s_lshr_b32 s43, s43, 11
    s_mul_i32 s45, s43, 36
    s_sub_u32 s42, s42, s45
    s_cmp_ge_u32 s43, 8
    s_cselect_b32 s45, 144, 18
    s_cselect_b32 s46, 36, 4
    s_cselect_b32 s52, 288, 36
    s_cselect_b32 s53, 18, 2
    s_mul_i32 s52, s52, {ROWB}
    s_mul_i32 s53, s53, {ROWB}
    s_mul_i32 s47, s43, 72
    s_cselect_b32 s47, 16, s47
    s_mul_i32 s45, s45, s41
    s_add_u32 s47, s47, s45
    v_and_b32 v2, 15, v1
    v_lshrrev_b32 v3, 4, v1
    v_mul_u32_u24 v8, s46, v3
    v_add_u32 v8, s47, v8
    v_mul_u32_u24 v8, {ROWB}, v8
    v_lshl_add_u32 v8, v2, 1, v8
    s_lshl_b32 s42, s42, 5
    s_cmp_ge_u32 s66, 648
    s_cselect_b32 s42, 0x7f000000, s42
    v_add_u32 v8, s42, v8
    s_add_u32 s54, s52, s53
    buffer_load_ushort v96, v8, s[68:71], 0 offen
    buffer_load_ushort v97, v8, s[68:71], s52 offen
    buffer_load_ushort v98, v8, s[68:71], s53 offen
    buffer_load_ushort v99, v8, s[68:71], s54 offen
    buffer_load_ushort v100, v8, s[68:71], 0 offen offset:{ROWB}
    buffer_load_ushort v101, v8, s[68:71], s52 offen offset:{ROWB}
    buffer_load_ushort v102, v8, s[68:71], s53 offen offset:{ROWB}
    buffer_load_ushort v103, v8, s[68:71], s54 offen offset:{ROWB}
    s_and_b32 s55, s59, 1
    ''')
    nch = 8 + clears(a, 55)
    stat_consts(a, ONE, IDX, (SJ, S4))
    a(f's_mov_b32 s47, {XOFF["q"] + 4*18432}\ns_cmp_eq_u32 s59, 3\ns_cbranch_scc0 L_qs_noones')
    ones_row(a, ONE, 47)
    a('L_qs_noones:')
    x_read_addr(a, XR4, 47)
    a(f's_mul_i32 s47, s59, 18432\ns_add_u32 s47, s47, {XOFF["q"]}\ns_lshl_b32 s45, s59, 5')
    x_read_addr(a, XRA, 47)
    q_tra(a, TRA, 0)
    a(f'''
    s_add_u32 s48, s20, 64
    v_add_u32 v4, s48, v2
    v_mul_u32_u24 v5, {ROWB}, v4
    v_lshl_add_u32 v5, v3, 3, v5
    s_add_u32 s44, s44, s45
    s_add_u32 s44, s44, {WS_Q}
    s_lshl_b32 s45, s59, 6
    s_add_u32 s45, s45, {EX_OFF}
    v_lshl_add_u32 v14, v3, 4, s45
    s_lshl_b32 s46, s59, 7
    s_add_u32 s46, s46, {EX_OFF + 256}
    v_lshl_add_u32 v15, v2, 3, s46
    ''')
    def reads(t):
        w, o = WB + 4 * (t % 3), (t % 16) * 4096
        return [((t, 'j'), f'ds_read_b128 v[{XJ+4*(t%4)}:{XJ+4*(t%4)+3}], v{XRA + t % 2} offset:{(t // 2) * 2048}'),
                ((t, '4'), f'ds_read_b128 v[{X4+4*(t%4)}:{X4+4*(t%4)+3}], v{XR4 + t % 2} offset:{(t // 2) * 2048}'),
                ((t, 'w'), f'ds_read_b64_tr_b16 v[{w}:{w+1}], v{TRA} offset:{o}'),
                ((t, 'w'), f'ds_read_b64_tr_b16 v[{w+2}:{w+3}], v{TRA} offset:{o+512}')]
    def mfmas(t):
        w, xj, x4 = WB + 4 * (t % 3), XJ + 4 * (t % 4), X4 + 4 * (t % 4)
        m = []
        if t % 2: m += [([(t, 'j')], smf16(SJ, ONE, xj - 4, IDX)), ([(t, '4')], smf16(S4, ONE, x4 - 4, IDX))]
        m += [([(t, 'j')], mf16(GJ, xj, xj, t == 0)), ([(t, '4')], mf16(G4, x4, x4, t == 0)), ([(t, '4'), (t, 'w')], mf16(ACC, w, x4, t == 0))]
        return m
    def vm(bi, nb):
        u = nb // 2
        if u == 9: return 0
        return 3 * (8 - u) + 2 + nch + (1 if bi > 2 else 0)
    kloop(a, reads, mfmas, vm, lambda bi: q_dma_w(a, 8) if bi == 2 else None)
    if stamp: stamp(a, 2)
    a(f'''
    v_lshl_or_b32 v96, v100, 16, v96
    v_lshl_or_b32 v97, v101, 16, v97
    v_lshl_or_b32 v98, v102, 16, v98
    v_lshl_or_b32 v99, v103, 16, v99
    s_mov_b32 s48, 0x80008000
    s_mov_b32 s49, 0x80008000
    ''')
    stats_raw(a, GJ, SJ, 45, 44, 46)
    a(f's_mov_b64 exec, s[48:49]\nds_write_b128 v14, v[{ACC}:{ACC+3}]\ns_mov_b64 exec, -1')
    stats_fin(a, 45, 44, 46, CQ)
    a(f's_mov_b64 exec, 0xffff\nds_write_b64 v15, v[44:45]\ns_mov_b64 exec, -1\ns_waitcnt lgkmcnt(0)\ns_barrier')
    stats_raw(a, G4, S4, 49, 48, 50)
    stats_fin(a, 49, 48, 50, CQ)
    for r in range(4): a(f'v_mov_b32_dpp v{52+r}, v{ACC+r} row_newbcast:15 row_mask:0xf bank_mask:0xf')
    a(f'v_cmp_gt_u32 vcc, {S}, v4\ns_andn2_b64 s[50:51], vcc, s[48:49]')
    for r in range(4): a(f'v_fma_f32 v{ACC+r}, -v48, v{52+r}, v{ACC+r}')
    for r in range(4): a(f'v_mul_f32 v{ACC+r}, v49, v{ACC+r}')
    a(f'''
    v_cvt_pk_bf16_f32 v52, v{ACC}, v{ACC+1}
    v_cvt_pk_bf16_f32 v53, v{ACC+2}, v{ACC+3}
    s_lshl_b32 s45, s66, 10
    s_add_u32 s45, s45, {WS_WO}
    v_lshlrev_b32 v9, 4, v1
    s_cmp_ge_u32 s66, 648
    s_cbranch_scc1 L_qs_nowo
    buffer_store_dwordx4 v[96:99], v9, s[32:35], s45 offen
L_qs_nowo:
    s_and_b64 exec, exec, s[50:51]
    s_cbranch_execz L_qs_end
    buffer_store_dwordx2 v[52:53], v5, s[32:35], s44 offen
L_qs_end:
    ''')
    if stamp: stamp(a, 3, end=True)
    a('s_endpgm')

def kv_main(a, stamp):
    ACC, GR, SX, ONE, IDX, WB, XB, TRA, XRA = 16, 32, 36, 40, 44, 64, 100, 116, 120
    a(f'''
    v_lshrrev_b32 v9, 3, v1
    v_and_b32 v10, 7, v1
    v_lshrrev_b32 v11, 1, v9
    v_xor_b32 v11, v11, v10
    v_mul_u32_u24 v6, {ROWB}, v9
    v_lshl_add_u32 v6, v11, 4, v6
    v_xor_b32 v7, 64, v6
    v_add_u32 v7, {8*ROWB}, v7
    s_mul_i32 s20, s17, {TKV}
    s_lshl_b32 s21, s16, 4
    s_add_u32 s20, s20, s21
    s_mul_i32 s23, s20, {ROWB}
    s_lshl_b32 s22, s19, 6
    s_mul_i32 s21, s16, 18432
    s_add_u32 s21, s21, {XOFF['kv']}
    s_cmp_eq_u32 s16, 5
    s_cselect_b32 s27, 0x00ffffff, -1
    s_cselect_b32 s24, 0x7fff7fff, -1
    s_mov_b32 s25, s24
    s_waitcnt lgkmcnt(0)
    ''')
    srd(a, 28, 4, 0, S * ROWB)
    for u in range(9):
        a(f'''
        s_add_u32 m0, s21, {u*2048}
        s_add_u32 s57, s22, s23
        buffer_load_dwordx4 v6, s[28:31], s57 offen lds
        s_add_u32 m0, s21, {u*2048+1024}
        s_mov_b32 exec_hi, s27
        buffer_load_dwordx4 v7, s[28:31], s57 offen lds
        s_mov_b32 exec_hi, -1
        ''')
        if u < 8: rot_next(a, 22, 128, ROWB)
    if stamp: stamp(a, 1)
    a('v_and_b32 v2, 15, v1\nv_lshrrev_b32 v3, 4, v1\nv_add_u32 v4, s20, v2')
    stat_consts(a, ONE, IDX, (SX,))
    a('s_cmp_eq_u32 s16, 5\ns_cbranch_scc0 L_kv_noones')
    ones_row(a, ONE, 21)
    a('L_kv_noones:')
    x_read_addr(a, XRA, 21)
    a(f'''
    v_bfe_u32 v7, v1, 2, 2
    v_and_b32 v8, 3, v1
    v_lshrrev_b32 v9, 1, v3
    v_lshlrev_b32 v9, 4, v9
    v_and_b32 v10, 1, v3
    v_lshl_add_u32 v9, v10, 2, v9
    v_add_u32 v9, v9, v7
    v_lshlrev_b32 v9, 5, v9
    v_lshl_add_u32 v{TRA}, v8, 3, v9
    v_lshl_add_u32 v9, v3, 3, v7
    v_lshlrev_b32 v9, 4, v9
    v_and_b32 v10, 1, v8
    v_lshl_add_u32 v9, v10, 3, v9
    v_lshrrev_b32 v10, 1, v8
    v_mul_u32_u24 v10, {KV_VE-KV_KE}, v10
    v_add_u32 v{TRA+1}, v9, v10
    s_mov_b32 s47, {EX_OFF}
    v_lshl_add_u32 v51, v3, 4, s47
    ''')
    srd(a, 32, 14, WS_KM, WS_WO - WS_KM)
    KXo, VTo, KMAXo = WS_KX - WS_KM, WS_VT - WS_KM, WS_KMAX - WS_KM
    a(f'''
    v_lshrrev_b32 v54, 5, v4
    v_lshlrev_b32 v54, 10, v54
    v_and_b32 v59, 31, v4
    v_lshl_add_u32 v54, v59, 4, v54
    v_lshrrev_b32 v55, 1, v3
    v_lshl_add_u32 v54, v55, 9, v54
    v_and_b32 v55, 1, v3
    v_lshl_add_u32 v54, v55, 3, v54
    v_lshrrev_b32 v55, 3, v4
    v_mul_u32_u24 v55, 288, v55
    v_and_b32 v56, 7, v4
    v_lshl_add_u32 v55, v56, 1, v55
    v_lshl_add_u32 v57, v3, 6, v55
    v_lshrrev_b32 v58, 8, v4
    v_lshlrev_b32 v58, 11, v58
    v_lshl_add_u32 v58, v59, 6, v58
    v_bfe_u32 v59, v4, 5, 3
    v_lshl_add_u32 v58, v59, 2, v58
    v_cmp_gt_u32 vcc, {S}, v4
    s_and_b64 s[24:25], s[24:25], vcc
    ''')
    def reads(t):
        w, o = WB + 12 * (t % 3), (t % 16) * 1024
        return [((t, 'x'), f'ds_read_b128 v[{XB+4*(t%4)}:{XB+4*(t%4)+3}], v{XRA + t % 2} offset:{(t // 2) * 2048}'),
                ((t, 0), f'ds_read_b64_tr_b16 v[{w}:{w+1}], v{TRA} offset:{o}'),
                ((t, 0), f'ds_read_b64_tr_b16 v[{w+2}:{w+3}], v{TRA} offset:{o+256}'),
                ((t, 1), f'ds_read_b64_tr_b16 v[{w+4}:{w+5}], v{TRA} offset:{KV_VM+o}'),
                ((t, 1), f'ds_read_b64_tr_b16 v[{w+6}:{w+7}], v{TRA} offset:{KV_VM+o+256}'),
                ((t, 2), f'ds_read_b64_tr_b16 v[{w+8}:{w+9}], v{TRA+1} offset:{KV_KE+t*512}'),
                ((t, 2), f'ds_read_b64_tr_b16 v[{w+10}:{w+11}], v{TRA+1} offset:{KV_KE+t*512+64}')]
    def mfmas(t):
        w, x = WB + 12 * (t % 3), XB + 4 * (t % 4)
        m = [([(t, 'x')], smf16(SX, ONE, x - 4, IDX))] if t % 2 else []
        m += [([(t, 'x')], mf16(GR, x, x, t == 0))]
        return m + [([(t, 'x'), (t, j)], mf16(ACC + 4 * j, w + 4 * j, x, t == 0)) for j in range(3)]
    kloop(a, reads, mfmas, lambda bi, nb: 18 - nb)
    if stamp: stamp(a, 2)
    a('s_mov_b32 s44, 0x80008000\ns_mov_b32 s45, 0x80008000\ns_nop 2')
    stats_raw(a, GR, SX, 48, 50, 49)
    a('s_cmp_eq_u32 s16, 5\ns_cbranch_scc0 L_kv_nocs\ns_mov_b64 exec, s[44:45]')
    for j in range(3): a(f'ds_write_b128 v51, v[{ACC+4*j}:{ACC+4*j+3}] offset:{64*j}')
    a('s_mov_b64 exec, -1\ns_waitcnt lgkmcnt(0)\nL_kv_nocs:\ns_barrier')
    for j in range(3): a(f'ds_read_b128 v[{WB+4*j}:{WB+4*j+3}], v51 offset:{64*j}')
    stats_fin(a, 48, 50, 49, 1.0)
    a('s_waitcnt lgkmcnt(0)')
    for i in range(12): a(f'v_fma_f32 v{ACC+i}, -v50, v{WB+i}, v{ACC+i}')
    for i in range(12): a(f'v_mul_f32 v{ACC+i}, v48, v{ACC+i}')
    P = 80
    for i in range(6): a(f'v_cvt_pk_bf16_f32 v{P+i}, v{ACC+2*i}, v{ACC+2*i+1}')
    a(f'''
    s_mov_b32 s46, {VTo}
    s_mov_b32 s47, {KXo}
    s_mov_b32 s48, 0xffff0000
    s_mov_b32 s49, 0
    s_mov_b32 s50, 0
    s_mov_b32 s51, 0xffff0000
    s_and_b64 exec, exec, s[24:25]
    s_cbranch_execz L_kv_nost
    buffer_store_dwordx2 v[{P}:{P+1}], v54, s[32:35], 0 offen
    buffer_store_short v{P+2}, v57, s[32:35], s46 offen
    buffer_store_short_d16_hi v{P+2}, v57, s[32:35], s46 offen offset:16
    buffer_store_short v{P+3}, v57, s[32:35], s46 offen offset:32
    buffer_store_short_d16_hi v{P+3}, v57, s[32:35], s46 offen offset:48
    s_and_b64 exec, s[24:25], s[48:49]
    buffer_store_dword v{P+5}, v58, s[32:35], s47 offen
    buffer_store_dword v{P+5}, v58, s[32:35], s47 offen offset:32
    s_and_b64 exec, s[24:25], s[50:51]
    buffer_store_short v{P+5}, v55, s[32:35], s46 offen offset:256
    buffer_store_short_d16_hi v{P+5}, v55, s[32:35], s46 offen offset:272
L_kv_nost:
    s_mov_b64 exec, -1
    v_cndmask_b32 v60, 0, v{P+5}, s[48:49]
    v_mov_b32 v61, 0
    v_dot2c_f32_bf16 v61, v{P}, v{P}
    v_dot2c_f32_bf16 v61, v{P+1}, v{P+1}
    v_dot2c_f32_bf16 v61, v60, v60
    s_nop 2
    v_cndmask_b32 v61, 0, v61, s[24:25]
    v_mov_b32 v62, v61
    s_nop 1
    v_permlane32_swap_b32 v61, v62
    v_add_f32 v61, v61, v62
    v_mov_b32 v62, v61
    s_nop 1
    v_permlane16_swap_b32 v61, v62
    v_add_f32 v61, v61, v62
    s_nop 1
    v_max_f32_dpp v61, v61, v61 row_ror:8 row_mask:0xf bank_mask:0xf
    s_nop 1
    v_max_f32_dpp v61, v61, v61 row_ror:4 row_mask:0xf bank_mask:0xf
    s_nop 1
    v_max_f32_dpp v61, v61, v61 row_ror:2 row_mask:0xf bank_mask:0xf
    s_nop 1
    v_max_f32_dpp v61, v61, v61 row_ror:1 row_mask:0xf bank_mask:0xf
    s_lshl_b32 s46, s17, 3
    s_add_u32 s46, s46, s16
    s_lshl_b32 s46, s46, 2
    s_add_u32 s46, s46, {KMAXo}
    v_mov_b32 v62, 0
    s_mov_b64 exec, 1
    buffer_store_dword v61, v62, s[32:35], s46 offen
    ''')
    if stamp: stamp(a, 3, end=True)
    a('s_endpgm')

def kv_helper(a):
    a(f'''
    s_sub_u32 s23, s16, 6
    v_lshrrev_b32 v2, 1, v1
    v_and_b32 v3, 0x13, v2
    v_bfe_u32 v4, v2, 2, 1
    v_bfe_u32 v5, v2, 3, 1
    v_lshl_add_u32 v3, v4, 3, v3
    v_lshl_add_u32 v3, v5, 2, v3
    v_mul_u32_u24 v3, 36, v3
    v_and_b32 v4, 1, v1
    v_lshl_add_u32 v6, v4, 4, v3
    v_mul_u32_u24 v7, 36, v1
    v_add_u32 v7, 20, v7
    s_mul_i32 s22, s19, {ROWB}
    s_mul_i32 s20, s23, {KV_VM}
    s_mul_i32 s21, s23, {KV_VE-KV_KE}
    s_add_u32 s21, s21, {KV_KE}
    s_waitcnt lgkmcnt(0)
    s_cmp_eq_u32 s23, 0
    s_cselect_b32 s28, s8, s10
    s_cselect_b32 s29, s9, s11
    s_mov_b32 s30, {D*36}
    s_mov_b32 s31, 0x20000
    ''')
    def dma(u):
        a(f's_add_u32 m0, s21, {u*1024}\ns_add_u32 s24, s22, {ROWB}\nbuffer_load_dwordx4 v7, s[28:31], s22 offen lds')
        a(f's_add_u32 m0, s20, {(u%8)*2048}\ns_nop 0\nbuffer_load_dwordx4 v6, s[28:31], s22 offen lds')
        a(f's_add_u32 m0, s20, {(u%8)*2048+1024}\ns_nop 0\nbuffer_load_dwordx4 v6, s[28:31], s24 offen lds')
        if u < 8: rot_next(a, 22, 2 * ROWB, 18 * ROWB)
    for u in range(8): dma(u)
    srd(a, 32, 14, 0, WS_USED)
    nch = clears(a, 23)
    a(f'''
    s_lshl_b32 s46, s17, 3
    s_add_u32 s46, s46, s16
    s_lshl_b32 s46, s46, 2
    s_add_u32 s46, s46, {WS_KMAX}
    v_mov_b32 v8, 0
    s_mov_b64 exec, 1
    buffer_store_dword v8, v8, s[32:35], s46 offen
    s_mov_b64 exec, -1
    ''')
    nch += 1
    for bi, nb in enumerate(STAGES):
        u = nb // 2
        left = 0 if u == 9 else 3 * (8 - u) + nch + (3 if bi > 2 else 0)
        a(f's_waitcnt vmcnt({left})\ns_barrier')
        if bi == 2: dma(8)
    a('s_barrier\ns_endpgm')

def k1(name, rotate=True, stamp=None):
    a = Asm()
    a(f'.globl {name}\n.p2align 8\n.type {name},@function\n{name}:')
    a(f'''
    s_cmp_ge_u32 s2, 256
    s_cbranch_scc1 L_k1_exit
    s_load_dwordx8 s[4:11], s[0:1], {KA_X}
    s_load_dwordx2 s[12:13], s[0:1], {KA_WO}
    s_load_dwordx2 s[14:15], s[0:1], {KA_WS}
    ''')
    if stamp: stamp(a, 0)
    a(f'''
    v_lshrrev_b32 v2, 6, v0
    v_and_b32 v1, 63, v0
    s_and_b32 s20, s2, 7
    v_readfirstlane_b32 s16, v2
    s_lshr_b32 s21, s2, 3
    s_mul_i32 s22, s20, 29
    s_mul_i32 s23, s20, 3
    s_cmp_eq_u32 s20, 7
    s_cselect_b32 s24, 1, 0
    s_add_u32 s22, s22, s24
    s_sub_u32 s23, s23, s24
    s_cmp_ge_u32 s20, 6
    s_cselect_b32 s24, 30, 29
    s_cmp_ge_u32 s21, s24
    s_cbranch_scc1 L_k1_kv
    s_add_u32 s26, s22, s21
    s_mul_i32 s17, s26, 57
    s_lshr_b32 s17, s17, 9
    s_mul_i32 s18, s17, 9
    s_sub_u32 s18, s26, s18
    ''')
    if rotate:
        a('''
        s_mul_i32 s19, s17, 3
        s_add_u32 s19, s19, s18
        s_mul_i32 s20, s19, 57
        s_lshr_b32 s20, s20, 9
        s_mul_i32 s20, s20, 9
        s_sub_u32 s19, s19, s20
        s_lshl_b32 s19, s19, 1
        ''')
    else: a('s_mov_b32 s19, 0')
    q_common(a)
    a('s_cmp_ge_u32 s16, 4\ns_cbranch_scc1 L_k1_qs')
    q_big(a, stamp)
    a('L_k1_qs:')
    q_small(a, stamp)
    a(f'''
L_k1_kv:
    s_sub_u32 s17, s21, s24
    s_add_u32 s17, s17, s23
    ''')
    if rotate: a('s_sub_u32 s19, s21, s24\ns_mul_i32 s19, s19, 6')
    else: a('s_mov_b32 s19, 0')
    a('s_cmp_ge_u32 s16, 6\ns_cbranch_scc1 L_k1_hkv')
    kv_main(a, stamp)
    a('L_k1_hkv:')
    kv_helper(a)
    a('L_k1_exit:\ns_endpgm')
    return a.text()
```

```python
from common import *

LG, LU, LD = 0, 36864, 73728
LP = 110592
LO = LP + 20480
LQ = LO + 9 * 1152
LDUM = LQ + 8 * 1280
LX = LDUM + 1024
X_FLAG, X_KEY, X_WIN, X_G, X_ACT, X_MAX, X_PMAX = LX, LX + 32, LX + 64, LX + 128, LX + 640, LX + 1152, LP
K2_LDS = LX + 2304
HROW = 2320
ONES = 0x3f803f80
M_LIMIT = 48.0
SPIN = 40000

SA, SB, OACC, T = 0, 16, 32, 52
IDXA, IDXB, WAD, RAD, OAD, OST, AAD, L16, QAD, GUV, MV, LANE, WAD3, QXAD = 68, 69, 70, 71, 72, 73, 74, 75, 76, 77, 78, 79, 80, 81
NV = 84
KM, KX, VV, OO, WO, QM, QX, AF = 0, 32, 40, 104, 120, 160, 164, 168
NA = 172
S_WS, S_G, S_U, S_D, S_X, S_OUT, S_WR = 20, 24, 28, 32, 36, 40, 44
WAVE, S_FS, S_WOC, S_MG, S_MU, S_MD, S_MST, S_GOFF, S_DOFF, S_CNT, S_NT0 = 18, 19, 48, 49, 50, 51, 52, 53, 54, 55, 56
S_DST = 57

def qkx(Y, slot): return f'v_mfma_f32_32x32x8bf16_1k v[{Y}:{Y+15}], a[{KX+(slot&~1)}:{KX+(slot&~1)+1}], a[{QX+2*(slot&1)}:{QX+2*(slot&1)+1}], 0'
def qkm(Y, slot): return f'v_mfma_f32_32x32x16_bf16 v[{Y}:{Y+15}], a[{KM+4*slot}:{KM+4*slot+3}], a[{QM}:{QM+3}], v[{Y}:{Y+15}]'
def pv(X, slot, s): return f'v_smfmac_f32_32x32x32_bf16 a[{OO}:{OO+15}], a[{VV+8*slot+4*s}:{VV+8*slot+4*s+3}], v[{X+8*s}:{X+8*s+7}], v{IDXA}'
def zero_o(): return f'v_mfma_f32_32x32x8bf16_1k a[{OO}:{OO+15}], a[{QX}:{QX+1}], a[{QX+2}:{QX+3}], 0'
def oproj(f, af, w): return f'v_smfmac_f32_16x16x64_bf16 v[{OACC+4*f}:{OACC+4*f+3}], a[{af}:{af+3}], a[{w}:{w+7}], v{IDXB}'
W_PART = [f'ds_write_b128 v{WAD}, a[{OO}:{OO+3}]', f'ds_write_b128 v{WAD}, a[{OO+4}:{OO+7}] offset:32', f'ds_write_b64 v{WAD3}, a[{OO+8}:{OO+9}]']
R_PART = [f'ds_read2st64_b64 v[{T+4*i}:{T+4*i+3}], v{RAD} offset0:{10*i} offset1:{10*i+5}' for i in range(4)]
def pka(d, x, y): return f'v_pk_add_f32 v[{T+d}:{T+d+1}], v[{T+x}:{T+x+1}], v[{T+y}:{T+y+1}]'
ADDS = [pka(0, 0, 2), pka(4, 4, 6), pka(8, 8, 10), pka(12, 12, 14), pka(0, 0, 4), pka(8, 8, 12), pka(0, 0, 8)]
NORM = [f'v_rcp_f32_dpp v{T+2}, v{T} row_newbcast:9 row_mask:0xf bank_mask:0xf',
        f'v_pk_mul_f32 v[{T}:{T+1}], v[{T}:{T+1}], v[{T+2}:{T+3}] op_sel_hi:[1,0]',
        f'v_cvt_pk_bf16_f32 v{T+4}, v{T}, v{T+1}',
        f'ds_write_b32 v{OAD}, v{T+4}',
        f'v_add_u32 v{OAD}, v{OST}, v{OAD}']

def tile(a, t, ex, slow, prev=True, nxt=True, kind='std', x16=None):
    X, Y = (SA, SB) if t % 2 == 0 else (SB, SA)
    m = {}
    def put(p, s): m.setdefault(p, []).append(s)
    p_pvb, p_x, p_qx, p_qm, p_pva = 2, 5, 6, 10, 14
    if kind == 'first': p_qx, p_qm, p_pva = 5, 9, 16
    if kind == 'second':
        p_pvb = 3
        if x16: p_x, p_qx, p_qm = 6, 7, 11
    if prev: put(p_pvb, pv(Y, (t - 1) % 8, 1))
    if x16:
        for s in x16: put(p_x, s)
    if nxt:
        put(p_qx, ('qx', qkx(Y, (t + 1) % 8))); put(p_qm, qkm(Y, (t + 1) % 8))
    if kind == 'first':
        for s in W_PART: put(p_qm, s)
        put(12, zero_o())
    put(p_pva, ('pa', pv(X, t, 0)))
    for p in range(17):
        for s in m.get(p, []):
            if isinstance(s, tuple):
                for e in ex.get(s[0], []): e() if callable(e) else a(e)
                s = s[1]
            s() if callable(s) else a(s)
        for e in ex.get(p, []): e() if callable(e) else a(e)
        if p < 16:
            if slow: a(f'v_sub_f32 v{X+p}, v{X+p}, v{MV}')
            a(f'v_exp_f32 v{X+p}, v{X+p}')

def wo_load(vm, tag, reg, soff_add):
    def th():
        vm.a(f's_add_u32 s58, s{S_WOC}, {soff_add}')
        vm.issue(tag, f'buffer_load_dwordx4 a[{reg}:{reg+3}], v{L16}, s[{S_WS}:{S_WS+3}], s58 offen')
        vm.issue(tag, f'buffer_load_dwordx4 a[{reg+4}:{reg+7}], v{L16}, s[{S_WS}:{S_WS+3}], s58 offen offset:1024')
    return th

def q_reads(slow):
    r = [f'ds_read_b128 a[{QM}:{QM+3}], v{QAD}', f'ds_read_b32 a{QX}, v{QXAD}', f'ds_read_b32 a{QX+3}, v{QXAD}',
         f'v_add_u32 v{QAD}, 1280, v{QAD}', f'v_add_u32 v{QXAD}, 1280, v{QXAD}']
    return r

STEP = 36 * 2048
def attention(a, n, slow, lab, vm, stamp):
    prio = {1: 3, 2: 2, 3: 1, 4: 0, 5: 3, 6: 2, 7: 1, 0: 0}
    def mload():
        return [f'ds_read_b32 v{T+15}, v82', 's_waitcnt lgkmcnt(0)', 'v_add_u32 v82, 128, v82'] if slow else []
    a('s_waitcnt lgkmcnt(0)')
    vm.need('km0', 'kx')
    a(qkx(SA, 0)); a(zero_o()); a(qkm(SA, 0))
    if slow:
        a(f'ds_read_b32 v{MV}, v82\nv_add_u32 v82, 128, v82\ns_waitcnt lgkmcnt(0)')
    a('s_nop 7')
    for t in range(8):
        ex = {0: [f's_setprio {prio[t]}']}
        if t < 7: ex['qx'] = [lambda t=t: vm.need(f'km{t+1}')]
        ex['pa'] = [lambda t=t: vm.need(f'v{t}')]
        if t == 3: ex[11] = [lambda: warm(vm, 0)]
        if t == 4: ex[11] = [lambda: warm(vm, 1)]
        if t == 5: ex[11] = [lambda: warm(vm, 2)]
        if t == 6: ex[11] = q_reads(slow); ex[15] = [wo_load(vm, 'f0', WO, 0)]
        if t == 7:
            ex['qx'] = ['s_waitcnt lgkmcnt(0)']; ex[15] = [wo_load(vm, 'f1', WO + 8, 2048)]
            ex[11] = mload()
        tile(a, t, ex, slow, prev=t > 0)
        if t == 7 and slow: a(f'v_mov_b32 v{MV}, v{T+15}')
    if stamp: stamp(a, 2)
    def dma(which):
        srdr, cur, vo, so = {'g': (S_G, S_MG, GUV, S_GOFF), 'u': (S_U, S_MU, GUV, S_GOFF), 'd': (S_D, S_MD, L16, S_DOFF)}[which]
        r = [f's_mov_b32 m0, s{cur}', f's_add_u32 s{cur}, s{cur}, s{S_MST}', f'buffer_load_dwordx4 v{vo}, s[{srdr}:{srdr+3}], s{so} offen lds']
        if which == 'u': r.append(f's_add_u32 s{S_GOFF}, s{S_GOFF}, {6*16*F*2}')
        if which == 'd': r.append(f's_add_u32 s{S_DOFF}, s{S_DOFF}, 6144')
        return r
    use = {1: 2, 3: 3, 4: 4, 6: 0, 7: 1} if n == 5 else {1: 2, 3: 3, 6: 0, 7: 1}
    def body(last):
        lv = Vm(a)
        nvm = 2 * n + 3 - 2
        if last:
            lv.q = ['d'] + ['f2'] * 2 + ['g'] + ['f3'] * 2 + (['f4'] * 2 if n == 5 else []) + ['u'] + ['f0'] * 2 + ['f1'] * 2
            free = {1: [KM, VV], 2: [VV + 8], 3: [KM + 8, VV + 16], 4: [VV + 24], 5: [KM + 16, VV + 32], 6: [VV + 40]}
            todo = [(7, f) for f in range(2, n)] + [(8, f) for f in range(n)]
            where = {}
        for t in range(8):
            ex = {0: [f's_setprio {prio[t]}']}
            x16 = None
            if t in use:
                f = use[t]
                wait = (lambda f=f: lv.need(f'f{f}')) if last else f's_waitcnt vmcnt({nvm})'
                x16 = [wait, oproj(f, AF, WO + 8 * f)]
                ex.setdefault(8, []).append(wo_load(lv, f'f{f}', WO + 8 * f, f * 2048 + (STEP if f < 2 else 0)))
            if t == 0:
                ex[16] = ['s_waitcnt lgkmcnt(0)', 's_barrier']
                if not last: ex[14] = dma('d')
            if t == 1:
                for i, p in enumerate((2, 9, 12, 15)): ex.setdefault(p, []).append(R_PART[i])
            if t == 2:
                ex.setdefault(1, []).append('s_waitcnt lgkmcnt(0)')
                for i, p in enumerate((1, 3, 5, 7, 9, 11, 13)): ex.setdefault(p, []).append(ADDS[i])
                if not last: ex[15] = dma('g')
            if t == 3:
                for i, p in enumerate((1, 3, 9, 11, 13)): ex.setdefault(p, []).append(NORM[i])
            if t == 4: ex[16] = ['s_waitcnt lgkmcnt(0)', 's_barrier']
            if t == 5:
                ex[1] = [f'ds_read_b128 a[{AF}:{AF+3}], v{AAD}', f'v_add_u32 v{AAD}, 1152, v{AAD}']
                if not last: ex[8] = dma('u')
            if t == 6:
                ex.setdefault(1, []).append('s_waitcnt lgkmcnt(0)')
                if not last: ex[11] = q_reads(slow)
            if t == 7 and not last:
                ex['qx'] = ['s_waitcnt lgkmcnt(0)']
                ex[11] = mload()
                ex[15] = [f's_add_u32 s{S_WOC}, s{S_WOC}, {STEP}', f's_sub_u32 s{S_CNT}, s{S_CNT}, 1', f's_cmp_lg_u32 s{S_CNT}, 0']
            if last:
                for i, reg in enumerate(free.get(t, [])):
                    if todo:
                        st, f = todo.pop(0); where[(st, f)] = reg
                        ex.setdefault(12 + 3 * i, []).append(wo_load(lv, f's{st}f{f}', reg, f * 2048 + (st - 6) * STEP))
                if t == 7:
                    def rows():
                        for i in range(5): lv.issue('x', f'buffer_load_dword v{SA+i}, v82, s[{S_X}:{S_X+3}], s59 offen offset:{256*i}')
                        for i in range(5): lv.issue('w', f'buffer_load_dword v{SA+5+i}, v82, s[{S_WR}:{S_WR+3}], 0 offen offset:{256*i}')
                    ex[3] = [f'v_lshlrev_b32 v82, 2, v{LANE}', f's_lshl_b32 s59, s2, 3', f's_add_u32 s59, s59, s{WAVE}', f's_mul_i32 s59, s59, {ROWB}']
                    ex[10] = [rows]
            tile(a, t, ex, slow, nxt=not (last and t == 7), kind={0: 'first', 1: 'second'}.get(t, 'std'), x16=x16)
            if t == 7 and slow and not last: a(f'v_mov_b32 v{MV}, v{T+15}')
        if last:
            assert not todo
            where[(7, 0)], where[(7, 1)] = WO, WO + 8
            return lv, where
    a(f's_mov_b32 s{S_CNT}, 6\n.p2align 3\n{lab}_loop:')
    body(False)
    a(f's_cbranch_scc1 {lab}_loop')
    if stamp: stamp(a, 3)
    lv, where = body(True)
    a('s_setprio 0\ns_nop 0')
    a(pv(SB, 7, 1))
    for f in range(2, n):
        lv.need(f'f{f}'); a(oproj(f, AF, WO + 8 * f))
    a(f's_nop {7 if n == 5 else 8}')
    for s in W_PART: a(s)
    a('s_waitcnt lgkmcnt(0)\ns_barrier')
    for s in R_PART: a(s)
    a('s_waitcnt lgkmcnt(2)'); a(ADDS[0]); a(ADDS[1]); a('s_waitcnt lgkmcnt(0)')
    for s in ADDS[2:]: a(s)
    a('s_nop 1'); a(NORM[0]); a('s_nop 0')
    for s in NORM[1:4]: a(s)
    a(f'''
    s_waitcnt lgkmcnt(0)
    s_barrier
    ds_read_b128 a[{AF}:{AF+3}], v{AAD}
    ds_read_b128 a[{QM}:{QM+3}], v{AAD} offset:1152
    s_waitcnt lgkmcnt(1)
    ''')
    for f in list(range(2, n)) + [0, 1]:
        lv.need(f's7f{f}' if f > 1 else f'f{f}'); a(oproj(f, AF, where[(7, f)]))
    a('s_waitcnt lgkmcnt(0)')
    for f in range(n):
        lv.need(f's8f{f}'); a(oproj(f, QM, where[(8, f)]))
    a(f'''
    v_and_b32 v{T}, 15, v{LANE}
    v_bfe_u32 v{T+1}, v{LANE}, 4, 1
    v_mul_u32_u24 v{T+1}, {4*HROW}, v{T+1}
    v_lshl_add_u32 v{T}, v{T}, 2, v{T+1}
    s_lshl_b32 s58, s{S_NT0}, 6
    s_add_u32 s58, s58, {LP}
    v_add_u32 v{T}, s58, v{T}
    v_lshrrev_b32 v{T+1}, 5, v{LANE}
    v_lshl_add_u32 v{T+1}, v{T+1}, 6, v{T}
    ''')
    for p in range(2):
        A, B = OACC + 8 * p, OACC + 8 * p + 4
        for r in range(4): a(f'v_permlane32_swap_b32 v{A+r}, v{B+r}')
        for r in range(4): a(f'v_add_f32 v{A+r}, v{A+r}, v{B+r}')
        for r in range(4): a(f'ds_write_b32 v{T+1}, v{A+r} offset:{r*HROW + p*128}')
    if n == 5:
        A = OACC + 16
        for r in range(4): a(f'v_mov_b32 v{T+4+r}, v{A+r}')
        for r in range(4): a(f'v_permlane32_swap_b32 v{A+r}, v{T+4+r}')
        for r in range(4): a(f'v_add_f32 v{A+r}, v{A+r}, v{T+4+r}')
        for r in range(4): a(f'ds_write_b32 v{T}, v{A+r} offset:{r*HROW + 256}')
    lv.need('x', 'w')
    a(f's_branch L_tail')

def warm(vm, i):
    vm.a(f's_add_u32 s58, s60, {i*8192}')
    vm.issue('warm', f'buffer_load_dwordx4 a[{WO+16+8*i}:{WO+19+8*i}], v{L16}, s[{S_WS}:{S_WS+3}], s58 offen')

def dpp_reduce(a, op, regs):
    for c in ('row_shr:1', 'row_shr:2', 'row_shr:4', 'row_shr:8', 'row_bcast:15 row_mask:0xa', 'row_bcast:31 row_mask:0xc'):
        if len(regs) < 3: a(f's_nop {2 - len(regs)}')
        for r in regs:
            mask = '' if 'row_mask' in c else ' row_mask:0xf'
            a(f'{op}_dpp v{r}, v{r}, v{r} {c}{mask} bank_mask:0xf')

def bf_round(a, dst, src):
    a(f'v_cvt_pk_bf16_f32 v{dst}, v{src}, v{src}\nv_and_b32 v{dst}, 0xffff0000, v{dst}')
def unpack(a, lo, src):
    a(f'v_lshlrev_b32 v{lo}, 16, v{src}\nv_and_b32 v{lo+1}, 0xffff0000, v{src}')

def tail(a, stamp):
    XP, WP, XF, AT, HP, LN, OU = 0, 5, 10, 20, 30, 35, 60
    a(f'''
L_tail:
    s_mul_i32 s58, s{WAVE}, {HROW}
    s_add_u32 s58, s58, {LP}
    v_lshl_add_u32 v50, v{LANE}, 3, s58
    v_mov_b32 v46, 0
    v_mov_b32 v47, 0
    v_mov_b32 v48, 0
    v_mov_b32 v49, 0
    v_mov_b32 v51, {hx(ONES)}
    ''')
    for i in range(5): unpack(a, XF + 2 * i, XP + i)
    a('s_waitcnt lgkmcnt(0)\ns_barrier')
    for i in range(5): a(f'ds_read_b64 v[{AT+2*i}:{AT+2*i+1}], v50 offset:{512*i}')
    for i in range(5): a(f'v_dot2c_f32_bf16 v49, v{WP+i}, v51')
    if stamp: stamp(a, 4)
    a('s_mov_b32 s62, -1\ns_mov_b32 s63, 0')
    for i in range(5):
        a(f's_waitcnt lgkmcnt({4-i})\nv_pk_add_f32 v[{AT+2*i}:{AT+2*i+1}], v[{AT+2*i}:{AT+2*i+1}], v[{XF+2*i}:{XF+2*i+1}]')
        a(f'v_cvt_pk_bf16_f32 v{HP+i}, v{AT+2*i}, v{AT+2*i+1}')
        if i == 4: a(f'v_cndmask_b32 v{HP+4}, 0, v{HP+4}, s[62:63]')
        a(f'v_dot2c_f32_bf16 v46, v{HP+i}, v51\nv_dot2c_f32_bf16 v47, v{HP+i}, v{HP+i}\nv_dot2c_f32_bf16 v48, v{HP+i}, v{WP+i}')
    a('s_nop 2')
    dpp_reduce(a, 'v_add_f32', [46, 47, 48, 49])
    a(f'''
    s_nop 0
    v_readlane_b32 s64, v46, 63
    v_readlane_b32 s65, v47, 63
    v_readlane_b32 s66, v48, 63
    v_readlane_b32 s67, v49, 63
    v_mov_b32 v52, {hx(f32(1.0/D))}
    v_mul_f32 v46, s64, v52
    v_mul_f32 v47, s65, v52
    v_fma_f32 v47, -v46, v46, v47
    v_max_f32 v47, 0, v47
    ''')
    bf_round(a, 47, 47)
    a(f'v_add_f32 v47, {hx(f32(1e-5))}, v47')
    bf_round(a, 47, 47)
    a('v_sqrt_f32 v47, v47')
    bf_round(a, 46, 46)
    bf_round(a, 47, 47)
    a(f'''
    v_rcp_f32 v48, v47
    v_mov_b32 v53, s66
    v_fma_f32 v53, -v46, s67, v53
    v_mul_f32 v53, v53, v48
    v_cvt_pk_bf16_f32 v53, v53, v53
    s_lshl_b32 s59, s2, 3
    s_add_u32 s59, s59, s{WAVE}
    s_sub_u32 s58, 2047, s59
    v_ashrrev_i32 v54, 31, v53
    v_or_b32 v54, 0x80000000, v54
    v_xor_b32 v53, v53, v54
    v_lshrrev_b32 v53, 16, v53
    v_lshl_or_b32 v53, v53, 11, s58
    s_lshl_b32 s58, s{WAVE}, 2
    s_add_u32 s58, s58, {X_KEY}
    v_mov_b32 v54, s58
    v_and_b32 v55, 7, v{LANE}
    s_mov_b32 s58, {X_KEY}
    v_lshl_add_u32 v55, v55, 2, s58
    ds_write_b32 v54, v53
    s_mov_b32 s60, {GRAN_REP}
    v_mul_lo_u32 v56, s60, v{LANE}
    s_lshl_b32 s60, s2, 7
    s_add_u32 s60, s60, {WS_GRAN}
    s_waitcnt lgkmcnt(0)
    s_barrier
    ds_read_b32 v54, v55
    s_waitcnt lgkmcnt(0)
    v_cmp_gt_u32 vcc, v54, v53
    s_mov_b32 s61, 0
    s_cbranch_vccnz L_notbest
    s_mov_b64 exec, 0xff
    buffer_store_dword v53, v56, s[{S_WS}:{S_WS+3}], s60 offen sc1
    s_mov_b64 exec, -1
    s_mov_b32 s61, 1
L_notbest:
    ''')
    if stamp: stamp(a, 5)
    a('v_sub_f32 v56, 0, v46\nv_mov_b32 v57, v56\nv_mov_b32 v49, v48')
    for i in range(5): unpack(a, XF + 2 * i, HP + i)
    for i in range(5): a(f'v_pk_add_f32 v[{AT+2*i}:{AT+2*i+1}], v[{XF+2*i}:{XF+2*i+1}], v[56:57]')
    for i in range(5): a(f'v_cvt_pk_bf16_f32 v{LN+i}, v{AT+2*i}, v{AT+2*i+1}')
    for i in range(5): unpack(a, AT + 2 * i, LN + i)
    for i in range(5): a(f'v_pk_mul_f32 v[{AT+2*i}:{AT+2*i+1}], v[{AT+2*i}:{AT+2*i+1}], v[48:49]')
    for i in range(5): a(f'v_cvt_pk_bf16_f32 v{LN+i}, v{AT+2*i}, v{AT+2*i+1}')
    a(f'''
    v_lshlrev_b32 v58, 2, v{LANE}
    s_cmp_eq_u32 s61, 1
    s_cbranch_scc0 L_norow
    s_mul_i32 s58, s2, 2304
    s_add_u32 s58, s58, {WS_ROWS}
    ''')
    for i in range(4): a(f'buffer_store_dword v{LN+i}, v58, s[{S_WS}:{S_WS+3}], s58 offen offset:{256*i} sc1')
    for i in range(4): a(f'buffer_store_dword v{HP+i}, v58, s[{S_WS}:{S_WS+3}], s58 offen offset:{1152+256*i} sc1')
    a(f'''
    s_mov_b32 exec_hi, 0
    buffer_store_dword v{LN+4}, v58, s[{S_WS}:{S_WS+3}], s58 offen offset:1024 sc1
    buffer_store_dword v{HP+4}, v58, s[{S_WS}:{S_WS+3}], s58 offen offset:{1152+1024} sc1
    s_mov_b32 exec_hi, -1
L_norow:
    ''')
    for i in range(5): unpack(a, AT + 2 * i, LN + i)
    for i in range(5): a(f'v_pk_add_f32 v[{AT+2*i}:{AT+2*i+1}], v[{AT+2*i}:{AT+2*i+1}], v[{XF+2*i}:{XF+2*i+1}]')
    for i in range(5): a(f'v_cvt_pk_bf16_f32 v{OU+i}, v{AT+2*i}, v{AT+2*i+1}')
    def out_row():
        for i in range(4): a(f'buffer_store_dword v{OU+i}, v58, s[{S_OUT}:{S_OUT+3}], s68 offen offset:{256*i}')
        a(f's_mov_b32 exec_hi, 0\nbuffer_store_dword v{OU+4}, v58, s[{S_OUT}:{S_OUT+3}], s68 offen offset:1024\ns_mov_b32 exec_hi, -1')
    a(f's_mul_i32 s68, s59, {ROWB}\ns_cmp_eq_u32 s61, 1\ns_cbranch_scc1 L_defer')
    out_row()
    a('L_defer:')
    GW, DW = 0, 60
    a(f'''
    v_lshrrev_b32 v1, 4, v{LANE}
    v_bfe_u32 v2, v{LANE}, 2, 2
    v_and_b32 v3, 3, v{LANE}
    v_lshl_add_u32 v2, v1, 3, v2
    s_cmp_ge_u32 s{S_FS}, 144
    s_cbranch_scc1 L_nopre
    s_and_b32 s58, s{WAVE}, 1
    v_and_b32 v4, 1, v1
    v_xor_b32 v4, s58, v4
    v_lshlrev_b32 v4, 5, v4
    v_lshl_add_u32 v4, v2, 6, v4
    v_lshl_add_u32 v4, v3, 3, v4
    s_bfe_u32 s58, s{WAVE}, 0x10001
    s_mul_i32 s58, s58, {LU}
    s_lshr_b32 s60, s{WAVE}, 2
    s_mul_i32 s69, s60, {9*2048}
    s_add_u32 s58, s58, s69
    v_add_u32 v4, s58, v4
    v_mul_u32_u24 v5, {ROWB}, v2
    v_lshl_add_u32 v5, v3, 3, v5
    s_lshl_b32 s58, s{S_NT0}, 5
    s_add_u32 s58, s58, {LD}
    v_add_u32 v5, s58, v5
    ''')
    for i in range(9):
        a(f'ds_read_b64_tr_b16 a[{GW+4*i}:{GW+4*i+1}], v4 offset:{2048*i}\nds_read_b64_tr_b16 a[{GW+4*i+2}:{GW+4*i+3}], v4 offset:{2048*i+256}')
    for f in range(5):
        a(f'ds_read_b64_tr_b16 a[{DW+4*f}:{DW+4*f+1}], v5 offset:{32*f}\nds_read_b64_tr_b16 a[{DW+4*f+2}:{DW+4*f+3}], v5 offset:{32*f+4*ROWB}')
    a(f'''
L_nopre:
    s_cmp_ge_u32 s{WAVE}, 4
    s_cbranch_scc1 L_polled
    s_getreg_b32 s58, hwreg(HW_REG_XCC_ID)
    s_and_b32 s58, s58, 7
    s_mul_i32 s58, s58, {GRAN_REP}
    s_lshl_b32 s60, s{WAVE}, 13
    s_add_u32 s58, s58, s60
    s_add_u32 s58, s58, {WS_GRAN}
    v_lshlrev_b32 v6, 7, v{LANE}
    s_mov_b32 s60, 0
L_poll:
    buffer_load_dword v7, v6, s[{S_WS}:{S_WS+3}], s58 offen sc1
    s_add_u32 s60, s60, 1
    s_waitcnt vmcnt(0)
    v_cmp_eq_u32 vcc, -1, v7
    s_and_b64 exec, exec, vcc
    s_cbranch_execz L_polldone
    s_cmp_gt_u32 s60, {SPIN}
    s_cbranch_scc1 L_polldone
    s_sleep 3
    s_branch L_poll
L_polldone:
    s_mov_b64 exec, -1
    s_nop 1
    ''')
    dpp_reduce(a, 'v_max_u32', [7])
    a(f'''
    s_lshl_b32 s58, s{WAVE}, 2
    s_add_u32 s58, s58, {X_WIN}
    v_mov_b32 v8, s58
    s_mov_b32 exec_lo, 0
    s_mov_b32 exec_hi, 0x80000000
    ds_write_b32 v8, v7
    s_mov_b64 exec, -1
L_polled:
    v_mov_b32 v8, {X_WIN}
    s_waitcnt lgkmcnt(0)
    s_barrier
    ds_read_b128 v[10:13], v8
    s_waitcnt lgkmcnt(0)
    v_max_u32 v10, v10, v11
    v_max3_u32 v10, v10, v12, v13
    s_nop 0
    v_readfirstlane_b32 s62, v10
    s_and_b32 s63, s62, 2047
    s_sub_u32 s63, 2047, s63
    s_lshr_b32 s64, s63, 3
    s_mul_i32 s64, s64, 2304
    s_add_u32 s64, s64, {WS_ROWS}
    ''')
    if stamp: stamp(a, 6)
    a(f'''
    s_cmp_ge_u32 s{S_FS}, 144
    s_cbranch_scc1 L_noffn
    s_lshr_b32 s60, s{WAVE}, 2
    s_mul_i32 s60, s60, 576
    s_add_u32 s60, s60, s64
    v_lshlrev_b32 v6, 4, v1
    s_mov_b32 s65, 0
L_xsel:
    ''')
    XS = 10
    for i in range(9): a(f'buffer_load_dwordx4 v[{XS+4*i}:{XS+4*i+3}], v6, s[{S_WS}:{S_WS+3}], s60 offen offset:{64*i} sc1')
    a(f's_add_u32 s65, s65, 1')
    for i in range(9):
        a(f's_waitcnt vmcnt({8-i})')
        a(f'v_mfma_f32_16x16x32_bf16 v[46:49], a[{GW+4*i}:{GW+4*i+3}], v[{XS+4*i}:{XS+4*i+3}], ' + ('0' if i == 0 else 'v[46:49]'))
        if i == 0: a(f'v_max_u32 v50, v{XS}, v{XS+1}\nv_max3_u32 v50, v50, v{XS+2}, v{XS+3}')
        else: a(f'v_max3_u32 v50, v50, v{XS+4*i}, v{XS+4*i+1}\nv_max3_u32 v50, v50, v{XS+4*i+2}, v{XS+4*i+3}')
    a(f'''
    v_cmp_eq_u32 vcc, -1, v50
    s_lshl_b32 s58, s{WAVE}, 6
    s_add_u32 s58, s58, {X_G}
    v_add_u32 v7, s58, v6
    s_cbranch_vccz L_xok
    s_cmp_gt_u32 s65, {SPIN}
    s_cbranch_scc0 L_xsel
L_xok:
    s_mov_b32 s66, 0x00010001
    s_mov_b32 s67, 0x00010001
    v_and_b32 v8, 31, v{LANE}
    s_mov_b32 s58, {X_G}
    v_lshl_add_u32 v9, v8, 2, s58
    s_mov_b64 exec, s[66:67]
    ds_write_b128 v7, v[46:49]
    s_mov_b64 exec, -1
    s_lshl_b32 s58, s{WAVE}, 6
    s_add_u32 s58, s58, {X_ACT}
    v_lshl_add_u32 v8, v8, 1, s58
    v_add_u32 v7, s58, v6
    s_waitcnt lgkmcnt(0)
    s_barrier
    ds_read2_b32 v[10:11], v9 offset0:0 offset1:64
    ds_read2_b32 v[12:13], v9 offset0:32 offset1:96
    v_lshrrev_b32 v2, 1, v1
    v_mul_u32_u24 v2, 4608, v2
    v_and_b32 v3, 1, v1
    v_lshl_add_u32 v2, v3, 4, v2
    s_mul_i32 s58, s{S_NT0}, 9216
    s_lshl_b32 s60, s{S_FS}, 5
    s_add_u32 s58, s58, s60
    s_add_u32 s58, s58, {WS_PART}
    s_waitcnt lgkmcnt(1)
    v_add_f32 v10, v10, v11
    ''')
    bf_round(a, 10, 10)
    a(f'''
    v_mul_f32 v11, {hx(f32(-math.log2(math.e)))}, v10
    v_exp_f32 v11, v11
    s_waitcnt lgkmcnt(0)
    v_add_f32 v12, v12, v13
    v_add_f32 v11, 1.0, v11
    v_rcp_f32 v11, v11
    ''')
    bf_round(a, 12, 12)
    a('v_mul_f32 v10, v10, v11')
    bf_round(a, 10, 10)
    a(f'''
    v_mul_f32 v10, v10, v12
    v_cvt_pk_bf16_f32 v10, v10, v10
    ds_write_b16 v8, v10
    s_waitcnt lgkmcnt(0)
    ds_read_b128 v[12:15], v7
    s_waitcnt lgkmcnt(0)
    ''')
    for f in range(5): a(f'v_mfma_f32_16x16x32_bf16 v[{16+4*f}:{19+4*f}], a[{DW+4*f}:{DW+4*f+3}], v[12:15], 0')
    a('s_mov_b64 exec, s[66:67]\ns_nop 2')
    for f in range(4):
        a(f'buffer_store_dwordx4 v[{16+4*f}:{19+4*f}], v2, s[{S_WS}:{S_WS+3}], s58 offen sc1\ns_add_u32 s58, s58, 9216')
    a(f'''
    s_cmp_ge_u32 s{WAVE}, 4
    s_cbranch_scc1 L_ffndone
    buffer_store_dwordx4 v[32:35], v2, s[{S_WS}:{S_WS+3}], s58 offen sc1
L_ffndone:
    s_mov_b64 exec, -1
    s_branch L_last
L_noffn:
    s_sub_u32 s69, s{S_FS}, 144
    s_cmp_ge_u32 s69, 72
    s_cbranch_scc1 L_last
    s_cmp_lg_u32 s{WAVE}, 0
    s_cbranch_scc1 L_last
    s_lshl_b32 s58, s69, 4
    s_add_u32 s58, s58, s64
    v_and_b32 v1, 1, v{LANE}
    v_lshlrev_b32 v2, 3, v1
    s_lshr_b32 s65, s62, 11
    s_lshl_b32 s65, s65, 16
    s_not_b32 s66, s65
    s_ashr_i32 s66, s66, 31
    s_or_b32 s66, s66, 0x80000000
    s_xor_b32 s65, s65, s66
    s_and_b32 s65, s65, 0xffff0000
    v_mov_b32 v3, s65
    v_mul_f32 v3, {hx(f32(-math.log2(math.e)))}, v3
    v_exp_f32 v3, v3
    s_mul_i32 s60, s69, 4608
    s_add_u32 s60, s60, {WS_PART}
    v_add_f32 v3, 1.0, v3
    v_rcp_f32 v3, v3
    s_mov_b32 s65, 0
    v_mov_b32 v26, 0
    v_mov_b32 v27, 0
    v_mov_b32 v28, 0
    v_mov_b32 v29, 0
    ''')
    bf_round(a, 3, 3)
    a(f'''
    s_sleep 10
L_fin:
    buffer_load_dwordx2 v[4:5], v2, s[{S_WS}:{S_WS+3}], s58 offen sc1
    buffer_load_dwordx2 v[6:7], v2, s[{S_WS}:{S_WS+3}], s58 offen offset:1152 sc1
    ''')
    for i in range(4): a(f'buffer_load_dwordx4 v[{10+4*i}:{13+4*i}], v{L16}, s[{S_WS}:{S_WS+3}], s60 offen offset:{1024*i} sc1')
    a(f'''
    s_add_u32 s66, s60, 4096
    s_mov_b32 exec_hi, 0
    buffer_load_dwordx4 v[26:29], v{L16}, s[{S_WS}:{S_WS+3}], s66 offen sc1
    s_mov_b32 exec_hi, -1
    s_add_u32 s65, s65, 1
    s_waitcnt vmcnt(0)
    v_max3_u32 v8, v4, v5, v6
    v_max3_u32 v8, v8, v7, v10
    ''')
    for i in range(11, 29, 2): a(f'v_max3_u32 v8, v8, v{i}, v{i+1}')
    a(f'''
    v_max_u32 v8, v8, v29
    v_cmp_eq_u32 vcc, -1, v8
    s_cbranch_vccz L_finok
    s_cmp_gt_u32 s65, {SPIN}
    s_cbranch_scc1 L_finok
    s_sleep 2
    s_branch L_fin
L_finok:
    v_pk_add_f32 v[10:11], v[10:11], v[14:15]
    v_pk_add_f32 v[12:13], v[12:13], v[16:17]
    v_pk_add_f32 v[18:19], v[18:19], v[22:23]
    v_pk_add_f32 v[20:21], v[20:21], v[24:25]
    v_pk_add_f32 v[10:11], v[10:11], v[26:27]
    v_pk_add_f32 v[12:13], v[12:13], v[28:29]
    v_pk_add_f32 v[10:11], v[10:11], v[18:19]
    v_pk_add_f32 v[12:13], v[12:13], v[20:21]
    s_nop 0
    ''')
    for c in (8, 4, 2):
        for r in range(10, 14): a(f'v_add_f32_dpp v{r}, v{r}, v{r} row_ror:{c} row_mask:0xf bank_mask:0xf')
    for sw in ('v_permlane16_swap_b32', 'v_permlane32_swap_b32'):
        for r in range(4): a(f'v_mov_b32 v{14+r}, v{10+r}')
        for r in range(4): a(f'{sw} v{10+r}, v{14+r}')
        for r in range(4): a(f'v_add_f32 v{10+r}, v{10+r}, v{14+r}')
    a('v_cvt_pk_bf16_f32 v8, v10, v11\nv_cvt_pk_bf16_f32 v9, v12, v13')
    unpack(a, 10, 8); unpack(a, 12, 9)
    for r in range(4): a(f'v_mul_f32 v{10+r}, v3, v{10+r}')
    a('v_cvt_pk_bf16_f32 v8, v10, v11\nv_cvt_pk_bf16_f32 v9, v12, v13')
    unpack(a, 10, 8); unpack(a, 12, 9); unpack(a, 14, 4); unpack(a, 16, 5)
    for r in range(4): a(f'v_add_f32 v{10+r}, v{10+r}, v{14+r}')
    a('v_cvt_pk_bf16_f32 v8, v10, v11\nv_cvt_pk_bf16_f32 v9, v12, v13')
    unpack(a, 10, 8); unpack(a, 12, 9); unpack(a, 14, 6); unpack(a, 16, 7)
    for r in range(4): a(f'v_add_f32 v{10+r}, v{10+r}, v{14+r}')
    a(f'''
    v_cvt_pk_bf16_f32 v8, v10, v11
    v_cvt_pk_bf16_f32 v9, v12, v13
    s_mul_i32 s58, s63, {ROWB}
    s_lshl_b32 s60, s69, 4
    s_add_u32 s58, s58, s60
    s_mov_b64 exec, 3
    buffer_store_dwordx2 v[8:9], v2, s[{S_OUT}:{S_OUT+3}], s58 offen
    s_mov_b64 exec, -1
L_last:
    s_cmp_eq_u32 s61, 1
    s_cbranch_scc0 L_end
    s_cmp_eq_u32 s63, s59
    s_cbranch_scc1 L_end
    ''')
    out_row()
    a('L_end:')
    if stamp: stamp(a, 7, end=True)
    a('s_endpgm')

def prologue(a, stamp):
    a(f'''
    s_cmp_ge_u32 s2, 256
    s_cbranch_scc1 L_k2_exit
    s_load_dwordx2 s[16:17], s[0:1], {KA_WS}
    s_load_dwordx2 s[4:5], s[0:1], {KA_X}
    s_load_dwordx8 s[8:15], s[0:1], {KA_WR}
    s_load_dwordx2 s[6:7], s[0:1], {KA_OUT}
    ''')
    if stamp: stamp(a, 0)
    a(f'''
    v_lshrrev_b32 v1, 6, v0
    v_and_b32 v{LANE}, 63, v0
    v_mov_b32 v2, {hx(ONES)}
    v_readfirstlane_b32 s{WAVE}, v1
    v_and_b32 v3, 31, v{LANE}
    v_lshrrev_b32 v4, 5, v{LANE}
    v_and_b32 v5, 7, v{LANE}
    v_bfe_u32 v6, v{LANE}, 3, 2
    s_lshl_b32 s58, s2, 3
    v_add_u32 v7, s58, v5
    v_mul_u32_u24 v7, {ROWB}, v7
    v_mul_u32_u24 v8, 36, v6
    v_add_u32 v7, v7, v8
    v_lshl_add_u32 v8, v4, 4, v7
    s_mul_i32 s59, s{WAVE}, 144
    v_min_u32 v9, 43, v{LANE}
    v_lshlrev_b32 v9, 4, v9
    v_lshlrev_b32 v{L16}, 4, v{LANE}
    v_mul_u32_u24 v10, 288, v4
    v_lshl_add_u32 v10, v3, 4, v10
    v_lshlrev_b32 v11, 6, v{LANE}
    s_bfe_u32 s60, s2, 0x30003
    s_lshl_b32 s61, s{WAVE}, 11
    s_lshl_b32 s62, s60, 2
    s_add_u32 s61, s61, s62
    s_add_u32 s61, s61, {WS_KX}
    s_lshl_b32 s62, s{WAVE}, 13
    s_add_u32 s62, s62, {WS_KM}
    s_mul_i32 s63, s{WAVE}, 9216
    s_add_u32 s63, s63, {WS_VT}
    s_mov_b32 s64, 0x3ffff
    s_mov_b32 s65, 0x3ffff
    s_mov_b32 s66, {WS_KMAX}
    ''')
    for i in range(KX, VV + 64): a(f'v_accvgpr_write_b32 a{i}, v2')
    a('s_waitcnt lgkmcnt(0)')
    srd(a, S_WS, 16, 0, WS_USED)
    vm = Vm(a)
    ws = f's[{S_WS}:{S_WS+3}]'
    vm.issue('q', f'buffer_load_dwordx4 v[12:15], v8, {ws}, s59 offen')
    vm.issue('q', f'buffer_load_dword v16, v7, {ws}, s59 offen offset:32')
    vm.issue('kmax', f'buffer_load_dwordx4 v[20:23], v9, {ws}, s66 offen')
    for t in range(8):
        a(f's_lshl_b32 s67, s60, 10\ns_add_u32 s67, s67, s62\ns_mul_i32 s68, s60, 1152\ns_add_u32 s68, s68, s63')
        vm.issue(f'km{t}', f'buffer_load_dwordx4 a[{KM+4*t}:{KM+4*t+3}], v{L16}, {ws}, s67 offen')
        if t == 0:
            a('s_mov_b32 exec_hi, 0')
            vm.issue('kx', f'buffer_load_dwordx4 a[{KX}:{KX+3}], v11, {ws}, s61 offen')
            vm.issue('kx', f'buffer_load_dwordx4 a[{KX+4}:{KX+7}], v11, {ws}, s61 offen offset:16')
        a('s_mov_b64 exec, s[64:65]')
        vm.issue(f'v{t}', f'buffer_load_dwordx4 a[{VV+8*t}:{VV+8*t+3}], v10, {ws}, s68 offen')
        vm.issue(f'v{t}', f'buffer_load_dwordx4 a[{VV+8*t+4}:{VV+8*t+7}], v10, {ws}, s68 offen offset:576')
        a('s_mov_b64 exec, -1')
        if t < 7: a('s_add_u32 s60, s60, 1\ns_and_b32 s60, s60, 7')
    a(f'''
    s_and_b32 s58, s2, 7
    s_lshr_b32 s59, s2, 3
    s_mul_i32 s{S_FS}, s58, 18
    s_add_u32 s{S_FS}, s{S_FS}, s59
    s_cmp_lt_u32 s59, 18
    s_cselect_b32 s{S_FS}, s{S_FS}, s2
    s_cselect_b32 s69, {D*F*2}, 0
    ''')
    for d, b in ((S_G, 10), (S_U, 12), (S_D, 14)):
        a(f's_mov_b32 s{d}, s{b}\ns_mov_b32 s{d+1}, s{b+1}\ns_mov_b32 s{d+2}, s69\ns_mov_b32 s{d+3}, 0x20000')
    srd(a, S_X, 4, 0, S * ROWB); srd(a, S_OUT, 6, 0, S * ROWB); srd(a, S_WR, 8, 0, ROWB)
    a(f'''
    s_mul_i32 s{S_GOFF}, s{WAVE}, {16*F*2}
    s_lshl_b32 s58, s{S_FS}, 6
    s_add_u32 s{S_GOFF}, s{S_GOFF}, s58
    s_mul_i32 s{S_DOFF}, s{S_FS}, 36864
    s_lshl_b32 s58, s{WAVE}, 10
    s_add_u32 s{S_DOFF}, s{S_DOFF}, s58
    s_add_u32 s{S_MU}, s58, {LU}
    s_add_u32 s{S_MD}, s58, {LD}
    s_cmp_lt_u32 s{WAVE}, 6
    s_cselect_b32 s{S_MG}, s58, {LDUM}
    s_cselect_b32 s{S_MU}, s{S_MU}, {LDUM}
    s_cselect_b32 s{S_MD}, s{S_MD}, {LDUM}
    s_cselect_b32 s{S_MST}, 6144, 0
    s_cselect_b32 s{S_GOFF}, s{S_GOFF}, 0x7f000000
    s_cselect_b32 s{S_DOFF}, s{S_DOFF}, 0x7f000000
    s_mul_i32 s{S_NT0}, s{WAVE}, 5
    s_lshl_b32 s58, s{WAVE}, 2
    s_add_u32 s58, s58, 4
    s_cmp_lt_u32 s{WAVE}, 4
    s_cselect_b32 s{S_NT0}, s{S_NT0}, s58
    s_lshl_b32 s{S_WOC}, s{S_NT0}, 11
    s_add_u32 s{S_WOC}, s{S_WOC}, {WS_WO}
    s_mul_i32 s60, s59, 20736
    s_lshl_b32 s58, s{WAVE}, 10
    s_add_u32 s60, s60, s58
    s_add_u32 s60, s60, {WS_WO}
    v_lshrrev_b32 v24, 2, v{LANE}
    v_mul_u32_u24 v25, {F*2}, v24
    v_lshrrev_b32 v24, 4, v{LANE}
    v_and_b32 v26, 2, v24
    v_and_b32 v27, 3, v{LANE}
    v_xor_b32 v26, v26, v27
    v_lshl_add_u32 v{GUV}, v26, 4, v25
    v_mov_b32 v{IDXA}, 0xdddd
    v_mov_b32 v{IDXB}, 0x4444
    v_mov_b32 v25, 0xeeee
    v_and_b32 v26, 15, v{LANE}
    v_cmp_lt_u32 vcc, 7, v26
    v_mul_u32_u24 v27, 80, v3
    s_mul_i32 s58, s{WAVE}, 2560
    v_cndmask_b32 v{IDXB}, v{IDXB}, v25, vcc
    s_add_u32 s58, s58, {LP}
    v_add_u32 v27, s58, v27
    v_lshl_add_u32 v{WAD}, v4, 4, v27
    v_lshl_add_u32 v{WAD3}, v4, 3, v27
    v_add_u32 v{WAD3}, 64, v{WAD3}
    v_min_u32 v25, 9, v26
    v_mul_u32_u24 v27, 640, v24
    v_lshl_add_u32 v27, v25, 3, v27
    s_mul_i32 s58, s{WAVE}, 80
    s_add_u32 s58, s58, {LP}
    v_add_u32 v{RAD}, s58, v27
    s_mul_i32 s58, s{WAVE}, 144
    s_add_u32 s58, s58, {LO}
    v_lshlrev_b32 v27, 5, v24
    v_lshl_add_u32 v27, v26, 2, v27
    v_add_u32 v{OAD}, s58, v27
    v_mov_b32 v{OST}, 1152
    s_add_u32 s58, s58, {8*1152}
    v_lshl_add_u32 v27, v24, 2, s58
    v_cmp_eq_u32 vcc, 8, v26
    s_mov_b32 s58, {LDUM}
    v_lshl_add_u32 v28, v{LANE}, 2, s58
    v_cndmask_b32 v{OAD}, v{OAD}, v27, vcc
    v_cndmask_b32 v{OST}, v{OST}, 16, vcc
    v_cmp_lt_u32 vcc, 8, v26
    v_mul_u32_u24 v27, 144, v5
    v_bfe_u32 v25, v{LANE}, 3, 1
    v_cndmask_b32 v{OAD}, v{OAD}, v28, vcc
    v_cndmask_b32 v{OST}, v{OST}, 0, vcc
    v_lshl_add_u32 v27, v25, 6, v27
    v_lshl_add_u32 v27, v24, 4, v27
    v_add_u32 v{AAD}, {LO}, v27
    v_add_u32 v{QAD}, {LQ}, v{L16}
    s_mov_b32 s58, {LQ + 1024}
    v_lshl_add_u32 v{QXAD}, v{LANE}, 2, s58
    ''')
    for i in range(OACC, OACC + 20): a(f'v_mov_b32 v{i}, 0')
    for i in list(range(WO + 16, WO + 40)) + [QX + 1, QX + 2] + list(range(AF, AF + 4)): a(f'v_accvgpr_write_b32 a{i}, 0')
    vm.need('kmax')
    a(f'''
    s_mov_b32 s62, -1
    s_mov_b32 s63, 0
    v_max3_f32 v20, v20, v21, v22
    v_cndmask_b32 v17, 0, v16, s[62:63]
    v_max_f32 v20, v20, v23
    v_mov_b32 v18, 0
    v_dot2c_f32_bf16 v18, v12, v12
    v_dot2c_f32_bf16 v18, v13, v13
    v_dot2c_f32_bf16 v18, v14, v14
    v_dot2c_f32_bf16 v18, v15, v15
    v_dot2c_f32_bf16 v18, v17, v17
    ''')
    dpp_reduce(a, 'v_max_f32', [20])
    a(f'''
    v_mov_b32 v19, v18
    v_readlane_b32 s58, v20, 63
    s_mul_i32 s59, s{WAVE}, 1280
    v_permlane32_swap_b32 v18, v19
    v_add_f32 v18, v18, v19
    v_mul_f32 v18, s58, v18
    v_sqrt_f32 v18, v18
    v_add_u32 v24, s59, v{QAD}
    v_add_u32 v25, s59, v{QXAD}
    v_add_u32 v18, 0x1ffff, v18
    v_and_b32 v18, 0xffff0000, v18
    v_cmp_nge_f32 vcc, {hx(f32(M_LIMIT))}, v18
    v_lshrrev_b32 v19, 16, v18
    v_or_b32 v19, 0x8000, v19
    v_cndmask_b32 v16, v19, v16, s[62:63]
    s_cmp_lg_u64 vcc, 0
    s_cselect_b32 s58, 1, 0
    ds_write_b128 v24, v[12:15]
    ds_write_b32 v25, v16
    s_lshl_b32 s59, s{WAVE}, 2
    s_add_u32 s59, s59, {X_FLAG}
    v_mov_b32 v26, s59
    v_mov_b32 v27, s58
    ds_write_b32 v26, v27
    s_mov_b32 s58, {X_FLAG}
    v_lshl_add_u32 v26, v5, 2, s58
    s_waitcnt lgkmcnt(0)
    s_barrier
    ds_read_b32 v27, v26
    ''')
    for r in q_reads(False): a(r)
    a(f'''
    s_waitcnt lgkmcnt(3)
    v_cmp_ne_u32 vcc, 0, v27
    ''')
    return vm

def k2(name, stamp=None):
    import copy
    a = Asm()
    a(f'.globl {name}\n.p2align 8\n.type {name},@function\n{name}:')
    vm = prologue(a, stamp)
    if stamp: stamp(a, 1)
    a(f's_cmp_ge_u32 s{WAVE}, 4\ns_cbranch_scc1 L_f4')
    q0 = list(vm.q)
    attention(a, 5, False, 'L_a5', vm, stamp)
    a('L_f4:')
    vm.q = list(q0)
    attention(a, 4, False, 'L_a4', vm, stamp)
    tail(a, stamp)
    a('L_k2_exit:\ns_endpgm')
    return a.text()
```

```python
import sys
from common import *
import k1
NAME = 'sequential_preLN__grouped_kv_mqa__moe_arch_mod__prompt'
HDR = open('cdna_kernels/' + NAME + '.s.ref').read().split('; Override')[0]

def stamper(wsreg, wavereg, base=WS_STAMP):
    def stamp(a, i, end=False):
        if i == 0:
            a('s_memrealtime s[78:79]\ns_memtime s[92:93]')
            for q in range(1, 12): a(f's_mov_b32 s{78+q+1}, 0')
            return
        a(f's_memrealtime s[76:77]\ns_waitcnt lgkmcnt(0)\ns_mov_b32 s{79+i}, s76')
        if end:
            a('s_memtime s[94:95]\ns_waitcnt lgkmcnt(0)\ns_sub_u32 s90, s94, s92\ns_mov_b64 exec, 1')
            srd(a, 72, wsreg, base, 256 * 8 * 64)
            a(f's_lshl_b32 s76, s2, 3\ns_add_u32 s76, s76, s{wavereg}\ns_lshl_b32 s76, s76, 6\nv_mov_b32 v0, 0')
            for q in range(12):
                a(f'v_mov_b32 v1, s{78 if q == 0 else 79+q}\nbuffer_store_dword v1, v0, s[72:75], s76 offen offset:{4*q}')
    return stamp

def assemble(parts):
    t = HDR
    for n, _, g, b, l, _, _ in parts:
        t += f'; @launch kernel={n} grid=({g},1,1) block=({b},1,1) lds={l}\n'
    t += '.amdgcn_target "amdgcn-amd-amdhsa--gfx950"\n.text\n'
    done = set()
    for n, txt, *_ in parts:
        if n not in done: t += txt
        done.add(n)
    t += '.section .rodata,"a"\n'
    done = set()
    for n, _, _, _, _, v, acc in parts:
        if n not in done: t += kdesc(n, v, acc)
        done.add(n)
    return t

import k2
def full(stamp1=None, stamp2=None, extra=()):
    return assemble([('proj_kernel', k1.k1('proj_kernel', stamp=stamp1), 256, 512, k1.K1_LDS, 128, 128),
                     ('attn_kernel', k2.k2('attn_kernel', stamp=stamp2), 256, 512, k2.K2_LDS, k2.NV + k2.NA, k2.NV)] + list(extra))

if __name__ == '__main__':
    open('cdna_kernels/' + NAME + '.s', 'w').write(full())
    open('full.s', 'w').write(full())
    open('full_st.s', 'w').write(full(stamper(14, 16), stamper(16, k2.WAVE, WS_STAMP + 0x40000)))
```

```python
from build import *
def empty(name): return f'.globl {name}\n.p2align 8\n.type {name},@function\n{name}:\n    s_endpgm\n'
e = ('nop_kernel', empty('nop_kernel'), 256, 64, 0, 8, 8)
open('v_e1.s','w').write(full(extra=[e]))
open('v_e3.s','w').write(full(extra=[e,e,e]))
t = assemble([e, ('proj_kernel', k1.k1('proj_kernel'), 256, 512, k1.K1_LDS, 128, 128), ('attn_kernel', k2.k2('attn_kernel'), 256, 512, k2.K2_LDS, k2.NV + k2.NA, k2.NV)])
open('v_f1.s','w').write(t)
p=('proj_kernel', k1.k1('proj_kernel'), 256, 512, k1.K1_LDS, 128, 128)
t = assemble([p, p, ('attn_kernel', k2.k2('attn_kernel'), 256, 512, k2.K2_LDS, k2.NV + k2.NA, k2.NV)])
open('v_k1x2.s','w').write(t)
q=('attn_kernel', k2.k2('attn_kernel'), 256, 512, k2.K2_LDS, k2.NV + k2.NA, k2.NV)
open('v_x2.s','w').write(assemble([p,q,p,q]))
```

```python
from build import *
def dbg_stamper(wavereg, back, first, nst, wg):
    def stamp(a, i, end=False):
        if i == 0:
            a('s_memrealtime s[78:79]\ns_memtime s[92:93]')
            a(f's_load_dwordx2 s[70:71], s[0:1], {KA_DBG}')
            return
        a(f's_memrealtime s[76:77]\ns_waitcnt lgkmcnt(0)\ns_mov_b32 s{79+i}, s76')
        if end:
            stamp.n += 1
            a(f's_cmp_lg_u32 s2, {wg}\ns_cbranch_scc1 L_st{first}_{stamp.n}\ns_cmp_lg_u32 s{wavereg}, 0\ns_cbranch_scc1 L_st{first}_{stamp.n}')
            a('s_memtime s[94:95]\ns_waitcnt lgkmcnt(0)\ns_sub_u32 s90, s94, s92\ns_mov_b64 exec, 1')
            a(f's_sub_u32 s72, s70, {back}\ns_subb_u32 s73, s71, 0\ns_mov_b32 s74, 256\ns_mov_b32 s75, 0x20000\nv_mov_b32 v0, 0')
            for q in range(nst):
                a(f'v_mov_b32 v1, s{78 if q == 0 else 79+q}\nbuffer_store_dword v1, v0, s[72:75], 0 offen offset:{4*(first+q)}')
            a(f'v_mov_b32 v1, s90\nbuffer_store_dword v1, v0, s[72:75], 0 offen offset:{4*(first+nst)}')
            a(f'L_st{first}_{stamp.n}:')
    stamp.n = 0
    return stamp
for wg in (0, 100, 148):
    open(f'v_dbg{wg}.s','w').write(full(dbg_stamper(16, 0, 0, 4, wg), dbg_stamper(k2.WAVE, 512, 5, 8, wg)))
```

```python
from build import *
def dbg_stamper(wavereg, back, first, nst, wg):
    def stamp(a, i, end=False):
        if i == 0:
            a('s_memrealtime s[78:79]\ns_memtime s[92:93]')
            a(f's_load_dwordx2 s[70:71], s[0:1], {KA_DBG}')
            return
        a(f's_memrealtime s[76:77]\ns_waitcnt lgkmcnt(0)\ns_mov_b32 s{79+i}, s76')
        if end:
            stamp.n += 1
            a(f's_cmp_lg_u32 s2, {wg}\ns_cbranch_scc1 L_st{first}_{stamp.n}\ns_cmp_lg_u32 s{wavereg}, 0\ns_cbranch_scc1 L_st{first}_{stamp.n}')
            a('s_memtime s[94:95]\ns_waitcnt lgkmcnt(0)\ns_sub_u32 s90, s94, s92\ns_mov_b64 exec, 1')
            a(f's_sub_u32 s72, s70, {back}\ns_subb_u32 s73, s71, 0\ns_mov_b32 s74, 256\ns_mov_b32 s75, 0x20000\nv_mov_b32 v0, 0')
            for q in range(nst):
                a(f'v_mov_b32 v1, s{78 if q == 0 else 79+q}\nbuffer_store_dword v1, v0, s[72:75], 0 offen offset:{4*(first+q)}')
            a(f'v_mov_b32 v1, s90\nbuffer_store_dword v1, v0, s[72:75], 0 offen offset:{4*(first+nst)}')
            a(f'L_st{first}_{stamp.n}:')
    stamp.n = 0
    return stamp
def fwd_stamper(wavereg, wg):
    base = dbg_stamper(wavereg, 0, 5, 8, wg)
    def stamp(a, i, end=False):
        base(a, i, end)
        if end:
            a(f's_cmp_lg_u32 s2, {wg}\ns_cbranch_scc1 L_fw\ns_cmp_lg_u32 s{wavereg}, 0\ns_cbranch_scc1 L_fw')
            a(f's_mov_b32 s76, {WS_STAMP + wg*8*64}\nbuffer_load_dwordx4 v[4:7], v0, s[20:23], s76 offen\nbuffer_load_dword v8, v0, s[20:23], s76 offen offset:44\ns_waitcnt vmcnt(0)')
            a('s_mov_b32 s72, s70\ns_mov_b32 s73, s71\ns_mov_b32 s74, 256\ns_mov_b32 s75, 0x20000')
            a('buffer_store_dwordx4 v[4:7], v0, s[72:75], 0 offen\nbuffer_store_dword v8, v0, s[72:75], 0 offen offset:16\nL_fw:')
    return stamp
for wg in (0, 100, 148):
    open(f'v_dbg{wg}.s','w').write(full(stamper(14, 16), fwd_stamper(k2.WAVE, wg)))
```

```python
from build import *
MULT = 10
def reveal(name, A, B):
    a = Asm()
    a(f'.globl {name}\n.p2align 8\n.type {name},@function\n{name}:')
    a(f's_cmp_ge_u32 s2, 1\ns_cbranch_scc1 L_rv_end\ns_load_dwordx2 s[4:5], s[0:1], {KA_WS}\nv_lshlrev_b32 v1, 9, v0\ns_waitcnt lgkmcnt(0)')
    srd(a, 8, 4, 0, WS_USED)
    for n, (kern, idx, op) in enumerate((A, B)):
        base = WS_STAMP + (0x40000 if kern == 2 else 0) + 4 * idx
        for j in range(4):
            a(f's_mov_b32 s12, {base + j*64*512}\nbuffer_load_dword v{2+4*n+j}, v1, s[8:11], s12 offen')
    a('s_waitcnt vmcnt(0)')
    for n, (kern, idx, op) in enumerate((A, B)):
        r = 2 + 4 * n
        a(f'v_{op}3_u32 v{r}, v{r}, v{r+1}, v{r+2}\nv_{op}_u32 v{r}, v{r}, v{r+3}')
        k2.dpp_reduce(a, f'v_{op}_u32', [r])
        a(f's_nop 1\nv_readlane_b32 s{14+n}, v{r}, 63')
    a(f'''
    s_memrealtime s[16:17]
    s_sub_u32 s14, s15, s14
    s_min_u32 s14, s14, 10000
    s_mul_i32 s14, s14, {MULT}
    s_waitcnt lgkmcnt(0)
L_rv:
    s_memrealtime s[18:19]
    s_waitcnt lgkmcnt(0)
    s_sub_u32 s20, s18, s16
    s_cmp_lt_u32 s20, s14
    s_cbranch_scc1 L_rv
L_rv_end:
    s_endpgm
    ''')
    return (name, a.text(), 1, 64, 0, 16, 16)
def mk(fn, A, B):
    open(fn, 'w').write(full(stamper(14, 16), stamper(16, k2.WAVE, WS_STAMP + 0x40000), extra=[reveal('rv_kernel', A, B)]))
if __name__ == '__main__':
    import sys
    mk('r0.s', (1,0,'min'), (1,0,'min'))
    mk('r1.s', (1,0,'min'), (1,3,'max'))
    mk('r2.s', (1,0,'min'), (2,0,'min'))
    mk('r3.s', (2,0,'min'), (2,1,'max'))
    mk('r4.s', (2,0,'min'), (2,4,'max'))
    mk('r5.s', (2,0,'min'), (2,7,'max'))
```

```python
S, D, H, DH, F = 2048, 576, 32, 18, 4608
ROWB = D * 2

KA_X, KA_WQ, KA_WK, KA_WV, KA_WO, KA_BX, KA_WR, KA_WG, KA_WU, KA_WD, KA_OUT, KA_DBG, KA_WS = [8 * i for i in range(13)]

WS_Q    = 0x000000; SZ_Q  = S * ROWB
WS_KV   = 0x240000; KVREC = 2560; KV_X = 1024; KV_V = 1280
WS_KMAX = 0x268000; SZ_KMAX = 176 * 4
WS_WO   = 0x269000; SZ_WO = 9 * 36 * 2048
WS_GRAN = 0x310000; GRAN_SP = 128; GRAN_REP = 256 * GRAN_SP + 256
WS_ROWS = 0x360000; SZ_ROWS = 256 * 2304
WS_PART = WS_ROWS + SZ_ROWS; SZ_PART = 72 * 144 * 32
WS_NONCE = 0x30F000
WS_STAMP = 0x500000
WS_USED = 0x600000

import math
CQ = DH ** -0.5 * math.log2(math.e)

import struct
def f32(x): return struct.unpack('<I', struct.pack('<f', x))[0]
def hx(x): return hex(x & 0xffffffff)

class Asm:
    def __init__(self): self.l = []
    def __call__(self, s):
        for line in s.strip('\n').split('\n'):
            line = line.strip()
            if not line: continue
            if line.startswith(';PAD') or line.startswith(';WALK') or line.endswith(':') or line.startswith('.'): self.l.append(line)
            elif line.startswith(';'): continue
            else: self.l.append('    ' + line)
    def text(self): return '\n'.join(self.l) + '\n'

def vr(b, n=1, k='v'): return f'{k}{b}' if n == 1 else f'{k}[{b}:{b+n-1}]'
def ar(b, n=1): return vr(b, n, 'a')
def sr(b, n=1): return vr(b, n, 's')

def srd(a, d, base, off, size):
    if off:
        a(f's_add_u32 s{d}, s{base}, {hex(off)}\ns_addc_u32 s{d+1}, s{base+1}, 0')
    elif d != base:
        a(f's_mov_b32 s{d}, s{base}\ns_mov_b32 s{d+1}, s{base+1}')
    a(f's_mov_b32 s{d+2}, {hex(size)}\ns_mov_b32 s{d+3}, 0x20000')

def kdesc(name, vgpr, acc, sgpr=100):
    return f'''.p2align 6
.amdhsa_kernel {name}
  .amdhsa_next_free_vgpr {vgpr}
  .amdhsa_next_free_sgpr {sgpr}
  .amdhsa_accum_offset {acc}
  .amdhsa_group_segment_fixed_size 0
  .amdhsa_kernarg_size 104
  .amdhsa_user_sgpr_count 2
  .amdhsa_user_sgpr_kernarg_segment_ptr 1
  .amdhsa_system_sgpr_workgroup_id_x 1
  .amdhsa_float_denorm_mode_32 3
.end_amdhsa_kernel
'''

class Lgkm:
    def __init__(self, a): self.a, self.q = a, []
    def issue(self, tag, ins):
        self.a(ins); self.q.append(tag)
    def need(self, *tags):
        last = max((i for i, t in enumerate(self.q) if t in tags), default=-1)
        if last >= 0:
            n = len(self.q) - 1 - last
            self.a(f's_waitcnt lgkmcnt({min(n, 15)})')
            if n <= 15: self.q = self.q[last + 1:]
            else: self.q = self.q[-15:]
    def drain(self):
        self.a('s_waitcnt lgkmcnt(0)'); self.q = []

def weave(main, fill):
    out, n, m, k = [], len(main), len(fill), 0
    for i, x in enumerate(main):
        out.append(x)
        while k < m and (k + 1) * n <= (i + 1) * m + (n - 1) * 0: out.append(fill[k]); k += 1
    out += fill[k:]
    return out

class Vm:
    def __init__(self, a): self.a, self.q = a, []
    def issue(self, tag, ins):
        self.a(ins); self.q.append(tag)
    def count(self, *tags):
        last = max((i for i, t in enumerate(self.q) if t in tags), default=-1)
        if last < 0: return None
        n = len(self.q) - 1 - last
        assert n <= 63
        self.q = self.q[last + 1:]
        return n
    def need(self, *tags):
        n = self.count(*tags)
        if n is not None: self.a(f's_waitcnt vmcnt({n})')

class Marks:
    def __init__(self, names, wsreg, wavereg, base):
        self.names, self.wsreg, self.wavereg, self.base = names, wsreg, wavereg, base
    def __call__(self, a, name):
        if name == 'start':
            a('s_memrealtime s[70:71]\ns_memtime s[72:73]')
            for q in range(16): a(f's_mov_b32 s{80+q}, 0')
            return
        if name in self.names:
            i = self.names.index(name)
            a(f's_memrealtime s[76:77]\ns_memtime s[78:79]\ns_waitcnt lgkmcnt(0)\ns_mov_b32 s{80+i}, s76\ns_mov_b32 s{88+i}, s78')
        if name == 'end':
            a('s_mov_b32 s80, s70\ns_mov_b32 s88, s72\ns_mov_b64 exec, 1')
            srd(a, 72, self.wsreg, self.base, 256 * 8 * 64)
            a(f's_lshl_b32 s76, s2, 3\ns_add_u32 s76, s76, s{self.wavereg}\ns_lshl_b32 s76, s76, 6\nv_mov_b32 v0, 0')
            for q in range(16):
                a(f'v_mov_b32 v1, s{80+q}\nbuffer_store_dword v1, v0, s[72:75], s76 offen offset:{4*q}')
def nomark(a, name): pass
```

```python
from common import *

K1_LDS = 162816
TQ, TKV = 79, 96
ONES = 0x3f803f80
LOOK = 2
LA = 3
KV_VM, KV_KE, KV_VE = 16384, 32768, 32768 + 9216 + 64
XOFF = {'q': 65536, 'kv': 51328}
EX_OFF = 161920
ST = ' sc1'
QROW = 144
DIAG = set()
FUSED = False

def bf_round(a, dst, src):
    a(f'v_cvt_pk_bf16_f32 v{dst}, v{src}, v{src}\nv_and_b32 v{dst}, 0xffff0000, v{dst}')

def rot_next(a, s, step, lim):
    a(f's_add_u32 s{s}, s{s}, {step}\ns_cmp_ge_u32 s{s}, {lim}\ns_cselect_b32 s{s}, 0, s{s}')

def mf16(d, x, y, first): return f'v_mfma_f32_16x16x32_bf16 v[{d}:{d+3}], {x}, {y}, ' + ('0' if first else f'v[{d}:{d+3}]')
def smf16(d, x, y, idx): return f'v_smfmac_f32_16x16x64_bf16 v[{d}:{d+3}], {x}, {y}, v{idx}'

BARS = [0, 1, 2, 3, 4, 5, 6, 7, 8]
def kloop(a, vm, reads, mfmas, issue, extra=None):
    L = Lgkm(a)
    nxt = [2]
    def capture(upto):
        keep, a.l = a.l, []
        while nxt[0] <= upto:
            issue(nxt[0]); nxt[0] += 1
        got, a.l = a.l, keep
        chunks, cur, masked, seen = [], [], False, False
        for l in got:
            cur.append(l); w = l.strip()
            if w == 's_mov_b64 exec, -1': masked = False
            elif 'saveexec' in w or w.split()[1].startswith('exec'): masked = True
            if w.startswith('buffer_'): seen = True
            if seen and not masked: chunks.append(cur); cur, seen = [], False
        assert not masked
        if cur:
            if chunks: chunks[-1] += cur
            else: chunks.append(cur)
        return ['\n'.join(c) for c in chunks]
    def stage(t):
        if t % 2 == 0 and t // 2 in BARS:
            u = t // 2
            last = ([b for b in BARS if b > u] + [9])[0] - 1
            vm.need(*range(u, last + 1))
            a('s_barrier')
            STAMP(a, f'u{u}')
            return last
    for c in capture(([b for b in BARS if b > 0])[0] - 1 + LA - 1): a(c)
    pend = []
    for t in range(LOOK):
        last = stage(t)
        for tag, ins in reads(t): L.issue(tag, ins)
        if last is not None:
            for c in capture(last + LA): a(c)
    for t in range(18):
        R = []
        if t + LOOK < 18:
            last = stage(t + LOOK)
            R = [('r', x) for x in reads(t + LOOK)]
            if last is not None: R += [('e', c) for c in capture(last + LA)]
        if extra: R += [('e', x) for x in extra(t)]
        for kind, x in weave([('m', x) for x in mfmas(t)], R):
            if kind == 'r': L.issue(*x)
            elif kind == 'e': a(x)
            else:
                L.need(*x[0]); a(x[1])

def stats_raw(GR, SX, V, M, T0):
    return f'''
    v_cndmask_b32 v{V}, 0, v{GR}, s[36:37]
    v_cndmask_b32 v{V}, v{V}, v{GR+1}, s[38:39]
    v_cndmask_b32 v{V}, v{V}, v{GR+2}, s[40:41]
    v_cndmask_b32 v{V}, v{V}, v{GR+3}, s[42:43]
    v_mov_b32 v{M}, v{SX}
    v_mov_b32 v{T0}, v{V}
    s_nop 1
    v_permlane32_swap_b32 v{SX}, v{M}
    v_permlane32_swap_b32 v{V}, v{T0}
    v_add_f32 v{M}, v{SX}, v{M}
    v_add_f32 v{V}, v{V}, v{T0}
    v_mov_b32 v{T0}, v{V}
    v_mul_f32 v{M}, {hx(f32(1.0/D))}, v{M}
    s_nop 0
    v_permlane16_swap_b32 v{V}, v{T0}
    v_add_f32 v{V}, v{V}, v{T0}
    '''

def stats_fin(V, M, T0, mul):
    r = lambda x: f'v_cvt_pk_bf16_f32 v{x}, v{x}, v{x}\nv_and_b32 v{x}, 0xffff0000, v{x}\n'
    return (f'v_mul_f32 v{T0}, v{M}, v{M}\nv_fma_f32 v{V}, v{V}, s58, -v{T0}\nv_max_f32 v{V}, 0, v{V}\n' + r(V)
            + f'v_add_f32 v{V}, {hx(f32(1e-5))}, v{V}\n' + r(V) + f'v_sqrt_f32 v{V}, v{V}\n' + r(M) + r(V)
            + f'v_rcp_f32 v{V}, v{V}\ns_nop 0\n' + (f'v_mul_f32 v{V}, {hx(f32(mul))}, v{V}\n' if mul != 1.0 else ''))
def lines(t): return [l.strip() for l in t.split('\n') if l.strip()]

def stat_consts(a, ONE, IDX, sx):
    for i in range(4): a(f'v_mov_b32 v{ONE+i}, {hx(ONES)}')
    for r in sx:
        for i in range(4): a(f'v_mov_b32 v{r+i}, 0')
    a(f'''
    v_mov_b32 v{IDX}, 0x4444
    v_mov_b32 v12, 0xeeee
    v_cmp_lt_u32 vcc, 7, v2
    s_mov_b32 s36, 0x00100001
    s_mov_b32 s37, 0x10000100
    v_cndmask_b32 v{IDX}, v{IDX}, v12, vcc
    s_lshl_b64 s[38:39], s[36:37], 1
    s_lshl_b64 s[40:41], s[36:37], 2
    s_lshl_b64 s[42:43], s[36:37], 3
    s_mov_b32 s58, {hx(f32(1.0/D))}
    ''')

def x_read_addr(a, XRA, base):
    a(f'''
    v_lshrrev_b32 v11, 1, v2
    v_xor_b32 v11, v11, v3
    v_lshlrev_b32 v11, 4, v11
    v_lshl_add_u32 v11, v2, 7, v11
    v_add_u32 v{XRA}, s{base}, v11
    v_xor_b32 v{XRA+1}, 64, v{XRA}
    ''')

def clears(vm, hs, R):
    a = vm.a
    a(f'''
    v_mov_b32 v{R}, -1
    v_mov_b32 v{R+1}, -1
    v_mov_b32 v{R+2}, -1
    v_mov_b32 v{R+3}, -1
    s_lshl_b32 s46, s{hs}, 7
    v_add_u32 v{R+4}, s46, v1
    v_lshlrev_b32 v{R+5}, 4, v{R+4}
    v_add_u32 v{R+6}, 64, v{R+4}
    s_mul_i32 s47, s2, 3600
    s_add_u32 s47, s47, {WS_ROWS}
    ''')
    vm.issue('c', f'buffer_store_dwordx4 v[{R}:{R+3}], v{R+5}, s[32:35], s47 offen{ST}')
    a(f'v_cmp_gt_u32 vcc, 225, v{R+6}\ns_and_saveexec_b64 s[48:49], vcc')
    vm.issue('c', f'buffer_store_dwordx4 v[{R}:{R+3}], v{R+5}, s[32:35], s47 offen offset:1024{ST}')
    if not FUSED:
        a(f's_mov_b64 exec, 0xff\ns_mov_b32 s50, {GRAN_REP}\nv_mul_lo_u32 v{R+7}, s50, v1\ns_lshl_b32 s47, s2, 7\ns_add_u32 s47, s47, {WS_GRAN}')
        vm.issue('c', f'buffer_store_dword v{R}, v{R+7}, s[32:35], s47 offen{ST}')
    a('s_mov_b64 exec, -1')

def q_common(a):
    a(f'''
    v_lshrrev_b32 v9, 3, v1
    v_and_b32 v10, 7, v1
    v_mul_u32_u24 v5, {ROWB}, v9
    s_and_b32 s24, s16, 1
    s_lshl_b32 s25, s24, 2
    v_and_b32 v11, 2, v9
    v_xor_b32 v11, v11, v10
    v_xor_b32 v11, s25, v11
    v_lshl_add_u32 v6, v11, 4, v5
    v_lshrrev_b32 v11, 1, v9
    v_xor_b32 v11, v11, v10
    v_xor_b32 v11, s25, v11
    v_lshl_add_u32 v7, v11, 4, v5
    s_mul_i32 s20, s17, {TQ}
    s_lshl_b32 s23, s16, 3
    s_add_u32 s23, s23, s20
    s_mul_i32 s23, s23, {ROWB}
    s_mul_i32 s27, s16, {8*ROWB}
    s_lshl_b32 s44, s18, 7
    s_add_u32 s27, s27, s44
    s_lshl_b32 s21, s16, 10
    s_lshr_b32 s56, s16, 1
    s_mul_i32 s56, s56, 18432
    s_lshl_b32 s24, s24, 10
    s_add_u32 s56, s56, s24
    s_add_u32 s56, s56, {XOFF['q']}
    ''')

XG = {0: [0, 1], 1: [2, 3], 2: [4], 3: [5], 4: [6], 5: [7], 6: [8]}
def q_issue(vm, u, small):
    a = vm.a
    if u > 8: return
    def xs(w):
        a(f's_add_u32 m0, s56, {w*2048 - w*128}\ns_nop 0')
        vm.issue(u, f'buffer_load_dwordx4 v7, s[28:31], s23 offen offset:{w*128} lds')
        if small:
            a(f's_add_u32 m0, s25, {w*2048 - w*128}\ns_mov_b64 exec, s[64:65]')
            vm.issue(u, f'buffer_load_dwordx4 v8, s[28:31], s24 offen offset:{w*128} lds')
            a('s_mov_b64 exec, -1')
    g = XG.get(u, [])
    if u == 0: xs(g[0]); g = g[1:]
    a(f's_add_u32 m0, s21, {(u % 8) * 8192}\ns_nop 0')
    vm.issue(u, 'buffer_load_dwordx4 v6, s[60:63], s27 offen lds')
    if u < 8: a(f's_add_u32 s27, s27, {64*ROWB}')
    for w in g: xs(w)

def q_first(a, vm, small):
    a('s_setprio 3\ns_waitcnt lgkmcnt(0)')
    q_issue(vm, 0, small)
    a('s_setprio 2')
    q_issue(vm, 1, small)
    a('s_setprio 0')

def q_tra(a, TRA):
    a(f'''
    v_bfe_u32 v12, v1, 2, 2
    v_and_b32 v13, 3, v1
    v_lshl_add_u32 v9, v3, 3, v12
    v_lshlrev_b32 v9, 7, v9
    v_lshl_add_u32 v9, v13, 3, v9
    v_lshrrev_b32 v10, 1, v12
    v_and_b32 v11, 1, v3
    v_lshl_add_u32 v10, v11, 1, v10
    v_lshl_add_u32 v{TRA}, v10, 5, v9
    v_xor_b32 v{TRA}, s45, v{TRA}
    ''')

def q_big(a, stamp, done):
    ACC, WB, XB, TRA, XRA = 16, 0, 24, 32, 34
    vm = Vm(a)
    q_first(a, vm, False)
    stamp(a, 'issued')
    a(f'''
    v_and_b32 v2, 15, v1
    v_lshrrev_b32 v3, 4, v1
    s_lshr_b32 s46, s16, 1
    s_mul_i32 s47, s46, {2*18432}
    s_add_u32 s47, s47, {XOFF['q']}
    s_and_b32 s45, s16, 1
    s_lshl_b32 s45, s45, 6
    ''')
    x_read_addr(a, XRA, 47)
    q_tra(a, TRA)
    a(f'''
    v_xor_b32 v{TRA+1}, 32, v{TRA}
    s_lshl_b32 s46, s46, 5
    v_add_u32 v4, s46, v2
    v_mul_u32_u24 v5, {QROW}, v4
    v_lshl_add_u32 v5, v3, 3, v5
    v_add_u32 v5, s45, v5
    s_lshl_b32 s45, s45, 1
    s_add_u32 s45, s45, {EX_OFF}
    v_lshl_add_u32 v14, v3, 4, s45
    s_lshl_b32 s46, s46, 3
    s_add_u32 s46, s46, {EX_OFF + 256}
    v_lshl_add_u32 v15, v2, 3, s46
    ''')
    def reads(t):
        w, x, o = WB + 8 * (t % 3), XB + 8 * (t % 3), (t % 16) * 4096
        r = []
        for j in range(2):
            r.append(((t, 'x', j), f'ds_read_b128 a[{x+4*j}:{x+4*j+3}], v{XRA + t % 2} offset:{(t // 2) * 2048 + 18432 * j}'))
            r.append(((t, 'w', j), f'ds_read_b64_tr_b16 a[{w+4*j}:{w+4*j+1}], v{TRA+j} offset:{o}'))
            r.append(((t, 'w', j), f'ds_read_b64_tr_b16 a[{w+4*j+2}:{w+4*j+3}], v{TRA+j} offset:{o+512}'))
        return r
    def mfmas(t):
        w, x = WB + 8 * (t % 3), XB + 8 * (t % 3)
        return [([(t, 'x', i), (t, 'w', j)], mf16(ACC + 8 * i + 4 * j, ar(w + 4 * j, 4), ar(x + 4 * i, 4), t == 0)) for i, j in ((0, 0), (1, 0), (0, 1), (1, 1))]
    kloop(a, vm, reads, mfmas, lambda u: q_issue(vm, u, False))
    stamp(a, 'loop')
    CS, SS, P = 36, 44, 48
    a(f'''
    s_barrier
    ds_read_b128 v[{CS}:{CS+3}], v14
    ds_read_b128 v[{CS+4}:{CS+7}], v14 offset:64
    ds_read_b64 v[{SS}:{SS+1}], v15
    ds_read_b64 v[{SS+2}:{SS+3}], v15 offset:128
    s_waitcnt lgkmcnt(1)
    ''')
    for i in range(2):
        if i: a('s_waitcnt lgkmcnt(0)')
        for r in range(8): a(f'v_fma_f32 v{ACC+8*i+r}, -v{SS+2*i}, v{CS+r}, v{ACC+8*i+r}')
        for r in range(8): a(f'v_mul_f32 v{ACC+8*i+r}, v{SS+2*i+1}, v{ACC+8*i+r}')
        for r in range(4): a(f'v_cvt_pk_bf16_f32 v{P+4*i+r}, v{ACC+8*i+2*r}, v{ACC+8*i+2*r+1}')
        a(f'ds_write_b64 v5, v[{P+4*i}:{P+4*i+1}] offset:{16*QROW*i}\nds_write_b64 v5, v[{P+4*i+2}:{P+4*i+3}] offset:{16*QROW*i+32}')
    a('s_branch L_q_out')

def q_out(a, done):
    a(f'''
L_q_out:
    v_lshrrev_b32 v9, 3, v1
    v_and_b32 v10, 7, v1
    s_lshl_b32 s46, s16, 3
    v_add_u32 v9, s46, v9
    v_mul_u32_u24 v11, {QROW}, v9
    v_lshl_add_u32 v11, v10, 4, v11
    v_mul_u32_u24 v12, {ROWB}, v9
    v_lshl_add_u32 v12, v10, 4, v12
    s_mul_i32 s46, s20, {ROWB}
    s_lshl_b32 s47, s18, 7
    s_add_u32 s46, s46, s47
    v_add_u32 v12, s46, v12
    v_add_u32 v13, {64*ROWB}, v12
    ''')
    srd(a, 32, 6, WS_Q, SZ_Q)
    a(f'''
    s_waitcnt lgkmcnt(0)
    ''')
    STAMP(a, 'qw')
    a(f'''
    s_barrier
    ds_read_b128 v[4:7], v11
    ds_read_b128 v[16:19], v11 offset:{64*QROW}
    v_cmp_gt_u32 vcc, 15, v9
    s_waitcnt lgkmcnt(1)
    buffer_store_dwordx4 v[4:7], v12, s[32:35], 0 offen{ST}
    s_and_b64 exec, exec, vcc
    s_cbranch_execz L_q_out2
    s_waitcnt lgkmcnt(0)
    buffer_store_dwordx4 v[16:19], v13, s[32:35], 0 offen{ST}
L_q_out2:
    s_mov_b64 exec, -1
    v_mov_b32 v29, 0
    ''')
    done(a)

def q_small(a, stamp, done):
    ACC, GJ, G4, SJ, S4, ONE, IDX, TRA, XRA, XR4, WG = 16, 20, 24, 28, 32, 36, 40, 41, 42, 44, 56
    WB, XJ, X4 = 0, 12, 44
    vm = Vm(a)
    a(f'''
    s_sub_u32 s59, s16, 4
    s_lshl_b32 s24, s59, 1
    v_lshrrev_b32 v11, 1, v9
    v_add_u32 v11, s24, v11
    v_xor_b32 v11, v11, v10
    v_lshl_add_u32 v8, v11, 4, v5
    s_lshl_b32 s24, s59, 2
    s_add_u32 s24, s24, s20
    s_add_u32 s24, s24, 64
    s_mul_i32 s24, s24, {ROWB}
    s_lshl_b32 s25, s59, 9
    s_add_u32 s25, s25, {XOFF['q'] + 4*18432}
    s_cmp_eq_u32 s59, 3
    s_cselect_b32 s64, 0x00ffffff, -1
    s_mov_b32 s65, 0
    ''')
    q_first(a, vm, True)
    stamp(a, 'issued')
    a('v_and_b32 v2, 15, v1\nv_lshrrev_b32 v3, 4, v1')
    stat_consts(a, ONE, IDX, (SJ, S4))
    a(f'''
    s_mov_b32 s47, {XOFF["q"] + 4*18432}
    s_cmp_eq_u32 s59, 3
    s_cbranch_scc0 L_qs_noones
    v_lshlrev_b32 v12, 4, v10
    v_add_u32 v12, s47, v12
    v_lshl_add_u32 v13, v9, 11, v12
    ds_write_b128 v13, v[{ONE}:{ONE+3}] offset:1920
    ds_write_b128 v12, v[{ONE}:{ONE+3}] offset:{8*2048+1920}
    ''')
    if FUSED:
        a(f'''
        s_cmp_eq_u32 s2, 0
        s_cbranch_scc0 L_qs_notag
        s_add_u32 s32, s6, {WS_NONCE}
        s_addc_u32 s33, s7, 0
        s_load_dword s46, s[32:33], 0
        s_mov_b32 s34, 4
        s_mov_b32 s35, 0x20000
        s_mov_b32 s8, s4
        s_mov_b32 s9, s5
        s_mov_b32 s10, 4
        s_mov_b32 s11, 0x20000
        v_mov_b32 v13, 0
        s_waitcnt lgkmcnt(0)
        s_add_u32 s46, s46, 1
        s_max_u32 s46, s46, 1
        v_mov_b32 v12, s46
        s_mov_b64 exec, 1
        buffer_store_dword v12, v13, s[8:11], 0 offen sc1
        buffer_store_dword v12, v13, s[32:35], 0 offen sc1
        s_mov_b64 exec, -1
L_qs_notag:
        ''')
    a(f'''
    s_waitcnt lgkmcnt(0)
L_qs_noones:
    ''')
    x_read_addr(a, XR4, 47)
    a(f's_mul_i32 s47, s59, 18432\ns_add_u32 s47, s47, {XOFF["q"]}\ns_lshl_b32 s45, s59, 5')
    x_read_addr(a, XRA, 47)
    q_tra(a, TRA)
    a(f'''
    v_add_u32 v4, 64, v2
    v_mul_u32_u24 v5, {QROW}, v4
    v_lshl_add_u32 v5, v3, 3, v5
    v_add_u32 v5, s45, v5
    s_lshl_b32 s45, s59, 6
    s_add_u32 s45, s45, {EX_OFF}
    v_lshl_add_u32 v14, v3, 4, s45
    s_lshl_b32 s46, s59, 7
    s_add_u32 s46, s46, {EX_OFF + 256}
    v_lshl_add_u32 v15, v2, 3, s46
    ''')
    srd(a, 32, 6, 0, WS_USED)
    srd(a, 8, 12, 0, D * ROWB)
    def chores():
        a(f'''
        s_lshl_b32 s66, s26, 2
        s_add_u32 s66, s66, s59
        s_and_b32 s51, s66, 1
        s_lshr_b32 s54, s66, 1
        s_mul_i32 s55, s54, 57
        s_lshr_b32 s55, s55, 11
        s_mul_i32 s45, s55, 36
        s_sub_u32 s54, s54, s45
        s_cmp_ge_u32 s55, 8
        s_cselect_b32 s45, 144, 18
        s_cselect_b32 s46, 36, 4
        s_cselect_b32 s52, 288, 36
        s_cselect_b32 s53, 18, 2
        s_mul_i32 s52, s52, {ROWB}
        s_mul_i32 s53, s53, {ROWB}
        s_mul_i32 s47, s55, 72
        s_cselect_b32 s47, 16, s47
        s_mul_i32 s45, s45, s51
        s_add_u32 s47, s47, s45
        v_mul_u32_u24 v9, s46, v3
        v_add_u32 v9, s47, v9
        v_mul_u32_u24 v9, {ROWB}, v9
        v_lshl_add_u32 v9, v2, 1, v9
        s_lshl_b32 s54, s54, 5
        s_cmp_ge_u32 s66, 648
        s_cselect_b32 s54, 0x7f000000, s54
        v_add_u32 v9, s54, v9
        s_add_u32 s54, s52, s53
        ''')
        for j in range(2):
            for q, so in enumerate(('0', 's52', 's53', 's54')):
                vm.issue('g', f'buffer_load_ushort v{WG+4*j+q}, v9, s[8:11], {so} offen offset:{ROWB*j}')
        a('s_and_b32 s55, s59, 1')
        clears(vm, 55, 64)
    def issue(u):
        q_issue(vm, u, True)
        if u == 5: chores()
    lead = lambda t: [u for u in {0: [0, 1, 2], 1: [3], 2: [4, 5, 6]}.get(t, [t + 4]) if u < 18]
    def reads(t):
        w, o = WB + 4 * (t % 3), (t % 16) * 4096
        r = []
        for u in lead(t):
            r.append(((u, 'j'), f'ds_read_b128 a[{XJ+4*(u%8)}:{XJ+4*(u%8)+3}], v{XRA + u % 2} offset:{(u // 2) * 2048}'))
            r.append(((u, '4'), f'ds_read_b128 a[{X4+4*(u%10)}:{X4+4*(u%10)+3}], v{XR4 + u % 2} offset:{(u // 2) * 2048}'))
        return r + [((t, 'w'), f'ds_read_b64_tr_b16 a[{w}:{w+1}], v{TRA} offset:{o}'),
                    ((t, 'w'), f'ds_read_b64_tr_b16 a[{w+2}:{w+3}], v{TRA} offset:{o+512}')]
    def mfmas(t):
        m = []
        for u in lead(t):
            xj, x4 = XJ + 4 * (u % 8), X4 + 4 * (u % 10)
            if u % 2: m += [([(u, 'j')], smf16(SJ, vr(ONE, 4), ar(xj - 4, 8), IDX)), ([(u, '4')], smf16(S4, vr(ONE, 4), ar(x4 - 4, 8), IDX))]
            m += [([(u, 'j')], mf16(GJ, ar(xj, 4), ar(xj, 4), u == 0)), ([(u, '4')], mf16(G4, ar(x4, 4), ar(x4, 4), u == 0))]
        return m + [([(t, '4'), (t, 'w')], mf16(ACC, ar(WB + 4 * (t % 3), 4), ar(X4 + 4 * (t % 10), 4), t == 0))]
    zip2 = lambda x, y: [z for p in zip(lines(x), lines(y)) for z in p if not z.startswith('s_nop')]
    f2 = zip2(stats_fin(47, 46, 48, CQ), stats_fin(51, 50, 52, CQ))
    fin = {14: ['s_nop 5'] + zip2(stats_raw(GJ, SJ, 47, 46, 48), stats_raw(G4, S4, 51, 50, 52)), 15: f2[:16], 16: f2[16:]}
    fin[17] = ['s_mov_b64 exec, 0xffff\nds_write_b64 v15, v[46:47]\ns_mov_b64 exec, -1'] + [f'v_lshl_or_b32 v{WG+q}, v{WG+4+q}, 16, v{WG+q}' for q in range(4)] + [
        f's_lshl_b32 s45, s66, 10\ns_add_u32 s45, s45, {WS_WO}\ns_cmp_ge_u32 s66, 648\ns_cselect_b32 s45, 0x7f000000, s45\nv_lshl_add_u32 v9, v1, 4, s45']
    kloop(a, vm, reads, mfmas, issue, lambda t: fin.get(t, []))
    stamp(a, 'loop')
    a(f'''
    s_mov_b32 s48, 0x80008000
    s_mov_b32 s49, 0x80008000
    s_mov_b64 exec, s[48:49]
    ds_write_b128 v14, v[{ACC}:{ACC+3}]
    s_mov_b64 exec, -1
    buffer_store_dwordx4 v[{WG}:{WG+3}], v9, s[32:35], 0 offen{ST}
    s_waitcnt lgkmcnt(0)
    s_barrier
    ''')
    for r in range(4): a(f'v_mov_b32_dpp v{52+r}, v{ACC+r} row_newbcast:15 row_mask:0xf bank_mask:0xf')
    for r in range(4): a(f'v_fma_f32 v{ACC+r}, -v50, v{52+r}, v{ACC+r}')
    for r in range(4): a(f'v_mul_f32 v{ACC+r}, v51, v{ACC+r}')
    a(f'''
    v_cvt_pk_bf16_f32 v52, v{ACC}, v{ACC+1}
    v_cvt_pk_bf16_f32 v53, v{ACC+2}, v{ACC+3}
    ds_write_b64 v5, v[52:53]
    ''')
    q_out(a, done)

def kv_tra(a, TRA):
    a(f'''
    v_bfe_u32 v12, v1, 2, 2
    v_and_b32 v13, 3, v1
    v_lshrrev_b32 v9, 1, v3
    v_lshlrev_b32 v9, 4, v9
    v_and_b32 v10, 1, v3
    v_lshl_add_u32 v9, v10, 2, v9
    v_add_u32 v9, v9, v12
    v_lshlrev_b32 v9, 5, v9
    v_lshl_add_u32 v{TRA}, v13, 3, v9
    v_lshl_add_u32 v9, v3, 3, v12
    v_lshlrev_b32 v9, 4, v9
    v_and_b32 v10, 1, v13
    v_lshl_add_u32 v9, v10, 3, v9
    v_lshrrev_b32 v10, 1, v13
    v_mul_u32_u24 v10, {KV_VE-KV_KE}, v10
    v_add_u32 v{TRA+1}, v9, v10
    ''')

def kv_out(a, done):
    a(f'''
    s_lshl_b32 s46, s16, 10
    v_lshl_add_u32 v8, v1, 4, s46
    s_mul_i32 s47, s17, {3*KVREC}
    v_add_u32 v9, s47, v8
    s_waitcnt lgkmcnt(0)
    s_barrier
    ds_read_b128 v[4:7], v8
    v_mov_b32 v10, {EX_OFF + 256}
    ds_read_b128 v[12:15], v10
    ds_read_b64 v[16:17], v10 offset:16
    s_mov_b32 s34, {64*KVREC}
    v_cmp_gt_u32 vcc, {3*KVREC}, v8
    s_and_b64 exec, exec, vcc
    s_waitcnt lgkmcnt(2)
    buffer_store_dwordx4 v[4:7], v9, s[32:35], 0 offen{ST}
    s_mov_b64 exec, -1
    s_waitcnt lgkmcnt(0)
    v_max3_f32 v29, v12, v13, v14
    v_max3_f32 v29, v29, v15, v16
    v_max_f32 v29, v29, v17
    ''')
    done(a)

def kv_main(a, stamp, done):
    ACC, GR, SX, ONE, IDX, TRA, XRA = 16, 32, 36, 40, 44, 46, 48
    WB, XB = 0, 36
    vm = Vm(a)
    a(f'''
    v_lshrrev_b32 v9, 3, v1
    v_and_b32 v10, 7, v1
    v_lshrrev_b32 v11, 1, v9
    v_xor_b32 v11, v11, v10
    v_mul_u32_u24 v6, {ROWB}, v9
    v_lshl_add_u32 v6, v11, 4, v6
    v_xor_b32 v7, 64, v6
    v_add_u32 v7, {8*ROWB}, v7
    s_mul_i32 s20, s17, {TKV}
    s_lshl_b32 s21, s16, 4
    s_add_u32 s20, s20, s21
    s_mul_i32 s23, s20, {ROWB}
    s_mul_i32 s21, s16, 18432
    s_add_u32 s21, s21, {XOFF['kv']}
    s_setprio 3
    s_waitcnt lgkmcnt(0)
    ''')
    def issue(u):
        if u > 8: return
        a(f's_add_u32 m0, s21, {u*2048 - u*128}\ns_nop 0')
        vm.issue(u, f'buffer_load_dwordx4 v6, s[28:31], s23 offen offset:{u*128} lds')
        a(f's_add_u32 m0, s21, {u*2048 + 1024 - u*128}\ns_nop 0')
        vm.issue(u, f'buffer_load_dwordx4 v7, s[28:31], s23 offen offset:{u*128} lds')
    issue(0); a('s_setprio 2'); issue(1); a('s_setprio 0')
    stamp(a, 'issued')
    a('v_and_b32 v2, 15, v1\nv_lshrrev_b32 v3, 4, v1')
    stat_consts(a, ONE, IDX, (SX,))
    x_read_addr(a, XRA, 21)
    kv_tra(a, TRA)
    srd(a, 32, 6, WS_KV, WS_WO - WS_KV)
    a(f'''
    s_mov_b32 s47, {EX_OFF}
    v_lshl_add_u32 v51, v3, 4, s47
    s_lshr_b32 s46, s16, 1
    s_mul_i32 s46, s46, {KVREC}
    s_and_b32 s47, s16, 1
    s_lshl_b32 s47, s47, 4
    v_add_u32 v4, s47, v2
    v_lshl_add_u32 v54, v4, 4, s46
    v_lshrrev_b32 v55, 1, v3
    v_lshl_add_u32 v54, v55, 9, v54
    v_and_b32 v55, 1, v3
    v_lshl_add_u32 v54, v55, 3, v54
    v_lshrrev_b32 v55, 3, v4
    v_mul_u32_u24 v55, 304, v55
    v_add_u32 v55, s46, v55
    v_and_b32 v56, 7, v4
    v_lshl_add_u32 v55, v56, 1, v55
    v_lshl_add_u32 v57, v3, 6, v55
    v_lshl_add_u32 v58, v4, 2, s46
    v_mov_b32 v59, 0x3f80
    ''')
    def reads(t):
        w, o = WB + 12 * (t % 3), (t % 16) * 1024
        return [((t, 'x'), f'ds_read_b128 a[{XB+4*(t%4)}:{XB+4*(t%4)+3}], v{XRA + t % 2} offset:{(t // 2) * 2048}'),
                ((t, 0), f'ds_read_b64_tr_b16 a[{w}:{w+1}], v{TRA} offset:{o}'),
                ((t, 0), f'ds_read_b64_tr_b16 a[{w+2}:{w+3}], v{TRA} offset:{o+256}'),
                ((t, 1), f'ds_read_b64_tr_b16 a[{w+4}:{w+5}], v{TRA} offset:{KV_VM+o}'),
                ((t, 1), f'ds_read_b64_tr_b16 a[{w+6}:{w+7}], v{TRA} offset:{KV_VM+o+256}'),
                ((t, 2), f'ds_read_b64_tr_b16 a[{w+8}:{w+9}], v{TRA+1} offset:{KV_KE+t*512}'),
                ((t, 2), f'ds_read_b64_tr_b16 a[{w+10}:{w+11}], v{TRA+1} offset:{KV_KE+t*512+64}')]
    def mfmas(t):
        w, x = WB + 12 * (t % 3), XB + 4 * (t % 4)
        m = [([(t, 'x')], smf16(SX, vr(ONE, 4), ar(x - 4, 8), IDX))] if t % 2 else []
        m += [([(t, 'x')], mf16(GR, ar(x, 4), ar(x, 4), t == 0))]
        return m + [([(t, 'x'), (t, j)], mf16(ACC + 4 * j, ar(w + 4 * j, 4), ar(x, 4), t == 0)) for j in range(3)]
    kloop(a, vm, reads, mfmas, issue)
    stamp(a, 'loop')
    a('s_nop 4')
    a(stats_raw(GR, SX, 48, 50, 49))
    a(stats_fin(48, 50, 49, 1.0))
    a('s_barrier')
    CS, P = 60, 72
    for j in range(3): a(f'ds_read_b128 v[{CS+4*j}:{CS+4*j+3}], v51 offset:{64*j}')
    a('s_mov_b32 s48, 0xffff0000\ns_mov_b32 s49, 0\ns_mov_b32 s50, 0\ns_mov_b32 s51, 0xffff0000')
    for j in range(3):
        a(f's_waitcnt lgkmcnt({2-j})')
        for i in range(4 * j, 4 * j + 4): a(f'v_fma_f32 v{ACC+i}, -v50, v{CS+i}, v{ACC+i}')
    for i in range(12): a(f'v_mul_f32 v{ACC+i}, v48, v{ACC+i}')
    for i in range(6): a(f'v_cvt_pk_bf16_f32 v{P+i}, v{ACC+2*i}, v{ACC+2*i+1}')
    a(f'''
    ds_write_b64 v54, v[{P}:{P+1}]
    ds_write_b16 v57, v{P+2} offset:{KV_V}
    ds_write_b16_d16_hi v57, v{P+2} offset:{KV_V+16}
    ds_write_b16 v57, v{P+3} offset:{KV_V+32}
    ds_write_b16_d16_hi v57, v{P+3} offset:{KV_V+48}
    s_mov_b64 exec, s[48:49]
    ds_write_b32 v58, v{P+5} offset:{KV_X}
    ds_write_b32 v58, v59 offset:{KV_X+128}
    s_mov_b64 exec, s[50:51]
    ds_write_b16 v55, v{P+5} offset:{KV_V+256}
    ds_write_b16_d16_hi v55, v{P+5} offset:{KV_V+272}
    ds_write_b16 v55, v59 offset:{KV_V+288}
    s_mov_b64 exec, -1
    v_cndmask_b32 v60, 0, v{P+5}, s[48:49]
    v_mov_b32 v61, 0
    v_dot2c_f32_bf16 v61, v{P}, v{P}
    v_dot2c_f32_bf16 v61, v{P+1}, v{P+1}
    v_dot2c_f32_bf16 v61, v60, v60
    s_nop 2
    v_mov_b32 v62, v61
    s_nop 1
    v_permlane32_swap_b32 v61, v62
    v_add_f32 v61, v61, v62
    v_mov_b32 v62, v61
    s_nop 1
    v_permlane16_swap_b32 v61, v62
    v_add_f32 v61, v61, v62
    s_nop 1
    v_max_f32_dpp v61, v61, v61 row_ror:8 row_mask:0xf bank_mask:0xf
    s_nop 1
    v_max_f32_dpp v61, v61, v61 row_ror:4 row_mask:0xf bank_mask:0xf
    s_nop 1
    v_max_f32_dpp v61, v61, v61 row_ror:2 row_mask:0xf bank_mask:0xf
    s_nop 1
    v_max_f32_dpp v61, v61, v61 row_ror:1 row_mask:0xf bank_mask:0xf
    s_lshl_b32 s46, s16, 2
    s_add_u32 s46, s46, {EX_OFF + 256}
    v_mov_b32 v62, s46
    ds_write_b32 v62, v61
    s_branch L_kv_out
    ''')

def kv_helper(a, stamp, done):
    ACC, ONE, TRA, WB = 16, 24, 28, 0
    vm = Vm(a)
    a(f'''
    s_sub_u32 s23, s16, 6
    v_lshrrev_b32 v2, 1, v1
    v_and_b32 v3, 0x13, v2
    v_bfe_u32 v4, v2, 2, 1
    v_bfe_u32 v5, v2, 3, 1
    v_lshl_add_u32 v3, v4, 3, v3
    v_lshl_add_u32 v3, v5, 2, v3
    v_mul_u32_u24 v3, 36, v3
    v_and_b32 v4, 1, v1
    v_lshl_add_u32 v6, v4, 4, v3
    v_mul_u32_u24 v7, 36, v1
    v_add_u32 v7, 20, v7
    s_mov_b32 s22, 0
    s_mul_i32 s20, s23, {KV_VM}
    s_mul_i32 s21, s23, {KV_VE-KV_KE}
    s_add_u32 s21, s21, {KV_KE}
    s_setprio 3
    s_waitcnt lgkmcnt(0)
    s_cmp_eq_u32 s23, 0
    s_cselect_b32 s28, s8, s10
    s_cselect_b32 s29, s9, s11
    s_mov_b32 s30, {D*36}
    s_mov_b32 s31, 0x20000
    ''')
    def issue(u):
        if u == 5:
            clears(vm, 23, 32)
        if u > 8: return
        a(f's_add_u32 m0, s21, {u*1024}\ns_nop 0')
        vm.issue(u, 'buffer_load_dwordx4 v7, s[28:31], s22 offen lds')
        a(f's_add_u32 m0, s20, {(u%8)*2048}\ns_nop 0')
        vm.issue(u, 'buffer_load_dwordx4 v6, s[28:31], s22 offen lds')
        a(f's_add_u32 m0, s20, {(u%8)*2048+1024}\ns_add_u32 s22, s22, {ROWB}')
        vm.issue(u, f'buffer_load_dwordx4 v6, s[28:31], s22 offen lds')
        if u < 8: a(f's_add_u32 s22, s22, {ROWB}')
    issue(0); a('s_setprio 2'); issue(1); a('s_setprio 0')
    srd(a, 32, 6, 0, WS_USED)
    a('v_lshrrev_b32 v3, 4, v1')
    kv_tra(a, TRA)
    a(f'v_add_u32 v{TRA}, s20, v{TRA}')
    for i in range(4): a(f'v_mov_b32 v{ONE+i}, {hx(ONES)}')
    def reads(t):
        w, o = WB + 8 * (t % 3), (t % 16) * 1024
        return [((t, 0), f'ds_read_b64_tr_b16 a[{w}:{w+1}], v{TRA} offset:{o}'),
                ((t, 0), f'ds_read_b64_tr_b16 a[{w+2}:{w+3}], v{TRA} offset:{o+256}'),
                ((t, 1), f'ds_read_b64_tr_b16 a[{w+4}:{w+5}], v{TRA+1} offset:{KV_KE+t*512}'),
                ((t, 1), f'ds_read_b64_tr_b16 a[{w+6}:{w+7}], v{TRA+1} offset:{KV_KE+t*512+64}')]
    def mfmas(t):
        w = WB + 8 * (t % 3)
        return [([(t, j)], mf16(ACC + 4 * j, ar(w + 4 * j, 4), vr(ONE, 4), t == 0)) for j in range(2)]
    kloop(a, vm, reads, mfmas, issue)
    a(f'''
    s_lshl_b32 s46, s23, 6
    s_add_u32 s46, s46, {EX_OFF}
    v_lshl_add_u32 v8, v3, 4, s46
    s_mov_b32 s46, {EX_OFF + 128}
    v_lshl_add_u32 v9, v3, 4, s46
    s_mov_b32 s48, 0x00010001
    s_mov_b32 s49, 0x00010001
    s_mov_b64 exec, s[48:49]
    s_nop 1
    ds_write_b128 v8, v[{ACC}:{ACC+3}]
    ds_write_b128 v9, v[{ACC+4}:{ACC+7}]
    s_mov_b64 exec, -1
    s_waitcnt lgkmcnt(0)
    s_barrier
    ''')
    srd(a, 32, 6, WS_KV, WS_WO - WS_KV)
    a('L_kv_out:')
    kv_out(a, done)

def decode(a, rotate):
    a(f'''
    v_lshrrev_b32 v2, 6, v0
    v_and_b32 v1, 63, v0
    s_and_b32 s20, s2, 7
    v_readfirstlane_b32 s16, v2
    s_lshr_b32 s21, s2, 3
    s_mul_i32 s22, s20, 29
    s_mul_i32 s23, s20, 3
    s_cmp_eq_u32 s20, 7
    s_cselect_b32 s24, 1, 0
    s_add_u32 s22, s22, s24
    s_sub_u32 s23, s23, s24
    s_cmp_ge_u32 s20, 6
    s_cselect_b32 s24, 30, 29
    s_cmp_ge_u32 s21, s24
    s_cbranch_scc1 L_k1_kv
    s_add_u32 s26, s22, s21
    s_mul_i32 s17, s26, 57
    s_lshr_b32 s17, s17, 9
    s_mul_i32 s18, s17, 9
    s_sub_u32 s18, s26, s18
    ''')

def phase1(a, rotate, stamp, done):
    global STAMP
    STAMP = stamp
    decode(a, rotate)
    q_common(a)
    a('s_cmp_ge_u32 s16, 4\ns_cbranch_scc1 L_k1_qs')
    q_big(a, stamp, done)
    a('L_k1_qs:')
    q_small(a, stamp, done)
    a('L_k1_kv:\ns_sub_u32 s17, s21, s24\ns_add_u32 s17, s17, s23')
    a('s_cmp_ge_u32 s16, 6\ns_cbranch_scc1 L_k1_hkv')
    kv_main(a, stamp, done)
    a('L_k1_hkv:')
    kv_helper(a, stamp, done)

def entry(a, stamp, exit_label):
    a(f'''
    s_cmp_ge_u32 s2, 256
    s_cbranch_scc1 {exit_label}
    s_load_dwordx2 s[28:29], s[0:1], {KA_X}
    s_load_dwordx2 s[60:61], s[0:1], {KA_WQ}
    s_load_dwordx4 s[8:11], s[0:1], {KA_WK}
    s_load_dwordx2 s[12:13], s[0:1], {KA_WO}
    s_load_dwordx4 s[4:7], s[0:1], {KA_DBG}
    s_mov_b32 s30, {S*ROWB}
    s_mov_b32 s31, 0x20000
    s_mov_b32 s62, {D*ROWB}
    s_mov_b32 s63, 0x20000
    ''')
    stamp(a, 'start')

def diag(t):
    out = []
    for l in t.split('\n'):
        s = l.strip()
        if 'nomfma' in DIAG and 'mfma' in s: continue
        if 'nord' in DIAG and s.startswith('ds_read') and ' a[' in s: continue
        if 'nodma' in DIAG and s.endswith('lds'): continue
        out.append(l)
    return '\n'.join(out)

def k1(name, rotate=True, stamp=nomark):
    a = Asm()
    a(f'.globl {name}\n.p2align 8\n.type {name},@function\n{name}:')
    entry(a, stamp, 'L_k1_exit')
    def done(a):
        stamp(a, 'end'); a('s_endpgm')
    phase1(a, rotate, stamp, done)
    a('L_k1_exit:\ns_endpgm')
    return diag(a.text())
```

```python
from common import *

LG, LU, LD = 0, 36864, 73728
LP = 110592
LO = LP + 20480
LQ = LO + 9 * 1152
LDUM = LQ + 8 * 1280
LX = LDUM + 1024
X_FLAG, X_KEY, X_WIN, X_G, X_ACT, X_MAX, X_PMAX = LX, LX + 32, LX + 64, LX + 128, LX + 640, LX + 1152, LP
K2_LDS = LX + 2304
HROW = 2320
LQR = LP
ONES = 0x3f803f80
M_LIMIT = 48.0
SPIN = 40000

SA, SB, OACC, T = 0, 16, 32, 52
IDXA, IDXB, WAD, RAD, OAD, OST, AAD, L16, QAD, GUV, MV, LANE, WAD3, QXAD = 68, 69, 70, 71, 72, 73, 74, 75, 76, 77, 78, 79, 80, 81
NV = 84
KM, KX, VV, OO, WO, QM, QX, AF = 0, 32, 40, 104, 120, 160, 164, 168
NA = 172
S_WS, S_G, S_U, S_D, S_X, S_OUT, S_WR = 20, 24, 28, 32, 36, 40, 44
WAVE, S_FS, S_WOC, S_MG, S_MU, S_MD, S_MST, S_GOFF, S_DOFF, S_CNT, S_NT0 = 18, 19, 48, 49, 50, 51, 52, 53, 54, 55, 56
S_DST = 57
DIAG = set()
LDP = ''
FUSED = False

def qkx(Y, slot): return f'v_mfma_f32_32x32x8bf16_1k v[{Y}:{Y+15}], a[{KX+(slot&~1)}:{KX+(slot&~1)+1}], a[{QX+2*(slot&1)}:{QX+2*(slot&1)+1}], 0'
def qkm(Y, slot): return f'v_mfma_f32_32x32x16_bf16 v[{Y}:{Y+15}], a[{KM+4*slot}:{KM+4*slot+3}], a[{QM}:{QM+3}], v[{Y}:{Y+15}]'
def pv(X, slot, s): return f'v_smfmac_f32_32x32x32_bf16 a[{OO}:{OO+15}], a[{VV+8*slot+4*s}:{VV+8*slot+4*s+3}], v[{X+8*s}:{X+8*s+7}], v{IDXA}'
def zero_o(): return f'v_mfma_f32_32x32x8bf16_1k a[{OO}:{OO+15}], a[{QX}:{QX+1}], a[{QX+2}:{QX+3}], 0'
def oproj(f, af, w): return f'v_smfmac_f32_16x16x64_bf16 v[{OACC+4*f}:{OACC+4*f+3}], a[{af}:{af+3}], a[{w}:{w+7}], v{IDXB}'
W_PART = [f'ds_write_b128 v{WAD}, a[{OO}:{OO+3}]', f'ds_write_b128 v{WAD}, a[{OO+4}:{OO+7}] offset:32', f'ds_write_b64 v{WAD3}, a[{OO+8}:{OO+9}]']
R_PART = [f'ds_read2st64_b64 v[{T+4*i}:{T+4*i+3}], v{RAD} offset0:{10*i} offset1:{10*i+5}' for i in range(4)]
def pka(d, x, y): return f'v_add_f32 v{T+d}, v{T+x}, v{T+y}\nv_add_f32 v{T+d+1}, v{T+x+1}, v{T+y+1}'
ADDS = [pka(0, 0, 2), pka(4, 4, 6), pka(8, 8, 10), pka(12, 12, 14), pka(0, 0, 4), pka(8, 8, 12), pka(0, 0, 8)]
NORM = [f'v_rcp_f32_dpp v{T+2}, v{T} row_newbcast:9 row_mask:0xf bank_mask:0xf',
        f'v_mul_f32 v{T}, v{T}, v{T+2}\nv_mul_f32 v{T+1}, v{T+1}, v{T+2}',
        f'v_cvt_pk_bf16_f32 v{T+4}, v{T}, v{T+1}',
        f'ds_write_b32 v{OAD}, v{T+4}',
        f'v_add_u32 v{OAD}, v{OST}, v{OAD}']

def tile(a, t, ex, slow, prev=True, nxt=True, kind='std', x16=None, x16b=None):
    X, Y = (SA, SB) if t % 2 == 0 else (SB, SA)
    m = {}
    def put(p, s): m.setdefault(p, []).append(s)
    p_pvb, p_x, p_qx, p_qm, p_pva = 2, 5, 6, 10, 14
    if kind == 'first': p_qx, p_qm, p_pva = 5, 9, 16
    if kind == 'second':
        p_pvb = 3
        if x16: p_x, p_qx, p_qm = 6, 7, 11
    if prev: put(p_pvb, pv(Y, (t - 1) % 8, 1))
    if x16:
        for s in x16: put(p_x, s)
    if x16b:
        for s in x16b: put(13, s)
    if nxt:
        put(p_qx, ('qx', qkx(Y, (t + 1) % 8))); put(p_qm, qkm(Y, (t + 1) % 8))
    if kind == 'first':
        for s in W_PART: put(p_qm, s)
        put(12, zero_o())
    put(p_pva, ('pa', pv(X, t, 0)))
    for p in range(17):
        for s in m.get(p, []):
            if isinstance(s, tuple):
                for e in ex.get(s[0], []): e() if callable(e) else a(e)
                s = s[1]
            s() if callable(s) else a(s)
        for e in ex.get(p, []): e() if callable(e) else a(e)
        if p < 16:
            if slow: a(f'v_sub_f32 v{X+p}, v{X+p}, v{MV}')
            a(f'v_exp_f32 v{X+p}, v{X+p}')

def wo_load(vm, tag, reg, soff_add):
    def th():
        vm.a(f's_add_u32 s58, s{S_WOC}, {soff_add}')
        vm.issue(tag, f'buffer_load_dwordx4 a[{reg}:{reg+3}], v{L16}, s[{S_WS}:{S_WS+3}], s58 offen{LDP}')
        vm.issue(tag, f'buffer_load_dwordx4 a[{reg+4}:{reg+7}], v{L16}, s[{S_WS}:{S_WS+3}], s58 offen offset:1024{LDP}')
    return th

def q_reads(slow):
    r = [f'ds_read_b128 a[{QM}:{QM+3}], v{QAD}', f'ds_read_b32 a{QX}, v{QXAD}', f'ds_read_b32 a{QX+3}, v{QXAD}',
         f'v_add_u32 v{QAD}, 1280, v{QAD}', f'v_add_u32 v{QXAD}, 1280, v{QXAD}']
    return r

STEP = 36 * 2048
def attention(a, n, slow, lab, vm, stamp):
    prio = {1: 2, 2: 1, 3: 0, 4: 3, 5: 2, 6: 1, 7: 1, 0: 0}
    def mload():
        return [f'ds_read_b32 v{T+15}, v82', 's_waitcnt lgkmcnt(0)', 'v_add_u32 v82, 128, v82'] if slow else []
    a('s_waitcnt lgkmcnt(0)')
    vm.need('km0')
    a(qkx(SA, 0)); a(qkm(SA, 0)); a(zero_o())
    if slow:
        a(f'ds_read_b32 v{MV}, v82\nv_add_u32 v82, 128, v82\ns_waitcnt lgkmcnt(0)')
    a('s_nop 3')
    for t in range(8):
        ex = {0: [f's_setprio {prio[t]}']}
        if t < 7: ex['qx'] = [lambda t=t: vm.need(f'km{t+1}')]
        ex['pa'] = [lambda t=t: vm.need(f'v{t}')]
        if t < 5:
            for q in range(4): ex[1 + 4 * q] = [lambda t=t, q=q: kv_load(vm, t + 3, q)]
        if t == 5:
            for q in range(3): ex[1 + 3 * q] = [lambda q=q: warm(vm, q)]
            ex[12] = [wo_load(vm, 'f', WO, 0)]
        if t >= 6:
            ex[1] = [wo_load(vm, 'f', WO + 8 * (2 * t - 11), (2 * t - 11) * 2048)]
            if t == 6: ex[8] = [wo_load(vm, 'f', WO + 16, 2 * 2048)]
        if t == 6: ex[11] = q_reads(slow)
        if t == 7:
            ex['qx'] = ['s_waitcnt lgkmcnt(0)']
            if n == 5: ex[15] = [wo_load(vm, 'f', WO + 32, 4 * 2048)]
            ex[11] = mload()
            ex[16] = [f's_add_u32 s{S_WOC}, s{S_WOC}, {STEP}']
        tile(a, t, ex, slow, prev=t > 0)
        if t == 7 and slow: a(f'v_mov_b32 v{MV}, v{T+15}')
    stamp(a, 's0')
    def dma(q):
        srdr, off, vo, so = ((S_G, LG, GUV, S_GOFF), (S_U, LU, GUV, S_GOFF), (S_D, LD, L16, S_DOFF))[q]
        r = [f's_add_u32 m0, s{S_MG}, {off}', 's_nop 0', f'buffer_load_dwordx4 v{vo}, s[{srdr}:{srdr+3}], s{so} offen lds']
        return r + [[], [f's_add_u32 s{S_GOFF}, s{S_GOFF}, {6*16*F*2}'], [f's_add_u32 s{S_MG}, s{S_MG}, 6144', f's_add_u32 s{S_DOFF}, s{S_DOFF}, 6144']][q]
    use = {4: [0], 5: [1], 6: [2], 7: [3, 4][:n - 3]}
    def body(last, xfer=False):
        lv = Vm(a)
        nvm = 2 * n - 2 + (3 if xfer else 0)
        if last:
            lv.q = [f'f{f}' for f in range(n) for _ in range(2)]
            free = {1: [KM, VV], 2: [VV + 8], 3: [KM + 8, VV + 16]}
            todo = [(8, f) for f in range(n)]
            where = {}
        for t in range(8):
            ex = {0: [f's_setprio {prio[t]}']}
            x16, x16b = None, None
            for q, f in enumerate(use.get(t, [])):
                wait = (lambda f=f: lv.need(f'f{f}')) if last else f's_waitcnt vmcnt({nvm})'
                item = [wait, oproj(f, AF, WO + 8 * f)]
                if t == 4: item = ['s_waitcnt lgkmcnt(0)'] + item
                if q == 0 and t != 4: x16 = item
                else: x16b = item
                ex.setdefault(8 if (q == 0 and t != 4) else 15, []).append(wo_load(lv, f'f{f}', WO + 8 * f, f * 2048))
            if t == 0:
                ex[16] = ['s_waitcnt lgkmcnt(0)', 's_barrier']
            if t == 1:
                for i, p in enumerate((1, 5, 8, 12)): ex.setdefault(p, []).append(R_PART[i])
            if t == 2:
                ex.setdefault(1, []).append('s_waitcnt lgkmcnt(0)')
                for i, p in enumerate((1, 3, 5, 7, 9, 11, 13)): ex.setdefault(p, []).append(ADDS[i])
            if t == 3:
                for i, p in enumerate((0, 2, 4, 5, 7)): ex.setdefault(p, []).append(NORM[i])
                ex[16] = ['s_waitcnt lgkmcnt(0)', 's_barrier']
            if xfer and t < 3: ex.setdefault(14, []).extend(dma(t))
            if t == 4:
                ex[1] = [f'ds_read_b128 a[{AF}:{AF+3}], v{AAD}', f'v_add_u32 v{AAD}, 1152, v{AAD}']
            if t == 6 and not last: ex[11] = q_reads(slow)
            if t == 7 and not last:
                ex['qx'] = ['s_waitcnt lgkmcnt(0)']
                ex[11] = mload()
                ex[16] = [f's_add_u32 s{S_WOC}, s{S_WOC}, {STEP}', f's_sub_u32 s{S_CNT}, s{S_CNT}, 1', f's_cmp_lg_u32 s{S_CNT}, 0']
            if last:
                for i, reg in enumerate(free.get(t, [])):
                    if todo:
                        st, f = todo.pop(0); where[(st, f)] = reg
                        ex.setdefault(11 + 3 * i, []).append(wo_load(lv, f's{st}f{f}', reg, f * 2048 + STEP))
                if t == 7:
                    def rows():
                        for i in range(5): lv.issue('x', f'buffer_load_dword v{SA+i}, v82, s[{S_X}:{S_X+3}], s59 offen offset:{256*i}')
                        for i in range(5): lv.issue('w', f'buffer_load_dword v{SA+5+i}, v82, s[{S_WR}:{S_WR+3}], 0 offen offset:{256*i}')
                    ex[3] = [f'v_lshlrev_b32 v82, 2, v{LANE}', f's_lshl_b32 s59, s2, 3', f's_add_u32 s59, s59, s{WAVE}', f's_mul_i32 s59, s59, {ROWB}', rows]
            tile(a, t, ex, slow, nxt=not (last and t == 7), kind={0: 'first', 1: 'second'}.get(t, 'std'), x16=x16, x16b=x16b)
            if t == 7 and slow and not last: a(f'v_mov_b32 v{MV}, v{T+15}')
        if last:
            assert not todo
            return lv, where
    a(f's_mov_b32 s{S_CNT}, 6\ns_cmp_eq_u32 s{S_MST}, 0\ns_cbranch_scc1 {lab}n_loop\n.p2align 3\n{lab}x_loop:')
    body(False, True)
    a(f's_cbranch_scc1 {lab}x_loop\ns_branch {lab}_last\n.p2align 3\n{lab}n_loop:')
    body(False, False)
    a(f's_cbranch_scc1 {lab}n_loop\n{lab}_last:')
    stamp(a, 's6')
    lv, where = body(True)
    a('s_setprio 0\ns_nop 0')
    a(pv(SB, 7, 1))
    stamp(a, 's7')
    a('s_nop 9')
    for s in W_PART: a(s)
    a('s_waitcnt lgkmcnt(0)\ns_barrier')
    stamp(a, 'b1')
    for s in R_PART: a(s)
    a('s_waitcnt lgkmcnt(2)'); a(ADDS[0]); a(ADDS[1]); a(ADDS[4]); a('s_waitcnt lgkmcnt(0)')
    for q in (2, 3, 5, 6): a(ADDS[q])
    a('s_nop 0'); a(NORM[0]); a('s_nop 0')
    for s in NORM[1:4]: a(s)
    a(f'''
    s_waitcnt lgkmcnt(0)
    s_barrier
    ds_read_b128 a[{QM}:{QM+3}], v{AAD} offset:1152
    ds_read_b128 a[{AF}:{AF+3}], v{AAD}
    ''')
    stamp(a, 'b2')
    a('s_waitcnt lgkmcnt(1)')
    for f in range(n):
        lv.need(f's8f{f}'); a(oproj(f, QM, where[(8, f)]))
    a('s_waitcnt lgkmcnt(0)')
    for f in range(n):
        lv.need(f'f{f}'); a(oproj(f, AF, WO + 8 * f))
    stamp(a, 'op')
    a(f'''
    v_and_b32 v{T}, 15, v{LANE}
    v_bfe_u32 v{T+1}, v{LANE}, 4, 1
    v_mul_u32_u24 v{T+1}, {4*HROW}, v{T+1}
    v_lshl_add_u32 v{T}, v{T}, 2, v{T+1}
    s_lshl_b32 s58, s{S_NT0}, 6
    s_add_u32 s58, s58, {LP}
    v_add_u32 v{T}, s58, v{T}
    v_lshrrev_b32 v{T+1}, 5, v{LANE}
    v_lshl_add_u32 v{T+1}, v{T+1}, 6, v{T}
    ''')
    for p in range(2):
        A, B = OACC + 8 * p, OACC + 8 * p + 4
        for r in range(4): a(f'v_permlane32_swap_b32 v{A+r}, v{B+r}')
        for r in range(4): a(f'v_add_f32 v{A+r}, v{A+r}, v{B+r}')
        for r in range(4): a(f'ds_write_b32 v{T+1}, v{A+r} offset:{r*HROW + p*128}')
    if n == 5:
        A = OACC + 16
        for r in range(4): a(f'v_mov_b32 v{T+4+r}, v{A+r}')
        for r in range(4): a(f'v_permlane32_swap_b32 v{A+r}, v{T+4+r}')
        for r in range(4): a(f'v_add_f32 v{A+r}, v{A+r}, v{T+4+r}')
        for r in range(4): a(f'ds_write_b32 v{T}, v{A+r} offset:{r*HROW + 256}')
    lv.need('x', 'w')
    a(f's_branch L_tail')

def warm(vm, i):
    vm.a(f's_add_u32 s58, s60, {i*8192}')
    vm.issue('warm', f'buffer_load_dwordx4 a[{WO+8*i}:{WO+3+8*i}], v{L16}, s[{S_WS}:{S_WS+3}], s58 offen{LDP}')

def dpp_reduce(a, op, regs):
    for c in ('row_shr:1', 'row_shr:2', 'row_shr:4', 'row_shr:8', 'row_bcast:15 row_mask:0xa', 'row_bcast:31 row_mask:0xc'):
        if len(regs) < 3: a(f's_nop {2 - len(regs)}')
        for r in regs:
            mask = '' if 'row_mask' in c else ' row_mask:0xf'
            a(f'{op}_dpp v{r}, v{r}, v{r} {c}{mask} bank_mask:0xf')

def bf_round(a, dst, src):
    a(f'v_cvt_pk_bf16_f32 v{dst}, v{src}, v{src}\nv_and_b32 v{dst}, 0xffff0000, v{dst}')
def unpack(a, lo, src):
    a(f'v_lshlrev_b32 v{lo}, 16, v{src}\nv_and_b32 v{lo+1}, 0xffff0000, v{src}')

def tail(a, stamp):
    XP, WP, XF, AT, HP, LN, OU = 0, 5, 10, 20, 30, 35, 60
    a(f'''
L_tail:
    s_mul_i32 s58, s{WAVE}, {HROW}
    s_add_u32 s58, s58, {LP}
    v_lshl_add_u32 v50, v{LANE}, 3, s58
    v_mov_b32 v46, 0
    v_mov_b32 v47, 0
    v_mov_b32 v48, 0
    v_mov_b32 v49, 0
    v_mov_b32 v51, {hx(ONES)}
    ''')
    for i in range(5): unpack(a, XF + 2 * i, XP + i)
    a('s_waitcnt lgkmcnt(0)\ns_barrier')
    for i in range(5): a(f'ds_read_b64 v[{AT+2*i}:{AT+2*i+1}], v50 offset:{512*i}')
    for i in range(5): a(f'v_dot2c_f32_bf16 v49, v{WP+i}, v51')
    stamp(a, 'attn')
    a('s_mov_b32 s62, -1\ns_mov_b32 s63, 0')
    for i in range(5):
        a(f's_waitcnt lgkmcnt({4-i})\nv_pk_add_f32 v[{AT+2*i}:{AT+2*i+1}], v[{AT+2*i}:{AT+2*i+1}], v[{XF+2*i}:{XF+2*i+1}]')
        a(f'v_cvt_pk_bf16_f32 v{HP+i}, v{AT+2*i}, v{AT+2*i+1}')
        if i == 4: a(f'v_cndmask_b32 v{HP+4}, 0, v{HP+4}, s[62:63]')
        a(f'v_dot2c_f32_bf16 v46, v{HP+i}, v51\nv_dot2c_f32_bf16 v47, v{HP+i}, v{HP+i}\nv_dot2c_f32_bf16 v48, v{HP+i}, v{WP+i}')
    a('s_nop 2')
    dpp_reduce(a, 'v_add_f32', [46, 47, 48, 49])
    a(f'''
    s_nop 0
    v_readlane_b32 s64, v46, 63
    v_readlane_b32 s65, v47, 63
    v_readlane_b32 s66, v48, 63
    v_readlane_b32 s67, v49, 63
    v_mov_b32 v52, {hx(f32(1.0/D))}
    v_mul_f32 v46, s64, v52
    v_mul_f32 v47, s65, v52
    v_fma_f32 v47, -v46, v46, v47
    v_max_f32 v47, 0, v47
    ''')
    bf_round(a, 47, 47)
    a(f'v_add_f32 v47, {hx(f32(1e-5))}, v47')
    bf_round(a, 47, 47)
    a('v_sqrt_f32 v47, v47')
    bf_round(a, 46, 46)
    bf_round(a, 47, 47)
    a(f'''
    v_rcp_f32 v48, v47
    v_mov_b32 v53, s66
    v_fma_f32 v53, -v46, s67, v53
    v_mul_f32 v53, v53, v48
    v_cvt_pk_bf16_f32 v53, v53, v53
    s_lshl_b32 s59, s2, 3
    s_add_u32 s59, s59, s{WAVE}
    s_sub_u32 s58, 2047, s59
    v_ashrrev_i32 v54, 31, v53
    v_or_b32 v54, 0x80000000, v54
    v_xor_b32 v53, v53, v54
    v_lshrrev_b32 v53, 16, v53
    v_lshl_or_b32 v53, v53, 11, s58
    s_lshl_b32 s58, s{WAVE}, 2
    s_add_u32 s58, s58, {X_KEY}
    v_mov_b32 v54, s58
    v_and_b32 v55, 7, v{LANE}
    s_mov_b32 s58, {X_KEY}
    v_lshl_add_u32 v55, v55, 2, s58
    ds_write_b32 v54, v53
    s_mov_b32 s60, {GRAN_REP}
    v_mul_lo_u32 v56, s60, v{LANE}
    s_lshl_b32 s60, s2, 7
    s_add_u32 s60, s60, {WS_GRAN}
    s_waitcnt lgkmcnt(0)
    s_barrier
    ds_read_b32 v54, v55
    s_waitcnt lgkmcnt(0)
    v_cmp_gt_u32 vcc, v54, v53
    s_mov_b32 s61, 0
    s_cbranch_vccnz L_notbest
    s_mov_b64 exec, 0xff
    buffer_store_dword v53, v56, s[{S_WS}:{S_WS+3}], s60 offen sc1
    s_mov_b64 exec, -1
    s_mov_b32 s61, 1
L_notbest:
    ''')
    stamp(a, 'gran')
    a('v_sub_f32 v56, 0, v46\nv_mov_b32 v57, v56\nv_mov_b32 v49, v48')
    for i in range(5): unpack(a, XF + 2 * i, HP + i)
    for i in range(5): a(f'v_pk_add_f32 v[{AT+2*i}:{AT+2*i+1}], v[{XF+2*i}:{XF+2*i+1}], v[56:57]')
    for i in range(5): a(f'v_cvt_pk_bf16_f32 v{LN+i}, v{AT+2*i}, v{AT+2*i+1}')
    for i in range(5): unpack(a, AT + 2 * i, LN + i)
    for i in range(5): a(f'v_pk_mul_f32 v[{AT+2*i}:{AT+2*i+1}], v[{AT+2*i}:{AT+2*i+1}], v[48:49]')
    for i in range(5): a(f'v_cvt_pk_bf16_f32 v{LN+i}, v{AT+2*i}, v{AT+2*i+1}')
    a(f'''
    v_lshlrev_b32 v58, 2, v{LANE}
    s_cmp_eq_u32 s61, 1
    s_cbranch_scc0 L_norow
    s_mul_i32 s58, s2, 2304
    s_add_u32 s58, s58, {WS_ROWS}
    ''')
    for i in range(4): a(f'buffer_store_dword v{LN+i}, v58, s[{S_WS}:{S_WS+3}], s58 offen offset:{256*i} sc1')
    for i in range(4): a(f'buffer_store_dword v{HP+i}, v58, s[{S_WS}:{S_WS+3}], s58 offen offset:{1152+256*i} sc1')
    a(f'''
    s_mov_b32 exec_hi, 0
    buffer_store_dword v{LN+4}, v58, s[{S_WS}:{S_WS+3}], s58 offen offset:1024 sc1
    buffer_store_dword v{HP+4}, v58, s[{S_WS}:{S_WS+3}], s58 offen offset:{1152+1024} sc1
    s_mov_b32 exec_hi, -1
L_norow:
    ''')
    for i in range(5): unpack(a, AT + 2 * i, LN + i)
    for i in range(5): a(f'v_pk_add_f32 v[{AT+2*i}:{AT+2*i+1}], v[{AT+2*i}:{AT+2*i+1}], v[{XF+2*i}:{XF+2*i+1}]')
    for i in range(5): a(f'v_cvt_pk_bf16_f32 v{OU+i}, v{AT+2*i}, v{AT+2*i+1}')
    def out_row():
        for i in range(4): a(f'buffer_store_dword v{OU+i}, v58, s[{S_OUT}:{S_OUT+3}], s68 offen offset:{256*i}')
        a(f's_mov_b32 exec_hi, 0\nbuffer_store_dword v{OU+4}, v58, s[{S_OUT}:{S_OUT+3}], s68 offen offset:1024\ns_mov_b32 exec_hi, -1')
    a(f's_mul_i32 s68, s59, {ROWB}\ns_cmp_eq_u32 s61, 1\ns_cbranch_scc1 L_defer')
    out_row()
    a('L_defer:')
    stamp(a, 'rows')
    GW, DW = 0, 60
    a(f'''
    v_lshrrev_b32 v1, 4, v{LANE}
    v_bfe_u32 v2, v{LANE}, 2, 2
    v_and_b32 v3, 3, v{LANE}
    v_lshl_add_u32 v2, v1, 3, v2
    s_cmp_ge_u32 s{S_FS}, 144
    s_cbranch_scc1 L_nopre
    s_and_b32 s58, s{WAVE}, 1
    v_and_b32 v4, 1, v1
    v_xor_b32 v4, s58, v4
    v_lshlrev_b32 v4, 5, v4
    v_lshl_add_u32 v4, v2, 6, v4
    v_lshl_add_u32 v4, v3, 3, v4
    s_bfe_u32 s58, s{WAVE}, 0x10001
    s_mul_i32 s58, s58, {LU}
    s_lshr_b32 s60, s{WAVE}, 2
    s_mul_i32 s69, s60, {9*2048}
    s_add_u32 s58, s58, s69
    v_add_u32 v4, s58, v4
    v_mul_u32_u24 v5, {ROWB}, v2
    v_lshl_add_u32 v5, v3, 3, v5
    s_lshl_b32 s58, s{S_NT0}, 5
    s_add_u32 s58, s58, {LD}
    v_add_u32 v5, s58, v5
    ''')
    for i in range(9):
        a(f'ds_read_b64_tr_b16 a[{GW+4*i}:{GW+4*i+1}], v4 offset:{2048*i}\nds_read_b64_tr_b16 a[{GW+4*i+2}:{GW+4*i+3}], v4 offset:{2048*i+256}')
    for f in range(5):
        a(f'ds_read_b64_tr_b16 a[{DW+4*f}:{DW+4*f+1}], v5 offset:{32*f}\nds_read_b64_tr_b16 a[{DW+4*f+2}:{DW+4*f+3}], v5 offset:{32*f+4*ROWB}')
    a(f'''
L_nopre:
    s_cmp_ge_u32 s{WAVE}, 4
    s_cbranch_scc1 L_polled
    s_getreg_b32 s58, hwreg(HW_REG_XCC_ID)
    s_and_b32 s58, s58, 7
    s_mul_i32 s58, s58, {GRAN_REP}
    s_lshl_b32 s60, s{WAVE}, 13
    s_add_u32 s58, s58, s60
    s_add_u32 s58, s58, {WS_GRAN}
    v_lshlrev_b32 v6, 7, v{LANE}
    s_mov_b32 s60, 0
L_poll:
    buffer_load_dword v7, v6, s[{S_WS}:{S_WS+3}], s58 offen sc1
    s_add_u32 s60, s60, 1
    s_waitcnt vmcnt(0)
    v_cmp_eq_u32 vcc, -1, v7
    s_and_b64 exec, exec, vcc
    s_cbranch_execz L_polldone
    s_cmp_gt_u32 s60, {SPIN}
    s_cbranch_scc1 L_polldone
    s_sleep 3
    s_branch L_poll
L_polldone:
    s_mov_b64 exec, -1
    s_nop 1
    ''')
    dpp_reduce(a, 'v_max_u32', [7])
    a(f'''
    s_lshl_b32 s58, s{WAVE}, 2
    s_add_u32 s58, s58, {X_WIN}
    v_mov_b32 v8, s58
    s_mov_b32 exec_lo, 0
    s_mov_b32 exec_hi, 0x80000000
    ds_write_b32 v8, v7
    s_mov_b64 exec, -1
L_polled:
    v_mov_b32 v8, {X_WIN}
    s_waitcnt lgkmcnt(0)
    s_barrier
    ds_read_b128 v[10:13], v8
    s_waitcnt lgkmcnt(0)
    v_max_u32 v10, v10, v11
    v_max3_u32 v10, v10, v12, v13
    s_nop 0
    v_readfirstlane_b32 s62, v10
    s_and_b32 s63, s62, 2047
    s_sub_u32 s63, 2047, s63
    s_lshr_b32 s64, s63, 3
    s_mul_i32 s64, s64, 2304
    s_add_u32 s64, s64, {WS_ROWS}
    ''')
    stamp(a, 'win')
    a(f'''
    s_cmp_ge_u32 s{S_FS}, 144
    s_cbranch_scc1 L_noffn
    s_lshr_b32 s60, s{WAVE}, 2
    s_mul_i32 s60, s60, 576
    s_add_u32 s60, s60, s64
    v_lshlrev_b32 v6, 4, v1
    s_mov_b32 s65, 0
L_xsel:
    ''')
    XS = 10
    for i in range(9): a(f'buffer_load_dwordx4 v[{XS+4*i}:{XS+4*i+3}], v6, s[{S_WS}:{S_WS+3}], s60 offen offset:{64*i} sc1')
    a(f's_add_u32 s65, s65, 1')
    for i in range(9):
        a(f's_waitcnt vmcnt({8-i})')
        a(f'v_mfma_f32_16x16x32_bf16 v[46:49], a[{GW+4*i}:{GW+4*i+3}], v[{XS+4*i}:{XS+4*i+3}], ' + ('0' if i == 0 else 'v[46:49]'))
        if i == 0: a(f'v_max_u32 v50, v{XS}, v{XS+1}\nv_max3_u32 v50, v50, v{XS+2}, v{XS+3}')
        else: a(f'v_max3_u32 v50, v50, v{XS+4*i}, v{XS+4*i+1}\nv_max3_u32 v50, v50, v{XS+4*i+2}, v{XS+4*i+3}')
    a(f'''
    v_cmp_eq_u32 vcc, -1, v50
    s_lshl_b32 s58, s{WAVE}, 6
    s_add_u32 s58, s58, {X_G}
    v_add_u32 v7, s58, v6
    s_cbranch_vccz L_xok
    s_cmp_gt_u32 s65, {SPIN}
    s_cbranch_scc0 L_xsel
L_xok:
    ''')
    stamp(a, 'xin')
    a(f'''
    s_mov_b32 s66, 0x00010001
    s_mov_b32 s67, 0x00010001
    v_and_b32 v8, 31, v{LANE}
    s_mov_b32 s58, {X_G}
    v_lshl_add_u32 v9, v8, 2, s58
    s_mov_b64 exec, s[66:67]
    ds_write_b128 v7, v[46:49]
    s_mov_b64 exec, -1
    s_lshl_b32 s58, s{WAVE}, 6
    s_add_u32 s58, s58, {X_ACT}
    v_lshl_add_u32 v8, v8, 1, s58
    v_add_u32 v7, s58, v6
    s_waitcnt lgkmcnt(0)
    s_barrier
    ds_read2_b32 v[10:11], v9 offset0:0 offset1:64
    ds_read2_b32 v[12:13], v9 offset0:32 offset1:96
    v_lshrrev_b32 v2, 1, v1
    v_mul_u32_u24 v2, 4608, v2
    v_and_b32 v3, 1, v1
    v_lshl_add_u32 v2, v3, 4, v2
    s_mul_i32 s58, s{S_NT0}, 9216
    s_lshl_b32 s60, s{S_FS}, 5
    s_add_u32 s58, s58, s60
    s_add_u32 s58, s58, {WS_PART}
    s_waitcnt lgkmcnt(1)
    v_add_f32 v10, v10, v11
    ''')
    bf_round(a, 10, 10)
    a(f'''
    v_mul_f32 v11, {hx(f32(-math.log2(math.e)))}, v10
    v_exp_f32 v11, v11
    s_waitcnt lgkmcnt(0)
    v_add_f32 v12, v12, v13
    v_add_f32 v11, 1.0, v11
    v_rcp_f32 v11, v11
    ''')
    bf_round(a, 12, 12)
    a('v_mul_f32 v10, v10, v11')
    bf_round(a, 10, 10)
    a(f'''
    v_mul_f32 v10, v10, v12
    v_cvt_pk_bf16_f32 v10, v10, v10
    ds_write_b16 v8, v10
    s_waitcnt lgkmcnt(0)
    ds_read_b128 v[12:15], v7
    s_waitcnt lgkmcnt(0)
    ''')
    stamp(a, 'act')
    for f in range(5): a(f'v_mfma_f32_16x16x32_bf16 v[{16+4*f}:{19+4*f}], a[{DW+4*f}:{DW+4*f+3}], v[12:15], 0')
    a('s_mov_b64 exec, s[66:67]\ns_nop 2')
    for f in range(4):
        a(f'buffer_store_dwordx4 v[{16+4*f}:{19+4*f}], v2, s[{S_WS}:{S_WS+3}], s58 offen sc1\ns_add_u32 s58, s58, 9216')
    a(f'''
    s_cmp_ge_u32 s{WAVE}, 4
    s_cbranch_scc1 L_ffndone
    buffer_store_dwordx4 v[32:35], v2, s[{S_WS}:{S_WS+3}], s58 offen sc1
L_ffndone:
    s_mov_b64 exec, -1
    s_branch L_last
L_noffn:
    s_sub_u32 s69, s{S_FS}, 144
    s_cmp_ge_u32 s69, 72
    s_cbranch_scc1 L_last
    s_cmp_lg_u32 s{WAVE}, 0
    s_cbranch_scc1 L_last
    s_lshl_b32 s58, s69, 4
    s_add_u32 s58, s58, s64
    v_and_b32 v1, 1, v{LANE}
    v_lshlrev_b32 v2, 3, v1
    s_lshr_b32 s65, s62, 11
    s_lshl_b32 s65, s65, 16
    s_not_b32 s66, s65
    s_ashr_i32 s66, s66, 31
    s_or_b32 s66, s66, 0x80000000
    s_xor_b32 s65, s65, s66
    s_and_b32 s65, s65, 0xffff0000
    v_mov_b32 v3, s65
    v_mul_f32 v3, {hx(f32(-math.log2(math.e)))}, v3
    v_exp_f32 v3, v3
    s_mul_i32 s60, s69, 4608
    s_add_u32 s60, s60, {WS_PART}
    v_add_f32 v3, 1.0, v3
    v_rcp_f32 v3, v3
    s_mov_b32 s65, 0
    v_mov_b32 v26, 0
    v_mov_b32 v27, 0
    v_mov_b32 v28, 0
    v_mov_b32 v29, 0
    ''')
    bf_round(a, 3, 3)
    a(f'''
    s_sleep 10
L_fin:
    buffer_load_dwordx2 v[4:5], v2, s[{S_WS}:{S_WS+3}], s58 offen sc1
    buffer_load_dwordx2 v[6:7], v2, s[{S_WS}:{S_WS+3}], s58 offen offset:1152 sc1
    ''')
    for i in range(4): a(f'buffer_load_dwordx4 v[{10+4*i}:{13+4*i}], v{L16}, s[{S_WS}:{S_WS+3}], s60 offen offset:{1024*i} sc1')
    a(f'''
    s_add_u32 s66, s60, 4096
    s_mov_b32 exec_hi, 0
    buffer_load_dwordx4 v[26:29], v{L16}, s[{S_WS}:{S_WS+3}], s66 offen sc1
    s_mov_b32 exec_hi, -1
    s_add_u32 s65, s65, 1
    s_waitcnt vmcnt(0)
    v_max3_u32 v8, v4, v5, v6
    v_max3_u32 v8, v8, v7, v10
    ''')
    for i in range(11, 29, 2): a(f'v_max3_u32 v8, v8, v{i}, v{i+1}')
    a(f'''
    v_max_u32 v8, v8, v29
    v_cmp_eq_u32 vcc, -1, v8
    s_cbranch_vccz L_finok
    s_cmp_gt_u32 s65, {SPIN}
    s_cbranch_scc1 L_finok
    s_sleep 2
    s_branch L_fin
L_finok:
    ''')
    stamp(a, 'fin')
    a(f'''
    v_pk_add_f32 v[10:11], v[10:11], v[14:15]
    v_pk_add_f32 v[12:13], v[12:13], v[16:17]
    v_pk_add_f32 v[18:19], v[18:19], v[22:23]
    v_pk_add_f32 v[20:21], v[20:21], v[24:25]
    v_pk_add_f32 v[10:11], v[10:11], v[26:27]
    v_pk_add_f32 v[12:13], v[12:13], v[28:29]
    v_pk_add_f32 v[10:11], v[10:11], v[18:19]
    v_pk_add_f32 v[12:13], v[12:13], v[20:21]
    s_nop 0
    ''')
    for c in (8, 4, 2):
        for r in range(10, 14): a(f'v_add_f32_dpp v{r}, v{r}, v{r} row_ror:{c} row_mask:0xf bank_mask:0xf')
    for sw in ('v_permlane16_swap_b32', 'v_permlane32_swap_b32'):
        for r in range(4): a(f'v_mov_b32 v{14+r}, v{10+r}')
        for r in range(4): a(f'{sw} v{10+r}, v{14+r}')
        for r in range(4): a(f'v_add_f32 v{10+r}, v{10+r}, v{14+r}')
    a('v_cvt_pk_bf16_f32 v8, v10, v11\nv_cvt_pk_bf16_f32 v9, v12, v13')
    unpack(a, 10, 8); unpack(a, 12, 9)
    for r in range(4): a(f'v_mul_f32 v{10+r}, v3, v{10+r}')
    a('v_cvt_pk_bf16_f32 v8, v10, v11\nv_cvt_pk_bf16_f32 v9, v12, v13')
    unpack(a, 10, 8); unpack(a, 12, 9); unpack(a, 14, 4); unpack(a, 16, 5)
    for r in range(4): a(f'v_add_f32 v{10+r}, v{10+r}, v{14+r}')
    a('v_cvt_pk_bf16_f32 v8, v10, v11\nv_cvt_pk_bf16_f32 v9, v12, v13')
    unpack(a, 10, 8); unpack(a, 12, 9); unpack(a, 14, 6); unpack(a, 16, 7)
    for r in range(4): a(f'v_add_f32 v{10+r}, v{10+r}, v{14+r}')
    a(f'''
    v_cvt_pk_bf16_f32 v8, v10, v11
    v_cvt_pk_bf16_f32 v9, v12, v13
    s_mul_i32 s58, s63, {ROWB}
    s_lshl_b32 s60, s69, 4
    s_add_u32 s58, s58, s60
    s_mov_b64 exec, 3
    buffer_store_dwordx2 v[8:9], v2, s[{S_OUT}:{S_OUT+3}], s58 offen
    s_mov_b64 exec, -1
L_last:
    s_cmp_eq_u32 s61, 1
    s_cbranch_scc0 L_end
    s_cmp_eq_u32 s63, s59
    s_cbranch_scc1 L_end
    ''')
    out_row()
    a('L_end:')
    stamp(a, 'end')
    a('s_endpgm')

def kv_load(vm, t, part=None):
    ws = f's[{S_WS}:{S_WS+3}]'
    if part in (None, 0): vm.issue(f'km{t}', f'buffer_load_dwordx4 a[{KM+4*t}:{KM+4*t+3}], v{L16}, {ws}, s67 offen{LDP}')
    if part in (None, 1): vm.issue(f'km{t}', f'buffer_load_dword a{KX+t}, v{T+14}, {ws}, s67 offen offset:{KV_X}{LDP}')
    if part in (None, 2): vm.issue(f'v{t}', f'buffer_load_dwordx4 a[{VV+8*t}:{VV+8*t+3}], v83, {ws}, s67 offen offset:{KV_V}{LDP}')
    if part in (None, 3):
        vm.issue(f'v{t}', f'buffer_load_dwordx4 a[{VV+8*t+4}:{VV+8*t+7}], v83, {ws}, s67 offen offset:{KV_V+608}{LDP}')
        if t < 7: vm.a(f's_add_u32 s67, s67, {KVREC}\ns_cmp_ge_u32 s67, s63\ns_cselect_b32 s67, s62, s67')

def qprep(a, vm, stamp):
    a(f's_cmp_ge_u32 s{WAVE}, 4\ns_cbranch_scc1 L_nokmax')
    dpp_reduce(a, 'v_max_f32', [21])
    a(f'''
    s_lshl_b32 s58, s{WAVE}, 2
    s_add_u32 s58, s58, {X_WIN}
    v_mov_b32 v22, s58
    s_mov_b32 exec_lo, 0
    s_mov_b32 exec_hi, 0x80000000
    ds_write_b32 v22, v21
    s_mov_b64 exec, -1
L_nokmax:
    v_mov_b32 v22, {X_WIN}
    s_mov_b32 s68, -1
    s_mov_b32 s69, 0
    v_mov_b32 v18, 0
    s_waitcnt lgkmcnt(0)
    ''')
    vm.need('q')
    stamp(a, 'qin')
    a(f'''
    s_barrier
    ds_read2_b32 v[12:13], v8 offset0:0 offset1:1
    ds_read2_b32 v[14:15], v8 offset0:2 offset1:3
    ds_read_b32 v16, v7 offset:32
    ds_read_b128 v[20:23], v22
    ''')
    if 'late1' not in DIAG: kv_load(vm, 1)
    stamp(a, 'q1')
    a(f'''
    s_waitcnt lgkmcnt(1)
    v_cndmask_b32 v17, 0, v16, s[68:69]
    v_dot2c_f32_bf16 v18, v12, v12
    v_dot2c_f32_bf16 v18, v13, v13
    v_dot2c_f32_bf16 v18, v14, v14
    v_dot2c_f32_bf16 v18, v15, v15
    v_dot2c_f32_bf16 v18, v17, v17
    s_waitcnt lgkmcnt(0)
    v_max3_f32 v20, v20, v21, v22
    s_mul_i32 s59, s{WAVE}, 1280
    v_mov_b32 v19, v18
    v_max_f32 v20, v20, v23
    s_nop 0
    v_permlane32_swap_b32 v18, v19
    v_add_f32 v18, v18, v19
    v_mul_f32 v18, v20, v18
    v_sqrt_f32 v18, v18
    s_add_u32 s59, s59, {LQ}
    v_add_u32 v24, s59, v{L16}
    v_add_u32 v25, s59, v{T+14}
    v_add_u32 v18, 0x1ffff, v18
    v_and_b32 v18, 0xffff0000, v18
    v_cmp_nge_f32 vcc, {hx(f32(M_LIMIT))}, v18
    v_lshrrev_b32 v19, 16, v18
    v_or_b32 v19, 0x8000, v19
    v_cndmask_b32 v16, v19, v16, s[68:69]
    s_cmp_lg_u64 vcc, 0
    s_cselect_b32 s58, 1, 0
    ds_write_b128 v24, v[12:15]
    ds_write_b32 v25, v16 offset:1024
    s_lshl_b32 s59, s{WAVE}, 2
    s_add_u32 s59, s59, {X_FLAG}
    v_mov_b32 v26, s59
    v_mov_b32 v27, s58
    ds_write_b32 v26, v27
    ''')

def prologue(a, stamp):
    if FUSED:
        a(f'''
L_p1done:
        ''')
        stamp(a, 'qst')
        a(f'''
        s_mov_b32 s24, s4
        s_mov_b32 s25, s5
        s_mov_b32 s26, 4
        s_mov_b32 s27, 0x20000
        v_mov_b32 v2, 0
        s_mov_b32 s58, 0
        s_mov_b32 s{S_WS}, s6
        s_mov_b32 s{S_WS+1}, s7
        s_mov_b32 s{S_WS+2}, {WS_USED}
        s_mov_b32 s{S_WS+3}, 0x20000
        s_mov_b32 s59, {GRAN_REP}
        v_mul_lo_u32 v3, s59, v1
        s_lshl_b32 s59, s2, 7
        s_add_u32 s59, s59, {WS_GRAN}
        v_mov_b32 v30, -1
        v_mov_b32 v32, v29
L_tag:
        buffer_load_dword v31, v2, s[24:27], 0 offen sc1
        s_add_u32 s58, s58, 1
        s_waitcnt vmcnt(0)
        v_cmp_ne_u32 vcc, 0, v31
        s_cbranch_vccnz L_tagok
        s_cmp_gt_u32 s58, {SPIN}
        s_cbranch_scc0 L_tag
L_tagok:
        ''')
        stamp(a, 'drain')
        a(f'''
        s_barrier
        s_cmp_lg_u32 s16, 0
        s_cbranch_scc1 L_noflag
        s_mov_b64 exec, 0xff
        buffer_store_dwordx3 v[30:32], v3, s[{S_WS}:{S_WS+3}], s59 offen sc1
        s_mov_b64 exec, -1
L_noflag:
        ''')
        stamp(a, 'flag')
    else:
        a('s_cmp_ge_u32 s2, 256\ns_cbranch_scc1 L_k2_exit')
    a(f'''
    s_load_dwordx2 s[16:17], s[0:1], {KA_WS}
    s_load_dwordx2 s[4:5], s[0:1], {KA_X}
    s_load_dwordx8 s[8:15], s[0:1], {KA_WR}
    s_load_dwordx2 s[6:7], s[0:1], {KA_OUT}
    ''')
    if not FUSED: stamp(a, 'start')
    a(f'''
    s_setprio 3
    v_lshrrev_b32 v1, 6, v0
    v_and_b32 v{LANE}, 63, v0
    v_and_b32 v5, 7, v0
    v_readfirstlane_b32 s{WAVE}, v1
    v_bfe_u32 v6, v0, 3, 2
    s_lshl_b32 s58, s2, 3
    s_add_u32 s61, s58, s{WAVE}
    s_mul_i32 s61, s61, {ROWB}
    v_mul_u32_u24 v7, 1168, v5
    v_mad_u32_u24 v7, v6, 36, v7
    s_mul_i32 s58, s{WAVE}, 144
    s_add_u32 s58, s58, {LQR}
    v_add_u32 v7, s58, v7
    v_lshrrev_b32 v4, 5, v{LANE}
    v_lshl_add_u32 v8, v4, 4, v7
    s_mul_i32 s68, s{WAVE}, 1168
    s_add_u32 s68, s68, {LQR}
    v_lshlrev_b32 v{L16}, 4, v{LANE}
    v_lshlrev_b32 v{T+14}, 2, v{LANE}
    v_and_b32 v3, 31, v{LANE}
    v_min_u32 v10, 18, v3
    v_lshlrev_b32 v10, 4, v10
    s_movk_i32 s62, 304
    v_mad_u32_u24 v10, v4, s62, v10
    s_mov_b32 s64, 0x0013ffff
    s_mov_b32 s65, 0x0013ffff
    v_mov_b32 v2, 0x7f000000
    v_cndmask_b32 v83, v2, v10, s[64:65]
    s_bfe_u32 s60, s2, 0x30003
    s_mul_i32 s62, s{WAVE}, {8*KVREC}
    s_add_u32 s62, s62, {WS_KV}
    s_mul_i32 s67, s60, {KVREC}
    s_add_u32 s67, s67, s62
    s_add_u32 s63, s62, {8*KVREC}
    ''')
    for i in range(8): a(f'v_accvgpr_write_b32 a{KX+i}, 0')
    a('s_waitcnt lgkmcnt(0)')
    vm = Vm(a)
    def first_loads():
        ws = f's[{S_WS}:{S_WS+3}]'
        a('s_mov_b32 m0, s68\ns_mov_b64 exec, 0xff')
        vm.issue('q', f'buffer_load_dwordx4 v{L16}, {ws}, s61 offen offset:1024{LDP} lds')
        a('s_mov_b64 exec, -1')
        vm.issue('q', f'buffer_load_dwordx4 v{L16}, {ws}, s61 offen{LDP} lds')
        a('s_setprio 0')
        kv_load(vm, 0)
        stamp(a, 'issued')
    if not FUSED:
        srd(a, S_WS, 16, 0, WS_USED)
        first_loads()
    a(f'''
    s_and_b32 s58, s2, 7
    s_lshr_b32 s59, s2, 3
    s_mul_i32 s{S_FS}, s58, 18
    s_add_u32 s{S_FS}, s{S_FS}, s59
    s_cmp_lt_u32 s59, 18
    s_cselect_b32 s{S_FS}, s{S_FS}, s2
    s_cselect_b32 s69, {D*F*2}, 0
    ''')
    for d, b in ((S_G, 10), (S_U, 12), (S_D, 14)):
        a(f's_mov_b32 s{d}, s{b}\ns_mov_b32 s{d+1}, s{b+1}\ns_mov_b32 s{d+2}, s69\ns_mov_b32 s{d+3}, 0x20000')
    srd(a, S_X, 4, 0, S * ROWB); srd(a, S_OUT, 6, 0, S * ROWB); srd(a, S_WR, 8, 0, ROWB)
    a(f'''
    s_mul_i32 s{S_GOFF}, s{WAVE}, {16*F*2}
    s_lshl_b32 s58, s{S_FS}, 6
    s_add_u32 s{S_GOFF}, s{S_GOFF}, s58
    s_mul_i32 s{S_DOFF}, s{S_FS}, 36864
    s_lshl_b32 s58, s{WAVE}, 10
    s_add_u32 s{S_DOFF}, s{S_DOFF}, s58
    s_mov_b32 s{S_MG}, s58
    s_cmp_lt_u32 s{WAVE}, 6
    s_cselect_b32 s{S_MST}, s69, 0
    s_mul_i32 s{S_NT0}, s{WAVE}, 5
    s_lshl_b32 s58, s{WAVE}, 2
    s_add_u32 s58, s58, 4
    s_cmp_lt_u32 s{WAVE}, 4
    s_cselect_b32 s{S_NT0}, s{S_NT0}, s58
    s_lshl_b32 s{S_WOC}, s{S_NT0}, 11
    s_add_u32 s{S_WOC}, s{S_WOC}, {WS_WO}
    s_mul_i32 s60, s59, 20736
    s_lshl_b32 s58, s{WAVE}, 10
    s_add_u32 s60, s60, s58
    s_add_u32 s60, s60, {WS_WO}
    v_lshrrev_b32 v24, 2, v{LANE}
    v_mul_u32_u24 v25, {F*2}, v24
    v_lshrrev_b32 v24, 4, v{LANE}
    v_and_b32 v26, 2, v24
    v_and_b32 v27, 3, v{LANE}
    v_xor_b32 v26, v26, v27
    v_lshl_add_u32 v{GUV}, v26, 4, v25
    v_mov_b32 v{IDXA}, 0xdddd
    v_mov_b32 v{IDXB}, 0x4444
    v_mov_b32 v25, 0xeeee
    v_and_b32 v26, 15, v{LANE}
    v_cmp_lt_u32 vcc, 7, v26
    v_mul_u32_u24 v27, 80, v3
    s_mul_i32 s58, s{WAVE}, 2560
    v_cndmask_b32 v{IDXB}, v{IDXB}, v25, vcc
    s_add_u32 s58, s58, {LP}
    v_add_u32 v27, s58, v27
    v_lshl_add_u32 v{WAD}, v4, 4, v27
    v_lshl_add_u32 v{WAD3}, v4, 3, v27
    v_add_u32 v{WAD3}, 64, v{WAD3}
    v_min_u32 v25, 9, v26
    v_mul_u32_u24 v27, 640, v24
    v_lshl_add_u32 v27, v25, 3, v27
    s_mul_i32 s58, s{WAVE}, 80
    s_add_u32 s58, s58, {LP}
    v_add_u32 v{RAD}, s58, v27
    s_mul_i32 s58, s{WAVE}, 144
    s_add_u32 s58, s58, {LO}
    v_lshlrev_b32 v27, 5, v24
    v_lshl_add_u32 v27, v26, 2, v27
    v_add_u32 v{OAD}, s58, v27
    v_mov_b32 v{OST}, 1152
    s_add_u32 s58, s58, {8*1152}
    v_lshl_add_u32 v27, v24, 2, s58
    v_cmp_eq_u32 vcc, 8, v26
    s_mov_b32 s58, {LDUM}
    v_lshl_add_u32 v28, v{LANE}, 2, s58
    v_cndmask_b32 v{OAD}, v{OAD}, v27, vcc
    v_cndmask_b32 v{OST}, v{OST}, 16, vcc
    v_cmp_lt_u32 vcc, 8, v26
    v_mul_u32_u24 v27, 144, v5
    v_bfe_u32 v25, v{LANE}, 3, 1
    v_cndmask_b32 v{OAD}, v{OAD}, v28, vcc
    v_cndmask_b32 v{OST}, v{OST}, 0, vcc
    v_lshl_add_u32 v27, v25, 6, v27
    v_lshl_add_u32 v27, v24, 4, v27
    v_add_u32 v{AAD}, {LO}, v27
    v_add_u32 v{QAD}, {LQ}, v{L16}
    s_mov_b32 s58, {LQ + 1024}
    v_lshl_add_u32 v{QXAD}, v{LANE}, 2, s58
    ''')
    for i in range(OACC, OACC + 20): a(f'v_mov_b32 v{i}, 0')
    for i in [QX + 1, QX + 2]: a(f'v_accvgpr_write_b32 a{i}, 0')
    if FUSED:
        a(f'''
        s_cmp_ge_u32 s{WAVE}, 4
        s_cbranch_scc1 L_flagsin
        s_getreg_b32 s58, hwreg(HW_REG_XCC_ID)
        s_and_b32 s58, s58, 7
        s_mul_i32 s58, s58, {GRAN_REP}
        s_lshl_b32 s59, s{WAVE}, 13
        s_add_u32 s58, s58, s59
        s_add_u32 s58, s58, {WS_GRAN + 4}
        v_lshlrev_b32 v24, 7, v{LANE}
        s_mov_b32 s59, 0
L_fpoll:
        buffer_load_dwordx2 v[20:21], v24, s[{S_WS}:{S_WS+3}], s58 offen sc1
        s_add_u32 s59, s59, 1
        s_waitcnt vmcnt(0)
        v_cmp_ne_u32 vcc, v20, v31
        s_and_b64 exec, exec, vcc
        s_cbranch_execz L_fdone
        s_cmp_gt_u32 s59, {SPIN}
        s_cbranch_scc1 L_fdone
        s_sleep 3
        s_branch L_fpoll
L_fdone:
        s_mov_b64 exec, -1
L_flagsin:
        s_barrier
        ''')
        stamp(a, 'sync')
        first_loads()
    qprep(a, vm, stamp)
    a(f'''
    s_mov_b32 s58, {X_FLAG}
    v_lshl_add_u32 v26, v5, 2, s58
    ''')
    stamp(a, 'q2')
    if 'late1' in DIAG: kv_load(vm, 1)
    kv_load(vm, 2)
    stamp(a, 'q3')
    a(f'''
    s_waitcnt lgkmcnt(0)
    s_barrier
    ds_read_b32 v27, v26
    ''')
    stamp(a, 'bar')
    for r in q_reads(False): a(r)
    a(f'''
    s_waitcnt lgkmcnt(3)
    v_cmp_ne_u32 vcc, 0, v27
    ''')
    return vm

def k2(name, stamp=nomark):
    t = k2_(name, stamp)
    out, inloop = [], False
    for l in t.split('\n'):
        s = l.strip()
        if s.endswith('_loop:'): inloop = True
        if inloop:
            if 'nowo' in DIAG and s.startswith('buffer_load') and 'lds' not in s: continue
            if 'nodma' in DIAG and s.startswith('buffer_load') and 'lds' in s: continue
            if 'noop' in DIAG and '16x16x64' in s: continue
            if 'novm' in DIAG and 'vmcnt' in s: continue
            if 'nobar' in DIAG and s == 's_barrier': continue
            if 'nods' in DIAG and (s.startswith('ds_') or 'lgkmcnt' in s): continue
            if 'novalu' in DIAG and (s.startswith('v_pk') or s.startswith('v_add') or s.startswith('v_rcp') or s.startswith('v_cvt')): continue
            if 'nopv' in DIAG and '32x32x32' in s: continue
            if 'noqk' in DIAG and ('32x32x16' in s or ('32x32x8' in s and ' v[' in s[:32])): continue
            if 'noqx' in DIAG and ('32x32x8' in s and ' v[' in s[:32]): continue
            if 'noexp' in DIAG and s.startswith('v_exp'): l = l.replace('v_exp_f32', 'v_nop ;')
            if 'noprio' in DIAG and s.startswith('s_setprio'): continue
        if s.startswith('s_cbranch_scc1') and s.endswith('_loop'): inloop = False
        out.append(l)
    return '\n'.join(out)

def k2_(name, stamp=nomark):
    a = Asm()
    a(f'.globl {name}\n.p2align 8\n.type {name},@function\n{name}:')
    if FUSED:
        import k1
        k1.entry(a, stamp, 'L_k2_exit')
        def done(a): a('s_branch L_p1done')
        k1.phase1(a, True, stamp, done)
    vm = prologue(a, stamp)
    stamp(a, 'prol')
    a(f's_cmp_ge_u32 s{WAVE}, 4\ns_cbranch_scc1 L_f4')
    q0 = list(vm.q)
    attention(a, 5, False, 'L_a5', vm, stamp)
    a('L_f4:')
    vm.q = list(q0)
    attention(a, 4, False, 'L_a4', vm, stamp)
    tail(a, stamp)
    a('L_k2_exit:\ns_endpgm')
    return a.text()
```

```python
import sys
from common import *
import k1
NAME = 'sequential_preLN__grouped_kv_mqa__moe_arch_mod__prompt'
HDR = open('cdna_kernels/' + NAME + '.s.ref').read().split('; Override')[0]

def assemble(parts):
    t = HDR
    for n, _, g, b, l, _, _ in parts:
        t += f'; @launch kernel={n} grid=({g},1,1) block=({b},1,1) lds={l}\n'
    t += '.amdgcn_target "amdgcn-amd-amdhsa--gfx950"\n.text\n'
    done = set()
    for n, txt, *_ in parts:
        if n not in done: t += txt
        done.add(n)
    t += '.section .rodata,"a"\n'
    done = set()
    for n, _, _, _, _, v, acc in parts:
        if n not in done: t += kdesc(n, v, acc)
        done.add(n)
    return t

import k2
def full(m1=None, m2=None, extra=()):
    s1 = Marks(m1, 6, 16, WS_STAMP) if m1 else nomark
    s2 = Marks(m2, 16, k2.WAVE, WS_STAMP + 0x40000) if m2 else nomark
    t = assemble([('proj_kernel', k1.k1('proj_kernel', stamp=s1), 256, 512, k1.K1_LDS, 152, 84),
                  ('attn_kernel', k2.k2('attn_kernel', stamp=s2), 256, 512, k2.K2_LDS, k2.NV + k2.NA, k2.NV)] + list(extra))
    if m1: t += f'; marks1 {" ".join(m1)}\n'
    return t
def fused(m2=None, as_list=True):
    k1.FUSED = k2.FUSED = True
    s2 = Marks(m2, 16, k2.WAVE, WS_STAMP + 0x40000) if m2 else nomark
    n = NAME + '_kernel'
    t = assemble([(n, k2.k2(n, stamp=s2), 256, 512, max(k1.K1_LDS, k2.K2_LDS), k2.NV + k2.NA, k2.NV)])
    if not as_list: t = t.replace(f'; @launch kernel={n} ', '; @launch ')
    if m2: t += f'; marks1 start\n'
    k1.FUSED = k2.FUSED = False
    return t
MF = ['start', 'loop', 'flag', 'sync', 'prol', 's0', 'gran', 'end']
M1 = ['start', 'issued', 'loop', 'end']
M2 = ['start', 'prol', 's0', 's6', 'attn', 'gran', 'win', 'end']
M2A = ['start', 'issued', 'bar', 'prol', 's6', 's7', 'b2', 'end']
M2B = ['start', 's7', 'b1', 'b2', 'op', 'attn', 'gran', 'end']
M2C = ['start', 'gran', 'rows', 'win', 'xin', 'act', 'fin', 'end']

if __name__ == '__main__':
    open('cdna_kernels/' + NAME + '.s', 'w').write(fused(as_list=False))
    open('fused.s', 'w').write(fused())
    open('fused_st.s', 'w').write(fused(MF))
    open('fused_sta.s', 'w').write(fused(['start', 'u0', 'loop', 'qw', 'drain', 'flag', 'sync', 'end']))
    open('fused_stb.s', 'w').write(fused(['start', 'sync', 'qin', 'q1', 'q2', 'q3', 'bar', 'end']))
    open('fused_stc.s', 'w').write(fused(M2B))
    open('fused_std.s', 'w').write(fused(M2C))
```

```python
from build import *
MULT = 10
def reveal(name, A, B):
    a = Asm()
    a(f'.globl {name}\n.p2align 8\n.type {name},@function\n{name}:')
    a(f's_cmp_ge_u32 s2, 1\ns_cbranch_scc1 L_rv_end\ns_load_dwordx2 s[4:5], s[0:1], {KA_WS}\nv_lshlrev_b32 v1, 9, v0\ns_waitcnt lgkmcnt(0)')
    srd(a, 8, 4, 0, WS_USED)
    for n, (kern, idx, op) in enumerate((A, B)):
        base = WS_STAMP + (0x40000 if kern == 2 else 0) + 4 * idx
        for j in range(4):
            a(f's_mov_b32 s12, {base + j*64*512}\nbuffer_load_dword v{2+4*n+j}, v1, s[8:11], s12 offen')
    a('s_waitcnt vmcnt(0)')
    for n, (kern, idx, op) in enumerate((A, B)):
        r = 2 + 4 * n
        a(f'v_{op}3_u32 v{r}, v{r}, v{r+1}, v{r+2}\nv_{op}_u32 v{r}, v{r}, v{r+3}')
        k2.dpp_reduce(a, f'v_{op}_u32', [r])
        a(f's_nop 1\nv_readlane_b32 s{14+n}, v{r}, 63')
    a(f'''
    s_memrealtime s[16:17]
    s_sub_u32 s14, s15, s14
    s_min_u32 s14, s14, 10000
    s_mul_i32 s14, s14, {MULT}
    s_waitcnt lgkmcnt(0)
L_rv:
    s_memrealtime s[18:19]
    s_waitcnt lgkmcnt(0)
    s_sub_u32 s20, s18, s16
    s_cmp_lt_u32 s20, s14
    s_cbranch_scc1 L_rv
L_rv_end:
    s_endpgm
    ''')
    return (name, a.text(), 1, 64, 0, 16, 16)
def mk(fn, marks, A, B):
    k1.FUSED = k2.FUSED = True
    s2 = Marks(marks, 16, k2.WAVE, WS_STAMP + 0x40000)
    n = NAME + '_kernel'
    t = assemble([(n, k2.k2(n, stamp=s2), 256, 512, max(k1.K1_LDS, k2.K2_LDS), k2.NV + k2.NA, k2.NV),
                  reveal('rv_kernel', (2, marks.index(A[0]), A[1]), (2, marks.index(B[0]), B[1]))])
    open(fn, 'w').write(t)
if __name__ == '__main__':
    import sys
    marks = sys.argv[1].split(',')
    for i, spec in enumerate(sys.argv[2:]):
        x = spec.split(',')
        mk(f'r{i}.s', marks, x[0:2], x[2:4])
```

```python
from common import *

K1_LDS = 162816
TQ, TKV = 79, 96
ONES = 0x3f803f80
LOOK = 2
LA = 3
KV_VM, KV_KE, KV_VE = 16384, 32768, 32768 + 9216 + 64
XOFF = {'q': 65536, 'kv': 51328}
EX_OFF = 161920
ST = ' sc1'
QROW = 144
DIAG = set()
FUSED = False

def bf_round(a, dst, src):
    a(f'v_cvt_pk_bf16_f32 v{dst}, v{src}, v{src}\nv_and_b32 v{dst}, 0xffff0000, v{dst}')

def rot_next(a, s, step, lim):
    a(f's_add_u32 s{s}, s{s}, {step}\ns_cmp_ge_u32 s{s}, {lim}\ns_cselect_b32 s{s}, 0, s{s}')

def mf16(d, x, y, first): return f'v_mfma_f32_16x16x32_bf16 v[{d}:{d+3}], {x}, {y}, ' + ('0' if first else f'v[{d}:{d+3}]')
def smf16(d, x, y, idx): return f'v_smfmac_f32_16x16x64_bf16 v[{d}:{d+3}], {x}, {y}, v{idx}'

BARS = [0, 1, 2, 3, 4, 5, 6, 7, 8]
def kloop(a, vm, reads, mfmas, issue, extra=None):
    L = Lgkm(a)
    nxt = [2]
    def capture(upto):
        keep, a.l = a.l, []
        while nxt[0] <= upto:
            issue(nxt[0]); nxt[0] += 1
        got, a.l = a.l, keep
        chunks, cur, masked, seen = [], [], False, False
        for l in got:
            cur.append(l); w = l.strip()
            if w == 's_mov_b64 exec, -1': masked = False
            elif 'saveexec' in w or w.split()[1].startswith('exec'): masked = True
            if w.startswith('buffer_'): seen = True
            if seen and not masked: chunks.append(cur); cur, seen = [], False
        assert not masked
        if cur:
            if chunks: chunks[-1] += cur
            else: chunks.append(cur)
        return ['\n'.join(c) for c in chunks]
    def stage(t):
        if t % 2 == 0 and t // 2 in BARS:
            u = t // 2
            last = ([b for b in BARS if b > u] + [9])[0] - 1
            vm.need(*range(u, last + 1))
            a('s_barrier')
            STAMP(a, f'u{u}')
            return last
    for c in capture(([b for b in BARS if b > 0])[0] - 1 + LA - 1): a(c)
    pend = []
    for t in range(LOOK):
        last = stage(t)
        for tag, ins in reads(t): L.issue(tag, ins)
        if last is not None:
            for c in capture(last + LA): a(c)
    for t in range(18):
        R = []
        if t + LOOK < 18:
            last = stage(t + LOOK)
            R = [('r', x) for x in reads(t + LOOK)]
            if last is not None: R += [('e', c) for c in capture(last + LA)]
        if extra: R += [('e', x) for x in extra(t)]
        for kind, x in weave([('m', x) for x in mfmas(t)], R):
            if kind == 'r': L.issue(*x)
            elif kind == 'e': a(x)
            else:
                L.need(*x[0]); a(x[1])

def stats_raw(GR, SX, V, M, T0):
    return f'''
    v_cndmask_b32 v{V}, 0, v{GR}, s[36:37]
    v_cndmask_b32 v{V}, v{V}, v{GR+1}, s[38:39]
    v_cndmask_b32 v{V}, v{V}, v{GR+2}, s[40:41]
    v_cndmask_b32 v{V}, v{V}, v{GR+3}, s[42:43]
    v_mov_b32 v{M}, v{SX}
    v_mov_b32 v{T0}, v{V}
    s_nop 1
    v_permlane32_swap_b32 v{SX}, v{M}
    v_permlane32_swap_b32 v{V}, v{T0}
    v_add_f32 v{M}, v{SX}, v{M}
    v_add_f32 v{V}, v{V}, v{T0}
    v_mov_b32 v{T0}, v{V}
    v_mul_f32 v{M}, {hx(f32(1.0/D))}, v{M}
    s_nop 0
    v_permlane16_swap_b32 v{V}, v{T0}
    v_add_f32 v{V}, v{V}, v{T0}
    '''

def stats_fin(V, M, T0, mul):
    r = lambda x: f'v_cvt_pk_bf16_f32 v{x}, v{x}, v{x}\nv_and_b32 v{x}, 0xffff0000, v{x}\n'
    return (f'v_mul_f32 v{T0}, v{M}, v{M}\nv_fma_f32 v{V}, v{V}, s58, -v{T0}\nv_max_f32 v{V}, 0, v{V}\n' + r(V)
            + f'v_add_f32 v{V}, {hx(f32(1e-5))}, v{V}\n' + r(V) + f'v_sqrt_f32 v{V}, v{V}\n' + r(M) + r(V)
            + f'v_rcp_f32 v{V}, v{V}\ns_nop 0\n' + (f'v_mul_f32 v{V}, {hx(f32(mul))}, v{V}\n' if mul != 1.0 else ''))
def lines(t): return [l.strip() for l in t.split('\n') if l.strip()]

def stat_consts(a, ONE, IDX, sx):
    for i in range(4): a(f'v_mov_b32 v{ONE+i}, {hx(ONES)}')
    for r in sx:
        for i in range(4): a(f'v_mov_b32 v{r+i}, 0')
    a(f'''
    v_mov_b32 v{IDX}, 0x4444
    v_mov_b32 v12, 0xeeee
    v_cmp_lt_u32 vcc, 7, v2
    s_mov_b32 s36, 0x00100001
    s_mov_b32 s37, 0x10000100
    v_cndmask_b32 v{IDX}, v{IDX}, v12, vcc
    s_lshl_b64 s[38:39], s[36:37], 1
    s_lshl_b64 s[40:41], s[36:37], 2
    s_lshl_b64 s[42:43], s[36:37], 3
    s_mov_b32 s58, {hx(f32(1.0/D))}
    ''')

def x_read_addr(a, XRA, base):
    a(f'''
    v_lshrrev_b32 v11, 1, v2
    v_xor_b32 v11, v11, v3
    v_lshlrev_b32 v11, 4, v11
    v_lshl_add_u32 v11, v2, 7, v11
    v_add_u32 v{XRA}, s{base}, v11
    v_xor_b32 v{XRA+1}, 64, v{XRA}
    ''')

def clears(vm, hs, R):
    a = vm.a
    a(f'''
    v_mov_b32 v{R}, -1
    v_mov_b32 v{R+1}, -1
    v_mov_b32 v{R+2}, -1
    v_mov_b32 v{R+3}, -1
    s_lshl_b32 s46, s{hs}, 7
    v_add_u32 v{R+4}, s46, v1
    v_lshlrev_b32 v{R+5}, 4, v{R+4}
    v_add_u32 v{R+6}, 64, v{R+4}
    s_mul_i32 s47, s2, 3600
    s_add_u32 s47, s47, {WS_ROWS}
    ''')
    vm.issue('c', f'buffer_store_dwordx4 v[{R}:{R+3}], v{R+5}, s[32:35], s47 offen{ST}')
    a(f'v_cmp_gt_u32 vcc, 225, v{R+6}\ns_and_saveexec_b64 s[48:49], vcc')
    vm.issue('c', f'buffer_store_dwordx4 v[{R}:{R+3}], v{R+5}, s[32:35], s47 offen offset:1024{ST}')
    if not FUSED:
        a(f's_mov_b64 exec, 0xff\ns_mov_b32 s50, {GRAN_REP}\nv_mul_lo_u32 v{R+7}, s50, v1\ns_lshl_b32 s47, s2, 7\ns_add_u32 s47, s47, {WS_GRAN}')
        vm.issue('c', f'buffer_store_dword v{R}, v{R+7}, s[32:35], s47 offen{ST}')
    a('s_mov_b64 exec, -1')

def q_common(a):
    a(f'''
    v_lshrrev_b32 v9, 3, v1
    v_and_b32 v10, 7, v1
    v_mul_u32_u24 v5, {ROWB}, v9
    s_and_b32 s24, s16, 1
    s_lshl_b32 s25, s24, 2
    v_and_b32 v11, 2, v9
    v_xor_b32 v11, v11, v10
    v_xor_b32 v11, s25, v11
    v_lshl_add_u32 v6, v11, 4, v5
    v_lshrrev_b32 v11, 1, v9
    v_xor_b32 v11, v11, v10
    v_xor_b32 v11, s25, v11
    v_lshl_add_u32 v7, v11, 4, v5
    s_mul_i32 s20, s17, {TQ}
    s_lshl_b32 s23, s16, 3
    s_add_u32 s23, s23, s20
    s_mul_i32 s23, s23, {ROWB}
    s_mul_i32 s27, s16, {8*ROWB}
    s_lshl_b32 s44, s18, 7
    s_add_u32 s27, s27, s44
    s_lshl_b32 s21, s16, 10
    s_lshr_b32 s56, s16, 1
    s_mul_i32 s56, s56, 18432
    s_lshl_b32 s24, s24, 10
    s_add_u32 s56, s56, s24
    s_add_u32 s56, s56, {XOFF['q']}
    ''')

XG = {0: [0, 1], 1: [2, 3], 2: [4], 3: [5], 4: [6], 5: [7], 6: [8]}
def q_issue(vm, u, small):
    a = vm.a
    if u > 8: return
    def xs(w):
        a(f's_add_u32 m0, s56, {w*2048 - w*128}\ns_nop 0')
        vm.issue(u, f'buffer_load_dwordx4 v7, s[28:31], s23 offen offset:{w*128} lds')
        if small:
            a(f's_add_u32 m0, s25, {w*2048 - w*128}\ns_mov_b64 exec, s[64:65]')
            vm.issue(u, f'buffer_load_dwordx4 v8, s[28:31], s24 offen offset:{w*128} lds')
            a('s_mov_b64 exec, -1')
    g = XG.get(u, [])
    if u == 0: xs(g[0]); g = g[1:]
    a(f's_add_u32 m0, s21, {(u % 8) * 8192}\ns_nop 0')
    vm.issue(u, 'buffer_load_dwordx4 v6, s[60:63], s27 offen lds')
    if u < 8: a(f's_add_u32 s27, s27, {64*ROWB}')
    for w in g: xs(w)

def q_first(a, vm, small):
    a('s_setprio 3\ns_waitcnt lgkmcnt(0)')
    q_issue(vm, 0, small)
    a('s_setprio 2')
    q_issue(vm, 1, small)
    a('s_setprio 0')

def q_tra(a, TRA):
    a(f'''
    v_bfe_u32 v12, v1, 2, 2
    v_and_b32 v13, 3, v1
    v_lshl_add_u32 v9, v3, 3, v12
    v_lshlrev_b32 v9, 7, v9
    v_lshl_add_u32 v9, v13, 3, v9
    v_lshrrev_b32 v10, 1, v12
    v_and_b32 v11, 1, v3
    v_lshl_add_u32 v10, v11, 1, v10
    v_lshl_add_u32 v{TRA}, v10, 5, v9
    v_xor_b32 v{TRA}, s45, v{TRA}
    ''')

def q_big(a, stamp, done):
    ACC, WB, XB, TRA, XRA = 16, 0, 24, 32, 34
    vm = Vm(a)
    q_first(a, vm, False)
    stamp(a, 'issued')
    a(f'''
    v_and_b32 v2, 15, v1
    v_lshrrev_b32 v3, 4, v1
    s_lshr_b32 s46, s16, 1
    s_mul_i32 s47, s46, {2*18432}
    s_add_u32 s47, s47, {XOFF['q']}
    s_and_b32 s45, s16, 1
    s_lshl_b32 s45, s45, 6
    ''')
    x_read_addr(a, XRA, 47)
    q_tra(a, TRA)
    a(f'''
    v_xor_b32 v{TRA+1}, 32, v{TRA}
    s_lshl_b32 s46, s46, 5
    v_add_u32 v4, s46, v2
    v_mul_u32_u24 v5, {QROW}, v4
    v_lshl_add_u32 v5, v3, 3, v5
    v_add_u32 v5, s45, v5
    s_lshl_b32 s45, s45, 1
    s_add_u32 s45, s45, {EX_OFF}
    v_lshl_add_u32 v14, v3, 4, s45
    s_lshl_b32 s46, s46, 3
    s_add_u32 s46, s46, {EX_OFF + 256}
    v_lshl_add_u32 v15, v2, 3, s46
    ''')
    def reads(t):
        w, x, o = WB + 8 * (t % 3), XB + 8 * (t % 3), (t % 16) * 4096
        r = []
        for j in range(2):
            r.append(((t, 'x', j), f'ds_read_b128 a[{x+4*j}:{x+4*j+3}], v{XRA + t % 2} offset:{(t // 2) * 2048 + 18432 * j}'))
            r.append(((t, 'w', j), f'ds_read_b64_tr_b16 a[{w+4*j}:{w+4*j+1}], v{TRA+j} offset:{o}'))
            r.append(((t, 'w', j), f'ds_read_b64_tr_b16 a[{w+4*j+2}:{w+4*j+3}], v{TRA+j} offset:{o+512}'))
        return r
    def mfmas(t):
        w, x = WB + 8 * (t % 3), XB + 8 * (t % 3)
        return [([(t, 'x', i), (t, 'w', j)], mf16(ACC + 8 * i + 4 * j, ar(w + 4 * j, 4), ar(x + 4 * i, 4), t == 0)) for i, j in ((0, 0), (1, 0), (0, 1), (1, 1))]
    kloop(a, vm, reads, mfmas, lambda u: q_issue(vm, u, False))
    stamp(a, 'loop')
    CS, SS, P = 36, 44, 48
    a(f'''
    s_barrier
    ds_read_b128 v[{CS}:{CS+3}], v14
    ds_read_b128 v[{CS+4}:{CS+7}], v14 offset:64
    ds_read_b64 v[{SS}:{SS+1}], v15
    ds_read_b64 v[{SS+2}:{SS+3}], v15 offset:128
    s_waitcnt lgkmcnt(1)
    ''')
    for i in range(2):
        if i: a('s_waitcnt lgkmcnt(0)')
        for r in range(8): a(f'v_fma_f32 v{ACC+8*i+r}, -v{SS+2*i}, v{CS+r}, v{ACC+8*i+r}')
        for r in range(8): a(f'v_mul_f32 v{ACC+8*i+r}, v{SS+2*i+1}, v{ACC+8*i+r}')
        for r in range(4): a(f'v_cvt_pk_bf16_f32 v{P+4*i+r}, v{ACC+8*i+2*r}, v{ACC+8*i+2*r+1}')
        a(f'ds_write_b64 v5, v[{P+4*i}:{P+4*i+1}] offset:{16*QROW*i}\nds_write_b64 v5, v[{P+4*i+2}:{P+4*i+3}] offset:{16*QROW*i+32}')
    a('s_branch L_q_out')

def q_out(a, done):
    a(f'''
L_q_out:
    v_lshrrev_b32 v9, 3, v1
    v_and_b32 v10, 7, v1
    s_lshl_b32 s46, s16, 3
    v_add_u32 v9, s46, v9
    v_mul_u32_u24 v11, {QROW}, v9
    v_lshl_add_u32 v11, v10, 4, v11
    v_mul_u32_u24 v12, {ROWB}, v9
    v_lshl_add_u32 v12, v10, 4, v12
    s_mul_i32 s46, s20, {ROWB}
    s_lshl_b32 s47, s18, 7
    s_add_u32 s46, s46, s47
    v_add_u32 v12, s46, v12
    v_add_u32 v13, {64*ROWB}, v12
    ''')
    srd(a, 32, 6, WS_Q, SZ_Q)
    a(f'''
    s_waitcnt lgkmcnt(0)
    ''')
    STAMP(a, 'qw')
    a(f'''
    s_barrier
    ds_read_b128 v[4:7], v11
    ds_read_b128 v[16:19], v11 offset:{64*QROW}
    v_cmp_gt_u32 vcc, 15, v9
    s_waitcnt lgkmcnt(1)
    buffer_store_dwordx4 v[4:7], v12, s[32:35], 0 offen{ST}
    s_and_b64 exec, exec, vcc
    s_cbranch_execz L_q_out2
    s_waitcnt lgkmcnt(0)
    buffer_store_dwordx4 v[16:19], v13, s[32:35], 0 offen{ST}
L_q_out2:
    s_mov_b64 exec, -1
    v_mov_b32 v29, 0
    ''')
    done(a)

def q_small(a, stamp, done):
    ACC, GJ, G4, SJ, S4, ONE, IDX, TRA, XRA, XR4, WG = 16, 20, 24, 28, 32, 36, 40, 41, 42, 44, 56
    WB, XJ, X4 = 0, 12, 44
    vm = Vm(a)
    a(f'''
    s_sub_u32 s59, s16, 4
    s_lshl_b32 s24, s59, 1
    v_lshrrev_b32 v11, 1, v9
    v_add_u32 v11, s24, v11
    v_xor_b32 v11, v11, v10
    v_lshl_add_u32 v8, v11, 4, v5
    s_lshl_b32 s24, s59, 2
    s_add_u32 s24, s24, s20
    s_add_u32 s24, s24, 64
    s_mul_i32 s24, s24, {ROWB}
    s_lshl_b32 s25, s59, 9
    s_add_u32 s25, s25, {XOFF['q'] + 4*18432}
    s_cmp_eq_u32 s59, 3
    s_cselect_b32 s64, 0x00ffffff, -1
    s_mov_b32 s65, 0
    ''')
    q_first(a, vm, True)
    stamp(a, 'issued')
    a('v_and_b32 v2, 15, v1\nv_lshrrev_b32 v3, 4, v1')
    stat_consts(a, ONE, IDX, (SJ, S4))
    a(f'''
    s_mov_b32 s47, {XOFF["q"] + 4*18432}
    s_cmp_eq_u32 s59, 3
    s_cbranch_scc0 L_qs_noones
    v_lshlrev_b32 v12, 4, v10
    v_add_u32 v12, s47, v12
    v_lshl_add_u32 v13, v9, 11, v12
    ds_write_b128 v13, v[{ONE}:{ONE+3}] offset:1920
    ds_write_b128 v12, v[{ONE}:{ONE+3}] offset:{8*2048+1920}
    ''')
    a(f'''
    s_waitcnt lgkmcnt(0)
L_qs_noones:
    ''')
    x_read_addr(a, XR4, 47)
    a(f's_mul_i32 s47, s59, 18432\ns_add_u32 s47, s47, {XOFF["q"]}\ns_lshl_b32 s45, s59, 5')
    x_read_addr(a, XRA, 47)
    q_tra(a, TRA)
    a(f'''
    v_add_u32 v4, 64, v2
    v_mul_u32_u24 v5, {QROW}, v4
    v_lshl_add_u32 v5, v3, 3, v5
    v_add_u32 v5, s45, v5
    s_lshl_b32 s45, s59, 6
    s_add_u32 s45, s45, {EX_OFF}
    v_lshl_add_u32 v14, v3, 4, s45
    s_lshl_b32 s46, s59, 7
    s_add_u32 s46, s46, {EX_OFF + 256}
    v_lshl_add_u32 v15, v2, 3, s46
    ''')
    srd(a, 32, 6, 0, WS_USED)
    srd(a, 8, 12, 0, D * ROWB)
    def chores():
        a(f'''
        s_lshl_b32 s66, s26, 2
        s_add_u32 s66, s66, s59
        s_and_b32 s51, s66, 1
        s_lshr_b32 s54, s66, 1
        s_mul_i32 s55, s54, 57
        s_lshr_b32 s55, s55, 11
        s_mul_i32 s45, s55, 36
        s_sub_u32 s54, s54, s45
        s_cmp_ge_u32 s55, 8
        s_cselect_b32 s45, 144, 18
        s_cselect_b32 s46, 36, 4
        s_cselect_b32 s52, 288, 36
        s_cselect_b32 s53, 18, 2
        s_mul_i32 s52, s52, {ROWB}
        s_mul_i32 s53, s53, {ROWB}
        s_mul_i32 s47, s55, 72
        s_cselect_b32 s47, 16, s47
        s_mul_i32 s45, s45, s51
        s_add_u32 s47, s47, s45
        v_mul_u32_u24 v9, s46, v3
        v_add_u32 v9, s47, v9
        v_mul_u32_u24 v9, {ROWB}, v9
        v_lshl_add_u32 v9, v2, 1, v9
        s_lshl_b32 s54, s54, 5
        s_cmp_ge_u32 s66, 648
        s_cselect_b32 s54, 0x7f000000, s54
        v_add_u32 v9, s54, v9
        s_add_u32 s54, s52, s53
        ''')
        for j in range(2):
            for q, so in enumerate(('0', 's52', 's53', 's54')):
                vm.issue('g', f'buffer_load_ushort v{WG+4*j+q}, v9, s[8:11], {so} offen offset:{ROWB*j}')
    chores()
    def issue(u):
        q_issue(vm, u, True)
        if u == 9:
            a('s_and_b32 s55, s59, 1')
            clears(vm, 55, 64)
    lead = lambda t: [u for u in {0: [0, 1, 2], 1: [3], 2: [4, 5, 6]}.get(t, [t + 4]) if u < 18]
    q0 = list(vm.q)
    def loop(both):
        vm.q = list(q0)
        def reads(t):
            w, o = WB + 4 * (t % 3), (t % 16) * 4096
            r4 = lambda u: ((u, '4'), f'ds_read_b128 a[{X4+4*(u%10)}:{X4+4*(u%10)+3}], v{XR4 + u % 2} offset:{(u // 2) * 2048}')
            r = []
            for u in lead(t):
                r.append(((u, 'j'), f'ds_read_b128 a[{XJ+4*(u%8)}:{XJ+4*(u%8)+3}], v{XRA + u % 2} offset:{(u // 2) * 2048}'))
                if both: r.append(r4(u))
            if not both: r.append(r4(t))
            return r + [((t, 'w'), f'ds_read_b64_tr_b16 a[{w}:{w+1}], v{TRA} offset:{o}'),
                        ((t, 'w'), f'ds_read_b64_tr_b16 a[{w+2}:{w+3}], v{TRA} offset:{o+512}')]
        def mfmas(t):
            m = []
            for u in lead(t):
                xj, x4 = XJ + 4 * (u % 8), X4 + 4 * (u % 10)
                if u % 2:
                    m.append(([(u, 'j')], smf16(SJ, vr(ONE, 4), ar(xj - 4, 8), IDX)))
                    if both: m.append(([(u, '4')], smf16(S4, vr(ONE, 4), ar(x4 - 4, 8), IDX)))
                m.append(([(u, 'j')], mf16(GJ, ar(xj, 4), ar(xj, 4), u == 0)))
                if both: m.append(([(u, '4')], mf16(G4, ar(x4, 4), ar(x4, 4), u == 0)))
            return m + [([(t, '4'), (t, 'w')], mf16(ACC, ar(WB + 4 * (t % 3), 4), ar(X4 + 4 * (t % 10), 4), t == 0))]
        if both:
            zip2 = lambda x, y: [z for p in zip(lines(x), lines(y)) for z in p if not z.startswith('s_nop')]
            f1, f2 = zip2(stats_raw(GJ, SJ, 47, 46, 48), stats_raw(G4, S4, 51, 50, 52)), zip2(stats_fin(47, 46, 48, CQ), stats_fin(51, 50, 52, CQ))
        else: f1, f2 = lines(stats_raw(GJ, SJ, 47, 46, 48)), lines(stats_fin(47, 46, 48, CQ))
        h = len(f2) // 2
        fin = {14: ['s_nop 6'] + f1, 15: f2[:h], 16: f2[h:]}
        fin[17] = ['s_mov_b64 exec, 0xffff\nds_write_b64 v15, v[46:47]\n' + ('ds_write_b64 v15, v[50:51] offset:128\n' if both else '') + 's_mov_b64 exec, -1'] + [
            f'v_lshl_or_b32 v{WG+q}, v{WG+4+q}, 16, v{WG+q}' for q in range(4)] + [
            f's_lshl_b32 s45, s66, 10\ns_add_u32 s45, s45, {WS_WO}\ns_cmp_ge_u32 s66, 648\ns_cselect_b32 s45, 0x7f000000, s45\nv_lshl_add_u32 v9, v1, 4, s45']
        kloop(a, vm, reads, mfmas, issue, lambda t: fin.get(t, []))
    a('s_cmp_eq_u32 s59, 3\ns_cbranch_scc1 L_qs_both')
    loop(False)
    a('s_branch L_qs_join\nL_qs_both:')
    loop(True)
    a('L_qs_join:')
    stamp(a, 'loop')
    a(f'''
    s_mov_b32 s48, 0x80008000
    s_mov_b32 s49, 0x80008000
    s_mov_b64 exec, s[48:49]
    ds_write_b128 v14, v[{ACC}:{ACC+3}]
    s_mov_b64 exec, -1
    buffer_store_dwordx4 v[{WG}:{WG+3}], v9, s[32:35], 0 offen{ST}
    s_mov_b32 s46, {EX_OFF + 256 + 512}
    v_lshl_add_u32 v15, v2, 3, s46
    s_waitcnt lgkmcnt(0)
    s_barrier
    ds_read_b64 v[50:51], v15
    ''')
    for r in range(4): a(f'v_mov_b32_dpp v{52+r}, v{ACC+r} row_newbcast:15 row_mask:0xf bank_mask:0xf')
    a('s_waitcnt lgkmcnt(0)')
    for r in range(4): a(f'v_fma_f32 v{ACC+r}, -v50, v{52+r}, v{ACC+r}')
    for r in range(4): a(f'v_mul_f32 v{ACC+r}, v51, v{ACC+r}')
    a(f'''
    v_cvt_pk_bf16_f32 v52, v{ACC}, v{ACC+1}
    v_cvt_pk_bf16_f32 v53, v{ACC+2}, v{ACC+3}
    ds_write_b64 v5, v[52:53]
    ''')
    q_out(a, done)

def kv_tra(a, TRA):
    a(f'''
    v_bfe_u32 v12, v1, 2, 2
    v_and_b32 v13, 3, v1
    v_lshrrev_b32 v9, 1, v3
    v_lshlrev_b32 v9, 4, v9
    v_and_b32 v10, 1, v3
    v_lshl_add_u32 v9, v10, 2, v9
    v_add_u32 v9, v9, v12
    v_lshlrev_b32 v9, 5, v9
    v_lshl_add_u32 v{TRA}, v13, 3, v9
    v_lshl_add_u32 v9, v3, 3, v12
    v_lshlrev_b32 v9, 4, v9
    v_and_b32 v10, 1, v13
    v_lshl_add_u32 v9, v10, 3, v9
    v_lshrrev_b32 v10, 1, v13
    v_mul_u32_u24 v10, {KV_VE-KV_KE}, v10
    v_add_u32 v{TRA+1}, v9, v10
    ''')

def kv_out(a, done):
    a(f'''
    s_lshl_b32 s46, s16, 10
    v_lshl_add_u32 v8, v1, 4, s46
    s_mul_i32 s47, s17, {3*KVREC}
    v_add_u32 v9, s47, v8
    s_waitcnt lgkmcnt(0)
    s_barrier
    ds_read_b128 v[4:7], v8
    v_mov_b32 v10, {EX_OFF + 256}
    ds_read_b128 v[12:15], v10
    ds_read_b64 v[16:17], v10 offset:16
    s_mov_b32 s34, {64*KVREC}
    v_cmp_gt_u32 vcc, {3*KVREC}, v8
    s_and_b64 exec, exec, vcc
    s_waitcnt lgkmcnt(2)
    buffer_store_dwordx4 v[4:7], v9, s[32:35], 0 offen{ST}
    s_mov_b64 exec, -1
    s_waitcnt lgkmcnt(0)
    v_max3_f32 v29, v12, v13, v14
    v_max3_f32 v29, v29, v15, v16
    v_max_f32 v29, v29, v17
    ''')
    done(a)

def kv_main(a, stamp, done):
    ACC, GR, SX, ONE, IDX, TRA, XRA = 16, 32, 36, 40, 44, 46, 48
    WB, XB = 0, 36
    vm = Vm(a)
    a(f'''
    v_lshrrev_b32 v9, 3, v1
    v_and_b32 v10, 7, v1
    v_lshrrev_b32 v11, 1, v9
    v_xor_b32 v11, v11, v10
    v_mul_u32_u24 v6, {ROWB}, v9
    v_lshl_add_u32 v6, v11, 4, v6
    v_xor_b32 v7, 64, v6
    v_add_u32 v7, {8*ROWB}, v7
    s_mul_i32 s20, s17, {TKV}
    s_lshl_b32 s21, s16, 4
    s_add_u32 s20, s20, s21
    s_mul_i32 s23, s20, {ROWB}
    s_mul_i32 s21, s16, 18432
    s_add_u32 s21, s21, {XOFF['kv']}
    s_setprio 3
    s_waitcnt lgkmcnt(0)
    ''')
    def issue(u):
        if u > 8: return
        a(f's_add_u32 m0, s21, {u*2048 - u*128}\ns_nop 0')
        vm.issue(u, f'buffer_load_dwordx4 v6, s[28:31], s23 offen offset:{u*128} lds')
        a(f's_add_u32 m0, s21, {u*2048 + 1024 - u*128}\ns_nop 0')
        vm.issue(u, f'buffer_load_dwordx4 v7, s[28:31], s23 offen offset:{u*128} lds')
    issue(0); a('s_setprio 2'); issue(1); a('s_setprio 0')
    stamp(a, 'issued')
    a('v_and_b32 v2, 15, v1\nv_lshrrev_b32 v3, 4, v1')
    stat_consts(a, ONE, IDX, (SX,))
    x_read_addr(a, XRA, 21)
    kv_tra(a, TRA)
    srd(a, 32, 6, WS_KV, WS_WO - WS_KV)
    a(f'''
    s_mov_b32 s47, {EX_OFF}
    v_lshl_add_u32 v51, v3, 4, s47
    s_lshr_b32 s46, s16, 1
    s_mul_i32 s46, s46, {KVREC}
    s_and_b32 s47, s16, 1
    s_lshl_b32 s47, s47, 4
    v_add_u32 v4, s47, v2
    v_lshl_add_u32 v54, v4, 4, s46
    v_lshrrev_b32 v55, 1, v3
    v_lshl_add_u32 v54, v55, 9, v54
    v_and_b32 v55, 1, v3
    v_lshl_add_u32 v54, v55, 3, v54
    v_lshrrev_b32 v55, 3, v4
    v_mul_u32_u24 v55, 304, v55
    v_add_u32 v55, s46, v55
    v_and_b32 v56, 7, v4
    v_lshl_add_u32 v55, v56, 1, v55
    v_lshl_add_u32 v57, v3, 6, v55
    v_lshl_add_u32 v58, v4, 2, s46
    v_mov_b32 v59, 0x3f80
    ''')
    def reads(t):
        w, o = WB + 12 * (t % 3), (t % 16) * 1024
        return [((t, 'x'), f'ds_read_b128 a[{XB+4*(t%4)}:{XB+4*(t%4)+3}], v{XRA + t % 2} offset:{(t // 2) * 2048}'),
                ((t, 0), f'ds_read_b64_tr_b16 a[{w}:{w+1}], v{TRA} offset:{o}'),
                ((t, 0), f'ds_read_b64_tr_b16 a[{w+2}:{w+3}], v{TRA} offset:{o+256}'),
                ((t, 1), f'ds_read_b64_tr_b16 a[{w+4}:{w+5}], v{TRA} offset:{KV_VM+o}'),
                ((t, 1), f'ds_read_b64_tr_b16 a[{w+6}:{w+7}], v{TRA} offset:{KV_VM+o+256}'),
                ((t, 2), f'ds_read_b64_tr_b16 a[{w+8}:{w+9}], v{TRA+1} offset:{KV_KE+t*512}'),
                ((t, 2), f'ds_read_b64_tr_b16 a[{w+10}:{w+11}], v{TRA+1} offset:{KV_KE+t*512+64}')]
    def mfmas(t):
        w, x = WB + 12 * (t % 3), XB + 4 * (t % 4)
        m = [([(t, 'x')], smf16(SX, vr(ONE, 4), ar(x - 4, 8), IDX))] if t % 2 else []
        m += [([(t, 'x')], mf16(GR, ar(x, 4), ar(x, 4), t == 0))]
        return m + [([(t, 'x'), (t, j)], mf16(ACC + 4 * j, ar(w + 4 * j, 4), ar(x, 4), t == 0)) for j in range(3)]
    kloop(a, vm, reads, mfmas, issue)
    stamp(a, 'loop')
    a('s_nop 4')
    a(stats_raw(GR, SX, 48, 50, 49))
    a(stats_fin(48, 50, 49, 1.0))
    a('s_barrier')
    CS, P = 60, 72
    for j in range(3): a(f'ds_read_b128 v[{CS+4*j}:{CS+4*j+3}], v51 offset:{64*j}')
    a('s_mov_b32 s48, 0xffff0000\ns_mov_b32 s49, 0\ns_mov_b32 s50, 0\ns_mov_b32 s51, 0xffff0000')
    for j in range(3):
        a(f's_waitcnt lgkmcnt({2-j})')
        for i in range(4 * j, 4 * j + 4): a(f'v_fma_f32 v{ACC+i}, -v50, v{CS+i}, v{ACC+i}')
    for i in range(12): a(f'v_mul_f32 v{ACC+i}, v48, v{ACC+i}')
    for i in range(6): a(f'v_cvt_pk_bf16_f32 v{P+i}, v{ACC+2*i}, v{ACC+2*i+1}')
    a(f'''
    ds_write_b64 v54, v[{P}:{P+1}]
    ds_write_b16 v57, v{P+2} offset:{KV_V}
    ds_write_b16_d16_hi v57, v{P+2} offset:{KV_V+16}
    ds_write_b16 v57, v{P+3} offset:{KV_V+32}
    ds_write_b16_d16_hi v57, v{P+3} offset:{KV_V+48}
    s_mov_b64 exec, s[48:49]
    ds_write_b32 v58, v{P+5} offset:{KV_X}
    ds_write_b32 v58, v59 offset:{KV_X+128}
    s_mov_b64 exec, s[50:51]
    ds_write_b16 v55, v{P+5} offset:{KV_V+256}
    ds_write_b16_d16_hi v55, v{P+5} offset:{KV_V+272}
    ds_write_b16 v55, v59 offset:{KV_V+288}
    s_mov_b64 exec, -1
    v_cndmask_b32 v60, 0, v{P+5}, s[48:49]
    v_mov_b32 v61, 0
    v_dot2c_f32_bf16 v61, v{P}, v{P}
    v_dot2c_f32_bf16 v61, v{P+1}, v{P+1}
    v_dot2c_f32_bf16 v61, v60, v60
    s_nop 2
    v_mov_b32 v62, v61
    s_nop 1
    v_permlane32_swap_b32 v61, v62
    v_add_f32 v61, v61, v62
    v_mov_b32 v62, v61
    s_nop 1
    v_permlane16_swap_b32 v61, v62
    v_add_f32 v61, v61, v62
    s_nop 1
    v_max_f32_dpp v61, v61, v61 row_ror:8 row_mask:0xf bank_mask:0xf
    s_nop 1
    v_max_f32_dpp v61, v61, v61 row_ror:4 row_mask:0xf bank_mask:0xf
    s_nop 1
    v_max_f32_dpp v61, v61, v61 row_ror:2 row_mask:0xf bank_mask:0xf
    s_nop 1
    v_max_f32_dpp v61, v61, v61 row_ror:1 row_mask:0xf bank_mask:0xf
    s_lshl_b32 s46, s16, 2
    s_add_u32 s46, s46, {EX_OFF + 256}
    v_mov_b32 v62, s46
    ds_write_b32 v62, v61
    s_branch L_kv_out
    ''')

def kv_helper(a, stamp, done):
    ACC, ONE, TRA, WB = 16, 24, 28, 0
    vm = Vm(a)
    a(f'''
    s_sub_u32 s23, s16, 6
    v_lshrrev_b32 v2, 1, v1
    v_and_b32 v3, 0x13, v2
    v_bfe_u32 v4, v2, 2, 1
    v_bfe_u32 v5, v2, 3, 1
    v_lshl_add_u32 v3, v4, 3, v3
    v_lshl_add_u32 v3, v5, 2, v3
    v_mul_u32_u24 v3, 36, v3
    v_and_b32 v4, 1, v1
    v_lshl_add_u32 v6, v4, 4, v3
    v_mul_u32_u24 v7, 36, v1
    v_add_u32 v7, 20, v7
    s_mov_b32 s22, 0
    s_mul_i32 s20, s23, {KV_VM}
    s_mul_i32 s21, s23, {KV_VE-KV_KE}
    s_add_u32 s21, s21, {KV_KE}
    s_setprio 3
    s_waitcnt lgkmcnt(0)
    s_cmp_eq_u32 s23, 0
    s_cselect_b32 s28, s8, s10
    s_cselect_b32 s29, s9, s11
    s_mov_b32 s30, {D*36}
    s_mov_b32 s31, 0x20000
    ''')
    def issue(u):
        if u == 9:
            clears(vm, 23, 32)
        if u > 8: return
        a(f's_add_u32 m0, s21, {u*1024}\ns_nop 0')
        vm.issue(u, 'buffer_load_dwordx4 v7, s[28:31], s22 offen lds')
        a(f's_add_u32 m0, s20, {(u%8)*2048}\ns_nop 0')
        vm.issue(u, 'buffer_load_dwordx4 v6, s[28:31], s22 offen lds')
        a(f's_add_u32 m0, s20, {(u%8)*2048+1024}\ns_add_u32 s22, s22, {ROWB}')
        vm.issue(u, f'buffer_load_dwordx4 v6, s[28:31], s22 offen lds')
        if u < 8: a(f's_add_u32 s22, s22, {ROWB}')
    issue(0); a('s_setprio 2'); issue(1); a('s_setprio 0')
    a(f'''
    s_cmp_eq_u32 s26, 255
    s_cselect_b32 s46, s23, 0
    s_cmp_eq_u32 s46, 1
    s_cbranch_scc0 L_notag
    s_add_u32 s32, s6, {WS_NONCE}
    s_addc_u32 s33, s7, 0
    s_load_dword s46, s[32:33], 0
    s_mov_b32 s34, 4
    s_mov_b32 s35, 0x20000
    s_mov_b32 s8, s4
    s_mov_b32 s9, s5
    s_mov_b32 s10, 4
    s_mov_b32 s11, 0x20000
    v_mov_b32 v13, 0
    s_waitcnt lgkmcnt(0)
    s_add_u32 s46, s46, 1
    s_max_u32 s46, s46, 1
    v_mov_b32 v12, s46
    s_mov_b64 exec, 1
    buffer_store_dword v12, v13, s[8:11], 0 offen sc1
    buffer_store_dword v12, v13, s[32:35], 0 offen sc1
    s_mov_b64 exec, -1
L_notag:
    ''')
    srd(a, 32, 6, 0, WS_USED)
    a('v_lshrrev_b32 v3, 4, v1')
    kv_tra(a, TRA)
    a(f'v_add_u32 v{TRA}, s20, v{TRA}')
    for i in range(4): a(f'v_mov_b32 v{ONE+i}, {hx(ONES)}')
    def reads(t):
        w, o = WB + 8 * (t % 3), (t % 16) * 1024
        return [((t, 0), f'ds_read_b64_tr_b16 a[{w}:{w+1}], v{TRA} offset:{o}'),
                ((t, 0), f'ds_read_b64_tr_b16 a[{w+2}:{w+3}], v{TRA} offset:{o+256}'),
                ((t, 1), f'ds_read_b64_tr_b16 a[{w+4}:{w+5}], v{TRA+1} offset:{KV_KE+t*512}'),
                ((t, 1), f'ds_read_b64_tr_b16 a[{w+6}:{w+7}], v{TRA+1} offset:{KV_KE+t*512+64}')]
    def mfmas(t):
        w = WB + 8 * (t % 3)
        return [([(t, j)], mf16(ACC + 4 * j, ar(w + 4 * j, 4), vr(ONE, 4), t == 0)) for j in range(2)]
    kloop(a, vm, reads, mfmas, issue)
    a(f'''
    s_lshl_b32 s46, s23, 6
    s_add_u32 s46, s46, {EX_OFF}
    v_lshl_add_u32 v8, v3, 4, s46
    s_mov_b32 s46, {EX_OFF + 128}
    v_lshl_add_u32 v9, v3, 4, s46
    s_mov_b32 s48, 0x00010001
    s_mov_b32 s49, 0x00010001
    s_mov_b64 exec, s[48:49]
    s_nop 1
    ds_write_b128 v8, v[{ACC}:{ACC+3}]
    ds_write_b128 v9, v[{ACC+4}:{ACC+7}]
    s_mov_b64 exec, -1
    s_waitcnt lgkmcnt(0)
    s_barrier
    ''')
    srd(a, 32, 6, WS_KV, WS_WO - WS_KV)
    a('L_kv_out:')
    kv_out(a, done)

def decode(a, rotate):
    a(f'''
    v_lshrrev_b32 v2, 6, v0
    v_and_b32 v1, 63, v0
    s_and_b32 s20, s2, 7
    v_readfirstlane_b32 s16, v2
    s_lshr_b32 s21, s2, 3
    s_mul_i32 s22, s20, 29
    s_mul_i32 s23, s20, 3
    s_cmp_eq_u32 s20, 7
    s_cselect_b32 s24, 1, 0
    s_add_u32 s22, s22, s24
    s_sub_u32 s23, s23, s24
    s_cmp_ge_u32 s20, 6
    s_cselect_b32 s24, 30, 29
    s_cmp_ge_u32 s21, s24
    s_cbranch_scc1 L_k1_kv
    s_add_u32 s26, s22, s21
    s_mul_i32 s17, s26, 57
    s_lshr_b32 s17, s17, 9
    s_mul_i32 s18, s17, 9
    s_sub_u32 s18, s26, s18
    ''')

def phase1(a, rotate, stamp, done):
    global STAMP
    STAMP = stamp
    decode(a, rotate)
    q_common(a)
    a('s_cmp_ge_u32 s16, 4\ns_cbranch_scc1 L_k1_qs')
    q_big(a, stamp, done)
    a('L_k1_qs:')
    q_small(a, stamp, done)
    a('L_k1_kv:\ns_sub_u32 s17, s21, s24\ns_add_u32 s17, s17, s23\ns_add_u32 s26, s17, 234')
    a('s_cmp_ge_u32 s16, 6\ns_cbranch_scc1 L_k1_hkv')
    kv_main(a, stamp, done)
    a('L_k1_hkv:')
    kv_helper(a, stamp, done)

def entry(a, stamp, exit_label):
    a(f'''
    s_cmp_ge_u32 s2, 256
    s_cbranch_scc1 {exit_label}
    s_load_dwordx2 s[28:29], s[0:1], {KA_X}
    s_load_dwordx2 s[60:61], s[0:1], {KA_WQ}
    s_load_dwordx4 s[8:11], s[0:1], {KA_WK}
    s_load_dwordx2 s[12:13], s[0:1], {KA_WO}
    s_load_dwordx4 s[4:7], s[0:1], {KA_DBG}
    s_mov_b32 s30, {S*ROWB}
    s_mov_b32 s31, 0x20000
    s_mov_b32 s62, {D*ROWB}
    s_mov_b32 s63, 0x20000
    ''')
    stamp(a, 'start')

def diag(t):
    out = []
    for l in t.split('\n'):
        s = l.strip()
        if 'nomfma' in DIAG and 'mfma' in s: continue
        if 'nostat' in DIAG and ('smfmac_f32_16' in s and s.endswith(('v40', 'v44')) or ('mfma_f32_16x16x32' in s and s.split(', ')[1] == s.split(', ')[2])): continue
        if 'nostat4' in DIAG and (s.startswith('v_smfmac_f32_16x16x64_bf16 v[32:35], v[36') or s.startswith('v_mfma_f32_16x16x32_bf16 v[24:27], a[') and s.split(', ')[1] == s.split(', ')[2]): continue
        if 'nolgkm' in DIAG and s.startswith('s_waitcnt lgkmcnt') and not s.endswith('(0)'): continue
        if 'nord' in DIAG and s.startswith('ds_read') and ' a[' in s: continue
        if 'nodma' in DIAG and s.endswith('lds'): continue
        out.append(l)
    return '\n'.join(out)

def k1(name, rotate=True, stamp=nomark):
    a = Asm()
    a(f'.globl {name}\n.p2align 8\n.type {name},@function\n{name}:')
    entry(a, stamp, 'L_k1_exit')
    def done(a):
        stamp(a, 'end'); a('s_endpgm')
    phase1(a, rotate, stamp, done)
    a('L_k1_exit:\ns_endpgm')
    return diag(a.text())
```

```python
from common import *

LG, LU, LD = 0, 36864, 73728
LP = 110592
LO = LP + 20480
LQ = LO + 9 * 1152
LDUM = LQ + 8 * 2048
LX = LDUM + 1024
X_FLAG, X_KEY, X_WIN, X_G, X_ACT, X_MAX, X_PMAX = LX, LX + 32, LX + 64, LX + 128, LX + 640, LX + 1152, LP
K2_LDS = LX + 2304
HROW = 2560
LQR = LP
ONES = 0x3f803f80
M_LIMIT = 48.0
SPIN = 40000
POLL_SLEEP, FIN_SLEEP, FIN_SLEEP2 = 3, 31, 2

SA, SB, OACC, T = 0, 16, 32, 52
IDXA, IDXB, WAD, RAD, OAD, OST, AAD, L16, QAD, GUV, MV, LANE, WAD3, QXAD = 68, 69, 70, 71, 72, 73, 74, 75, 76, 77, 78, 79, 80, 81
NV = 84
KM, KX, VV, OO, WO, QM, QX, AF = 0, 32, 40, 104, 120, 160, 164, 168
NA = 172
S_WS, S_G, S_U, S_D, S_X, S_OUT, S_WR = 20, 24, 28, 32, 36, 40, 44
WAVE, S_FS, S_WOC, S_MG, S_MU, S_MD, S_MST, S_GOFF, S_DOFF, S_CNT, S_NT0 = 18, 19, 48, 49, 50, 51, 52, 53, 54, 55, 56
S_DST = 57
DIAG = set()
LDP = ' sc1'
FUSED = False
WOP = ' sc1'
QKORD = 0
PRIO = (3, 2, 1, 3, 3, 2, 1, 1)
MIDP = {3: (10, 0), 0: (10, 0)}
SPEC = 0
DEFER = 0
LATE = 0
ALIGN = 3
KPOLL_SLEEP, KPOLL_FIRST, FPOLL_SLEEP = 3, 8, 2
ROTF = 0x30003
PRE = (3, 1, 0)

def qk8(Y, slot, c): return f'v_mfma_f32_32x32x8bf16_1k v[{Y}:{Y+15}], a[{KX+(slot&~1)}:{KX+(slot&~1)+1}], a[{QX+2*(slot&1)}:{QX+2*(slot&1)+1}], {c}'
def qk16(Y, slot, c): return f'v_mfma_f32_32x32x16_bf16 v[{Y}:{Y+15}], a[{KM+4*slot}:{KM+4*slot+3}], a[{QM}:{QM+3}], {c}'
def qkx(Y, slot): return (qk16 if QKORD else qk8)(Y, slot, '0')
def qkm(Y, slot): return (qk8 if QKORD else qk16)(Y, slot, f'v[{Y}:{Y+15}]')
def pv(X, slot, s): return f'v_smfmac_f32_32x32x32_bf16 a[{OO}:{OO+15}], a[{VV+8*slot+4*s}:{VV+8*slot+4*s+3}], v[{X+8*s}:{X+8*s+7}], v{IDXA}'
def zero_o(): return f'v_mfma_f32_32x32x8bf16_1k a[{OO}:{OO+15}], a[{QX}:{QX+1}], a[{QX+2}:{QX+3}], 0'
def oproj(f, af, w): return f'v_smfmac_f32_16x16x64_bf16 v[{OACC+4*f}:{OACC+4*f+3}], a[{af}:{af+3}], a[{w}:{w+7}], v{IDXB}'
W_PART = [f'ds_write_b128 v{WAD}, a[{OO}:{OO+3}]', f'ds_write_b128 v{WAD}, a[{OO+4}:{OO+7}] offset:32', f'ds_write_b64 v{WAD3}, a[{OO+8}:{OO+9}]']
R_PART = [f'ds_read2st64_b64 v[{T+4*i}:{T+4*i+3}], v{RAD} offset0:{10*i} offset1:{10*i+5}' for i in range(4)]
def pka(d, x, y): return f'v_add_f32 v{T+d}, v{T+x}, v{T+y}\nv_add_f32 v{T+d+1}, v{T+x+1}, v{T+y+1}'
ADDS = [pka(0, 0, 2), pka(4, 4, 6), pka(8, 8, 10), pka(12, 12, 14), pka(0, 0, 4), pka(8, 8, 12), pka(0, 0, 8)]
NORM = [f'v_rcp_f32_dpp v{T+2}, v{T} row_newbcast:9 row_mask:0xf bank_mask:0xf',
        f'v_mul_f32 v{T}, v{T}, v{T+2}\nv_mul_f32 v{T+1}, v{T+1}, v{T+2}',
        f'v_cvt_pk_bf16_f32 v{T+4}, v{T}, v{T+1}',
        f'ds_write_b32 v{OAD}, v{T+4}',
        f'v_add_u32 v{OAD}, v{OST}, v{OAD}']

def tile(a, t, ex, slow, prev=True, nxt=True, kind='std', x16=None, x16b=None):
    X, Y = (SA, SB) if t % 2 == 0 else (SB, SA)
    m = {}
    def put(p, s): m.setdefault(p, []).append(s)
    p_pvb, p_x, p_qx, p_qm, p_pva = 2, 5, 6, 10, 14
    if kind == 'first': p_qx, p_qm, p_pva = 5, 9, 16
    if kind == 'second':
        p_pvb = 3
        if x16: p_x, p_qx, p_qm = 6, 7, 11
    if prev: put(p_pvb, pv(Y, (t - 1) % 8, 1))
    if x16:
        for s in x16: put(p_x, s)
    if x16b:
        for s in x16b: put(13, s)
    if nxt:
        put(p_qx, ('qx', qkx(Y, (t + 1) % 8))); put(p_qm, qkm(Y, (t + 1) % 8))
    if kind == 'first':
        for s in W_PART: put(p_qm, s)
        put(12, zero_o())
    put(p_pva, ('pa', pv(X, t, 0)))
    for p in range(17):
        for s in m.get(p, []):
            if isinstance(s, tuple):
                for e in ex.get(s[0], []): e() if callable(e) else a(e)
                s = s[1]
            s() if callable(s) else a(s)
        for e in ex.get(p, []): e() if callable(e) else a(e)
        if p < 16:
            if slow: a(f'v_sub_f32 v{X+p}, v{X+p}, v{MV}')
            a(f'v_exp_f32 v{X+p}, v{X+p}')

def wo_load(vm, tag, reg, soff_add):
    def th():
        vm.a(f's_add_u32 s58, s{S_WOC}, {soff_add}')
        vm.issue(tag, f'buffer_load_dwordx4 a[{reg}:{reg+3}], v{L16}, s[{S_WS}:{S_WS+3}], s58 offen{WOP}')
        vm.issue(tag, f'buffer_load_dwordx4 a[{reg+4}:{reg+7}], v{L16}, s[{S_WS}:{S_WS+3}], s58 offen offset:1024{WOP}')
    return th

def q_reads(slow):
    r = [f'ds_read_b128 a[{QM}:{QM+3}], v{QAD}', f'ds_read_b128 a[{QX}:{QX+3}], v{QAD} offset:1024', f'v_add_u32 v{QAD}, 2048, v{QAD}']
    return r

STEP = 36 * 2048
def attention(a, n, slow, lab, vm, stamp, pre):
    prio = dict(zip((1, 2, 3, 4, 5, 6, 7, 0), PRIO))
    def mload():
        return [f'ds_read_b32 v{T+15}, v82', 's_waitcnt lgkmcnt(0)', 'v_add_u32 v82, 128, v82'] if slow else []
    a('s_waitcnt lgkmcnt(0)')
    vm.need('km0')
    a(qkx(SA, 0)); a(qkm(SA, 0)); a(zero_o())
    if slow:
        a(f'ds_read_b32 v{MV}, v82\nv_add_u32 v82, 128, v82\ns_waitcnt lgkmcnt(0)')
    a('s_nop 3')
    for t in range(8):
        ex = {0: [f's_setprio {prio[t]}']}
        if t < 7: ex['qx'] = [lambda t=t: vm.need(f'km{t+1}')]
        ex['pa'] = [lambda t=t: vm.need(f'v{t}')]
        if t + pre < 8:
            for q in range(4): ex[1 + 4 * q] = [lambda t=t, q=q: kv_load(vm, t + pre, q)]
        if t == 5:
            for q in range(3): ex[1 + 3 * q] = [lambda q=q: warm(vm, q)]
            ex[12] = [wo_load(vm, 'f', WO, 0)]
        if t >= 6:
            ex[1] = [wo_load(vm, 'f', WO + 8 * (2 * t - 11), (2 * t - 11) * 2048)]
            if t == 6: ex[8] = [wo_load(vm, 'f', WO + 16, 2 * 2048)]
        if t == 6: ex[11] = q_reads(slow)
        if t == 7:
            ex['qx'] = ['s_waitcnt lgkmcnt(0)']
            if n == 5: ex[15] = [wo_load(vm, 'f', WO + 32, 4 * 2048)]
            ex[11] = mload()
            ex[16] = [f's_add_u32 s{S_WOC}, s{S_WOC}, {STEP}']
        tile(a, t, ex, slow, prev=t > 0)
        if t == 7 and slow: a(f'v_mov_b32 v{MV}, v{T+15}')
    stamp(a, 's0')
    def dma(q):
        srdr, off, vo, so = ((S_G, LG, GUV, S_GOFF), (S_U, LU, GUV, S_GOFF), (S_D, LD, L16, S_DOFF))[q]
        r = [f's_add_u32 m0, s{S_MG}, {off}', 's_nop 0', f'buffer_load_dwordx4 v{vo}, s[{srdr}:{srdr+3}], s{so} offen lds']
        return r + [[], [f's_add_u32 s{S_GOFF}, s{S_GOFF}, {6*16*F*2}'], [f's_add_u32 s{S_MG}, s{S_MG}, 6144', f's_add_u32 s{S_DOFF}, s{S_DOFF}, 6144']][q]
    use = {4: [0], 5: [1], 6: [2], 7: [3, 4][:n - 3]}
    def body(last, xfer=False):
        lv = Vm(a)
        nvm = 2 * n - 2 + (3 if xfer else 0)
        if last:
            lv.q = [f'f{f}' for f in range(n) for _ in range(2)]
            free = {1: [KM, VV], 2: [VV + 8], 3: [KM + 8, VV + 16]}
            todo = [(8, f) for f in range(n)]
            where = {}
        for t in range(8):
            ex = {0: [f's_setprio {prio[t]}']}
            if t in MIDP: ex[MIDP[t][0]] = [f's_setprio {MIDP[t][1]}']
            x16, x16b = None, None
            for q, f in enumerate(use.get(t, [])):
                wait = (lambda f=f: lv.need(f'f{f}')) if last else f's_waitcnt vmcnt({nvm})'
                item = [wait, oproj(f, AF, WO + 8 * f)]
                if t == 4: item = ['s_waitcnt lgkmcnt(0)'] + item
                if q == 0 and t != 4: x16 = item
                else: x16b = item
                ex.setdefault(8 if (q == 0 and t != 4) else 15, []).append(wo_load(lv, f'f{f}', WO + 8 * f, f * 2048))
            if t == 0:
                ex[16] = ['s_waitcnt lgkmcnt(0)', 's_barrier']
            if t == 1:
                for i, p in enumerate((1, 5, 8, 12)): ex.setdefault(p, []).append(R_PART[i])
            if t == 2:
                ex.setdefault(1, []).append('s_waitcnt lgkmcnt(0)')
                for i, p in enumerate((1, 3, 5, 7, 9, 11, 13)): ex.setdefault(p, []).append(ADDS[i])
            if t == 3:
                for i, p in enumerate((0, 2, 4, 5, 7)): ex.setdefault(p, []).append(NORM[i])
                ex[16] = ['s_waitcnt lgkmcnt(0)', 's_barrier']
            if xfer and t < 3: ex.setdefault(14, []).extend(dma(t))
            if t == 4:
                ex.setdefault(1, []).extend([f'ds_read_b128 a[{AF}:{AF+3}], v{AAD}', f'v_add_u32 v{AAD}, 1152, v{AAD}'])
            if t == 6 and not last: ex[11] = q_reads(slow)
            if t == 7 and not last:
                ex['qx'] = ['s_waitcnt lgkmcnt(0)']
                ex[11] = mload()
                ex[16] = [f's_add_u32 s{S_WOC}, s{S_WOC}, {STEP}', f's_sub_u32 s{S_CNT}, s{S_CNT}, 1', f's_cmp_lg_u32 s{S_CNT}, 0']
            if last:
                for i, reg in enumerate(free.get(t, [])):
                    if todo:
                        st, f = todo.pop(0); where[(st, f)] = reg
                        ex.setdefault(11 + 3 * i, []).append(wo_load(lv, f's{st}f{f}', reg, f * 2048 + STEP))
                if t == 7:
                    def rows():
                        for i in range(5): lv.issue('x', f'buffer_load_dword v{SA+i}, v82, s[{S_X}:{S_X+3}], s59 offen offset:{256*i}')
                        for i in range(5): lv.issue('w', f'buffer_load_dword v{SA+5+i}, v82, s[{S_WR}:{S_WR+3}], 0 offen offset:{256*i}')
                    ex[3] = [f'v_lshlrev_b32 v82, 2, v{LANE}', f's_lshl_b32 s59, s2, 3', f's_add_u32 s59, s59, s{WAVE}', f's_mul_i32 s59, s59, {ROWB}', rows]
            tile(a, t, ex, slow, nxt=not (last and t == 7), kind={0: 'first', 1: 'second'}.get(t, 'std'), x16=x16, x16b=x16b)
            if t == 7 and slow and not last: a(f'v_mov_b32 v{MV}, v{T+15}')
        if last:
            assert not todo
            return lv, where
    a(f's_mov_b32 s{S_CNT}, 6\ns_cmp_eq_u32 s{S_MST}, 0\ns_cbranch_scc1 {lab}n_loop\n.p2align {ALIGN}\n{lab}x_loop:')
    body(False, True)
    a(f's_cbranch_scc1 {lab}x_loop\ns_branch {lab}_last\n.p2align {ALIGN}\n{lab}n_loop:')
    body(False, False)
    a(f's_cbranch_scc1 {lab}n_loop\n{lab}_last:')
    stamp(a, 's6')
    lv, where = body(True)
    a('s_setprio 0\ns_nop 0')
    a(pv(SB, 7, 1))
    stamp(a, 's7')
    a('s_nop 9')
    for s in W_PART: a(s)
    a('s_waitcnt lgkmcnt(0)\ns_barrier')
    stamp(a, 'b1')
    for s in R_PART: a(s)
    a(f'''
    v_and_b32 v20, 15, v{LANE}
    v_bfe_u32 v21, v{LANE}, 4, 1
    v_mul_u32_u24 v21, {4*HROW + 64}, v21
    v_lshl_add_u32 v20, v20, 2, v21
    s_lshl_b32 s58, s{S_NT0}, 6
    s_add_u32 s58, s58, {LP}
    v_add_u32 v20, s58, v20
    v_lshrrev_b32 v21, 5, v{LANE}
    v_lshl_add_u32 v21, v21, 6, v20
    v_add_u32 v22, 128, v21
    ''')
    a('s_waitcnt lgkmcnt(2)'); a(ADDS[0]); a(ADDS[1]); a(ADDS[4]); a('s_waitcnt lgkmcnt(0)')
    for q in (2, 3, 5, 6): a(ADDS[q])
    a('s_nop 0'); a(NORM[0]); a('s_nop 0')
    for s in NORM[1:4]: a(s)
    lv.need('x', 'w')
    for i in range(5): unpack(a, 10 + 2 * i, i)
    a(f'''
    s_waitcnt lgkmcnt(0)
    s_barrier
    ds_read_b128 a[{QM}:{QM+3}], v{AAD} offset:1152
    ds_read_b128 a[{AF}:{AF+3}], v{AAD}
    v_mov_b32 v{T+8}, 0
    v_mov_b32 v{T+9}, {hx(ONES)}
    s_mul_i32 s58, s{WAVE}, {HROW}
    s_lshr_b32 s59, s{WAVE}, 2
    s_lshl_b32 s59, s59, 6
    s_add_u32 s58, s58, s59
    s_add_u32 s58, s58, {LP}
    v_lshl_add_u32 v{T+10}, v{LANE}, 3, s58
    ''')
    for i in range(5): a(f'v_dot2c_f32_bf16 v{T+8}, v{5+i}, v{T+9}')
    stamp(a, 'b2')
    a('s_waitcnt lgkmcnt(1)')
    for f in range(n):
        lv.need(f's8f{f}'); a(oproj(f, QM, where[(8, f)]))
    a('s_waitcnt lgkmcnt(0)')
    for f in range(n):
        lv.need(f'f{f}'); a(oproj(f, AF, WO + 8 * f))
    stamp(a, 'op')
    a(f's_nop {9 - n}')
    R = HROW // 256
    for p in range(2):
        A, B = OACC + 8 * p, OACC + 8 * p + 4
        for r in range(4): a(f'v_permlane32_swap_b32 v{A+r}, v{B+r}')
        for r in range(4): a(f'v_add_f32 v{A+r}, v{A+r}, v{B+r}')
        for r in (0, 2): a(f'ds_write2st64_b32 v{21+p}, v{A+r}, v{A+r+1} offset0:{r*R} offset1:{(r+1)*R}')
    if n == 5:
        A = OACC + 16
        for r in range(4): a(f'v_mov_b32 v{T+4+r}, v{A+r}')
        for r in range(4): a(f'v_permlane32_swap_b32 v{A+r}, v{T+4+r}')
        for r in range(4): a(f'v_add_f32 v{A+r}, v{A+r}, v{T+4+r}')
        for r in (0, 2): a(f'ds_write2st64_b32 v20, v{A+r}, v{A+r+1} offset0:{r*R+1} offset1:{(r+1)*R+1}')
    a(f's_branch L_tail')

def warm(vm, i):
    vm.a(f's_add_u32 s58, s60, {i*8192}')
    vm.issue('warm', f'buffer_load_dwordx4 a[{WO+8*i}:{WO+3+8*i}], v{L16}, s[{S_WS}:{S_WS+3}], s58 offen{LDP}')

def dpp_reduce(a, op, regs):
    for c in ('row_shr:1', 'row_shr:2', 'row_shr:4', 'row_shr:8', 'row_bcast:15 row_mask:0xa', 'row_bcast:31 row_mask:0xc'):
        if len(regs) < 3: a(f's_nop {2 - len(regs)}')
        for r in regs:
            mask = '' if 'row_mask' in c else ' row_mask:0xf'
            a(f'{op}_dpp v{r}, v{r}, v{r} {c}{mask} bank_mask:0xf')

def bf_round(a, dst, src):
    a(f'v_cvt_pk_bf16_f32 v{dst}, v{src}, v{src}\nv_and_b32 v{dst}, 0xffff0000, v{dst}')
def unpack(a, lo, src):
    a(f'v_lshlrev_b32 v{lo}, 16, v{src}\nv_and_b32 v{lo+1}, 0xffff0000, v{src}')

def tail(a, stamp):
    XP, WP, XF, AT, HP, LN, OU = 0, 5, 10, 20, 30, 35, 60
    a(f'''
L_tail:
    v_mov_b32 v46, 0
    v_mov_b32 v47, 0
    s_waitcnt lgkmcnt(0)
    v_mov_b32 v48, 0
    v_mov_b32 v49, v{T+8}
    v_mov_b32 v51, v{T+9}
    s_barrier
    ''')
    for i in range(5): a(f'ds_read_b64 v[{AT+2*i}:{AT+2*i+1}], v{T+10} offset:{512*i}')
    stamp(a, 'attn')
    a(f'''
    s_mov_b32 s62, -1
    s_mov_b32 s63, 0
    s_lshl_b32 s59, s2, 3
    s_add_u32 s59, s59, s{WAVE}
    s_sub_u32 s69, 2047, s59
    s_lshl_b32 s58, s{WAVE}, 2
    s_add_u32 s58, s58, {X_KEY}
    v_mov_b32 v57, s58
    v_and_b32 v55, 7, v{LANE}
    s_mov_b32 s58, {X_KEY}
    v_lshl_add_u32 v55, v55, 2, s58
    s_mov_b32 s60, {GRAN_REP}
    v_mul_lo_u32 v56, s60, v{LANE}
    v_mov_b32 v52, {hx(f32(1.0/D))}
    ''')
    for i in range(5):
        a(f's_waitcnt lgkmcnt({4-i})\nv_pk_add_f32 v[{AT+2*i}:{AT+2*i+1}], v[{AT+2*i}:{AT+2*i+1}], v[{XF+2*i}:{XF+2*i+1}]')
        a(f'v_cvt_pk_bf16_f32 v{HP+i}, v{AT+2*i}, v{AT+2*i+1}')
        if i == 4: a(f'v_cndmask_b32 v{HP+4}, 0, v{HP+4}, s[62:63]')
        a(f'v_dot2c_f32_bf16 v46, v{HP+i}, v51\nv_dot2c_f32_bf16 v47, v{HP+i}, v{HP+i}\nv_dot2c_f32_bf16 v48, v{HP+i}, v{WP+i}')
    a(f'''
    s_lshl_b32 s60, s2, 7
    s_add_u32 s60, s60, {WS_GRAN}
    s_nop 0
    v_permlane32_swap_b32 v46, v47
    v_permlane32_swap_b32 v48, v49
    v_add_f32 v46, v46, v47
    v_add_f32 v48, v48, v49
    s_nop 1
    v_permlane16_swap_b32 v46, v48
    v_add_f32 v46, v46, v48
    ''')
    for c in (8, 4, 2, 1): a(f's_nop 1\nv_add_f32_dpp v46, v46, v46 row_ror:{c} row_mask:0xf bank_mask:0xf')
    a(f'''
    s_nop 0
    v_readlane_b32 s64, v46, 0
    v_readlane_b32 s65, v46, 32
    v_readlane_b32 s66, v46, 16
    v_readlane_b32 s67, v46, 48
    v_mul_f32 v46, s64, v52
    v_mul_f32 v47, s65, v52
    v_fma_f32 v47, -v46, v46, v47
    v_max_f32 v47, 0, v47
    ''')
    bf_round(a, 47, 47)
    a(f'v_add_f32 v47, {hx(f32(1e-5))}, v47')
    bf_round(a, 47, 47)
    a('v_sqrt_f32 v47, v47')
    bf_round(a, 46, 46)
    bf_round(a, 47, 47)
    a(f'''
    v_rcp_f32 v48, v47
    v_mov_b32 v53, s66
    v_fma_f32 v53, -v46, s67, v53
    v_mul_f32 v53, v53, v48
    v_cvt_pk_bf16_f32 v53, v53, v53
    v_ashrrev_i32 v54, 31, v53
    v_or_b32 v54, 0x80000000, v54
    v_xor_b32 v53, v53, v54
    v_lshrrev_b32 v53, 16, v53
    v_lshl_or_b32 v53, v53, 11, s69
    ds_write_b32 v57, v53
    s_getreg_b32 s58, hwreg(HW_REG_XCC_ID)
    s_and_b32 s58, s58, 7
    s_mul_i32 s58, s58, {GRAN_REP}
    s_and_b32 s64, s{WAVE}, 3
    s_lshl_b32 s64, s64, 13
    s_add_u32 s58, s58, s64
    s_add_u32 s64, s58, {WS_GRAN}
    v_lshlrev_b32 v65, 7, v{LANE}
    s_waitcnt lgkmcnt(0)
    s_barrier
    ds_read_b32 v54, v55
    s_mov_b32 s61, 0
    s_waitcnt lgkmcnt(0)
    v_cmp_gt_u32 vcc, v54, v53
    s_cbranch_vccnz L_notbest
    s_mov_b64 exec, 0xff
    buffer_store_dword v53, v56, s[{S_WS}:{S_WS+3}], s60 offen sc1
    s_mov_b64 exec, -1
    s_mov_b32 s61, 1
L_notbest:
    ''')
    stamp(a, 'gran')
    for c in (4, 2, 1): a(f'v_max_u32_dpp v54, v54, v54 row_ror:{c} row_mask:0xf bank_mask:0xf\ns_nop 1')
    a(f'v_readfirstlane_b32 s65, v54\ns_xor_b32 s65, s65, s{WAVE}\ns_and_b32 s65, s65, 4')
    a('v_sub_f32 v56, 0, v46\nv_mov_b32 v57, v56\nv_mov_b32 v49, v48')
    for i in range(5): unpack(a, XF + 2 * i, HP + i)
    for i in range(5): a(f'v_pk_add_f32 v[{AT+2*i}:{AT+2*i+1}], v[{XF+2*i}:{XF+2*i+1}], v[56:57]')
    for i in range(5): a(f'v_cvt_pk_bf16_f32 v{LN+i}, v{AT+2*i}, v{AT+2*i+1}')
    for i in range(5): unpack(a, AT + 2 * i, LN + i)
    for i in range(5): a(f'v_pk_mul_f32 v[{AT+2*i}:{AT+2*i+1}], v[{AT+2*i}:{AT+2*i+1}], v[48:49]')
    for i in range(5): a(f'v_cvt_pk_bf16_f32 v{LN+i}, v{AT+2*i}, v{AT+2*i+1}')
    a(f'''
    v_lshlrev_b32 v58, 2, v{LANE}
    s_cmp_eq_u32 s61, 1
    s_cbranch_scc0 L_norow
    s_mul_i32 s58, s2, 2304
    s_add_u32 s58, s58, {WS_ROWS}
    ''')
    for i in range(4): a(f'buffer_store_dword v{LN+i}, v58, s[{S_WS}:{S_WS+3}], s58 offen offset:{256*i} sc1')
    for i in range(4): a(f'buffer_store_dword v{HP+i}, v58, s[{S_WS}:{S_WS+3}], s58 offen offset:{1152+256*i} sc1')
    a(f'''
    s_mov_b32 exec_hi, 0
    buffer_store_dword v{LN+4}, v58, s[{S_WS}:{S_WS+3}], s58 offen offset:1024 sc1
    buffer_store_dword v{HP+4}, v58, s[{S_WS}:{S_WS+3}], s58 offen offset:{1152+1024} sc1
    s_mov_b32 exec_hi, -1
L_norow:
    ''')
    for i in range(5): unpack(a, AT + 2 * i, LN + i)
    for i in range(5): a(f'v_pk_add_f32 v[{AT+2*i}:{AT+2*i+1}], v[{AT+2*i}:{AT+2*i+1}], v[{XF+2*i}:{XF+2*i+1}]')
    for i in range(5): a(f'v_cvt_pk_bf16_f32 v{OU+i}, v{AT+2*i}, v{AT+2*i+1}')
    def out_row():
        for i in range(4): a(f'buffer_store_dword v{OU+i}, v58, s[{S_OUT}:{S_OUT+3}], s68 offen offset:{256*i}')
        a(f's_mov_b32 exec_hi, 0\nbuffer_store_dword v{OU+4}, v58, s[{S_OUT}:{S_OUT+3}], s68 offen offset:1024\ns_mov_b32 exec_hi, -1')
    a(f's_mul_i32 s68, s59, {ROWB}')
    if not DEFER:
        a('s_cmp_eq_u32 s61, 1\ns_cbranch_scc1 L_defer')
        out_row()
        a('L_defer:')
    elif DEFER == 2:
        a('s_cmp_eq_u32 s61, 1\ns_cbranch_scc1 L_defer\ns_cmp_eq_u32 s65, 0\ns_cbranch_scc1 L_defer')
        out_row()
        a('s_mov_b32 s61, 2\nL_defer:')
    stamp(a, 'rows')
    GW, DW = 0, 60
    a(f'''
    v_lshrrev_b32 v1, 4, v{LANE}
    v_bfe_u32 v2, v{LANE}, 2, 2
    v_and_b32 v3, 3, v{LANE}
    v_lshl_add_u32 v2, v1, 3, v2
    s_cmp_ge_u32 s{S_FS}, 144
    s_cbranch_scc1 L_nopre
    s_and_b32 s58, s{WAVE}, 1
    v_and_b32 v4, 1, v1
    v_xor_b32 v4, s58, v4
    v_lshlrev_b32 v4, 5, v4
    v_lshl_add_u32 v4, v2, 6, v4
    v_lshl_add_u32 v4, v3, 3, v4
    s_bfe_u32 s58, s{WAVE}, 0x10001
    s_mul_i32 s58, s58, {LU}
    s_lshr_b32 s60, s{WAVE}, 2
    s_mul_i32 s69, s60, {9*2048}
    s_add_u32 s58, s58, s69
    v_add_u32 v4, s58, v4
    v_mul_u32_u24 v5, {ROWB}, v2
    v_lshl_add_u32 v5, v3, 3, v5
    s_lshl_b32 s58, s{S_NT0}, 5
    s_add_u32 s58, s58, {LD}
    v_add_u32 v5, s58, v5
    ''')
    for i in range(9):
        a(f'ds_read_b64_tr_b16 a[{GW+4*i}:{GW+4*i+1}], v4 offset:{2048*i}\nds_read_b64_tr_b16 a[{GW+4*i+2}:{GW+4*i+3}], v4 offset:{2048*i+256}')
    for f in range(5):
        a(f'ds_read_b64_tr_b16 a[{DW+4*f}:{DW+4*f+1}], v5 offset:{32*f}\nds_read_b64_tr_b16 a[{DW+4*f+2}:{DW+4*f+3}], v5 offset:{32*f+4*ROWB}')
    a(f'''
L_nopre:
    s_cmp_lg_u32 s65, 0
    s_cbranch_scc1 L_polled
    s_mov_b32 s60, 0
L_poll:
    buffer_load_dword v66, v65, s[{S_WS}:{S_WS+3}], s64 offen sc1
    s_add_u32 s60, s60, 1
    s_waitcnt vmcnt(0)
    v_cmp_eq_u32 vcc, -1, v66
    s_and_b64 exec, exec, vcc
    s_cbranch_execz L_polldone
    s_cmp_gt_u32 s60, {SPIN}
    s_cbranch_scc1 L_polldone
    ''')
    if SPEC:
        a(f'''
        s_cmp_gt_u32 s60, {SPEC}
        s_cbranch_scc1 L_nospec
        s_mov_b64 s[66:67], exec
        s_mov_b64 exec, -1
        v_cndmask_b32 v67, v66, 0, s[66:67]
        ''')
        dpp_reduce(a, 'v_max_u32', [67])
        a(f'''
        s_nop 0
        v_readlane_b32 s62, v67, 63
        s_andn2_b32 s62, 2047, s62
        s_lshr_b32 s62, s62, 3
        s_mul_i32 s62, s62, 2304
        s_add_u32 s62, s62, {WS_ROWS}
        s_mov_b64 exec, 0x1ff
        buffer_load_dword v67, v65, s[{S_WS}:{S_WS+3}], s62 offen sc1
        s_mov_b64 exec, s[66:67]
        s_branch L_poll
L_nospec:
        ''')
    a(f'''
    s_sleep {POLL_SLEEP}
    s_branch L_poll
L_polldone:
    s_mov_b64 exec, -1
    s_nop 1
    ''')
    dpp_reduce(a, 'v_max_u32', [66])
    a(f'''
    s_and_b32 s58, s{WAVE}, 3
    s_lshl_b32 s58, s58, 2
    s_add_u32 s58, s58, {X_WIN}
    v_mov_b32 v8, s58
    s_mov_b32 exec_lo, 0
    s_mov_b32 exec_hi, 0x80000000
    ds_write_b32 v8, v66
    s_mov_b64 exec, -1
L_polled:
    v_mov_b32 v8, {X_WIN}
    s_waitcnt lgkmcnt(0)
    s_barrier
    ds_read_b128 v[10:13], v8
    s_waitcnt lgkmcnt(0)
    v_max_u32 v10, v10, v11
    v_max3_u32 v10, v10, v12, v13
    s_nop 0
    v_readfirstlane_b32 s62, v10
    s_and_b32 s63, s62, 2047
    s_sub_u32 s63, 2047, s63
    s_lshr_b32 s64, s63, 3
    s_mul_i32 s64, s64, 2304
    s_add_u32 s64, s64, {WS_ROWS}
    ''')
    stamp(a, 'win')
    a(f'''
    s_cmp_ge_u32 s{S_FS}, 144
    s_cbranch_scc1 L_noffn
    s_lshr_b32 s60, s{WAVE}, 2
    s_mul_i32 s60, s60, 576
    s_add_u32 s60, s60, s64
    s_mul_i32 s68, s{WAVE}, 576
    s_add_u32 m0, s68, {LP}
    s_mov_b32 s66, -1
    s_mov_b32 s67, 0xf
    v_lshlrev_b32 v6, 4, v1
    s_mov_b32 s65, 0
L_xsel:
    s_mov_b64 exec, s[66:67]
    buffer_load_dwordx4 v{L16}, s[{S_WS}:{S_WS+3}], s60 offen sc1 lds
    ''')
    XS = 10
    a(f'''
    s_mov_b64 exec, -1
    s_add_u32 s65, s65, 1
    s_lshl_b32 s58, s{WAVE}, 6
    s_add_u32 s58, s58, {X_G}
    v_add_u32 v7, s58, v6
    v_and_b32 v8, 31, v{LANE}
    s_mov_b32 s58, {X_G}
    v_lshl_add_u32 v9, v8, 2, s58
    s_lshl_b32 s58, s{WAVE}, 6
    s_add_u32 s58, s58, {X_ACT}
    v_lshl_add_u32 v8, v8, 1, s58
    v_add_u32 v51, s58, v6
    v_lshrrev_b32 v2, 3, v{LANE}
    v_mul_u32_u24 v2, 4608, v2
    v_and_b32 v3, 7, v{LANE}
    v_lshl_add_u32 v2, v3, 2, v2
    s_mul_i32 s58, s{S_NT0}, 9216
    s_lshl_b32 s69, s{S_FS}, 5
    s_add_u32 s58, s58, s69
    s_add_u32 s58, s58, {WS_PART}
    s_add_u32 s69, s68, {LP}
    v_add_u32 v52, s69, v6
    s_waitcnt vmcnt(0)
    ''')
    for i in range(9): a(f'ds_read_b128 v[{XS+4*i}:{XS+4*i+3}], v52 offset:{64*i}')
    for i in range(9):
        a(f's_waitcnt lgkmcnt({8-i})')
        a(f'v_mfma_f32_16x16x32_bf16 v[46:49], a[{GW+4*i}:{GW+4*i+3}], v[{XS+4*i}:{XS+4*i+3}], ' + ('0' if i == 0 else 'v[46:49]'))
        if i == 0: a(f'v_max_u32 v50, v{XS}, v{XS+1}\nv_max3_u32 v50, v50, v{XS+2}, v{XS+3}')
        else: a(f'v_max3_u32 v50, v50, v{XS+4*i}, v{XS+4*i+1}\nv_max3_u32 v50, v50, v{XS+4*i+2}, v{XS+4*i+3}')
    a(f'''
    v_cmp_eq_u32 vcc, -1, v50
    s_cbranch_vccz L_xok
    s_cmp_gt_u32 s65, {SPIN}
    s_cbranch_scc0 L_xsel
L_xok:
    ''')
    stamp(a, 'xin')
    a(f'''
    s_mul_i32 s68, s59, {ROWB}
    s_mov_b32 s66, 0x00010001
    s_mov_b32 s67, 0x00010001
    s_mov_b64 exec, s[66:67]
    ds_write_b128 v7, v[46:49]
    s_mov_b64 exec, -1
    s_waitcnt lgkmcnt(0)
    s_barrier
    ds_read2_b32 v[10:11], v9 offset0:0 offset1:64
    ds_read2_b32 v[12:13], v9 offset0:32 offset1:96
    s_waitcnt lgkmcnt(1)
    v_add_f32 v10, v10, v11
    ''')
    bf_round(a, 10, 10)
    a(f'''
    v_mul_f32 v11, {hx(f32(-math.log2(math.e)))}, v10
    v_exp_f32 v11, v11
    s_waitcnt lgkmcnt(0)
    v_add_f32 v12, v12, v13
    v_add_f32 v11, 1.0, v11
    v_rcp_f32 v11, v11
    ''')
    bf_round(a, 12, 12)
    a('v_mul_f32 v10, v10, v11')
    bf_round(a, 10, 10)
    a(f'''
    v_mul_f32 v10, v10, v12
    v_cvt_pk_bf16_f32 v10, v10, v10
    ds_write_b16 v8, v10
    s_waitcnt lgkmcnt(0)
    ds_read_b128 v[12:15], v51
    s_waitcnt lgkmcnt(0)
    ''')
    stamp(a, 'act')
    for f in range(5): a(f'v_mfma_f32_16x16x32_bf16 v[{16+4*f}:{19+4*f}], v[12:15], a[{DW+4*f}:{DW+4*f+3}], 0')
    a(f'''
    s_mov_b32 s64, 0xffff0000
    s_mov_b32 s65, 0
    s_mov_b32 s66, 0
    s_mov_b32 s67, 0xffff
    s_nop 0
    v_cndmask_b32 v16, v16, v20, s[64:65]
    s_mov_b32 s65, 0xffff0000
    s_mov_b32 s64, 0
    v_cndmask_b32 v16, v16, v24, s[66:67]
    s_add_u32 s69, s58, {4*9216}
    s_cmp_ge_u32 s{WAVE}, 4
    v_cndmask_b32 v16, v16, v28, s[64:65]
    buffer_store_dword v16, v2, s[{S_WS}:{S_WS+3}], s58 offen sc1
    s_cbranch_scc1 L_ffndone
    s_mov_b64 exec, 0xffff
    buffer_store_dword v32, v2, s[{S_WS}:{S_WS+3}], s69 offen sc1
L_ffndone:
    s_mov_b64 exec, -1
    s_branch L_last
L_noffn:
    s_sub_u32 s69, s{S_FS}, 144
    s_cmp_ge_u32 s69, 72
    s_cbranch_scc1 L_last
    s_cmp_lg_u32 s{WAVE}, 0
    s_cbranch_scc1 L_last
    s_cmp_eq_u32 s61, {[0, 2, 2][DEFER]}
    s_cbranch_scc1 L_finrow
    s_cmp_eq_u32 s63, s59
    s_cbranch_scc1 L_finrow
    ''')
    out_row()
    a(f'''
L_finrow:
    s_mov_b32 s61, {[0, 2, 2][DEFER]}
    s_lshl_b32 s58, s69, 4
    s_add_u32 s58, s58, s64
    v_and_b32 v1, 1, v{LANE}
    v_lshlrev_b32 v2, 3, v1
    s_lshr_b32 s65, s62, 11
    s_lshl_b32 s65, s65, 16
    s_not_b32 s66, s65
    s_ashr_i32 s66, s66, 31
    s_or_b32 s66, s66, 0x80000000
    s_xor_b32 s65, s65, s66
    s_and_b32 s65, s65, 0xffff0000
    v_mov_b32 v3, s65
    v_mul_f32 v3, {hx(f32(-math.log2(math.e)))}, v3
    v_exp_f32 v3, v3
    s_mul_i32 s60, s69, 4608
    s_add_u32 s60, s60, {WS_PART}
    v_add_f32 v3, 1.0, v3
    v_rcp_f32 v3, v3
    s_mov_b32 s65, 0
    v_mov_b32 v26, 0
    v_mov_b32 v27, 0
    v_mov_b32 v28, 0
    v_mov_b32 v29, 0
    ''')
    bf_round(a, 3, 3)
    a(f'''
L_fin0:
    buffer_load_dwordx2 v[4:5], v2, s[{S_WS}:{S_WS+3}], s58 offen sc1
    buffer_load_dwordx2 v[6:7], v2, s[{S_WS}:{S_WS+3}], s58 offen offset:1152 sc1
    s_add_u32 s65, s65, 1
    s_waitcnt vmcnt(0)
    v_max_u32 v8, v4, v5
    v_max3_u32 v8, v8, v6, v7
    v_cmp_eq_u32 vcc, -1, v8
    s_cbranch_vccz L_fin1
    s_cmp_gt_u32 s65, {SPIN}
    s_cbranch_scc0 L_fin0
L_fin1:
    s_sleep {FIN_SLEEP}
L_fin:
    ''')
    for i in range(4): a(f'buffer_load_dwordx4 v[{10+4*i}:{13+4*i}], v{L16}, s[{S_WS}:{S_WS+3}], s60 offen offset:{1024*i} sc1')
    a(f'''
    s_add_u32 s66, s60, 4096
    s_mov_b32 s67, exec_hi
    s_mov_b32 exec_hi, 0
    buffer_load_dwordx4 v[26:29], v{L16}, s[{S_WS}:{S_WS+3}], s66 offen sc1
    s_mov_b32 exec_hi, s67
    s_add_u32 s65, s65, 1
    s_waitcnt vmcnt(0)
    v_mov_b32 v8, v10
    ''')
    for i in range(11, 29, 2): a(f'v_max3_u32 v8, v8, v{i}, v{i+1}')
    a(f'''
    v_max_u32 v8, v8, v29
    v_cmp_eq_u32 vcc, -1, v8
    s_and_b64 exec, exec, vcc
    s_cbranch_execz L_finok
    s_cmp_gt_u32 s65, {SPIN}
    s_cbranch_scc1 L_finok
    s_sleep {FIN_SLEEP2}
    s_branch L_fin
L_finok:
    s_mov_b64 exec, -1
    ''')
    stamp(a, 'fin')
    a(f'''
    v_pk_add_f32 v[10:11], v[10:11], v[14:15]
    v_pk_add_f32 v[12:13], v[12:13], v[16:17]
    v_pk_add_f32 v[18:19], v[18:19], v[22:23]
    v_pk_add_f32 v[20:21], v[20:21], v[24:25]
    v_pk_add_f32 v[10:11], v[10:11], v[26:27]
    v_pk_add_f32 v[12:13], v[12:13], v[28:29]
    v_pk_add_f32 v[10:11], v[10:11], v[18:19]
    v_pk_add_f32 v[12:13], v[12:13], v[20:21]
    s_nop 0
    ''')
    for c in (8, 4, 2):
        for r in range(10, 14): a(f'v_add_f32_dpp v{r}, v{r}, v{r} row_ror:{c} row_mask:0xf bank_mask:0xf')
    for sw in ('v_permlane16_swap_b32', 'v_permlane32_swap_b32'):
        for r in range(4): a(f'v_mov_b32 v{14+r}, v{10+r}')
        for r in range(4): a(f'{sw} v{10+r}, v{14+r}')
        for r in range(4): a(f'v_add_f32 v{10+r}, v{10+r}, v{14+r}')
    a('v_cvt_pk_bf16_f32 v8, v10, v11\nv_cvt_pk_bf16_f32 v9, v12, v13')
    unpack(a, 10, 8); unpack(a, 12, 9)
    for r in range(4): a(f'v_mul_f32 v{10+r}, v3, v{10+r}')
    a('v_cvt_pk_bf16_f32 v8, v10, v11\nv_cvt_pk_bf16_f32 v9, v12, v13')
    unpack(a, 10, 8); unpack(a, 12, 9); unpack(a, 14, 4); unpack(a, 16, 5)
    for r in range(4): a(f'v_add_f32 v{10+r}, v{10+r}, v{14+r}')
    a('v_cvt_pk_bf16_f32 v8, v10, v11\nv_cvt_pk_bf16_f32 v9, v12, v13')
    unpack(a, 10, 8); unpack(a, 12, 9); unpack(a, 14, 6); unpack(a, 16, 7)
    for r in range(4): a(f'v_add_f32 v{10+r}, v{10+r}, v{14+r}')
    a(f'''
    v_cvt_pk_bf16_f32 v8, v10, v11
    v_cvt_pk_bf16_f32 v9, v12, v13
    s_mul_i32 s58, s63, {ROWB}
    s_lshl_b32 s60, s69, 4
    s_add_u32 s58, s58, s60
    s_mov_b64 exec, 3
    buffer_store_dwordx2 v[8:9], v2, s[{S_OUT}:{S_OUT+3}], s58 offen
    s_mov_b64 exec, -1
L_last:
    s_cmp_eq_u32 s61, {[0, 2, 2][DEFER]}
    s_cbranch_scc1 L_end
    s_cmp_eq_u32 s63, s59
    s_cbranch_scc1 L_end
    ''')
    out_row()
    a('L_end:')
    stamp(a, 'end')
    a('s_endpgm')

def kv_load(vm, t, part=None):
    ws = f's[{S_WS}:{S_WS+3}]'
    if part in (None, 0): vm.issue(f'km{t}', f'buffer_load_dwordx4 a[{KM+4*t}:{KM+4*t+3}], v{L16}, {ws}, s67 offen{LDP}')
    if part in (None, 1): vm.issue(f'km{t}', f'buffer_load_dword a{KX+t}, v{T+14}, {ws}, s67 offen offset:{KV_X}{LDP}')
    m = 'vmask' in DIAG
    if part in (None, 2):
        if m: vm.a('s_mov_b64 exec, s[64:65]')
        vm.issue(f'v{t}', f'buffer_load_dwordx4 a[{VV+8*t}:{VV+8*t+3}], v83, {ws}, s67 offen offset:{KV_V}{LDP}')
        if m and part == 2: vm.a('s_mov_b64 exec, -1')
    if part in (None, 3):
        if m and part == 3: vm.a('s_mov_b64 exec, s[64:65]')
        vm.issue(f'v{t}', f'buffer_load_dwordx4 a[{VV+8*t+4}:{VV+8*t+7}], v83, {ws}, s67 offen offset:{KV_V+608}{LDP}')
        if m: vm.a('s_mov_b64 exec, -1')
        if t < 7: vm.a(f's_add_u32 s67, s67, {KVREC}\ns_cmp_ge_u32 s67, s63\ns_cselect_b32 s67, s62, s67')

def qprep(a, vm, stamp):
    a(f's_cmp_ge_u32 s{WAVE}, 4\ns_cbranch_scc1 L_nokmax')
    dpp_reduce(a, 'v_max_f32', [21])
    a(f'''
    s_lshl_b32 s58, s{WAVE}, 2
    s_add_u32 s58, s58, {X_WIN}
    v_mov_b32 v22, s58
    s_mov_b32 exec_lo, 0
    s_mov_b32 exec_hi, 0x80000000
    ds_write_b32 v22, v21
    s_mov_b64 exec, -1
L_nokmax:
    v_mov_b32 v22, {X_WIN}
    s_mov_b32 s68, -1
    s_mov_b32 s69, 0
    v_mov_b32 v18, 0
    s_waitcnt lgkmcnt(0)
    ''')
    vm.need('q')
    stamp(a, 'qin')
    a(f'''
    s_barrier
    ds_read2_b32 v[12:13], v8 offset0:0 offset1:1
    ds_read2_b32 v[14:15], v8 offset0:2 offset1:3
    ds_read_b32 v16, v7 offset:32
    ds_read_b128 v[20:23], v22
    ''')
    for t in range(PRE[0], PRE[0] + PRE[1]): kv_load(vm, t)
    stamp(a, 'q1')
    a(f'''
    s_waitcnt lgkmcnt(1)
    v_cndmask_b32 v17, 0, v16, s[68:69]
    v_dot2c_f32_bf16 v18, v12, v12
    v_dot2c_f32_bf16 v18, v13, v13
    v_dot2c_f32_bf16 v18, v14, v14
    v_dot2c_f32_bf16 v18, v15, v15
    v_dot2c_f32_bf16 v18, v17, v17
    s_waitcnt lgkmcnt(0)
    v_max3_f32 v20, v20, v21, v22
    s_lshl_b32 s59, s{WAVE}, 11
    v_mov_b32 v19, v18
    v_max_f32 v20, v20, v23
    s_nop 0
    v_permlane32_swap_b32 v18, v19
    v_add_f32 v18, v18, v19
    v_mul_f32 v18, v20, v18
    v_sqrt_f32 v18, v18
    s_add_u32 s59, s59, {LQ}
    v_add_u32 v24, s59, v{L16}
    v_mov_b32 v17, 0
    v_add_u32 v18, 0x1ffff, v18
    v_and_b32 v18, 0xffff0000, v18
    v_cmp_nge_f32 vcc, {hx(f32(M_LIMIT))}, v18
    v_lshrrev_b32 v19, 16, v18
    v_or_b32 v19, 0x8000, v19
    v_cndmask_b32 v16, v19, v16, s[68:69]
    s_cmp_lg_u64 vcc, 0
    s_cselect_b32 s58, 1, 0
    ds_write_b128 v24, v[12:15]
    v_mov_b32 v18, 0
    v_mov_b32 v19, v16
    ds_write_b128 v24, v[16:19] offset:1024
    s_lshl_b32 s59, s{WAVE}, 2
    s_add_u32 s59, s59, {X_FLAG}
    v_mov_b32 v26, s59
    v_mov_b32 v27, s58
    ds_write_b32 v26, v27
    ''')

def prologue(a, stamp):
    if FUSED:
        a(f'''
L_p1done:
        ''')
        stamp(a, 'qst')
        a(f'''
        s_lshl_b32 s57, s26, 7
        s_add_u32 s57, s57, {WS_GRAN}
        s_mov_b32 s96, s4
        s_mov_b32 s97, s5
        s_mov_b32 s98, 4
        s_mov_b32 s99, 0x20000
        v_mov_b32 v64, 0
        buffer_load_dword v61, v64, s[96:99], 0 offen sc1
        s_mov_b32 s{S_WS}, s6
        s_mov_b32 s{S_WS+1}, s7
        s_mov_b32 s{S_WS+2}, {WS_USED}
        s_mov_b32 s{S_WS+3}, 0x20000
        s_mov_b32 s59, {GRAN_REP}
        v_mul_lo_u32 v63, s59, v1
        v_mov_b32 v60, -1
        v_mov_b32 v62, v29
        ''')
    else:
        a('s_cmp_ge_u32 s2, 256\ns_cbranch_scc1 L_k2_exit')
    a(f'''
    s_load_dwordx2 s[16:17], s[0:1], {KA_WS}
    s_load_dwordx2 s[4:5], s[0:1], {KA_X}
    s_load_dwordx8 s[8:15], s[0:1], {KA_WR}
    s_load_dwordx2 s[6:7], s[0:1], {KA_OUT}
    ''')
    if not FUSED: stamp(a, 'start')
    a(f'''
    s_setprio 3
    v_lshrrev_b32 v1, 6, v0
    v_and_b32 v{LANE}, 63, v0
    v_and_b32 v5, 7, v0
    v_readfirstlane_b32 s{WAVE}, v1
    v_bfe_u32 v6, v0, 3, 2
    s_lshl_b32 s58, s2, 3
    s_add_u32 s61, s58, s{WAVE}
    s_mul_i32 s61, s61, {ROWB}
    v_mul_u32_u24 v7, 1168, v5
    v_mad_u32_u24 v7, v6, 36, v7
    s_mul_i32 s58, s{WAVE}, 144
    s_add_u32 s58, s58, {LQR}
    v_add_u32 v7, s58, v7
    v_lshrrev_b32 v4, 5, v{LANE}
    v_lshl_add_u32 v8, v4, 4, v7
    s_mul_i32 s68, s{WAVE}, 1168
    s_add_u32 s68, s68, {LQR}
    v_lshlrev_b32 v{L16}, 4, v{LANE}
    v_lshlrev_b32 v{T+14}, 2, v{LANE}
    v_and_b32 v3, 31, v{LANE}
    v_min_u32 v10, 18, v3
    v_lshlrev_b32 v10, 4, v10
    s_movk_i32 s62, 304
    v_mad_u32_u24 v10, v4, s62, v10
    s_mov_b32 s64, 0x0013ffff
    s_mov_b32 s65, 0x0013ffff
    v_mov_b32 v2, 0x7f000000
    v_cndmask_b32 v83, v{10 if 'vclamp' in DIAG else 2}, v10, s[64:65]
    s_bfe_u32 s60, s2, {ROTF}
    s_mul_i32 s62, s{WAVE}, {8*KVREC}
    s_add_u32 s62, s62, {WS_KV}
    s_mul_i32 s67, s60, {KVREC}
    s_add_u32 s67, s67, s62
    s_add_u32 s63, s62, {8*KVREC}
    ''')
    for i in range(72 if 'vmask' in DIAG else 8): a(f'v_accvgpr_write_b32 a{KX+i}, 0')
    if not FUSED: a('s_waitcnt lgkmcnt(0)')
    vm = Vm(a)
    def first_loads():
        ws = f's[{S_WS}:{S_WS+3}]'
        a('s_mov_b32 m0, s68\ns_mov_b64 exec, 0xff')
        vm.issue('q', f'buffer_load_dwordx4 v{L16}, {ws}, s61 offen offset:1024{LDP} lds')
        a('s_mov_b64 exec, -1')
        vm.issue('q', f'buffer_load_dwordx4 v{L16}, {ws}, s61 offen{LDP} lds')
        a('s_setprio 0')
        stamp(a, 'issued')
    if not FUSED:
        srd(a, S_WS, 16, 0, WS_USED)
        first_loads()
    def late_setup():
        a(f'''
        s_and_b32 s58, s2, 7
        s_lshr_b32 s59, s2, 3
        s_mul_i32 s{S_FS}, s58, 18
        s_add_u32 s{S_FS}, s{S_FS}, s59
        s_cmp_lt_u32 s59, 18
        s_cselect_b32 s{S_FS}, s{S_FS}, s2
        s_cselect_b32 s69, {D*F*2}, 0
        ''')
        for d, b in ((S_G, 10), (S_U, 12), (S_D, 14)):
            a(f's_mov_b32 s{d}, s{b}\ns_mov_b32 s{d+1}, s{b+1}\ns_mov_b32 s{d+2}, s69\ns_mov_b32 s{d+3}, 0x20000')
        srd(a, S_X, 4, 0, S * ROWB); srd(a, S_OUT, 6, 0, S * ROWB); srd(a, S_WR, 8, 0, ROWB)
        a(f'''
        s_mul_i32 s{S_GOFF}, s{WAVE}, {16*F*2}
        s_lshl_b32 s58, s{S_FS}, 6
        s_add_u32 s{S_GOFF}, s{S_GOFF}, s58
        s_mul_i32 s{S_DOFF}, s{S_FS}, 36864
        s_lshl_b32 s58, s{WAVE}, 10
        s_add_u32 s{S_DOFF}, s{S_DOFF}, s58
        s_mov_b32 s{S_MG}, s58
        s_cmp_lt_u32 s{WAVE}, 6
        s_cselect_b32 s{S_MST}, s69, 0
        s_mul_i32 s{S_NT0}, s{WAVE}, 5
        s_lshl_b32 s58, s{WAVE}, 2
        s_add_u32 s58, s58, 4
        s_cmp_lt_u32 s{WAVE}, 4
        s_cselect_b32 s{S_NT0}, s{S_NT0}, s58
        s_lshl_b32 s{S_WOC}, s{S_NT0}, 11
        s_add_u32 s{S_WOC}, s{S_WOC}, {WS_WO}
        s_mul_i32 s60, s59, 20736
        s_lshl_b32 s58, s{WAVE}, 10
        s_add_u32 s60, s60, s58
        s_add_u32 s60, s60, {WS_WO}
        v_lshrrev_b32 v24, 2, v{LANE}
        v_mul_u32_u24 v25, {F*2}, v24
        v_lshrrev_b32 v24, 4, v{LANE}
        v_and_b32 v26, 2, v24
        v_and_b32 v27, 3, v{LANE}
        v_xor_b32 v26, v26, v27
        v_lshl_add_u32 v{GUV}, v26, 4, v25
        v_mov_b32 v{IDXA}, 0xdddd
        v_mov_b32 v{IDXB}, 0x4444
        v_mov_b32 v25, 0xeeee
        v_and_b32 v26, 15, v{LANE}
        v_cmp_lt_u32 vcc, 7, v26
        v_mul_u32_u24 v27, 80, v3
        s_mul_i32 s58, s{WAVE}, 2560
        v_cndmask_b32 v{IDXB}, v{IDXB}, v25, vcc
        s_add_u32 s58, s58, {LP}
        v_add_u32 v27, s58, v27
        v_lshl_add_u32 v{WAD}, v4, 4, v27
        v_lshl_add_u32 v{WAD3}, v4, 3, v27
        v_add_u32 v{WAD3}, 64, v{WAD3}
        v_min_u32 v25, 9, v26
        v_mul_u32_u24 v27, 640, v24
        v_lshl_add_u32 v27, v25, 3, v27
        s_mul_i32 s58, s{WAVE}, 80
        s_add_u32 s58, s58, {LP}
        v_add_u32 v{RAD}, s58, v27
        s_mul_i32 s58, s{WAVE}, 144
        s_add_u32 s58, s58, {LO}
        v_lshlrev_b32 v27, 5, v24
        v_lshl_add_u32 v27, v26, 2, v27
        v_add_u32 v{OAD}, s58, v27
        v_mov_b32 v{OST}, 1152
        s_add_u32 s58, s58, {8*1152}
        v_lshl_add_u32 v27, v24, 2, s58
        v_cmp_eq_u32 vcc, 8, v26
        s_mov_b32 s58, {LDUM}
        v_lshl_add_u32 v28, v{LANE}, 2, s58
        v_cndmask_b32 v{OAD}, v{OAD}, v27, vcc
        v_cndmask_b32 v{OST}, v{OST}, 16, vcc
        v_cmp_lt_u32 vcc, 8, v26
        v_mul_u32_u24 v27, 144, v5
        v_bfe_u32 v25, v{LANE}, 3, 1
        v_cndmask_b32 v{OAD}, v{OAD}, v28, vcc
        v_cndmask_b32 v{OST}, v{OST}, 0, vcc
        v_lshl_add_u32 v27, v25, 6, v27
        v_lshl_add_u32 v27, v24, 4, v27
        v_add_u32 v{AAD}, {LO}, v27
        v_add_u32 v{QAD}, {LQ}, v{L16}
        ''')
        for i in range(OACC, OACC + 20): a(f'v_mov_b32 v{i}, 0')
    if not FUSED: late_setup()
    if FUSED:
        a(f'''
        s_getreg_b32 s58, hwreg(HW_REG_XCC_ID)
        s_and_b32 s58, s58, 7
        s_mul_i32 s58, s58, {GRAN_REP}
        s_add_u32 s58, s58, {WS_GRAN + 4}
        s_mul_i32 s59, s{WAVE}, {8 * 43}
        s_lshr_b32 s59, s59, 7
        v_add_u32 v24, s59, v{LANE}
        v_min_u32 v24, 21, v24
        v_add_u32 v24, 234, v24
        v_lshlrev_b32 v24, 7, v24
        s_mov_b32 s59, 0
        s_waitcnt vmcnt(0)
L_tag:
        v_cmp_ne_u32 vcc, 0, v61
        s_cbranch_vccnz L_tagok
        buffer_load_dword v61, v64, s[96:99], 0 offen sc1
        s_add_u32 s59, s59, 1
        s_cmp_gt_u32 s59, {SPIN}
        s_waitcnt vmcnt(0)
        s_cbranch_scc0 L_tag
L_tagok:
        ''')
        stamp(a, 'drain')
        a(f'''
        s_barrier
        s_cmp_lg_u32 s{WAVE}, 7
        s_cbranch_scc1 L_noflag
        s_mov_b64 exec, 0xff
        buffer_store_dwordx3 v[60:62], v63, s[{S_WS}:{S_WS+3}], s57 offen sc1
        s_mov_b64 exec, -1
L_noflag:
        ''')
        if LATE == 0:
            a('s_mov_b32 s57, s58\nv_mov_b32 v21, v24\ns_waitcnt lgkmcnt(0)')
            late_setup()
            a('s_mov_b32 s58, s57\nv_mov_b32 v24, v21')
        else: a(f's_sleep {KPOLL_FIRST}')
        a(f'''
        s_mov_b32 s59, 0
        s_mov_b64 exec, 15
L_kpoll:
        buffer_load_dword v20, v24, s[{S_WS}:{S_WS+3}], s58 offen sc1
        s_add_u32 s59, s59, 1
        s_waitcnt vmcnt(0)
        v_cmp_ne_u32 vcc, v20, v61
        s_and_b64 exec, exec, vcc
        s_cbranch_execz L_kdone
        s_cmp_gt_u32 s59, {SPIN}
        s_cbranch_scc1 L_kdone
        s_sleep {KPOLL_SLEEP}
        s_branch L_kpoll
L_kdone:
        s_mov_b64 exec, -1
        ''')
        stamp(a, 'kin')
        for t in range(PRE[0]):
            a(f's_setprio {max(3 - t, 0)}'); kv_load(vm, t)
        a('s_mov_b32 s57, s58')
        if LATE == 1:
            a('s_waitcnt lgkmcnt(0)'); late_setup()
        a(f'''
        s_setprio 3
        s_cmp_ge_u32 s{WAVE}, 4
        s_cbranch_scc1 L_flagsin
        s_lshl_b32 s59, s{WAVE}, 13
        s_add_u32 s58, s57, s59
        v_lshlrev_b32 v24, 7, v{LANE}
        s_mov_b32 s59, 0
L_fpoll:
        buffer_load_dwordx2 v[20:21], v24, s[{S_WS}:{S_WS+3}], s58 offen sc1
        s_add_u32 s59, s59, 1
        s_waitcnt vmcnt(0)
        v_cmp_ne_u32 vcc, v20, v61
        s_and_b64 exec, exec, vcc
        s_cbranch_execz L_fdone
        s_cmp_gt_u32 s59, {SPIN}
        s_cbranch_scc1 L_fdone
        s_sleep {FPOLL_SLEEP}
        s_branch L_fpoll
L_fdone:
        s_mov_b64 exec, -1
L_flagsin:
        s_barrier
        ''')
        stamp(a, 'sync')
        first_loads()
        if LATE == 2:
            a('s_waitcnt lgkmcnt(0)'); late_setup()
    qprep(a, vm, stamp)
    a(f'''
    s_mov_b32 s58, {X_FLAG}
    v_lshl_add_u32 v26, v5, 2, s58
    ''')
    stamp(a, 'q2')
    for t in range(PRE[0] + PRE[1], sum(PRE)): kv_load(vm, t)
    stamp(a, 'q3')
    a(f'''
    s_waitcnt lgkmcnt(0)
    s_barrier
    ds_read_b32 v27, v26
    ''')
    stamp(a, 'bar')
    for r in q_reads(False): a(r)
    a(f'''
    s_waitcnt lgkmcnt(2)
    v_cmp_ne_u32 vcc, 0, v27
    ''')
    return vm

def true_max(a, vm):
    a('L_slow:')
    for t in range(sum(PRE), 8): kv_load(vm, t)
    a(f'''
    v_cndmask_b32 v16, 0, v16, s[68:69]
    v_mov_b32 v19, v16
    s_waitcnt lgkmcnt(0)
    s_barrier
    ds_write_b128 v24, v[16:19] offset:1024
    v_add_u32 v{QAD}, {LQ}, v{L16}
    s_lshl_b32 s58, s{WAVE}, 7
    s_add_u32 s58, s58, {X_PMAX}
    v_lshl_add_u32 v25, v3, 2, s58
    s_mov_b32 s{S_CNT}, 8
    s_waitcnt vmcnt(0) lgkmcnt(0)
    s_barrier
L_mx:
    ''')
    vm.q = []
    for r in q_reads(True): a(r)
    a(f'v_mov_b32 v{MV}, 0xff800000\ns_waitcnt lgkmcnt(0)')
    for t in range(8):
        a(qkx(SA, t)); a(qkm(SA, t)); a('s_nop 11')
        for r in range(0, 16, 2): a(f'v_max3_f32 v{MV}, v{MV}, v{SA+r}, v{SA+r+1}')
        a('s_nop 7')
    a(f'''
    v_mov_b32 v26, v{MV}
    s_nop 1
    v_permlane32_swap_b32 v{MV}, v26
    v_max_f32 v{MV}, v{MV}, v26
    ds_write_b32 v25, v{MV}
    v_add_u32 v25, 1024, v25
    s_sub_u32 s{S_CNT}, s{S_CNT}, 1
    s_cmp_lg_u32 s{S_CNT}, 0
    s_cbranch_scc1 L_mx
    v_and_b32 v3, 31, v{LANE}
    s_lshl_b32 s58, s{WAVE}, 10
    s_add_u32 s58, s58, {X_PMAX}
    v_lshl_add_u32 v25, v3, 2, s58
    s_waitcnt lgkmcnt(0)
    s_barrier
    ''')
    for i in range(4): a(f'ds_read2_b32 v[{2*i+8}:{2*i+9}], v25 offset0:{64*i} offset1:{64*i+32}')
    a(f'''
    s_mov_b32 s58, {X_MAX}
    v_lshl_add_u32 v82, v3, 2, s58
    s_lshl_b32 s58, s{WAVE}, 7
    v_add_u32 v25, s58, v82
    s_waitcnt lgkmcnt(0)
    v_max3_f32 v8, v8, v9, v10
    v_max3_f32 v8, v8, v11, v12
    v_max3_f32 v8, v8, v13, v14
    v_max_f32 v8, v8, v15
    ds_write_b32 v25, v8
    ''')
    if 'dumpm' in DIAG:
        a(f's_lshl_b32 s58, s2, 3\ns_add_u32 s58, s58, s{WAVE}\ns_lshl_b32 s58, s58, 7\ns_add_u32 s58, s58, {WS_STAMP}\nv_lshlrev_b32 v9, 2, v3\nbuffer_store_dword v8, v9, s[{S_WS}:{S_WS+3}], s58 offen\ns_waitcnt vmcnt(0)')
    a(f'''
    v_add_u32 v{QAD}, {LQ}, v{L16}
    s_waitcnt lgkmcnt(0)
    s_barrier
    ''')
    for r in q_reads(True): a(r)

def k2(name, stamp=nomark):
    t = k2_(name, stamp)
    out, inloop = [], False
    for l in t.split('\n'):
        s = l.strip()
        if s.endswith('_loop:'): inloop = True
        if inloop:
            if 'nowo' in DIAG and s.startswith('buffer_load') and 'lds' not in s: continue
            if 'nodma' in DIAG and s.startswith('buffer_load') and 'lds' in s: continue
            if 'noop' in DIAG and '16x16x64' in s: continue
            if 'novm' in DIAG and 'vmcnt' in s: continue
            if 'nobar' in DIAG and s == 's_barrier': continue
            if 'nods' in DIAG and (s.startswith('ds_') or 'lgkmcnt' in s): continue
            if 'novalu' in DIAG and (s.startswith('v_pk') or s.startswith('v_add') or s.startswith('v_rcp') or s.startswith('v_cvt')): continue
            if 'nopv' in DIAG and '32x32x32' in s: continue
            if 'noqk' in DIAG and ('32x32x16' in s or ('32x32x8' in s and ' v[' in s[:32])): continue
            if 'noqx' in DIAG and ('32x32x8' in s and ' v[' in s[:32]): continue
            if 'noexp' in DIAG and s.startswith('v_exp'): l = l.replace('v_exp_f32', 'v_nop ;')
            if 'noprio' in DIAG and s.startswith('s_setprio'): continue
        if s.startswith('s_cbranch_scc1') and s.endswith('_loop'): inloop = False
        out.append(l)
    return '\n'.join(out)

def k2_(name, stamp=nomark):
    a = Asm()
    a(f'.globl {name}\n.p2align 8\n.type {name},@function\n{name}:')
    if FUSED:
        import k1
        k1.entry(a, stamp, 'L_k2_exit')
        def done(a): a('s_branch L_p1done')
        k1.phase1(a, True, stamp, done)
        a.l = k1.diag(a.text()).rstrip('\n').split('\n')
    vm = prologue(a, stamp)
    stamp(a, 'prol')
    a(f's_cbranch_vccnz L_slow\ns_cmp_ge_u32 s{WAVE}, 4\ns_cbranch_scc1 L_f4')
    q0 = list(vm.q)
    attention(a, 5, False, 'L_a5', vm, stamp, sum(PRE))
    a('L_f4:')
    vm.q = list(q0)
    attention(a, 4, False, 'L_a4', vm, stamp, sum(PRE))
    tail(a, stamp)
    vm.q = list(q0)
    true_max(a, vm)
    a(f's_cmp_ge_u32 s{WAVE}, 4\ns_cbranch_scc1 L_s4')
    attention(a, 5, True, 'L_b5', vm, nomark, 8)
    a('L_s4:')
    vm.q = []
    attention(a, 4, True, 'L_b4', vm, nomark, 8)
    a('L_k2_exit:\ns_endpgm')
    return a.text()
```

```python
from common import *

LG, LU, LD = 0, 36864, 73728
LP = 110592
LO = LP + 20480
LQ = LO + 9 * 1152
LDUM = LQ + 8 * 2048
LX = LDUM + 1024
X_FLAG, X_KEY, X_WIN, X_G, X_ACT, X_MAX, X_PMAX = LX, LX + 32, LX + 64, LX + 128, LX + 640, LX + 1152, LP
K2_LDS = LX + 2304
HROW = 2560
LQR = LP
ONES = 0x3f803f80
M_LIMIT = 48.0
SPIN = 40000
POLL_SLEEP, FIN_SLEEP, FIN_SLEEP2 = 3, 31, 2

SA, SB, OACC, T = 0, 16, 32, 52
IDXA, IDXB, WAD, RAD, OAD, OST, AAD, L16, QAD, GUV, MV, LANE, WAD3, QXAD = 68, 69, 70, 71, 72, 73, 74, 75, 76, 77, 78, 79, 80, 81
NV = 84
KM, KX, VV, OO, WO, QM, QX, AF = 0, 32, 40, 104, 120, 160, 164, 168
NA = 172
S_WS, S_G, S_U, S_D, S_X, S_OUT, S_WR = 20, 24, 28, 32, 36, 40, 44
WAVE, S_FS, S_WOC, S_MG, S_MU, S_MD, S_MST, S_GOFF, S_DOFF, S_CNT, S_NT0 = 18, 19, 48, 49, 50, 51, 52, 53, 54, 55, 56
S_DST = 57
DIAG = set()
LDP = ' sc1'
FUSED = False
WOP = ' sc1'
QKORD = 0
PRIO = (3, 2, 1, 3, 3, 2, 1, 1)
MIDP = {3: (10, 0), 0: (10, 0)}
SPEC = 0
DEFER = 0
OUTP = ''
LATE = 0
ALIGN = 3
KPOLL_SLEEP, KPOLL_FIRST, FPOLL_SLEEP = 3, 8, 2
ROTF = 0x30003
PRE = (3, 1, 0)

def qk8(Y, slot, c): return f'v_mfma_f32_32x32x8bf16_1k v[{Y}:{Y+15}], a[{KX+(slot&~1)}:{KX+(slot&~1)+1}], a[{QX+2*(slot&1)}:{QX+2*(slot&1)+1}], {c}'
def qk16(Y, slot, c): return f'v_mfma_f32_32x32x16_bf16 v[{Y}:{Y+15}], a[{KM+4*slot}:{KM+4*slot+3}], a[{QM}:{QM+3}], {c}'
def qkx(Y, slot): return (qk16 if QKORD else qk8)(Y, slot, '0')
def qkm(Y, slot): return (qk8 if QKORD else qk16)(Y, slot, f'v[{Y}:{Y+15}]')
def pv(X, slot, s): return f'v_smfmac_f32_32x32x32_bf16 a[{OO}:{OO+15}], a[{VV+8*slot+4*s}:{VV+8*slot+4*s+3}], v[{X+8*s}:{X+8*s+7}], v{IDXA}'
def zero_o(): return f'v_mfma_f32_32x32x8bf16_1k a[{OO}:{OO+15}], a[{QX}:{QX+1}], a[{QX+2}:{QX+3}], 0'
def oproj(f, af, w): return f'v_smfmac_f32_16x16x64_bf16 v[{OACC+4*f}:{OACC+4*f+3}], a[{af}:{af+3}], a[{w}:{w+7}], v{IDXB}'
W_PART = [f'ds_write_b128 v{WAD}, a[{OO}:{OO+3}]', f'ds_write_b128 v{WAD}, a[{OO+4}:{OO+7}] offset:32', f'ds_write_b64 v{WAD3}, a[{OO+8}:{OO+9}]']
R_PART = [f'ds_read2st64_b64 v[{T+4*i}:{T+4*i+3}], v{RAD} offset0:{10*i} offset1:{10*i+5}' for i in range(4)]
def pka(d, x, y): return f'v_add_f32 v{T+d}, v{T+x}, v{T+y}\nv_add_f32 v{T+d+1}, v{T+x+1}, v{T+y+1}'
ADDS = [pka(0, 0, 2), pka(4, 4, 6), pka(8, 8, 10), pka(12, 12, 14), pka(0, 0, 4), pka(8, 8, 12), pka(0, 0, 8)]
NORM = [f'v_rcp_f32_dpp v{T+2}, v{T} row_newbcast:9 row_mask:0xf bank_mask:0xf',
        f'v_mul_f32 v{T}, v{T}, v{T+2}\nv_mul_f32 v{T+1}, v{T+1}, v{T+2}',
        f'v_cvt_pk_bf16_f32 v{T+4}, v{T}, v{T+1}',
        f'ds_write_b32 v{OAD}, v{T+4}',
        f'v_add_u32 v{OAD}, v{OST}, v{OAD}']

def tile(a, t, ex, slow, prev=True, nxt=True, kind='std', x16=None, x16b=None):
    X, Y = (SA, SB) if t % 2 == 0 else (SB, SA)
    m = {}
    def put(p, s): m.setdefault(p, []).append(s)
    p_pvb, p_x, p_qx, p_qm, p_pva = 2, 5, 6, 10, 14
    if kind == 'first': p_qx, p_qm, p_pva = 5, 9, 16
    if kind == 'second':
        p_pvb = 3
        if x16: p_x, p_qx, p_qm = 6, 7, 11
    if prev: put(p_pvb, pv(Y, (t - 1) % 8, 1))
    if x16:
        for s in x16: put(p_x, s)
    if x16b:
        for s in x16b: put(13, s)
    if nxt:
        put(p_qx, ('qx', qkx(Y, (t + 1) % 8))); put(p_qm, qkm(Y, (t + 1) % 8))
    if kind == 'first':
        for s in W_PART: put(p_qm, s)
        put(12, zero_o())
    put(p_pva, ('pa', pv(X, t, 0)))
    for p in range(17):
        for s in m.get(p, []):
            if isinstance(s, tuple):
                for e in ex.get(s[0], []): e() if callable(e) else a(e)
                s = s[1]
            s() if callable(s) else a(s)
        for e in ex.get(p, []): e() if callable(e) else a(e)
        if p < 16:
            if slow: a(f'v_sub_f32 v{X+p}, v{X+p}, v{MV}')
            a(f'v_exp_f32 v{X+p}, v{X+p}')

def wo_load(vm, tag, reg, soff_add):
    def th():
        vm.a(f's_add_u32 s58, s{S_WOC}, {soff_add}')
        vm.issue(tag, f'buffer_load_dwordx4 a[{reg}:{reg+3}], v{L16}, s[{S_WS}:{S_WS+3}], s58 offen{WOP}')
        vm.issue(tag, f'buffer_load_dwordx4 a[{reg+4}:{reg+7}], v{L16}, s[{S_WS}:{S_WS+3}], s58 offen offset:1024{WOP}')
    return th

def q_reads(slow):
    r = [f'ds_read_b128 a[{QM}:{QM+3}], v{QAD}', f'ds_read_b128 a[{QX}:{QX+3}], v{QAD} offset:1024', f'v_add_u32 v{QAD}, 2048, v{QAD}']
    return r

STEP = 36 * 2048
def attention(a, n, slow, lab, vm, stamp, pre):
    prio = dict(zip((1, 2, 3, 4, 5, 6, 7, 0), PRIO))
    def mload():
        return [f'ds_read_b32 v{T+15}, v82', 's_waitcnt lgkmcnt(0)', 'v_add_u32 v82, 128, v82'] if slow else []
    a('s_waitcnt lgkmcnt(0)')
    vm.need('km0')
    a(qkx(SA, 0)); a(qkm(SA, 0)); a(zero_o())
    if slow:
        a(f'ds_read_b32 v{MV}, v82\nv_add_u32 v82, 128, v82\ns_waitcnt lgkmcnt(0)')
    a('s_nop 3')
    for t in range(8):
        ex = {0: [f's_setprio {prio[t]}']}
        if t < 7: ex['qx'] = [lambda t=t: vm.need(f'km{t+1}')]
        ex['pa'] = [lambda t=t: vm.need(f'v{t}')]
        if t + pre < 8:
            for q in range(4): ex[1 + 4 * q] = [lambda t=t, q=q: kv_load(vm, t + pre, q)]
        if t == 5:
            for q in range(3): ex[1 + 3 * q] = [lambda q=q: warm(vm, q)]
            ex[12] = [wo_load(vm, 'f', WO, 0)]
        if t >= 6:
            ex[1] = [wo_load(vm, 'f', WO + 8 * (2 * t - 11), (2 * t - 11) * 2048)]
            if t == 6: ex[8] = [wo_load(vm, 'f', WO + 16, 2 * 2048)]
        if t == 6: ex[11] = q_reads(slow)
        if t == 7:
            ex['qx'] = ['s_waitcnt lgkmcnt(0)']
            if n == 5: ex[15] = [wo_load(vm, 'f', WO + 32, 4 * 2048)]
            ex[11] = mload()
            ex[16] = [f's_add_u32 s{S_WOC}, s{S_WOC}, {STEP}']
        tile(a, t, ex, slow, prev=t > 0)
        if t == 7 and slow: a(f'v_mov_b32 v{MV}, v{T+15}')
    stamp(a, 's0')
    def dma(q):
        srdr, off, vo, so = ((S_G, LG, GUV, S_GOFF), (S_U, LU, GUV, S_GOFF), (S_D, LD, L16, S_DOFF))[q]
        r = [f's_add_u32 m0, s{S_MG}, {off}', 's_nop 0', f'buffer_load_dwordx4 v{vo}, s[{srdr}:{srdr+3}], s{so} offen lds']
        return r + [[], [f's_add_u32 s{S_GOFF}, s{S_GOFF}, {6*16*F*2}'], [f's_add_u32 s{S_MG}, s{S_MG}, 6144', f's_add_u32 s{S_DOFF}, s{S_DOFF}, 6144']][q]
    use = {4: [0], 5: [1], 6: [2], 7: [3, 4][:n - 3]}
    def body(last, xfer=False):
        lv = Vm(a)
        nvm = 2 * n - 2 + (3 if xfer else 0)
        if last:
            lv.q = [f'f{f}' for f in range(n) for _ in range(2)]
            free = {1: [KM, VV], 2: [VV + 8], 3: [KM + 8, VV + 16]}
            todo = [(8, f) for f in range(n)]
            where = {}
        for t in range(8):
            ex = {0: [f's_setprio {prio[t]}']}
            if t in MIDP: ex[MIDP[t][0]] = [f's_setprio {MIDP[t][1]}']
            x16, x16b = None, None
            for q, f in enumerate(use.get(t, [])):
                wait = (lambda f=f: lv.need(f'f{f}')) if last else f's_waitcnt vmcnt({nvm})'
                item = [wait, oproj(f, AF, WO + 8 * f)]
                if t == 4: item = ['s_waitcnt lgkmcnt(0)'] + item
                if q == 0 and t != 4: x16 = item
                else: x16b = item
                ex.setdefault(8 if (q == 0 and t != 4) else 15, []).append(wo_load(lv, f'f{f}', WO + 8 * f, f * 2048))
            if t == 0:
                ex[16] = ['s_waitcnt lgkmcnt(0)', 's_barrier']
            if t == 1:
                for i, p in enumerate((1, 5, 8, 12)): ex.setdefault(p, []).append(R_PART[i])
            if t == 2:
                ex.setdefault(1, []).append('s_waitcnt lgkmcnt(0)')
                for i, p in enumerate((1, 3, 5, 7, 9, 11, 13)): ex.setdefault(p, []).append(ADDS[i])
            if t == 3:
                for i, p in enumerate((0, 2, 4, 5, 7)): ex.setdefault(p, []).append(NORM[i])
                ex[16] = ['s_waitcnt lgkmcnt(0)', 's_barrier']
            if xfer and t < 3: ex.setdefault(14, []).extend(dma(t))
            if t == 4:
                ex.setdefault(1, []).extend([f'ds_read_b128 a[{AF}:{AF+3}], v{AAD}', f'v_add_u32 v{AAD}, 1152, v{AAD}'])
            if t == 6 and not last: ex[11] = q_reads(slow)
            if t == 7 and not last:
                ex['qx'] = ['s_waitcnt lgkmcnt(0)']
                ex[11] = mload()
                ex[16] = [f's_add_u32 s{S_WOC}, s{S_WOC}, {STEP}', f's_sub_u32 s{S_CNT}, s{S_CNT}, 1', f's_cmp_lg_u32 s{S_CNT}, 0']
            if last:
                for i, reg in enumerate(free.get(t, [])):
                    if todo:
                        st, f = todo.pop(0); where[(st, f)] = reg
                        ex.setdefault(11 + 3 * i, []).append(wo_load(lv, f's{st}f{f}', reg, f * 2048 + STEP))
                if t == 7:
                    def rows():
                        for i in range(5): lv.issue('x', f'buffer_load_dword v{SA+i}, v82, s[{S_X}:{S_X+3}], s59 offen offset:{256*i}')
                        for i in range(5): lv.issue('w', f'buffer_load_dword v{SA+5+i}, v82, s[{S_WR}:{S_WR+3}], 0 offen offset:{256*i}')
                    ex[3] = [f'v_lshlrev_b32 v82, 2, v{LANE}', f's_lshl_b32 s59, s2, 3', f's_add_u32 s59, s59, s{WAVE}', f's_mul_i32 s59, s59, {ROWB}', rows]
            tile(a, t, ex, slow, nxt=not (last and t == 7), kind={0: 'first', 1: 'second'}.get(t, 'std'), x16=x16, x16b=x16b)
            if t == 7 and slow and not last: a(f'v_mov_b32 v{MV}, v{T+15}')
        if last:
            assert not todo
            return lv, where
    a(f's_mov_b32 s{S_CNT}, 6\ns_cmp_eq_u32 s{S_MST}, 0\ns_cbranch_scc1 {lab}n_loop\n.p2align {ALIGN}\n{lab}x_loop:')
    body(False, True)
    a(f's_cbranch_scc1 {lab}x_loop\ns_branch {lab}_last\n.p2align {ALIGN}\n{lab}n_loop:')
    body(False, False)
    a(f's_cbranch_scc1 {lab}n_loop\n{lab}_last:')
    stamp(a, 's6')
    lv, where = body(True)
    a('s_setprio 0\ns_nop 0')
    a(pv(SB, 7, 1))
    stamp(a, 's7')
    a('s_nop 9')
    for s in W_PART: a(s)
    a('s_waitcnt lgkmcnt(0)\ns_barrier')
    stamp(a, 'b1')
    for s in R_PART: a(s)
    a(f'''
    v_and_b32 v20, 15, v{LANE}
    v_bfe_u32 v21, v{LANE}, 4, 1
    v_mul_u32_u24 v21, {4*HROW + 64}, v21
    v_lshl_add_u32 v20, v20, 2, v21
    s_lshl_b32 s58, s{S_NT0}, 6
    s_add_u32 s58, s58, {LP}
    v_add_u32 v20, s58, v20
    v_lshrrev_b32 v21, 5, v{LANE}
    v_lshl_add_u32 v21, v21, 6, v20
    v_add_u32 v22, 128, v21
    ''')
    a('s_waitcnt lgkmcnt(2)'); a(ADDS[0]); a(ADDS[1]); a(ADDS[4]); a('s_waitcnt lgkmcnt(0)')
    for q in (2, 3, 5, 6): a(ADDS[q])
    a('s_nop 0'); a(NORM[0]); a('s_nop 0')
    for s in NORM[1:4]: a(s)
    lv.need('x', 'w')
    for i in range(5): unpack(a, 10 + 2 * i, i)
    a(f'''
    s_waitcnt lgkmcnt(0)
    s_barrier
    ds_read_b128 a[{QM}:{QM+3}], v{AAD} offset:1152
    ds_read_b128 a[{AF}:{AF+3}], v{AAD}
    v_mov_b32 v{T+8}, 0
    v_mov_b32 v{T+9}, {hx(ONES)}
    s_mul_i32 s58, s{WAVE}, {HROW}
    s_lshr_b32 s59, s{WAVE}, 2
    s_lshl_b32 s59, s59, 6
    s_add_u32 s58, s58, s59
    s_add_u32 s58, s58, {LP}
    v_lshl_add_u32 v{T+10}, v{LANE}, 3, s58
    ''')
    for i in range(5): a(f'v_dot2c_f32_bf16 v{T+8}, v{5+i}, v{T+9}')
    stamp(a, 'b2')
    a('s_waitcnt lgkmcnt(1)')
    for f in range(n):
        lv.need(f's8f{f}'); a(oproj(f, QM, where[(8, f)]))
    a('s_waitcnt lgkmcnt(0)')
    for f in range(n):
        lv.need(f'f{f}'); a(oproj(f, AF, WO + 8 * f))
    stamp(a, 'op')
    a(f's_nop {9 - n}')
    R = HROW // 256
    for p in range(2):
        A, B = OACC + 8 * p, OACC + 8 * p + 4
        for r in range(4): a(f'v_permlane32_swap_b32 v{A+r}, v{B+r}')
        for r in range(4): a(f'v_add_f32 v{A+r}, v{A+r}, v{B+r}')
        for r in (0, 2): a(f'ds_write2st64_b32 v{21+p}, v{A+r}, v{A+r+1} offset0:{r*R} offset1:{(r+1)*R}')
    if n == 5:
        A = OACC + 16
        for r in range(4): a(f'v_mov_b32 v{T+4+r}, v{A+r}')
        for r in range(4): a(f'v_permlane32_swap_b32 v{A+r}, v{T+4+r}')
        for r in range(4): a(f'v_add_f32 v{A+r}, v{A+r}, v{T+4+r}')
        for r in (0, 2): a(f'ds_write2st64_b32 v20, v{A+r}, v{A+r+1} offset0:{r*R+1} offset1:{(r+1)*R+1}')
    a(f's_branch L_tail')

def warm(vm, i):
    vm.a(f's_add_u32 s58, s60, {i*8192}')
    vm.issue('warm', f'buffer_load_dwordx4 a[{WO+8*i}:{WO+3+8*i}], v{L16}, s[{S_WS}:{S_WS+3}], s58 offen{LDP}')

def dpp_reduce(a, op, regs):
    for c in ('row_shr:1', 'row_shr:2', 'row_shr:4', 'row_shr:8', 'row_bcast:15 row_mask:0xa', 'row_bcast:31 row_mask:0xc'):
        if len(regs) < 3: a(f's_nop {2 - len(regs)}')
        for r in regs:
            mask = '' if 'row_mask' in c else ' row_mask:0xf'
            a(f'{op}_dpp v{r}, v{r}, v{r} {c}{mask} bank_mask:0xf')

def bf_round(a, dst, src):
    a(f'v_cvt_pk_bf16_f32 v{dst}, v{src}, v{src}\nv_and_b32 v{dst}, 0xffff0000, v{dst}')
def unpack(a, lo, src):
    a(f'v_lshlrev_b32 v{lo}, 16, v{src}\nv_and_b32 v{lo+1}, 0xffff0000, v{src}')

def tail(a, stamp):
    XP, WP, XF, AT, HP, LN, OU = 0, 5, 10, 20, 30, 35, 60
    a(f'''
L_tail:
    v_mov_b32 v46, 0
    v_mov_b32 v47, 0
    s_waitcnt lgkmcnt(0)
    v_mov_b32 v48, 0
    v_mov_b32 v49, v{T+8}
    v_mov_b32 v51, v{T+9}
    s_barrier
    ''')
    for i in range(5): a(f'ds_read_b64 v[{AT+2*i}:{AT+2*i+1}], v{T+10} offset:{512*i}')
    stamp(a, 'attn')
    a(f'''
    s_mov_b32 s62, -1
    s_mov_b32 s63, 0
    s_lshl_b32 s59, s2, 3
    s_add_u32 s59, s59, s{WAVE}
    s_sub_u32 s69, 2047, s59
    s_lshl_b32 s58, s{WAVE}, 2
    s_add_u32 s58, s58, {X_KEY}
    v_mov_b32 v57, s58
    v_and_b32 v55, 7, v{LANE}
    s_mov_b32 s58, {X_KEY}
    v_lshl_add_u32 v55, v55, 2, s58
    s_mov_b32 s60, {GRAN_REP}
    v_mul_lo_u32 v56, s60, v{LANE}
    v_mov_b32 v52, {hx(f32(1.0/D))}
    ''')
    for i in range(5):
        a(f's_waitcnt lgkmcnt({4-i})\nv_pk_add_f32 v[{AT+2*i}:{AT+2*i+1}], v[{AT+2*i}:{AT+2*i+1}], v[{XF+2*i}:{XF+2*i+1}]')
        a(f'v_cvt_pk_bf16_f32 v{HP+i}, v{AT+2*i}, v{AT+2*i+1}')
        if i == 4: a(f'v_cndmask_b32 v{HP+4}, 0, v{HP+4}, s[62:63]')
        a(f'v_dot2c_f32_bf16 v46, v{HP+i}, v51\nv_dot2c_f32_bf16 v47, v{HP+i}, v{HP+i}\nv_dot2c_f32_bf16 v48, v{HP+i}, v{WP+i}')
    a(f'''
    s_lshl_b32 s60, s2, 7
    s_add_u32 s60, s60, {WS_GRAN}
    s_nop 0
    v_permlane32_swap_b32 v46, v47
    v_permlane32_swap_b32 v48, v49
    v_add_f32 v46, v46, v47
    v_add_f32 v48, v48, v49
    s_nop 1
    v_permlane16_swap_b32 v46, v48
    v_add_f32 v46, v46, v48
    ''')
    for c in (8, 4, 2, 1): a(f's_nop 1\nv_add_f32_dpp v46, v46, v46 row_ror:{c} row_mask:0xf bank_mask:0xf')
    a(f'''
    s_nop 0
    v_readlane_b32 s64, v46, 0
    v_readlane_b32 s65, v46, 32
    v_readlane_b32 s66, v46, 16
    v_readlane_b32 s67, v46, 48
    v_mul_f32 v46, s64, v52
    v_mul_f32 v47, s65, v52
    v_fma_f32 v47, -v46, v46, v47
    v_max_f32 v47, 0, v47
    ''')
    bf_round(a, 47, 47)
    a(f'v_add_f32 v47, {hx(f32(1e-5))}, v47')
    bf_round(a, 47, 47)
    a('v_sqrt_f32 v47, v47')
    bf_round(a, 46, 46)
    bf_round(a, 47, 47)
    a(f'''
    v_rcp_f32 v48, v47
    v_mov_b32 v53, s66
    v_fma_f32 v53, -v46, s67, v53
    v_mul_f32 v53, v53, v48
    v_cvt_pk_bf16_f32 v53, v53, v53
    v_ashrrev_i32 v54, 31, v53
    v_or_b32 v54, 0x80000000, v54
    v_xor_b32 v53, v53, v54
    v_lshrrev_b32 v53, 16, v53
    v_lshl_or_b32 v53, v53, 11, s69
    ds_write_b32 v57, v53
    s_getreg_b32 s58, hwreg(HW_REG_XCC_ID)
    s_and_b32 s58, s58, 7
    s_mul_i32 s58, s58, {GRAN_REP}
    s_and_b32 s64, s{WAVE}, 3
    s_lshl_b32 s64, s64, 13
    s_add_u32 s58, s58, s64
    s_add_u32 s64, s58, {WS_GRAN}
    v_lshlrev_b32 v65, 7, v{LANE}
    s_waitcnt lgkmcnt(0)
    s_barrier
    ds_read_b32 v54, v55
    s_mov_b32 s61, 0
    s_waitcnt lgkmcnt(0)
    v_cmp_gt_u32 vcc, v54, v53
    s_cbranch_vccnz L_notbest
    s_mov_b64 exec, 0xff
    buffer_store_dword v53, v56, s[{S_WS}:{S_WS+3}], s60 offen sc1
    s_mov_b64 exec, -1
    s_mov_b32 s61, 1
L_notbest:
    ''')
    stamp(a, 'gran')
    for c in (4, 2, 1): a(f'v_max_u32_dpp v54, v54, v54 row_ror:{c} row_mask:0xf bank_mask:0xf\ns_nop 1')
    a(f'v_readfirstlane_b32 s65, v54\ns_xor_b32 s65, s65, s{WAVE}\ns_and_b32 s65, s65, 4')
    a('v_sub_f32 v56, 0, v46\nv_mov_b32 v57, v56\nv_mov_b32 v49, v48')
    for i in range(5): unpack(a, XF + 2 * i, HP + i)
    for i in range(5): a(f'v_pk_add_f32 v[{AT+2*i}:{AT+2*i+1}], v[{XF+2*i}:{XF+2*i+1}], v[56:57]')
    for i in range(5): a(f'v_cvt_pk_bf16_f32 v{LN+i}, v{AT+2*i}, v{AT+2*i+1}')
    for i in range(5): unpack(a, AT + 2 * i, LN + i)
    for i in range(5): a(f'v_pk_mul_f32 v[{AT+2*i}:{AT+2*i+1}], v[{AT+2*i}:{AT+2*i+1}], v[48:49]')
    for i in range(5): a(f'v_cvt_pk_bf16_f32 v{LN+i}, v{AT+2*i}, v{AT+2*i+1}')
    a(f'''
    v_lshlrev_b32 v58, 2, v{LANE}
    s_cmp_eq_u32 s61, 1
    s_cbranch_scc0 L_norow
    s_mul_i32 s58, s2, 2304
    s_add_u32 s58, s58, {WS_ROWS}
    ''')
    for i in range(4): a(f'buffer_store_dword v{LN+i}, v58, s[{S_WS}:{S_WS+3}], s58 offen offset:{256*i} sc1')
    for i in range(4): a(f'buffer_store_dword v{HP+i}, v58, s[{S_WS}:{S_WS+3}], s58 offen offset:{1152+256*i} sc1')
    a(f'''
    s_mov_b32 exec_hi, 0
    buffer_store_dword v{LN+4}, v58, s[{S_WS}:{S_WS+3}], s58 offen offset:1024 sc1
    buffer_store_dword v{HP+4}, v58, s[{S_WS}:{S_WS+3}], s58 offen offset:{1152+1024} sc1
    s_mov_b32 exec_hi, -1
L_norow:
    ''')
    for i in range(5): unpack(a, AT + 2 * i, LN + i)
    for i in range(5): a(f'v_pk_add_f32 v[{AT+2*i}:{AT+2*i+1}], v[{AT+2*i}:{AT+2*i+1}], v[{XF+2*i}:{XF+2*i+1}]')
    for i in range(5): a(f'v_cvt_pk_bf16_f32 v{OU+i}, v{AT+2*i}, v{AT+2*i+1}')
    def out_row():
        for i in range(4): a(f'buffer_store_dword v{OU+i}, v58, s[{S_OUT}:{S_OUT+3}], s68 offen offset:{256*i}{OUTP}')
        a(f's_mov_b32 exec_hi, 0\nbuffer_store_dword v{OU+4}, v58, s[{S_OUT}:{S_OUT+3}], s68 offen offset:1024{OUTP}\ns_mov_b32 exec_hi, -1')
    a(f's_mul_i32 s68, s59, {ROWB}')
    if not DEFER:
        a('s_cmp_eq_u32 s61, 1\ns_cbranch_scc1 L_defer')
        out_row()
        a('L_defer:')
    elif DEFER == 2:
        a('s_cmp_eq_u32 s61, 1\ns_cbranch_scc1 L_defer\ns_cmp_eq_u32 s65, 0\ns_cbranch_scc1 L_defer')
        out_row()
        a('s_mov_b32 s61, 2\nL_defer:')
    stamp(a, 'rows')
    GW, DW = 0, 60
    a(f'''
    v_lshrrev_b32 v1, 4, v{LANE}
    v_bfe_u32 v2, v{LANE}, 2, 2
    v_and_b32 v3, 3, v{LANE}
    v_lshl_add_u32 v2, v1, 3, v2
    s_cmp_ge_u32 s{S_FS}, 144
    s_cbranch_scc1 L_nopre
    s_and_b32 s58, s{WAVE}, 1
    v_and_b32 v4, 1, v1
    v_xor_b32 v4, s58, v4
    v_lshlrev_b32 v4, 5, v4
    v_lshl_add_u32 v4, v2, 6, v4
    v_lshl_add_u32 v4, v3, 3, v4
    s_bfe_u32 s58, s{WAVE}, 0x10001
    s_mul_i32 s58, s58, {LU}
    s_lshr_b32 s60, s{WAVE}, 2
    s_mul_i32 s69, s60, {9*2048}
    s_add_u32 s58, s58, s69
    v_add_u32 v4, s58, v4
    v_mul_u32_u24 v5, {ROWB}, v2
    v_lshl_add_u32 v5, v3, 3, v5
    s_lshl_b32 s58, s{S_NT0}, 5
    s_add_u32 s58, s58, {LD}
    v_add_u32 v5, s58, v5
    ''')
    for i in range(9):
        a(f'ds_read_b64_tr_b16 a[{GW+4*i}:{GW+4*i+1}], v4 offset:{2048*i}\nds_read_b64_tr_b16 a[{GW+4*i+2}:{GW+4*i+3}], v4 offset:{2048*i+256}')
    for f in range(5):
        a(f'ds_read_b64_tr_b16 a[{DW+4*f}:{DW+4*f+1}], v5 offset:{32*f}\nds_read_b64_tr_b16 a[{DW+4*f+2}:{DW+4*f+3}], v5 offset:{32*f+4*ROWB}')
    a(f'''
L_nopre:
    s_cmp_lg_u32 s65, 0
    s_cbranch_scc1 L_polled
    s_mov_b32 s60, 0
L_poll:
    buffer_load_dword v66, v65, s[{S_WS}:{S_WS+3}], s64 offen sc1
    s_add_u32 s60, s60, 1
    s_waitcnt vmcnt(0)
    v_cmp_eq_u32 vcc, -1, v66
    s_and_b64 exec, exec, vcc
    s_cbranch_execz L_polldone
    s_cmp_gt_u32 s60, {SPIN}
    s_cbranch_scc1 L_polldone
    ''')
    if SPEC:
        a(f'''
        s_cmp_gt_u32 s60, {SPEC}
        s_cbranch_scc1 L_nospec
        s_mov_b64 s[66:67], exec
        s_mov_b64 exec, -1
        v_cndmask_b32 v67, v66, 0, s[66:67]
        ''')
        dpp_reduce(a, 'v_max_u32', [67])
        a(f'''
        s_nop 0
        v_readlane_b32 s62, v67, 63
        s_andn2_b32 s62, 2047, s62
        s_lshr_b32 s62, s62, 3
        s_mul_i32 s62, s62, 2304
        s_add_u32 s62, s62, {WS_ROWS}
        s_mov_b64 exec, 0x1ff
        buffer_load_dword v67, v65, s[{S_WS}:{S_WS+3}], s62 offen sc1
        s_mov_b64 exec, s[66:67]
        s_branch L_poll
L_nospec:
        ''')
    a(f'''
    s_sleep {POLL_SLEEP}
    s_branch L_poll
L_polldone:
    s_mov_b64 exec, -1
    s_nop 1
    ''')
    dpp_reduce(a, 'v_max_u32', [66])
    a(f'''
    s_and_b32 s58, s{WAVE}, 3
    s_lshl_b32 s58, s58, 2
    s_add_u32 s58, s58, {X_WIN}
    v_mov_b32 v8, s58
    s_mov_b32 exec_lo, 0
    s_mov_b32 exec_hi, 0x80000000
    ds_write_b32 v8, v66
    s_mov_b64 exec, -1
L_polled:
    v_mov_b32 v8, {X_WIN}
    s_waitcnt lgkmcnt(0)
    s_barrier
    ds_read_b128 v[10:13], v8
    s_waitcnt lgkmcnt(0)
    v_max_u32 v10, v10, v11
    v_max3_u32 v10, v10, v12, v13
    s_nop 0
    v_readfirstlane_b32 s62, v10
    s_and_b32 s63, s62, 2047
    s_sub_u32 s63, 2047, s63
    s_lshr_b32 s64, s63, 3
    s_mul_i32 s64, s64, 2304
    s_add_u32 s64, s64, {WS_ROWS}
    ''')
    stamp(a, 'win')
    a(f'''
    s_cmp_ge_u32 s{S_FS}, 144
    s_cbranch_scc1 L_noffn
    s_lshr_b32 s60, s{WAVE}, 2
    s_mul_i32 s60, s60, 576
    s_add_u32 s60, s60, s64
    s_mul_i32 s68, s{WAVE}, 576
    s_add_u32 m0, s68, {LP}
    s_mov_b32 s66, -1
    s_mov_b32 s67, 0xf
    v_lshlrev_b32 v6, 4, v1
    s_mov_b32 s65, 0
L_xsel:
    s_mov_b64 exec, s[66:67]
    buffer_load_dwordx4 v{L16}, s[{S_WS}:{S_WS+3}], s60 offen sc1 lds
    ''')
    XS = 10
    a(f'''
    s_mov_b64 exec, -1
    s_add_u32 s65, s65, 1
    s_lshl_b32 s58, s{WAVE}, 6
    s_add_u32 s58, s58, {X_G}
    v_add_u32 v7, s58, v6
    v_and_b32 v8, 31, v{LANE}
    s_mov_b32 s58, {X_G}
    v_lshl_add_u32 v9, v8, 2, s58
    s_lshl_b32 s58, s{WAVE}, 6
    s_add_u32 s58, s58, {X_ACT}
    v_lshl_add_u32 v8, v8, 1, s58
    v_add_u32 v51, s58, v6
    v_lshrrev_b32 v2, 3, v{LANE}
    v_mul_u32_u24 v2, 4608, v2
    v_and_b32 v3, 7, v{LANE}
    v_lshl_add_u32 v2, v3, 2, v2
    s_mul_i32 s58, s{S_NT0}, 9216
    s_lshl_b32 s69, s{S_FS}, 5
    s_add_u32 s58, s58, s69
    s_add_u32 s58, s58, {WS_PART}
    s_add_u32 s69, s68, {LP}
    v_add_u32 v52, s69, v6
    s_waitcnt vmcnt(0)
    ''')
    for i in range(9): a(f'ds_read_b128 v[{XS+4*i}:{XS+4*i+3}], v52 offset:{64*i}')
    for i in range(9):
        a(f's_waitcnt lgkmcnt({8-i})')
        a(f'v_mfma_f32_16x16x32_bf16 v[46:49], a[{GW+4*i}:{GW+4*i+3}], v[{XS+4*i}:{XS+4*i+3}], ' + ('0' if i == 0 else 'v[46:49]'))
        if i == 0: a(f'v_max_u32 v50, v{XS}, v{XS+1}\nv_max3_u32 v50, v50, v{XS+2}, v{XS+3}')
        else: a(f'v_max3_u32 v50, v50, v{XS+4*i}, v{XS+4*i+1}\nv_max3_u32 v50, v50, v{XS+4*i+2}, v{XS+4*i+3}')
    a(f'''
    v_cmp_eq_u32 vcc, -1, v50
    s_cbranch_vccz L_xok
    s_cmp_gt_u32 s65, {SPIN}
    s_cbranch_scc0 L_xsel
L_xok:
    ''')
    stamp(a, 'xin')
    a(f'''
    s_mul_i32 s68, s59, {ROWB}
    s_mov_b32 s66, 0x00010001
    s_mov_b32 s67, 0x00010001
    s_mov_b64 exec, s[66:67]
    ds_write_b128 v7, v[46:49]
    s_mov_b64 exec, -1
    s_waitcnt lgkmcnt(0)
    s_barrier
    ds_read2_b32 v[10:11], v9 offset0:0 offset1:64
    ds_read2_b32 v[12:13], v9 offset0:32 offset1:96
    s_waitcnt lgkmcnt(1)
    v_add_f32 v10, v10, v11
    ''')
    bf_round(a, 10, 10)
    a(f'''
    v_mul_f32 v11, {hx(f32(-math.log2(math.e)))}, v10
    v_exp_f32 v11, v11
    s_waitcnt lgkmcnt(0)
    v_add_f32 v12, v12, v13
    v_add_f32 v11, 1.0, v11
    v_rcp_f32 v11, v11
    ''')
    bf_round(a, 12, 12)
    a('v_mul_f32 v10, v10, v11')
    bf_round(a, 10, 10)
    a(f'''
    v_mul_f32 v10, v10, v12
    v_cvt_pk_bf16_f32 v10, v10, v10
    ds_write_b16 v8, v10
    s_waitcnt lgkmcnt(0)
    ds_read_b128 v[12:15], v51
    s_waitcnt lgkmcnt(0)
    ''')
    stamp(a, 'act')
    for f in range(5): a(f'v_mfma_f32_16x16x32_bf16 v[{16+4*f}:{19+4*f}], v[12:15], a[{DW+4*f}:{DW+4*f+3}], 0')
    a(f'''
    s_mov_b32 s64, 0xffff0000
    s_mov_b32 s65, 0
    s_mov_b32 s66, 0
    s_mov_b32 s67, 0xffff
    s_nop 0
    v_cndmask_b32 v16, v16, v20, s[64:65]
    s_mov_b32 s65, 0xffff0000
    s_mov_b32 s64, 0
    v_cndmask_b32 v16, v16, v24, s[66:67]
    s_add_u32 s69, s58, {4*9216}
    s_cmp_ge_u32 s{WAVE}, 4
    v_cndmask_b32 v16, v16, v28, s[64:65]
    buffer_store_dword v16, v2, s[{S_WS}:{S_WS+3}], s58 offen sc1
    s_cbranch_scc1 L_ffndone
    s_mov_b64 exec, 0xffff
    buffer_store_dword v32, v2, s[{S_WS}:{S_WS+3}], s69 offen sc1
L_ffndone:
    s_mov_b64 exec, -1
    s_branch L_last
L_noffn:
    s_sub_u32 s69, s{S_FS}, 144
    s_cmp_ge_u32 s69, 72
    s_cbranch_scc1 L_last
    s_cmp_lg_u32 s{WAVE}, 0
    s_cbranch_scc1 L_last
    s_cmp_eq_u32 s61, {[0, 2, 2][DEFER]}
    s_cbranch_scc1 L_finrow
    s_cmp_eq_u32 s63, s59
    s_cbranch_scc1 L_finrow
    ''')
    out_row()
    a(f'''
L_finrow:
    s_mov_b32 s61, {[0, 2, 2][DEFER]}
    s_lshl_b32 s58, s69, 4
    s_add_u32 s58, s58, s64
    v_and_b32 v1, 1, v{LANE}
    v_lshlrev_b32 v2, 3, v1
    s_lshr_b32 s65, s62, 11
    s_lshl_b32 s65, s65, 16
    s_not_b32 s66, s65
    s_ashr_i32 s66, s66, 31
    s_or_b32 s66, s66, 0x80000000
    s_xor_b32 s65, s65, s66
    s_and_b32 s65, s65, 0xffff0000
    v_mov_b32 v3, s65
    v_mul_f32 v3, {hx(f32(-math.log2(math.e)))}, v3
    v_exp_f32 v3, v3
    s_mul_i32 s60, s69, 4608
    s_add_u32 s60, s60, {WS_PART}
    v_add_f32 v3, 1.0, v3
    v_rcp_f32 v3, v3
    s_mov_b32 s65, 0
    v_mov_b32 v26, 0
    v_mov_b32 v27, 0
    v_mov_b32 v28, 0
    v_mov_b32 v29, 0
    ''')
    bf_round(a, 3, 3)
    a(f'''
L_fin0:
    buffer_load_dwordx2 v[4:5], v2, s[{S_WS}:{S_WS+3}], s58 offen sc1
    buffer_load_dwordx2 v[6:7], v2, s[{S_WS}:{S_WS+3}], s58 offen offset:1152 sc1
    s_add_u32 s65, s65, 1
    s_waitcnt vmcnt(0)
    v_max_u32 v8, v4, v5
    v_max3_u32 v8, v8, v6, v7
    v_cmp_eq_u32 vcc, -1, v8
    s_cbranch_vccz L_fin1
    s_cmp_gt_u32 s65, {SPIN}
    s_cbranch_scc0 L_fin0
L_fin1:
    s_sleep {FIN_SLEEP}
L_fin:
    ''')
    for i in range(4): a(f'buffer_load_dwordx4 v[{10+4*i}:{13+4*i}], v{L16}, s[{S_WS}:{S_WS+3}], s60 offen offset:{1024*i} sc1')
    a(f'''
    s_add_u32 s66, s60, 4096
    s_mov_b32 s67, exec_hi
    s_mov_b32 exec_hi, 0
    buffer_load_dwordx4 v[26:29], v{L16}, s[{S_WS}:{S_WS+3}], s66 offen sc1
    s_mov_b32 exec_hi, s67
    s_add_u32 s65, s65, 1
    s_waitcnt vmcnt(0)
    v_mov_b32 v8, v10
    ''')
    for i in range(11, 29, 2): a(f'v_max3_u32 v8, v8, v{i}, v{i+1}')
    a(f'''
    v_max_u32 v8, v8, v29
    v_cmp_eq_u32 vcc, -1, v8
    s_and_b64 exec, exec, vcc
    s_cbranch_execz L_finok
    s_cmp_gt_u32 s65, {SPIN}
    s_cbranch_scc1 L_finok
    s_sleep {FIN_SLEEP2}
    s_branch L_fin
L_finok:
    s_mov_b64 exec, -1
    ''')
    stamp(a, 'fin')
    a(f'''
    v_pk_add_f32 v[10:11], v[10:11], v[14:15]
    v_pk_add_f32 v[12:13], v[12:13], v[16:17]
    v_pk_add_f32 v[18:19], v[18:19], v[22:23]
    v_pk_add_f32 v[20:21], v[20:21], v[24:25]
    v_pk_add_f32 v[10:11], v[10:11], v[26:27]
    v_pk_add_f32 v[12:13], v[12:13], v[28:29]
    v_pk_add_f32 v[10:11], v[10:11], v[18:19]
    v_pk_add_f32 v[12:13], v[12:13], v[20:21]
    s_nop 0
    ''')
    for c in (8, 4, 2):
        for r in range(10, 14): a(f'v_add_f32_dpp v{r}, v{r}, v{r} row_ror:{c} row_mask:0xf bank_mask:0xf')
    for sw in ('v_permlane16_swap_b32', 'v_permlane32_swap_b32'):
        for r in range(4): a(f'v_mov_b32 v{14+r}, v{10+r}')
        for r in range(4): a(f'{sw} v{10+r}, v{14+r}')
        for r in range(4): a(f'v_add_f32 v{10+r}, v{10+r}, v{14+r}')
    a('v_cvt_pk_bf16_f32 v8, v10, v11\nv_cvt_pk_bf16_f32 v9, v12, v13')
    unpack(a, 10, 8); unpack(a, 12, 9)
    for r in range(4): a(f'v_mul_f32 v{10+r}, v3, v{10+r}')
    a('v_cvt_pk_bf16_f32 v8, v10, v11\nv_cvt_pk_bf16_f32 v9, v12, v13')
    unpack(a, 10, 8); unpack(a, 12, 9); unpack(a, 14, 4); unpack(a, 16, 5)
    for r in range(4): a(f'v_add_f32 v{10+r}, v{10+r}, v{14+r}')
    a('v_cvt_pk_bf16_f32 v8, v10, v11\nv_cvt_pk_bf16_f32 v9, v12, v13')
    unpack(a, 10, 8); unpack(a, 12, 9); unpack(a, 14, 6); unpack(a, 16, 7)
    for r in range(4): a(f'v_add_f32 v{10+r}, v{10+r}, v{14+r}')
    a(f'''
    v_cvt_pk_bf16_f32 v8, v10, v11
    v_cvt_pk_bf16_f32 v9, v12, v13
    s_mul_i32 s58, s63, {ROWB}
    s_lshl_b32 s60, s69, 4
    s_add_u32 s58, s58, s60
    s_mov_b64 exec, 3
    buffer_store_dwordx2 v[8:9], v2, s[{S_OUT}:{S_OUT+3}], s58 offen{OUTP}
    s_mov_b64 exec, -1
L_last:
    s_cmp_eq_u32 s61, {[0, 2, 2][DEFER]}
    s_cbranch_scc1 L_end
    s_cmp_eq_u32 s63, s59
    s_cbranch_scc1 L_end
    ''')
    out_row()
    a('L_end:')
    stamp(a, 'end')
    a('s_endpgm')

def kv_load(vm, t, part=None):
    ws = f's[{S_WS}:{S_WS+3}]'
    if part in (None, 0): vm.issue(f'km{t}', f'buffer_load_dwordx4 a[{KM+4*t}:{KM+4*t+3}], v{L16}, {ws}, s67 offen{LDP}')
    if part in (None, 1): vm.issue(f'km{t}', f'buffer_load_dword a{KX+t}, v{T+14}, {ws}, s67 offen offset:{KV_X}{LDP}')
    m = 'vmask' in DIAG
    if part in (None, 2):
        if m: vm.a('s_mov_b64 exec, s[64:65]')
        vm.issue(f'v{t}', f'buffer_load_dwordx4 a[{VV+8*t}:{VV+8*t+3}], v83, {ws}, s67 offen offset:{KV_V}{LDP}')
        if m and part == 2: vm.a('s_mov_b64 exec, -1')
    if part in (None, 3):
        if m and part == 3: vm.a('s_mov_b64 exec, s[64:65]')
        vm.issue(f'v{t}', f'buffer_load_dwordx4 a[{VV+8*t+4}:{VV+8*t+7}], v83, {ws}, s67 offen offset:{KV_V+608}{LDP}')
        if m: vm.a('s_mov_b64 exec, -1')
        if t < 7: vm.a(f's_add_u32 s67, s67, {KVREC}\ns_cmp_ge_u32 s67, s63\ns_cselect_b32 s67, s62, s67')

def qprep(a, vm, stamp):
    a(f's_cmp_ge_u32 s{WAVE}, 4\ns_cbranch_scc1 L_nokmax')
    dpp_reduce(a, 'v_max_f32', [21])
    a(f'''
    s_lshl_b32 s58, s{WAVE}, 2
    s_add_u32 s58, s58, {X_WIN}
    v_mov_b32 v22, s58
    s_mov_b32 exec_lo, 0
    s_mov_b32 exec_hi, 0x80000000
    ds_write_b32 v22, v21
    s_mov_b64 exec, -1
L_nokmax:
    v_mov_b32 v22, {X_WIN}
    s_mov_b32 s68, -1
    s_mov_b32 s69, 0
    v_mov_b32 v18, 0
    s_waitcnt lgkmcnt(0)
    ''')
    vm.need('q')
    stamp(a, 'qin')
    a(f'''
    s_barrier
    ds_read2_b32 v[12:13], v8 offset0:0 offset1:1
    ds_read2_b32 v[14:15], v8 offset0:2 offset1:3
    ds_read_b32 v16, v7 offset:32
    ds_read_b128 v[20:23], v22
    ''')
    for t in range(PRE[0], PRE[0] + PRE[1]): kv_load(vm, t)
    stamp(a, 'q1')
    a(f'''
    s_waitcnt lgkmcnt(1)
    v_cndmask_b32 v17, 0, v16, s[68:69]
    v_dot2c_f32_bf16 v18, v12, v12
    v_dot2c_f32_bf16 v18, v13, v13
    v_dot2c_f32_bf16 v18, v14, v14
    v_dot2c_f32_bf16 v18, v15, v15
    v_dot2c_f32_bf16 v18, v17, v17
    s_waitcnt lgkmcnt(0)
    v_max3_f32 v20, v20, v21, v22
    s_lshl_b32 s59, s{WAVE}, 11
    v_mov_b32 v19, v18
    v_max_f32 v20, v20, v23
    s_nop 0
    v_permlane32_swap_b32 v18, v19
    v_add_f32 v18, v18, v19
    v_mul_f32 v18, v20, v18
    v_sqrt_f32 v18, v18
    s_add_u32 s59, s59, {LQ}
    v_add_u32 v24, s59, v{L16}
    v_mov_b32 v17, 0
    v_add_u32 v18, 0x1ffff, v18
    v_and_b32 v18, 0xffff0000, v18
    v_cmp_nge_f32 vcc, {hx(f32(M_LIMIT))}, v18
    v_lshrrev_b32 v19, 16, v18
    v_or_b32 v19, 0x8000, v19
    v_cndmask_b32 v16, v19, v16, s[68:69]
    s_cmp_lg_u64 vcc, 0
    s_cselect_b32 s58, 1, 0
    ds_write_b128 v24, v[12:15]
    v_mov_b32 v18, 0
    v_mov_b32 v19, v16
    ds_write_b128 v24, v[16:19] offset:1024
    s_lshl_b32 s59, s{WAVE}, 2
    s_add_u32 s59, s59, {X_FLAG}
    v_mov_b32 v26, s59
    v_mov_b32 v27, s58
    ds_write_b32 v26, v27
    ''')

def prologue(a, stamp):
    if FUSED:
        a(f'''
L_p1done:
        ''')
        stamp(a, 'qst')
        a(f'''
        s_lshl_b32 s57, s26, 7
        s_add_u32 s57, s57, {WS_GRAN}
        s_mov_b32 s96, s4
        s_mov_b32 s97, s5
        s_mov_b32 s98, 4
        s_mov_b32 s99, 0x20000
        v_mov_b32 v64, 0
        buffer_load_dword v61, v64, s[96:99], 0 offen sc1
        s_mov_b32 s{S_WS}, s6
        s_mov_b32 s{S_WS+1}, s7
        s_mov_b32 s{S_WS+2}, {WS_USED}
        s_mov_b32 s{S_WS+3}, 0x20000
        s_mov_b32 s59, {GRAN_REP}
        v_mul_lo_u32 v63, s59, v1
        v_mov_b32 v60, -1
        v_mov_b32 v62, v29
        ''')
    else:
        a('s_cmp_ge_u32 s2, 256\ns_cbranch_scc1 L_k2_exit')
    a(f'''
    s_load_dwordx2 s[16:17], s[0:1], {KA_WS}
    s_load_dwordx2 s[4:5], s[0:1], {KA_X}
    s_load_dwordx8 s[8:15], s[0:1], {KA_WR}
    s_load_dwordx2 s[6:7], s[0:1], {KA_OUT}
    ''')
    if not FUSED: stamp(a, 'start')
    a(f'''
    s_setprio 3
    v_lshrrev_b32 v1, 6, v0
    v_and_b32 v{LANE}, 63, v0
    v_and_b32 v5, 7, v0
    v_readfirstlane_b32 s{WAVE}, v1
    v_bfe_u32 v6, v0, 3, 2
    s_lshl_b32 s58, s2, 3
    s_add_u32 s61, s58, s{WAVE}
    s_mul_i32 s61, s61, {ROWB}
    v_mul_u32_u24 v7, 1168, v5
    v_mad_u32_u24 v7, v6, 36, v7
    s_mul_i32 s58, s{WAVE}, 144
    s_add_u32 s58, s58, {LQR}
    v_add_u32 v7, s58, v7
    v_lshrrev_b32 v4, 5, v{LANE}
    v_lshl_add_u32 v8, v4, 4, v7
    s_mul_i32 s68, s{WAVE}, 1168
    s_add_u32 s68, s68, {LQR}
    v_lshlrev_b32 v{L16}, 4, v{LANE}
    v_lshlrev_b32 v{T+14}, 2, v{LANE}
    v_and_b32 v3, 31, v{LANE}
    v_min_u32 v10, 18, v3
    v_lshlrev_b32 v10, 4, v10
    s_movk_i32 s62, 304
    v_mad_u32_u24 v10, v4, s62, v10
    s_mov_b32 s64, 0x0013ffff
    s_mov_b32 s65, 0x0013ffff
    v_mov_b32 v2, 0x7f000000
    v_cndmask_b32 v83, v{10 if 'vclamp' in DIAG else 2}, v10, s[64:65]
    s_bfe_u32 s60, s2, {ROTF}
    s_mul_i32 s62, s{WAVE}, {8*KVREC}
    s_add_u32 s62, s62, {WS_KV}
    s_mul_i32 s67, s60, {KVREC}
    s_add_u32 s67, s67, s62
    s_add_u32 s63, s62, {8*KVREC}
    ''')
    for i in range(72 if 'vmask' in DIAG else 8): a(f'v_accvgpr_write_b32 a{KX+i}, 0')
    if not FUSED: a('s_waitcnt lgkmcnt(0)')
    vm = Vm(a)
    def first_loads():
        ws = f's[{S_WS}:{S_WS+3}]'
        a('s_mov_b32 m0, s68\ns_mov_b64 exec, 0xff')
        vm.issue('q', f'buffer_load_dwordx4 v{L16}, {ws}, s61 offen offset:1024{LDP} lds')
        a('s_mov_b64 exec, -1')
        vm.issue('q', f'buffer_load_dwordx4 v{L16}, {ws}, s61 offen{LDP} lds')
        a('s_setprio 0')
        stamp(a, 'issued')
    if not FUSED:
        srd(a, S_WS, 16, 0, WS_USED)
        first_loads()
    def late_setup():
        a(f'''
        s_and_b32 s58, s2, 7
        s_lshr_b32 s59, s2, 3
        s_mul_i32 s{S_FS}, s58, 18
        s_add_u32 s{S_FS}, s{S_FS}, s59
        s_cmp_lt_u32 s59, 18
        s_cselect_b32 s{S_FS}, s{S_FS}, s2
        s_cselect_b32 s69, {D*F*2}, 0
        ''')
        for d, b in ((S_G, 10), (S_U, 12), (S_D, 14)):
            a(f's_mov_b32 s{d}, s{b}\ns_mov_b32 s{d+1}, s{b+1}\ns_mov_b32 s{d+2}, s69\ns_mov_b32 s{d+3}, 0x20000')
        srd(a, S_X, 4, 0, S * ROWB); srd(a, S_OUT, 6, 0, S * ROWB); srd(a, S_WR, 8, 0, ROWB)
        a(f'''
        s_mul_i32 s{S_GOFF}, s{WAVE}, {16*F*2}
        s_lshl_b32 s58, s{S_FS}, 6
        s_add_u32 s{S_GOFF}, s{S_GOFF}, s58
        s_mul_i32 s{S_DOFF}, s{S_FS}, 36864
        s_lshl_b32 s58, s{WAVE}, 10
        s_add_u32 s{S_DOFF}, s{S_DOFF}, s58
        s_mov_b32 s{S_MG}, s58
        s_cmp_lt_u32 s{WAVE}, 6
        s_cselect_b32 s{S_MST}, s69, 0
        s_mul_i32 s{S_NT0}, s{WAVE}, 5
        s_lshl_b32 s58, s{WAVE}, 2
        s_add_u32 s58, s58, 4
        s_cmp_lt_u32 s{WAVE}, 4
        s_cselect_b32 s{S_NT0}, s{S_NT0}, s58
        s_lshl_b32 s{S_WOC}, s{S_NT0}, 11
        s_add_u32 s{S_WOC}, s{S_WOC}, {WS_WO}
        s_mul_i32 s60, s59, 20736
        s_lshl_b32 s58, s{WAVE}, 10
        s_add_u32 s60, s60, s58
        s_add_u32 s60, s60, {WS_WO}
        v_lshrrev_b32 v24, 2, v{LANE}
        v_mul_u32_u24 v25, {F*2}, v24
        v_lshrrev_b32 v24, 4, v{LANE}
        v_and_b32 v26, 2, v24
        v_and_b32 v27, 3, v{LANE}
        v_xor_b32 v26, v26, v27
        v_lshl_add_u32 v{GUV}, v26, 4, v25
        v_mov_b32 v{IDXA}, 0xdddd
        v_mov_b32 v{IDXB}, 0x4444
        v_mov_b32 v25, 0xeeee
        v_and_b32 v26, 15, v{LANE}
        v_cmp_lt_u32 vcc, 7, v26
        v_mul_u32_u24 v27, 80, v3
        s_mul_i32 s58, s{WAVE}, 2560
        v_cndmask_b32 v{IDXB}, v{IDXB}, v25, vcc
        s_add_u32 s58, s58, {LP}
        v_add_u32 v27, s58, v27
        v_lshl_add_u32 v{WAD}, v4, 4, v27
        v_lshl_add_u32 v{WAD3}, v4, 3, v27
        v_add_u32 v{WAD3}, 64, v{WAD3}
        v_min_u32 v25, 9, v26
        v_mul_u32_u24 v27, 640, v24
        v_lshl_add_u32 v27, v25, 3, v27
        s_mul_i32 s58, s{WAVE}, 80
        s_add_u32 s58, s58, {LP}
        v_add_u32 v{RAD}, s58, v27
        s_mul_i32 s58, s{WAVE}, 144
        s_add_u32 s58, s58, {LO}
        v_lshlrev_b32 v27, 5, v24
        v_lshl_add_u32 v27, v26, 2, v27
        v_add_u32 v{OAD}, s58, v27
        v_mov_b32 v{OST}, 1152
        s_add_u32 s58, s58, {8*1152}
        v_lshl_add_u32 v27, v24, 2, s58
        v_cmp_eq_u32 vcc, 8, v26
        s_mov_b32 s58, {LDUM}
        v_lshl_add_u32 v28, v{LANE}, 2, s58
        v_cndmask_b32 v{OAD}, v{OAD}, v27, vcc
        v_cndmask_b32 v{OST}, v{OST}, 16, vcc
        v_cmp_lt_u32 vcc, 8, v26
        v_mul_u32_u24 v27, 144, v5
        v_bfe_u32 v25, v{LANE}, 3, 1
        v_cndmask_b32 v{OAD}, v{OAD}, v28, vcc
        v_cndmask_b32 v{OST}, v{OST}, 0, vcc
        v_lshl_add_u32 v27, v25, 6, v27
        v_lshl_add_u32 v27, v24, 4, v27
        v_add_u32 v{AAD}, {LO}, v27
        v_add_u32 v{QAD}, {LQ}, v{L16}
        ''')
        for i in range(OACC, OACC + 20): a(f'v_mov_b32 v{i}, 0')
    if not FUSED: late_setup()
    if FUSED:
        a(f'''
        s_getreg_b32 s58, hwreg(HW_REG_XCC_ID)
        s_and_b32 s58, s58, 7
        s_mul_i32 s58, s58, {GRAN_REP}
        s_add_u32 s58, s58, {WS_GRAN + 4}
        s_mul_i32 s59, s{WAVE}, {8 * 43}
        s_lshr_b32 s59, s59, 7
        v_add_u32 v24, s59, v{LANE}
        v_min_u32 v24, 21, v24
        v_add_u32 v24, 234, v24
        v_lshlrev_b32 v24, 7, v24
        s_mov_b32 s59, 0
        s_waitcnt vmcnt(0)
L_tag:
        v_cmp_ne_u32 vcc, 0, v61
        s_cbranch_vccnz L_tagok
        buffer_load_dword v61, v64, s[96:99], 0 offen sc1
        s_add_u32 s59, s59, 1
        s_cmp_gt_u32 s59, {SPIN}
        s_waitcnt vmcnt(0)
        s_cbranch_scc0 L_tag
L_tagok:
        ''')
        stamp(a, 'drain')
        a(f'''
        s_barrier
        s_cmp_lg_u32 s{WAVE}, 7
        s_cbranch_scc1 L_noflag
        s_mov_b64 exec, 0xff
        buffer_store_dwordx3 v[60:62], v63, s[{S_WS}:{S_WS+3}], s57 offen sc1
        s_mov_b64 exec, -1
L_noflag:
        ''')
        if LATE == 0:
            a('s_mov_b32 s57, s58\nv_mov_b32 v21, v24\ns_waitcnt lgkmcnt(0)')
            late_setup()
            a('s_mov_b32 s58, s57\nv_mov_b32 v24, v21')
        else: a(f's_sleep {KPOLL_FIRST}')
        a(f'''
        s_mov_b32 s59, 0
        s_mov_b64 exec, 15
L_kpoll:
        buffer_load_dword v20, v24, s[{S_WS}:{S_WS+3}], s58 offen sc1
        s_add_u32 s59, s59, 1
        s_waitcnt vmcnt(0)
        v_cmp_ne_u32 vcc, v20, v61
        s_and_b64 exec, exec, vcc
        s_cbranch_execz L_kdone
        s_cmp_gt_u32 s59, {SPIN}
        s_cbranch_scc1 L_kdone
        s_sleep {KPOLL_SLEEP}
        s_branch L_kpoll
L_kdone:
        s_mov_b64 exec, -1
        ''')
        stamp(a, 'kin')
        for t in range(PRE[0]):
            a(f's_setprio {max(3 - t, 0)}'); kv_load(vm, t)
        a('s_mov_b32 s57, s58')
        if LATE == 1:
            a('s_waitcnt lgkmcnt(0)'); late_setup()
        a(f'''
        s_setprio 3
        s_cmp_ge_u32 s{WAVE}, 4
        s_cbranch_scc1 L_flagsin
        s_lshl_b32 s59, s{WAVE}, 13
        s_add_u32 s58, s57, s59
        v_lshlrev_b32 v24, 7, v{LANE}
        s_mov_b32 s59, 0
L_fpoll:
        buffer_load_dwordx2 v[20:21], v24, s[{S_WS}:{S_WS+3}], s58 offen sc1
        s_add_u32 s59, s59, 1
        s_waitcnt vmcnt(0)
        v_cmp_ne_u32 vcc, v20, v61
        s_and_b64 exec, exec, vcc
        s_cbranch_execz L_fdone
        s_cmp_gt_u32 s59, {SPIN}
        s_cbranch_scc1 L_fdone
        s_sleep {FPOLL_SLEEP}
        s_branch L_fpoll
L_fdone:
        s_mov_b64 exec, -1
L_flagsin:
        s_barrier
        ''')
        stamp(a, 'sync')
        first_loads()
        if LATE == 2:
            a('s_waitcnt lgkmcnt(0)'); late_setup()
    qprep(a, vm, stamp)
    a(f'''
    s_mov_b32 s58, {X_FLAG}
    v_lshl_add_u32 v26, v5, 2, s58
    ''')
    stamp(a, 'q2')
    for t in range(PRE[0] + PRE[1], sum(PRE)): kv_load(vm, t)
    stamp(a, 'q3')
    a(f'''
    s_waitcnt lgkmcnt(0)
    s_barrier
    ds_read_b32 v27, v26
    ''')
    stamp(a, 'bar')
    for r in q_reads(False): a(r)
    a(f'''
    s_waitcnt lgkmcnt(2)
    v_cmp_ne_u32 vcc, 0, v27
    ''')
    return vm

def true_max(a, vm):
    a('L_slow:')
    for t in range(sum(PRE), 8): kv_load(vm, t)
    a(f'''
    v_cndmask_b32 v16, 0, v16, s[68:69]
    v_mov_b32 v19, v16
    s_waitcnt lgkmcnt(0)
    s_barrier
    ds_write_b128 v24, v[16:19] offset:1024
    v_add_u32 v{QAD}, {LQ}, v{L16}
    s_lshl_b32 s58, s{WAVE}, 7
    s_add_u32 s58, s58, {X_PMAX}
    v_lshl_add_u32 v25, v3, 2, s58
    s_mov_b32 s{S_CNT}, 8
    s_waitcnt vmcnt(0) lgkmcnt(0)
    s_barrier
L_mx:
    ''')
    vm.q = []
    for r in q_reads(True): a(r)
    a(f'v_mov_b32 v{MV}, 0xff800000\ns_waitcnt lgkmcnt(0)')
    for t in range(8):
        a(qkx(SA, t)); a(qkm(SA, t)); a('s_nop 11')
        for r in range(0, 16, 2): a(f'v_max3_f32 v{MV}, v{MV}, v{SA+r}, v{SA+r+1}')
        a('s_nop 7')
    a(f'''
    v_mov_b32 v26, v{MV}
    s_nop 1
    v_permlane32_swap_b32 v{MV}, v26
    v_max_f32 v{MV}, v{MV}, v26
    ds_write_b32 v25, v{MV}
    v_add_u32 v25, 1024, v25
    s_sub_u32 s{S_CNT}, s{S_CNT}, 1
    s_cmp_lg_u32 s{S_CNT}, 0
    s_cbranch_scc1 L_mx
    v_and_b32 v3, 31, v{LANE}
    s_lshl_b32 s58, s{WAVE}, 10
    s_add_u32 s58, s58, {X_PMAX}
    v_lshl_add_u32 v25, v3, 2, s58
    s_waitcnt lgkmcnt(0)
    s_barrier
    ''')
    for i in range(4): a(f'ds_read2_b32 v[{2*i+8}:{2*i+9}], v25 offset0:{64*i} offset1:{64*i+32}')
    a(f'''
    s_mov_b32 s58, {X_MAX}
    v_lshl_add_u32 v82, v3, 2, s58
    s_lshl_b32 s58, s{WAVE}, 7
    v_add_u32 v25, s58, v82
    s_waitcnt lgkmcnt(0)
    v_max3_f32 v8, v8, v9, v10
    v_max3_f32 v8, v8, v11, v12
    v_max3_f32 v8, v8, v13, v14
    v_max_f32 v8, v8, v15
    ds_write_b32 v25, v8
    ''')
    if 'dumpm' in DIAG:
        a(f's_lshl_b32 s58, s2, 3\ns_add_u32 s58, s58, s{WAVE}\ns_lshl_b32 s58, s58, 7\ns_add_u32 s58, s58, {WS_STAMP}\nv_lshlrev_b32 v9, 2, v3\nbuffer_store_dword v8, v9, s[{S_WS}:{S_WS+3}], s58 offen\ns_waitcnt vmcnt(0)')
    a(f'''
    v_add_u32 v{QAD}, {LQ}, v{L16}
    s_waitcnt lgkmcnt(0)
    s_barrier
    ''')
    for r in q_reads(True): a(r)

def k2(name, stamp=nomark):
    t = k2_(name, stamp)
    out, inloop = [], False
    for l in t.split('\n'):
        s = l.strip()
        if s.endswith('_loop:'): inloop = True
        if inloop:
            if 'nowo' in DIAG and s.startswith('buffer_load') and 'lds' not in s: continue
            if 'nodma' in DIAG and s.startswith('buffer_load') and 'lds' in s: continue
            if 'noop' in DIAG and '16x16x64' in s: continue
            if 'novm' in DIAG and 'vmcnt' in s: continue
            if 'nobar' in DIAG and s == 's_barrier': continue
            if 'nods' in DIAG and (s.startswith('ds_') or 'lgkmcnt' in s): continue
            if 'novalu' in DIAG and (s.startswith('v_pk') or s.startswith('v_add') or s.startswith('v_rcp') or s.startswith('v_cvt')): continue
            if 'nopv' in DIAG and '32x32x32' in s: continue
            if 'noqk' in DIAG and ('32x32x16' in s or ('32x32x8' in s and ' v[' in s[:32])): continue
            if 'noqx' in DIAG and ('32x32x8' in s and ' v[' in s[:32]): continue
            if 'noexp' in DIAG and s.startswith('v_exp'): l = l.replace('v_exp_f32', 'v_nop ;')
            if 'noprio' in DIAG and s.startswith('s_setprio'): continue
        if s.startswith('s_cbranch_scc1') and s.endswith('_loop'): inloop = False
        out.append(l)
    return '\n'.join(out)

def k2_(name, stamp=nomark):
    a = Asm()
    a(f'.globl {name}\n.p2align 8\n.type {name},@function\n{name}:')
    if FUSED:
        import k1
        k1.entry(a, stamp, 'L_k2_exit')
        def done(a): a('s_branch L_p1done')
        k1.phase1(a, True, stamp, done)
        a.l = k1.diag(a.text()).rstrip('\n').split('\n')
    vm = prologue(a, stamp)
    stamp(a, 'prol')
    a(f's_cbranch_vccnz L_slow\ns_cmp_ge_u32 s{WAVE}, 4\ns_cbranch_scc1 L_f4')
    q0 = list(vm.q)
    attention(a, 5, False, 'L_a5', vm, stamp, sum(PRE))
    a('L_f4:')
    vm.q = list(q0)
    attention(a, 4, False, 'L_a4', vm, stamp, sum(PRE))
    tail(a, stamp)
    vm.q = list(q0)
    true_max(a, vm)
    a(f's_cmp_ge_u32 s{WAVE}, 4\ns_cbranch_scc1 L_s4')
    attention(a, 5, True, 'L_b5', vm, nomark, 8)
    a('L_s4:')
    vm.q = []
    attention(a, 4, True, 'L_b4', vm, nomark, 8)
    a('L_k2_exit:\ns_endpgm')
    return a.text()
```

```python
from common import *

K1_LDS = 162816
TQ, TKV = 79, 96
ONES = 0x3f803f80
LOOK = 2
LA = 3
KV_VM, KV_KE, KV_VE = 16384, 32768, 32768 + 9216 + 64
XOFF = {'q': 65536, 'kv': 51328}
EX_OFF = 161920
ST = ' sc1'
QROW = 144
DIAG = set()
FUSED = False
TOUCH = 0
CODEPF = 1
PREW = 1
CLR_AT = 9
ROT = 1
WALK = 0

def bf_round(a, dst, src):
    a(f'v_cvt_pk_bf16_f32 v{dst}, v{src}, v{src}\nv_and_b32 v{dst}, 0xffff0000, v{dst}')

def rot_next(a, s, step, lim):
    a(f's_add_u32 s{s}, s{s}, {step}\ns_cmp_ge_u32 s{s}, {lim}\ns_cselect_b32 s{s}, 0, s{s}')

def mf16(d, x, y, first): return f'v_mfma_f32_16x16x32_bf16 v[{d}:{d+3}], {x}, {y}, ' + ('0' if first else f'v[{d}:{d+3}]')
def smf16(d, x, y, idx): return f'v_smfmac_f32_16x16x64_bf16 v[{d}:{d+3}], {x}, {y}, v{idx}'

BARS = [0, 1, 2, 3, 4, 5, 6, 7, 8]
def kloop(a, vm, reads, mfmas, issue, extra=None, walk=None):
    L = Lgkm(a)
    nxt = [2]
    def capture(upto):
        keep, a.l = a.l, []
        while nxt[0] <= upto:
            issue(nxt[0]); nxt[0] += 1
        got, a.l = a.l, keep
        chunks, cur, masked, seen = [], [], False, False
        for l in got:
            cur.append(l); w = l.strip()
            if w == 's_mov_b64 exec, -1': masked = False
            elif 'saveexec' in w or w.split()[1].startswith('exec'): masked = True
            if w.startswith('buffer_'): seen = True
            if seen and not masked: chunks.append(cur); cur, seen = [], False
        assert not masked
        if cur:
            if chunks: chunks[-1] += cur
            else: chunks.append(cur)
        return ['\n'.join(c) for c in chunks]
    def stage(t):
        if t % 2 == 0 and t // 2 in BARS:
            u = t // 2
            last = ([b for b in BARS if b > u] + [9])[0] - 1
            vm.need(*range(u, last + 1))
            a('s_barrier')
            STAMP(a, f'u{u}')
            return last
    for c in capture(([b for b in BARS if b > 0])[0] - 1 + LA - 1): a(c)
    if walk and WALK: a(walk)
    for t in range(LOOK):
        last = stage(t)
        for tag, ins in reads(t): L.issue(tag, ins)
        if last is not None:
            for c in capture(last + LA): a(c)
    for t in range(18):
        R = []
        if t + LOOK < 18:
            last = stage(t + LOOK)
            R = [('r', x) for x in reads(t + LOOK)]
            if last is not None: R += [('e', c) for c in capture(last + LA)]
        if extra: R += [('e', x) for x in extra(t)]
        for kind, x in weave([('m', x) for x in mfmas(t)], R):
            if kind == 'r': L.issue(*x)
            elif kind == 'e': a(x)
            else:
                L.need(*x[0]); a(x[1])

def stats_raw(GR, SX, V, M, T0):
    return f'''
    v_cndmask_b32 v{V}, 0, v{GR}, s[36:37]
    v_cndmask_b32 v{V}, v{V}, v{GR+1}, s[38:39]
    v_cndmask_b32 v{V}, v{V}, v{GR+2}, s[40:41]
    v_cndmask_b32 v{V}, v{V}, v{GR+3}, s[42:43]
    v_mov_b32 v{M}, v{SX}
    v_mov_b32 v{T0}, v{V}
    s_nop 1
    v_permlane32_swap_b32 v{SX}, v{M}
    v_permlane32_swap_b32 v{V}, v{T0}
    v_add_f32 v{M}, v{SX}, v{M}
    v_add_f32 v{V}, v{V}, v{T0}
    v_mov_b32 v{T0}, v{V}
    v_mul_f32 v{M}, {hx(f32(1.0/D))}, v{M}
    s_nop 0
    v_permlane16_swap_b32 v{V}, v{T0}
    v_add_f32 v{V}, v{V}, v{T0}
    '''

def stats_fin(V, M, T0, mul):
    r = lambda x: f'v_cvt_pk_bf16_f32 v{x}, v{x}, v{x}\nv_and_b32 v{x}, 0xffff0000, v{x}\n'
    return (f'v_mul_f32 v{T0}, v{M}, v{M}\nv_fma_f32 v{V}, v{V}, s58, -v{T0}\nv_max_f32 v{V}, 0, v{V}\n' + r(V)
            + f'v_add_f32 v{V}, {hx(f32(1e-5))}, v{V}\n' + r(V) + f'v_sqrt_f32 v{V}, v{V}\n' + r(M) + r(V)
            + f'v_rcp_f32 v{V}, v{V}\ns_nop 0\n' + (f'v_mul_f32 v{V}, {hx(f32(mul))}, v{V}\n' if mul != 1.0 else ''))
def lines(t): return [l.strip() for l in t.split('\n') if l.strip()]

def stat_consts(a, ONE, IDX, sx):
    for i in range(4): a(f'v_mov_b32 v{ONE+i}, {hx(ONES)}')
    for r in sx:
        for i in range(4): a(f'v_mov_b32 v{r+i}, 0')
    a(f'''
    v_mov_b32 v{IDX}, 0x4444
    v_mov_b32 v12, 0xeeee
    v_cmp_lt_u32 vcc, 7, v2
    s_mov_b32 s36, 0x00100001
    s_mov_b32 s37, 0x10000100
    v_cndmask_b32 v{IDX}, v{IDX}, v12, vcc
    s_lshl_b64 s[38:39], s[36:37], 1
    s_lshl_b64 s[40:41], s[36:37], 2
    s_lshl_b64 s[42:43], s[36:37], 3
    s_mov_b32 s58, {hx(f32(1.0/D))}
    ''')

def x_read_addr(a, XRA, base):
    a(f'''
    v_lshrrev_b32 v11, 1, v2
    v_xor_b32 v11, v11, v3
    v_lshlrev_b32 v11, 4, v11
    v_lshl_add_u32 v11, v2, 7, v11
    v_add_u32 v{XRA}, s{base}, v11
    v_xor_b32 v{XRA+1}, 64, v{XRA}
    ''')

def clears(vm, hs, R, flagw):
    a = vm.a
    a(f'''
    v_mov_b32 v{R}, -1
    v_mov_b32 v{R+1}, -1
    v_mov_b32 v{R+2}, -1
    v_mov_b32 v{R+3}, -1
    s_lshl_b32 s46, s{hs}, 11
    s_cmp_lt_u32 s{hs}, 2
    s_cselect_b32 s46, s46, 0x7f000000
    v_lshl_add_u32 v{R+5}, v1, 4, s46
    s_mul_i32 s47, s2, 3600
    s_add_u32 s47, s47, {WS_ROWS}
    ''')
    vm.issue('c', f'buffer_store_dwordx4 v[{R}:{R+3}], v{R+5}, s[32:35], s47 offen{ST}')
    a(f'v_cmp_gt_u32 vcc, {3600 - 1024}, v{R+5}\nv_mov_b32 v{R+4}, 0x7f000000\nv_lshrrev_b32 v{R+6}, 3, v1\nv_cndmask_b32 v{R+5}, v{R+4}, v{R+5}, vcc')
    vm.issue('c', f'buffer_store_dwordx4 v[{R}:{R+3}], v{R+5}, s[32:35], s47 offen offset:1024{ST}')
    a(f'''
    s_mov_b32 s50, {GRAN_REP}
    v_mul_lo_u32 v{R+6}, s50, v{R+6}
    v_and_b32 v{R+7}, 7, v1
    s_cmp_eq_u32 s{hs}, {flagw}
    s_cselect_b32 s46, 0, 0x7f000000
    v_lshl_add_u32 v{R+7}, v{R+7}, 4, s46
    v_add_u32 v{R+6}, v{R+7}, v{R+6}
    s_lshl_b32 s47, s26, 7
    s_add_u32 s47, s47, {WS_GRAN}
    ''')
    vm.issue('c', f'buffer_store_dwordx4 v[{R}:{R+3}], v{R+6}, s[32:35], s47 offen{ST}')

def q_common(a):
    a(f'''
    v_lshrrev_b32 v9, 3, v1
    v_and_b32 v10, 7, v1
    v_mul_u32_u24 v5, {ROWB}, v9
    s_and_b32 s24, s16, 1
    s_lshl_b32 s25, s24, 2
    v_and_b32 v11, 2, v9
    v_xor_b32 v11, v11, v10
    v_xor_b32 v11, s25, v11
    v_lshl_add_u32 v6, v11, 4, v5
    v_lshrrev_b32 v11, 1, v9
    v_xor_b32 v11, v11, v10
    v_xor_b32 v11, s25, v11
    v_lshl_add_u32 v7, v11, 4, v5
    s_mul_i32 s20, s17, {TQ}
    s_lshl_b32 s23, s16, 3
    s_add_u32 s23, s23, s20
    s_add_u32 s23, s23, 1
    s_mul_i32 s23, s23, {ROWB}
    s_mul_i32 s27, s16, {8*ROWB}
    s_lshl_b32 s44, s18, 7
    s_add_u32 s27, s27, s44
    s_lshl_b32 s21, s16, 10
    s_lshr_b32 s56, s16, 1
    s_mul_i32 s56, s56, 18432
    s_lshl_b32 s24, s24, 10
    s_add_u32 s56, s56, s24
    s_add_u32 s56, s56, {XOFF['q']}
    ''')
    if ROT:
        a(f'''
        s_mul_i32 s19, s17, 3
        s_add_u32 s19, s19, s18
        s_mul_i32 s57, s19, 57
        s_lshr_b32 s57, s57, 9
        s_mul_i32 s57, s57, 9
        s_sub_u32 s19, s19, s57
        s_lshl_b32 s57, s19, 7
        s_add_u32 s23, s23, s57
        s_mul_i32 s22, s19, {64*ROWB}
        s_add_u32 s27, s27, s22
        s_sub_u32 s19, 9, s19
        ''')

XG = {0: [0, 1], 1: [2, 3], 2: [4], 3: [5], 4: [6], 5: [7], 6: [8]}
def q_issue(vm, u, small):
    a = vm.a
    if u > 8: return
    def xs(w):
        if ROT and w:
            a(f's_cmp_eq_u32 s19, {w}\ns_cselect_b32 s22, {ROWB}, 0\ns_sub_u32 s23, s23, s22' + ('\ns_sub_u32 s24, s24, s22' if small else ''))
        a(f's_add_u32 m0, s56, {w*2048 - w*128}\ns_nop 0')
        vm.issue(u, f'buffer_load_dwordx4 v7, s[28:31], s23 offen offset:{w*128} lds')
        if small:
            a(f's_add_u32 m0, s25, {w*2048 - w*128}\ns_mov_b64 exec, s[64:65]')
            vm.issue(u, f'buffer_load_dwordx4 v8, s[28:31], s24 offen offset:{w*128} lds')
            a('s_mov_b64 exec, -1')
    g = XG.get(u, [])
    if u == 0: xs(g[0]); g = g[1:]
    a(f's_add_u32 m0, s21, {(u % 8) * 8192}\ns_nop 0')
    vm.issue(u, 'buffer_load_dwordx4 v6, s[60:63], s27 offen lds')
    if u < 8:
        a(f's_add_u32 s27, s27, {64*ROWB}')
        if ROT: a(f's_cmp_eq_u32 s19, {u+1}\ns_cselect_b32 s22, {D*ROWB}, 0\ns_sub_u32 s27, s27, s22')
    for w in g: xs(w)

def q_first(a, vm, small):
    a(f's_setprio 3\ns_waitcnt lgkmcnt(0)\ns_sub_u32 s28, s28, {ROWB}\ns_subb_u32 s29, s29, 0')
    q_issue(vm, 0, small)
    a('s_setprio 2')
    q_issue(vm, 1, small)
    a('s_setprio 0')

def q_tra(a, TRA):
    a(f'''
    v_bfe_u32 v12, v1, 2, 2
    v_and_b32 v13, 3, v1
    v_lshl_add_u32 v9, v3, 3, v12
    v_lshlrev_b32 v9, 7, v9
    v_lshl_add_u32 v9, v13, 3, v9
    v_lshrrev_b32 v10, 1, v12
    v_and_b32 v11, 1, v3
    v_lshl_add_u32 v10, v11, 1, v10
    v_lshl_add_u32 v{TRA}, v10, 5, v9
    v_xor_b32 v{TRA}, s45, v{TRA}
    ''')

def q_big(a, stamp, done):
    ACC, WB, XB, TRA, XRA = 16, 0, 24, 32, 34
    vm = Vm(a)
    q_first(a, vm, False)
    stamp(a, 'issued')
    a(f'''
    v_and_b32 v2, 15, v1
    v_lshrrev_b32 v3, 4, v1
    s_lshr_b32 s46, s16, 1
    s_mul_i32 s47, s46, {2*18432}
    s_add_u32 s47, s47, {XOFF['q']}
    s_and_b32 s45, s16, 1
    s_lshl_b32 s45, s45, 6
    ''')
    x_read_addr(a, XRA, 47)
    q_tra(a, TRA)
    a(f'''
    v_xor_b32 v{TRA+1}, 32, v{TRA}
    s_lshl_b32 s46, s46, 5
    v_add_u32 v4, s46, v2
    v_mul_u32_u24 v5, {QROW}, v4
    v_lshl_add_u32 v5, v3, 3, v5
    v_add_u32 v5, s45, v5
    s_lshl_b32 s45, s45, 1
    s_add_u32 s45, s45, {EX_OFF}
    v_lshl_add_u32 v14, v3, 4, s45
    s_lshl_b32 s46, s46, 3
    s_add_u32 s46, s46, {EX_OFF + 256}
    v_lshl_add_u32 v15, v2, 3, s46
    ''')
    def reads(t):
        w, x, o = WB + 8 * (t % 3), XB + 8 * (t % 3), (t % 16) * 4096
        r = []
        for j in range(2):
            r.append(((t, 'x', j), f'ds_read_b128 a[{x+4*j}:{x+4*j+3}], v{XRA + t % 2} offset:{(t // 2) * 2048 + 18432 * j}'))
            r.append(((t, 'w', j), f'ds_read_b64_tr_b16 a[{w+4*j}:{w+4*j+1}], v{TRA+j} offset:{o}'))
            r.append(((t, 'w', j), f'ds_read_b64_tr_b16 a[{w+4*j+2}:{w+4*j+3}], v{TRA+j} offset:{o+512}'))
        return r
    def mfmas(t):
        w, x = WB + 8 * (t % 3), XB + 8 * (t % 3)
        return [([(t, 'x', i), (t, 'w', j)], mf16(ACC + 8 * i + 4 * j, ar(w + 4 * j, 4), ar(x + 4 * i, 4), t == 0)) for i, j in ((0, 0), (1, 0), (0, 1), (1, 1))]
    kloop(a, vm, reads, mfmas, lambda u: q_issue(vm, u, False), walk=';WALK p 4 s16 0')
    a(';PAD p')
    stamp(a, 'loop')
    CS, SS, P = 36, 44, 48
    a(f'''
    s_barrier
    ds_read_b128 v[{CS}:{CS+3}], v14
    ds_read_b128 v[{CS+4}:{CS+7}], v14 offset:64
    ds_read_b64 v[{SS}:{SS+1}], v15
    ds_read_b64 v[{SS+2}:{SS+3}], v15 offset:128
    s_waitcnt lgkmcnt(1)
    ''')
    for i in range(2):
        if i: a('s_waitcnt lgkmcnt(0)')
        for r in range(8): a(f'v_fma_f32 v{ACC+8*i+r}, -v{SS+2*i}, v{CS+r}, v{ACC+8*i+r}')
        for r in range(8): a(f'v_mul_f32 v{ACC+8*i+r}, v{SS+2*i+1}, v{ACC+8*i+r}')
        for r in range(4): a(f'v_cvt_pk_bf16_f32 v{P+4*i+r}, v{ACC+8*i+2*r}, v{ACC+8*i+2*r+1}')
        a(f'ds_write_b64 v5, v[{P+4*i}:{P+4*i+1}] offset:{16*QROW*i}\nds_write_b64 v5, v[{P+4*i+2}:{P+4*i+3}] offset:{16*QROW*i+32}')
    a('s_branch L_q_out\n;PAD -')

def q_out(a, done):
    a(f'''
L_q_out:
    v_lshrrev_b32 v9, 3, v1
    v_and_b32 v10, 7, v1
    s_lshl_b32 s46, s16, 3
    v_add_u32 v9, s46, v9
    v_mul_u32_u24 v11, {QROW}, v9
    v_lshl_add_u32 v11, v10, 4, v11
    v_mul_u32_u24 v12, {ROWB}, v9
    v_lshl_add_u32 v12, v10, 4, v12
    s_mul_i32 s46, s20, {ROWB}
    s_lshl_b32 s47, s18, 7
    s_add_u32 s46, s46, s47
    v_add_u32 v12, s46, v12
    v_add_u32 v13, {64*ROWB}, v12
    ''')
    srd(a, 32, 6, WS_Q, SZ_Q)
    a(f'''
    s_waitcnt lgkmcnt(0)
    ''')
    STAMP(a, 'qw')
    a(f'''
    s_barrier
    ds_read_b128 v[4:7], v11
    ds_read_b128 v[16:19], v11 offset:{64*QROW}
    v_cmp_gt_u32 vcc, 15, v9
    s_waitcnt lgkmcnt(1)
    buffer_store_dwordx4 v[4:7], v12, s[32:35], 0 offen{ST}
    s_and_b64 exec, exec, vcc
    s_cbranch_execz L_q_out2
    s_waitcnt lgkmcnt(0)
    buffer_store_dwordx4 v[16:19], v13, s[32:35], 0 offen{ST}
L_q_out2:
    s_mov_b64 exec, -1
    v_mov_b32 v29, 0
    ''')
    done(a)
    a(';PAD -')

def q_small(a, stamp, done):
    ACC, GJ, G4, SJ, S4, ONE, IDX, TRA, XRA, XR4, WG = 16, 20, 24, 28, 32, 36, 40, 41, 42, 44, 56
    WB, XJ, X4 = 0, 12, 44
    vm = Vm(a)
    a(f'''
    s_sub_u32 s59, s16, 4
    s_lshl_b32 s24, s59, 1
    v_lshrrev_b32 v11, 1, v9
    v_add_u32 v11, s24, v11
    v_xor_b32 v11, v11, v10
    v_lshl_add_u32 v8, v11, 4, v5
    s_lshl_b32 s24, s59, 2
    s_add_u32 s24, s24, s20
    s_add_u32 s24, s24, 65
    s_mul_i32 s24, s24, {ROWB}
    {'s_add_u32 s24, s24, s57' if ROT else ''}
    s_lshl_b32 s25, s59, 9
    s_add_u32 s25, s25, {XOFF['q'] + 4*18432}
    s_cmp_eq_u32 s59, 3
    s_cselect_b32 s64, 0x00ffffff, -1
    s_mov_b32 s65, 0
    ''')
    q_first(a, vm, True)
    stamp(a, 'issued')
    a('v_and_b32 v2, 15, v1\nv_lshrrev_b32 v3, 4, v1')
    stat_consts(a, ONE, IDX, (SJ, S4))
    a(f'''
    s_mov_b32 s47, {XOFF["q"] + 4*18432}
    s_cmp_eq_u32 s59, 3
    s_cbranch_scc0 L_qs_noones
    v_lshlrev_b32 v12, 4, v10
    v_add_u32 v12, s47, v12
    v_lshl_add_u32 v13, v9, 11, v12
    ds_write_b128 v13, v[{ONE}:{ONE+3}] offset:1920
    ds_write_b128 v12, v[{ONE}:{ONE+3}] offset:{8*2048+1920}
    ''')
    a(f'''
    s_waitcnt lgkmcnt(0)
L_qs_noones:
    ''')
    x_read_addr(a, XR4, 47)
    a(f's_mul_i32 s47, s59, 18432\ns_add_u32 s47, s47, {XOFF["q"]}\ns_lshl_b32 s45, s59, 5')
    x_read_addr(a, XRA, 47)
    q_tra(a, TRA)
    a(f'''
    v_add_u32 v4, 64, v2
    v_mul_u32_u24 v5, {QROW}, v4
    v_lshl_add_u32 v5, v3, 3, v5
    v_add_u32 v5, s45, v5
    s_lshl_b32 s45, s59, 6
    s_add_u32 s45, s45, {EX_OFF}
    v_lshl_add_u32 v14, v3, 4, s45
    s_lshl_b32 s46, s59, 7
    s_add_u32 s46, s46, {EX_OFF + 256}
    v_lshl_add_u32 v15, v2, 3, s46
    ''')
    srd(a, 32, 6, 0, WS_USED)
    srd(a, 8, 12, 0, D * ROWB)
    def chores():
        a(f'''
        s_lshl_b32 s66, s26, 2
        s_add_u32 s66, s66, s59
        s_and_b32 s51, s66, 1
        s_lshr_b32 s54, s66, 1
        s_mul_i32 s55, s54, 57
        s_lshr_b32 s55, s55, 11
        s_mul_i32 s45, s55, 36
        s_sub_u32 s54, s54, s45
        s_cmp_ge_u32 s55, 8
        s_cselect_b32 s45, 144, 18
        s_cselect_b32 s46, 36, 4
        s_cselect_b32 s52, 288, 36
        s_cselect_b32 s53, 18, 2
        s_mul_i32 s52, s52, {ROWB}
        s_mul_i32 s53, s53, {ROWB}
        s_mul_i32 s47, s55, 72
        s_cselect_b32 s47, 16, s47
        s_mul_i32 s45, s45, s51
        s_add_u32 s47, s47, s45
        v_mul_u32_u24 v9, s46, v3
        v_add_u32 v9, s47, v9
        v_mul_u32_u24 v9, {ROWB}, v9
        v_lshl_add_u32 v9, v2, 1, v9
        s_lshl_b32 s54, s54, 5
        s_cmp_ge_u32 s66, 648
        s_cselect_b32 s54, 0x7f000000, s54
        v_add_u32 v9, s54, v9
        s_add_u32 s54, s52, s53
        ''')
        for j in range(2):
            for q, so in enumerate(('0', 's52', 's53', 's54')):
                vm.issue('g', f'buffer_load_ushort v{WG+4*j+q}, v9, s[8:11], {so} offen offset:{ROWB*j}')
    chores()
    def issue(u):
        q_issue(vm, u, True)
        if u == CLR_AT:
            clears(vm, 59, 64, 2)
            if TOUCH:
                a(f's_mul_i32 s46, s20, {ROWB}\nv_mov_b32 v72, 0\ns_mov_b32 s8, s4\ns_mov_b32 s9, s5\ns_mov_b32 s10, 4\ns_mov_b32 s11, 0x20000')
                vm.issue('c', 'buffer_load_dword v73, v72, s[32:35], s46 offen sc1')
                vm.issue('c', 'buffer_load_dword v74, v72, s[8:11], 0 offen sc1')
    lead = lambda t: [u for u in {0: [0, 1, 2], 1: [3], 2: [4, 5, 6]}.get(t, [t + 4]) if u < 18]
    q0 = list(vm.q)
    def loop(both):
        vm.q = list(q0)
        def reads(t):
            w, o = WB + 4 * (t % 3), (t % 16) * 4096
            r4 = lambda u: ((u, '4'), f'ds_read_b128 a[{X4+4*(u%10)}:{X4+4*(u%10)+3}], v{XR4 + u % 2} offset:{(u // 2) * 2048}')
            r = []
            for u in lead(t):
                r.append(((u, 'j'), f'ds_read_b128 a[{XJ+4*(u%8)}:{XJ+4*(u%8)+3}], v{XRA + u % 2} offset:{(u // 2) * 2048}'))
                if both: r.append(r4(u))
            if not both: r.append(r4(t))
            return r + [((t, 'w'), f'ds_read_b64_tr_b16 a[{w}:{w+1}], v{TRA} offset:{o}'),
                        ((t, 'w'), f'ds_read_b64_tr_b16 a[{w+2}:{w+3}], v{TRA} offset:{o+512}')]
        def mfmas(t):
            m = []
            for u in lead(t):
                xj, x4 = XJ + 4 * (u % 8), X4 + 4 * (u % 10)
                if u % 2:
                    m.append(([(u, 'j')], smf16(SJ, vr(ONE, 4), ar(xj - 4, 8), IDX)))
                    if both: m.append(([(u, '4')], smf16(S4, vr(ONE, 4), ar(x4 - 4, 8), IDX)))
                m.append(([(u, 'j')], mf16(GJ, ar(xj, 4), ar(xj, 4), u == 0)))
                if both: m.append(([(u, '4')], mf16(G4, ar(x4, 4), ar(x4, 4), u == 0)))
            return m + [([(t, '4'), (t, 'w')], mf16(ACC, ar(WB + 4 * (t % 3), 4), ar(X4 + 4 * (t % 10), 4), t == 0))]
        if both:
            zip2 = lambda x, y: [z for p in zip(lines(x), lines(y)) for z in p if not z.startswith('s_nop')]
            f1, f2 = zip2(stats_raw(GJ, SJ, 47, 46, 48), stats_raw(G4, S4, 51, 50, 52)), zip2(stats_fin(47, 46, 48, CQ), stats_fin(51, 50, 52, CQ))
        else: f1, f2 = lines(stats_raw(GJ, SJ, 47, 46, 48)), lines(stats_fin(47, 46, 48, CQ))
        h = len(f2) // 2
        fin = {14: ['s_nop 6'] + f1, 15: f2[:h], 16: f2[h:]}
        fin[17] = ['s_mov_b64 exec, 0xffff\nds_write_b64 v15, v[46:47]\n' + ('ds_write_b64 v15, v[50:51] offset:128\n' if both else '') + 's_mov_b64 exec, -1'] + [
            f'v_lshl_or_b32 v{WG+q}, v{WG+4+q}, 16, v{WG+q}' for q in range(4)] + [
            f's_lshl_b32 s45, s66, 10\ns_add_u32 s45, s45, {WS_WO}\ns_cmp_ge_u32 s66, 648\ns_cselect_b32 s45, 0x7f000000, s45\nv_lshl_add_u32 v9, v1, 4, s45']
        kloop(a, vm, reads, mfmas, issue, lambda t: fin.get(t, []))
    a('s_cmp_eq_u32 s59, 3\ns_cbranch_scc1 L_qs_both')
    loop(False)
    a('s_branch L_qs_join\nL_qs_both:')
    loop(True)
    a('L_qs_join:\n;PAD p')
    stamp(a, 'loop')
    a(f'''
    s_mov_b32 s48, 0x80008000
    s_mov_b32 s49, 0x80008000
    s_mov_b64 exec, s[48:49]
    ds_write_b128 v14, v[{ACC}:{ACC+3}]
    s_mov_b64 exec, -1
    buffer_store_dwordx4 v[{WG}:{WG+3}], v9, s[32:35], 0 offen{ST}
    s_mov_b32 s46, {EX_OFF + 256 + 512}
    v_lshl_add_u32 v15, v2, 3, s46
    s_waitcnt lgkmcnt(0)
    s_barrier
    ds_read_b64 v[50:51], v15
    ''')
    for r in range(4): a(f'v_mov_b32_dpp v{52+r}, v{ACC+r} row_newbcast:15 row_mask:0xf bank_mask:0xf')
    a('s_waitcnt lgkmcnt(0)')
    for r in range(4): a(f'v_fma_f32 v{ACC+r}, -v50, v{52+r}, v{ACC+r}')
    for r in range(4): a(f'v_mul_f32 v{ACC+r}, v51, v{ACC+r}')
    a(f'''
    v_cvt_pk_bf16_f32 v52, v{ACC}, v{ACC+1}
    v_cvt_pk_bf16_f32 v53, v{ACC+2}, v{ACC+3}
    ds_write_b64 v5, v[52:53]
    ''')
    q_out(a, done)

def kv_tra(a, TRA):
    a(f'''
    v_bfe_u32 v12, v1, 2, 2
    v_and_b32 v13, 3, v1
    v_lshrrev_b32 v9, 1, v3
    v_lshlrev_b32 v9, 4, v9
    v_and_b32 v10, 1, v3
    v_lshl_add_u32 v9, v10, 2, v9
    v_add_u32 v9, v9, v12
    v_lshlrev_b32 v9, 5, v9
    v_lshl_add_u32 v{TRA}, v13, 3, v9
    v_lshl_add_u32 v9, v3, 3, v12
    v_lshlrev_b32 v9, 4, v9
    v_and_b32 v10, 1, v13
    v_lshl_add_u32 v9, v10, 3, v9
    v_lshrrev_b32 v10, 1, v13
    v_mul_u32_u24 v10, {KV_VE-KV_KE}, v10
    v_add_u32 v{TRA+1}, v9, v10
    ''')

def kv_out(a, done):
    a(f'''
    s_lshl_b32 s46, s16, 10
    v_lshl_add_u32 v8, v1, 4, s46
    s_mul_i32 s47, s17, {3*KVREC}
    v_add_u32 v9, s47, v8
    s_waitcnt lgkmcnt(0)
    s_barrier
    ds_read_b128 v[4:7], v8
    v_mov_b32 v10, {EX_OFF + 256}
    ds_read_b128 v[12:15], v10
    ds_read_b64 v[16:17], v10 offset:16
    s_mov_b32 s34, {64*KVREC}
    v_cmp_gt_u32 vcc, {3*KVREC}, v8
    s_and_b64 exec, exec, vcc
    s_waitcnt lgkmcnt(2)
    buffer_store_dwordx4 v[4:7], v9, s[32:35], 0 offen{ST}
    s_mov_b64 exec, -1
    s_waitcnt lgkmcnt(0)
    v_max3_f32 v29, v12, v13, v14
    v_max3_f32 v29, v29, v15, v16
    v_max_f32 v29, v29, v17
    ''')
    done(a)

def kv_main(a, stamp, done):
    ACC, GR, SX, ONE, IDX, TRA, XRA = 16, 32, 36, 40, 44, 46, 48
    WB, XB = 0, 36
    vm = Vm(a)
    a(f'''
    v_lshrrev_b32 v9, 3, v1
    v_and_b32 v10, 7, v1
    v_lshrrev_b32 v11, 1, v9
    v_xor_b32 v11, v11, v10
    v_mul_u32_u24 v6, {ROWB}, v9
    v_lshl_add_u32 v6, v11, 4, v6
    v_xor_b32 v7, 64, v6
    v_add_u32 v7, {8*ROWB}, v7
    s_mul_i32 s20, s17, {TKV}
    s_lshl_b32 s21, s16, 4
    s_add_u32 s20, s20, s21
    s_add_u32 s23, s20, 1
    s_mul_i32 s23, s23, {ROWB}
    {"s_lshl_b32 s22, s18, 7" if ROT else ""}
    {"s_add_u32 s23, s23, s22" if ROT else ""}
    s_mul_i32 s21, s16, 18432
    s_add_u32 s21, s21, {XOFF['kv']}
    s_setprio 3
    s_waitcnt lgkmcnt(0)
    s_sub_u32 s28, s28, {ROWB}
    s_subb_u32 s29, s29, 0
    ''')
    def issue(u):
        if u > 8: return
        if ROT and u: a(f's_cmp_eq_u32 s19, {u}\ns_cselect_b32 s22, {ROWB}, 0\ns_sub_u32 s23, s23, s22')
        a(f's_add_u32 m0, s21, {u*2048 - u*128}\ns_nop 0')
        vm.issue(u, f'buffer_load_dwordx4 v6, s[28:31], s23 offen offset:{u*128} lds')
        a(f's_add_u32 m0, s21, {u*2048 + 1024 - u*128}\ns_nop 0')
        vm.issue(u, f'buffer_load_dwordx4 v7, s[28:31], s23 offen offset:{u*128} lds')
    issue(0); a('s_setprio 2'); issue(1); a('s_setprio 0')
    stamp(a, 'issued')
    a('v_and_b32 v2, 15, v1\nv_lshrrev_b32 v3, 4, v1')
    stat_consts(a, ONE, IDX, (SX,))
    x_read_addr(a, XRA, 21)
    kv_tra(a, TRA)
    srd(a, 32, 6, WS_KV, WS_WO - WS_KV)
    a(f'''
    s_mov_b32 s47, {EX_OFF}
    v_lshl_add_u32 v51, v3, 4, s47
    s_lshr_b32 s46, s16, 1
    s_mul_i32 s46, s46, {KVREC}
    s_and_b32 s47, s16, 1
    s_lshl_b32 s47, s47, 4
    v_add_u32 v4, s47, v2
    v_lshl_add_u32 v54, v4, 4, s46
    v_lshrrev_b32 v55, 1, v3
    v_lshl_add_u32 v54, v55, 9, v54
    v_and_b32 v55, 1, v3
    v_lshl_add_u32 v54, v55, 3, v54
    v_lshrrev_b32 v55, 3, v4
    v_mul_u32_u24 v55, 304, v55
    v_add_u32 v55, s46, v55
    v_and_b32 v56, 7, v4
    v_lshl_add_u32 v55, v56, 1, v55
    v_lshl_add_u32 v57, v3, 6, v55
    v_lshl_add_u32 v58, v4, 2, s46
    v_mov_b32 v59, 0x3f80
    ''')
    def reads(t):
        w, o = WB + 12 * (t % 3), (t % 16) * 1024
        return [((t, 'x'), f'ds_read_b128 a[{XB+4*(t%4)}:{XB+4*(t%4)+3}], v{XRA + t % 2} offset:{(t // 2) * 2048}'),
                ((t, 0), f'ds_read_b64_tr_b16 a[{w}:{w+1}], v{TRA} offset:{o}'),
                ((t, 0), f'ds_read_b64_tr_b16 a[{w+2}:{w+3}], v{TRA} offset:{o+256}'),
                ((t, 1), f'ds_read_b64_tr_b16 a[{w+4}:{w+5}], v{TRA} offset:{KV_VM+o}'),
                ((t, 1), f'ds_read_b64_tr_b16 a[{w+6}:{w+7}], v{TRA} offset:{KV_VM+o+256}'),
                ((t, 2), f'ds_read_b64_tr_b16 a[{w+8}:{w+9}], v{TRA+1} offset:{KV_KE+t*512}'),
                ((t, 2), f'ds_read_b64_tr_b16 a[{w+10}:{w+11}], v{TRA+1} offset:{KV_KE+t*512+64}')]
    def mfmas(t):
        w, x = WB + 12 * (t % 3), XB + 4 * (t % 4)
        m = [([(t, 'x')], smf16(SX, vr(ONE, 4), ar(x - 4, 8), IDX))] if t % 2 else []
        m += [([(t, 'x')], mf16(GR, ar(x, 4), ar(x, 4), t == 0))]
        return m + [([(t, 'x'), (t, j)], mf16(ACC + 4 * j, ar(w + 4 * j, 4), ar(x, 4), t == 0)) for j in range(3)]
    kloop(a, vm, reads, mfmas, issue, walk=';WALK k 4 s16 0')
    a(';PAD k')
    stamp(a, 'loop')
    a('s_nop 4')
    a(stats_raw(GR, SX, 48, 50, 49))
    a(stats_fin(48, 50, 49, 1.0))
    a('s_barrier')
    CS, P = 60, 72
    for j in range(3): a(f'ds_read_b128 v[{CS+4*j}:{CS+4*j+3}], v51 offset:{64*j}')
    a('s_mov_b32 s48, 0xffff0000\ns_mov_b32 s49, 0\ns_mov_b32 s50, 0\ns_mov_b32 s51, 0xffff0000')
    for j in range(3):
        a(f's_waitcnt lgkmcnt({2-j})')
        for i in range(4 * j, 4 * j + 4): a(f'v_fma_f32 v{ACC+i}, -v50, v{CS+i}, v{ACC+i}')
    for i in range(12): a(f'v_mul_f32 v{ACC+i}, v48, v{ACC+i}')
    for i in range(6): a(f'v_cvt_pk_bf16_f32 v{P+i}, v{ACC+2*i}, v{ACC+2*i+1}')
    a(f'''
    ds_write_b64 v54, v[{P}:{P+1}]
    ds_write_b16 v57, v{P+2} offset:{KV_V}
    ds_write_b16_d16_hi v57, v{P+2} offset:{KV_V+16}
    ds_write_b16 v57, v{P+3} offset:{KV_V+32}
    ds_write_b16_d16_hi v57, v{P+3} offset:{KV_V+48}
    s_mov_b64 exec, s[48:49]
    ds_write_b32 v58, v{P+5} offset:{KV_X}
    ds_write_b32 v58, v59 offset:{KV_X+128}
    s_mov_b64 exec, s[50:51]
    ds_write_b16 v55, v{P+5} offset:{KV_V+256}
    ds_write_b16_d16_hi v55, v{P+5} offset:{KV_V+272}
    ds_write_b16 v55, v59 offset:{KV_V+288}
    s_mov_b64 exec, -1
    v_cndmask_b32 v60, 0, v{P+5}, s[48:49]
    v_mov_b32 v61, 0
    v_dot2c_f32_bf16 v61, v{P}, v{P}
    v_dot2c_f32_bf16 v61, v{P+1}, v{P+1}
    v_dot2c_f32_bf16 v61, v60, v60
    s_nop 2
    v_mov_b32 v62, v61
    s_nop 1
    v_permlane32_swap_b32 v61, v62
    v_add_f32 v61, v61, v62
    v_mov_b32 v62, v61
    s_nop 1
    v_permlane16_swap_b32 v61, v62
    v_add_f32 v61, v61, v62
    s_nop 1
    v_max_f32_dpp v61, v61, v61 row_ror:8 row_mask:0xf bank_mask:0xf
    s_nop 1
    v_max_f32_dpp v61, v61, v61 row_ror:4 row_mask:0xf bank_mask:0xf
    s_nop 1
    v_max_f32_dpp v61, v61, v61 row_ror:2 row_mask:0xf bank_mask:0xf
    s_nop 1
    v_max_f32_dpp v61, v61, v61 row_ror:1 row_mask:0xf bank_mask:0xf
    s_lshl_b32 s46, s16, 2
    s_add_u32 s46, s46, {EX_OFF + 256}
    v_mov_b32 v62, s46
    ds_write_b32 v62, v61
    s_branch L_kv_out
;PAD -
    ''')

def kv_helper(a, stamp, done):
    ACC, ONE, TRA, WB = 16, 24, 28, 0
    vm = Vm(a)
    a(f'''
    s_sub_u32 s23, s16, 6
    v_lshrrev_b32 v2, 1, v1
    v_and_b32 v3, 0x13, v2
    v_bfe_u32 v4, v2, 2, 1
    v_bfe_u32 v5, v2, 3, 1
    v_lshl_add_u32 v3, v4, 3, v3
    v_lshl_add_u32 v3, v5, 2, v3
    v_mul_u32_u24 v3, 36, v3
    v_and_b32 v4, 1, v1
    v_lshl_add_u32 v6, v4, 4, v3
    v_mul_u32_u24 v7, 36, v1
    v_add_u32 v7, 20, v7
    {f's_mul_i32 s22, s18, {2*ROWB}' if ROT else 's_mov_b32 s22, 0'}
    s_mul_i32 s20, s23, {KV_VM}
    s_mul_i32 s21, s23, {KV_VE-KV_KE}
    s_add_u32 s21, s21, {KV_KE}
    s_setprio 3
    s_waitcnt lgkmcnt(0)
    s_cmp_eq_u32 s23, 0
    s_cselect_b32 s28, s8, s10
    s_cselect_b32 s29, s9, s11
    s_mov_b32 s30, {D*36}
    s_mov_b32 s31, 0x20000
    ''')
    def issue(u):
        if u == CLR_AT:
            clears(vm, 23, 32, 0)
            if TOUCH:
                a(f'v_mov_b32 v40, 0\ns_mov_b32 s8, s4\ns_mov_b32 s9, s5\ns_mov_b32 s10, 4\ns_mov_b32 s11, 0x20000\ns_mov_b32 s46, {WS_KV}')
                vm.issue('c', 'buffer_load_dword v41, v40, s[32:35], s46 offen sc1')
                vm.issue('c', 'buffer_load_dword v42, v40, s[8:11], 0 offen sc1')
        if u > 8: return
        a(f's_add_u32 m0, s21, {u*1024}\ns_nop 0')
        vm.issue(u, 'buffer_load_dwordx4 v7, s[28:31], s22 offen lds')
        a(f's_add_u32 m0, s20, {(u%8)*2048}\ns_nop 0')
        vm.issue(u, 'buffer_load_dwordx4 v6, s[28:31], s22 offen lds')
        a(f's_add_u32 m0, s20, {(u%8)*2048+1024}\ns_add_u32 s22, s22, {ROWB}')
        vm.issue(u, f'buffer_load_dwordx4 v6, s[28:31], s22 offen lds')
        if u < 8:
            a(f's_add_u32 s22, s22, {ROWB}')
            if ROT: a(f's_cmp_eq_u32 s19, {u+1}\ns_cselect_b32 s22, 0, s22')
    issue(0); a('s_setprio 2'); issue(1); a('s_setprio 0')
    a(f'''
    s_cmp_eq_u32 s26, 255
    s_cselect_b32 s46, s23, 0
    s_cmp_eq_u32 s46, 1
    s_cbranch_scc0 L_notag
    s_add_u32 s32, s6, {WS_NONCE}
    s_addc_u32 s33, s7, 0
    s_load_dword s46, s[32:33], 0
    s_mov_b32 s34, 4
    s_mov_b32 s35, 0x20000
    s_mov_b32 s8, s4
    s_mov_b32 s9, s5
    s_mov_b32 s10, 4
    s_mov_b32 s11, 0x20000
    v_mov_b32 v13, 0
    s_waitcnt lgkmcnt(0)
    s_add_u32 s46, s46, 1
    s_add_u32 s47, s46, 1
    s_cmp_lt_u32 s47, 2
    s_cselect_b32 s46, 1, s46
    v_mov_b32 v12, s46
    s_mov_b64 exec, 1
    buffer_store_dword v12, v13, s[8:11], 0 offen sc1
    buffer_store_dword v12, v13, s[32:35], 0 offen sc1
    s_mov_b64 exec, -1
L_notag:
    ''')
    srd(a, 32, 6, 0, WS_USED)
    a('v_lshrrev_b32 v3, 4, v1')
    kv_tra(a, TRA)
    a(f'v_add_u32 v{TRA}, s20, v{TRA}')
    for i in range(4): a(f'v_mov_b32 v{ONE+i}, {hx(ONES)}')
    def reads(t):
        w, o = WB + 8 * (t % 3), (t % 16) * 1024
        return [((t, 0), f'ds_read_b64_tr_b16 a[{w}:{w+1}], v{TRA} offset:{o}'),
                ((t, 0), f'ds_read_b64_tr_b16 a[{w+2}:{w+3}], v{TRA} offset:{o+256}'),
                ((t, 1), f'ds_read_b64_tr_b16 a[{w+4}:{w+5}], v{TRA+1} offset:{KV_KE+t*512}'),
                ((t, 1), f'ds_read_b64_tr_b16 a[{w+6}:{w+7}], v{TRA+1} offset:{KV_KE+t*512+64}')]
    def mfmas(t):
        w = WB + 8 * (t % 3)
        return [([(t, j)], mf16(ACC + 4 * j, ar(w + 4 * j, 4), vr(ONE, 4), t == 0)) for j in range(2)]
    kloop(a, vm, reads, mfmas, issue)
    a(f'''
    s_lshl_b32 s46, s23, 6
    s_add_u32 s46, s46, {EX_OFF}
    v_lshl_add_u32 v8, v3, 4, s46
    s_mov_b32 s46, {EX_OFF + 128}
    v_lshl_add_u32 v9, v3, 4, s46
    s_mov_b32 s48, 0x00010001
    s_mov_b32 s49, 0x00010001
    s_mov_b64 exec, s[48:49]
    s_nop 1
    ds_write_b128 v8, v[{ACC}:{ACC+3}]
    ds_write_b128 v9, v[{ACC+4}:{ACC+7}]
    s_mov_b64 exec, -1
    s_waitcnt lgkmcnt(0)
    s_barrier
    ''')
    srd(a, 32, 6, WS_KV, WS_WO - WS_KV)
    a('L_kv_out:\n;PAD k')
    kv_out(a, done)
    a(';PAD -')

def decode(a, rotate):
    a(f'''
    v_lshrrev_b32 v2, 6, v0
    v_and_b32 v1, 63, v0
    s_and_b32 s20, s2, 7
    v_readfirstlane_b32 s16, v2
    s_lshr_b32 s21, s2, 3
    s_mul_i32 s22, s20, 29
    s_mul_i32 s23, s20, 3
    s_cmp_eq_u32 s20, 7
    s_cselect_b32 s24, 1, 0
    s_add_u32 s22, s22, s24
    s_sub_u32 s23, s23, s24
    s_cmp_ge_u32 s20, 6
    s_cselect_b32 s24, 30, 29
    s_cmp_ge_u32 s21, s24
    s_cbranch_scc1 L_k1_kv
    s_add_u32 s26, s22, s21
    s_mul_i32 s17, s26, 57
    s_lshr_b32 s17, s17, 9
    s_mul_i32 s18, s17, 9
    s_sub_u32 s18, s26, s18
    ''')

def phase1(a, rotate, stamp, done):
    global STAMP
    STAMP = stamp
    decode(a, rotate)
    q_common(a)
    a('s_cmp_ge_u32 s16, 4\ns_cbranch_scc1 L_k1_qs')
    q_big(a, stamp, done)
    a('L_k1_qs:')
    q_small(a, stamp, done)
    a('L_k1_kv:\ns_sub_u32 s17, s21, s24\ns_add_u32 s17, s17, s23\ns_add_u32 s26, s17, 234')
    a('s_sub_u32 s19, s21, s24\ns_mul_i32 s18, s19, 3\ns_sub_u32 s19, 9, s18')
    a('s_cmp_ge_u32 s16, 6\ns_cbranch_scc1 L_k1_hkv')
    kv_main(a, stamp, done)
    a('L_k1_hkv:')
    kv_helper(a, stamp, done)

def entry(a, stamp, exit_label):
    a(f'''
    s_cmp_ge_u32 s2, 256
    s_cbranch_scc1 {exit_label}
    s_load_dwordx2 s[28:29], s[0:1], {KA_X}
    s_load_dwordx2 s[60:61], s[0:1], {KA_WQ}
    s_load_dwordx4 s[8:11], s[0:1], {KA_WK}
    s_load_dwordx2 s[12:13], s[0:1], {KA_WO}
    s_load_dwordx4 s[4:7], s[0:1], {KA_DBG}
    s_mov_b32 s30, {(S+1)*ROWB}
    s_mov_b32 s31, 0x20000
    s_mov_b32 s62, {D*ROWB}
    s_mov_b32 s63, 0x20000
    ''')
    stamp(a, 'start')
    if CODEPF:
        a(f'''
        s_getpc_b64 s[36:37]
        s_lshr_b32 s38, s2, 3
        s_mul_i32 s38, s38, 1280
        v_lshl_add_u32 v2, v0, 7, s38
        v_cmp_gt_u32 vcc, 10, v0
        s_and_saveexec_b64 s[38:39], vcc
        s_cbranch_execz L_nopf
        global_load_dword v83, v2, s[36:37]
L_nopf:
        s_mov_b64 exec, -1
        ''')

def diag(t):
    out = []
    for l in t.split('\n'):
        s = l.strip()
        if 'nomfma' in DIAG and 'mfma' in s: continue
        if 'nostat' in DIAG and ('smfmac_f32_16' in s and s.endswith(('v40', 'v44')) or ('mfma_f32_16x16x32' in s and s.split(', ')[1] == s.split(', ')[2])): continue
        if 'nostat4' in DIAG and (s.startswith('v_smfmac_f32_16x16x64_bf16 v[32:35], v[36') or s.startswith('v_mfma_f32_16x16x32_bf16 v[24:27], a[') and s.split(', ')[1] == s.split(', ')[2]): continue
        if 'nolgkm' in DIAG and s.startswith('s_waitcnt lgkmcnt') and not s.endswith('(0)'): continue
        if 'nord' in DIAG and s.startswith('ds_read') and ' a[' in s: continue
        if 'nodma' in DIAG and s.endswith('lds'): continue
        out.append(l)
    return '\n'.join(out)

def k1(name, rotate=True, stamp=nomark):
    a = Asm()
    a(f'.globl {name}\n.p2align 8\n.type {name},@function\n{name}:')
    entry(a, stamp, 'L_k1_exit')
    def done(a):
        stamp(a, 'end'); a('s_endpgm')
    phase1(a, rotate, stamp, done)
    a('L_k1_exit:\ns_endpgm')
    return diag(a.text())
```

```python
from common import *

LG, LU, LD = 0, 36864, 73728
LP = 110592
LO = LP + 20480
LQ = LO + 9 * 1152
LDUM = LQ + 8 * 2048
LX = LDUM + 1024
X_FLAG, X_KEY, X_WIN, X_G, X_ACT, X_MAX, X_PMAX = LX, LX + 32, LX + 64, LX + 128, LX + 640, LX + 1152, LP
K2_LDS = LX + 2304
HROW = 2560
LQR = LP
ONES = 0x3f803f80
M_LIMIT = 48.0
SPIN = 40000
POLL_SLEEP, FIN_SLEEP, FIN_SLEEP2 = 3, 28, 2

SA, SB, OACC, T = 0, 16, 32, 52
IDXA, IDXB, WAD, RAD, OAD, OST, AAD, L16, QAD, GUV, MV, LANE, WAD3, QXAD = 68, 69, 70, 71, 72, 73, 74, 75, 76, 77, 78, 79, 80, 81
NV = 84
KM, KX, VV, OO, WO, QM, QX, AF = 0, 32, 40, 104, 120, 160, 164, 168
NA = 172
S_WS, S_G, S_U, S_D, S_X, S_OUT, S_WR = 20, 24, 28, 32, 36, 40, 44
WAVE, S_FS, S_WOC, S_MG, S_MU, S_MD, S_MST, S_GOFF, S_DOFF, S_CNT, S_NT0 = 18, 19, 48, 49, 50, 51, 52, 53, 54, 55, 56
S_DST = 57
DIAG = set()
LDP = ' sc1'
FUSED = False
WOP = ' sc1'
QKORD = 0
PRIO = (3, 2, 1, 3, 3, 2, 1, 1)
MIDP = {3: (10, 0), 0: (10, 0)}
SPEC = 0
DEFER = 0
WALK = 0
TOUCH = 0
OUTP = ''
LATE = 0
ALIGN = 3
KPOLL_SLEEP, KPOLL_FIRST, FPOLL_SLEEP = 3, 8, 2
ROTF = 0x30003
PRE = (2, 1, 1)

def qk8(Y, slot, c): return f'v_mfma_f32_32x32x8bf16_1k v[{Y}:{Y+15}], a[{KX+(slot&~1)}:{KX+(slot&~1)+1}], a[{QX+2*(slot&1)}:{QX+2*(slot&1)+1}], {c}'
def qk16(Y, slot, c): return f'v_mfma_f32_32x32x16_bf16 v[{Y}:{Y+15}], a[{KM+4*slot}:{KM+4*slot+3}], a[{QM}:{QM+3}], {c}'
def qkx(Y, slot): return (qk16 if QKORD else qk8)(Y, slot, '0')
def qkm(Y, slot): return (qk8 if QKORD else qk16)(Y, slot, f'v[{Y}:{Y+15}]')
def pv(X, slot, s): return f'v_smfmac_f32_32x32x32_bf16 a[{OO}:{OO+15}], a[{VV+8*slot+4*s}:{VV+8*slot+4*s+3}], v[{X+8*s}:{X+8*s+7}], v{IDXA}'
def zero_o(): return f'v_mfma_f32_32x32x8bf16_1k a[{OO}:{OO+15}], a[{QX}:{QX+1}], a[{QX+2}:{QX+3}], 0'
def oproj(f, af, w): return f'v_smfmac_f32_16x16x64_bf16 v[{OACC+4*f}:{OACC+4*f+3}], a[{af}:{af+3}], a[{w}:{w+7}], v{IDXB}'
W_PART = [f'ds_write_b128 v{WAD}, a[{OO}:{OO+3}]', f'ds_write_b128 v{WAD}, a[{OO+4}:{OO+7}] offset:32', f'ds_write_b64 v{WAD3}, a[{OO+8}:{OO+9}]']
R_PART = [f'ds_read2st64_b64 v[{T+4*i}:{T+4*i+3}], v{RAD} offset0:{10*i} offset1:{10*i+5}' for i in range(4)]
def pka(d, x, y): return f'v_add_f32 v{T+d}, v{T+x}, v{T+y}\nv_add_f32 v{T+d+1}, v{T+x+1}, v{T+y+1}'
ADDS = [pka(0, 0, 2), pka(4, 4, 6), pka(8, 8, 10), pka(12, 12, 14), pka(0, 0, 4), pka(8, 8, 12), pka(0, 0, 8)]
NORM = [f'v_rcp_f32_dpp v{T+2}, v{T} row_newbcast:9 row_mask:0xf bank_mask:0xf',
        f'v_mul_f32 v{T}, v{T}, v{T+2}\nv_mul_f32 v{T+1}, v{T+1}, v{T+2}',
        f'v_cvt_pk_bf16_f32 v{T+4}, v{T}, v{T+1}',
        f'ds_write_b32 v{OAD}, v{T+4}',
        f'v_add_u32 v{OAD}, v{OST}, v{OAD}']

def tile(a, t, ex, slow, prev=True, nxt=True, kind='std', x16=None, x16b=None):
    X, Y = (SA, SB) if t % 2 == 0 else (SB, SA)
    m = {}
    def put(p, s): m.setdefault(p, []).append(s)
    p_pvb, p_x, p_qx, p_qm, p_pva = 2, 5, 6, 10, 14
    if kind == 'first': p_qx, p_qm, p_pva = 5, 9, 16
    if kind == 'second':
        p_pvb = 3
        if x16: p_x, p_qx, p_qm = 6, 7, 11
    if prev: put(p_pvb, pv(Y, (t - 1) % 8, 1))
    if x16:
        for s in x16: put(p_x, s)
    if x16b:
        for s in x16b: put(13, s)
    if nxt:
        put(p_qx, ('qx', qkx(Y, (t + 1) % 8))); put(p_qm, qkm(Y, (t + 1) % 8))
    if kind == 'first':
        for s in W_PART: put(p_qm, s)
        put(12, zero_o())
    put(p_pva, ('pa', pv(X, t, 0)))
    for p in range(17):
        for s in m.get(p, []):
            if isinstance(s, tuple):
                for e in ex.get(s[0], []): e() if callable(e) else a(e)
                s = s[1]
            s() if callable(s) else a(s)
        for e in ex.get(p, []): e() if callable(e) else a(e)
        if p < 16:
            if slow: a(f'v_sub_f32 v{X+p}, v{X+p}, v{MV}')
            a(f'v_exp_f32 v{X+p}, v{X+p}')

def wo_load(vm, tag, reg, soff_add):
    def th():
        vm.a(f's_add_u32 s58, s{S_WOC}, {soff_add}')
        vm.issue(tag, f'buffer_load_dwordx4 a[{reg}:{reg+3}], v{L16}, s[{S_WS}:{S_WS+3}], s58 offen{WOP}')
        vm.issue(tag, f'buffer_load_dwordx4 a[{reg+4}:{reg+7}], v{L16}, s[{S_WS}:{S_WS+3}], s58 offen offset:1024{WOP}')
    return th

def q_reads(slow):
    r = [f'ds_read_b128 a[{QM}:{QM+3}], v{QAD}', f'ds_read_b128 a[{QX}:{QX+3}], v{QAD} offset:1024', f'v_add_u32 v{QAD}, 2048, v{QAD}']
    return r

STEP = 36 * 2048
def attention(a, n, slow, lab, vm, stamp, pre):
    prio = dict(zip((1, 2, 3, 4, 5, 6, 7, 0), PRIO))
    def mload():
        return [f'ds_read_b32 v{T+15}, v82', 's_waitcnt lgkmcnt(0)', 'v_add_u32 v82, 128, v82'] if slow else []
    a('s_waitcnt lgkmcnt(0)')
    vm.need('km0')
    a(qkx(SA, 0)); a(qkm(SA, 0)); a(zero_o())
    if slow:
        a(f'ds_read_b32 v{MV}, v82\nv_add_u32 v82, 128, v82\ns_waitcnt lgkmcnt(0)')
    a('s_nop 3')
    for t in range(8):
        ex = {0: [f's_setprio {prio[t]}']}
        if t < 7: ex['qx'] = [lambda t=t: vm.need(f'km{t+1}')]
        ex['pa'] = [lambda t=t: vm.need(f'v{t}')]
        if t + pre < 8:
            for q in range(4): ex[1 + 4 * q] = [lambda t=t, q=q: kv_load(vm, t + pre, q)]
        if t == 5:
            for q in range(3): ex[1 + 3 * q] = [lambda q=q: warm(vm, q)]
            def touch():
                a(f's_lshl_b32 s58, s2, 3\ns_mul_i32 s58, s58, {ROWB}')
                vm.issue('t', f'buffer_load_dword a{WO+4}, v{T+14}, s[{S_WR}:{S_WR+3}], 0 offen')
                vm.issue('t', f'buffer_load_dword a{WO+5}, v{T+14}, s[{S_OUT}:{S_OUT+3}], s58 offen')
            if TOUCH: ex[10] = [touch]
            ex[12] = [wo_load(vm, 'f', WO, 0)]
        if t >= 6:
            ex[1] = [wo_load(vm, 'f', WO + 8 * (2 * t - 11), (2 * t - 11) * 2048)]
            if t == 6: ex[8] = [wo_load(vm, 'f', WO + 16, 2 * 2048)]
        if t == 6: ex[11] = q_reads(slow)
        if t == 7:
            ex['qx'] = ['s_waitcnt lgkmcnt(0)']
            if n == 5: ex[15] = [wo_load(vm, 'f', WO + 32, 4 * 2048)]
            ex[11] = mload()
            ex[16] = [f's_add_u32 s{S_WOC}, s{S_WOC}, {STEP}']
        tile(a, t, ex, slow, prev=t > 0)
        if t == 7 and slow: a(f'v_mov_b32 v{MV}, v{T+15}')
    stamp(a, 's0')
    def dma(q):
        srdr, off, vo, so = ((S_G, LG, GUV, S_GOFF), (S_U, LU, GUV, S_GOFF), (S_D, LD, L16, S_DOFF))[q]
        r = [f's_add_u32 m0, s{S_MG}, {off}', 's_nop 0', f'buffer_load_dwordx4 v{vo}, s[{srdr}:{srdr+3}], s{so} offen lds']
        return r + [[], [f's_add_u32 s{S_GOFF}, s{S_GOFF}, {6*16*F*2}'], [f's_add_u32 s{S_MG}, s{S_MG}, 6144', f's_add_u32 s{S_DOFF}, s{S_DOFF}, 6144']][q]
    use = {4: [0], 5: [1], 6: [2], 7: [3, 4][:n - 3]}
    def body(last, xfer=False):
        lv = Vm(a)
        nvm = 2 * n - 2 + (3 if xfer else 0)
        if last:
            lv.q = [f'f{f}' for f in range(n) for _ in range(2)]
            free = {1: [KM, VV], 2: [VV + 8], 3: [KM + 8, VV + 16]}
            todo = [(8, f) for f in range(n)]
            where = {}
        for t in range(8):
            ex = {0: [f's_setprio {prio[t]}']}
            if t in MIDP: ex[MIDP[t][0]] = [f's_setprio {MIDP[t][1]}']
            x16, x16b = None, None
            for q, f in enumerate(use.get(t, [])):
                wait = (lambda f=f: lv.need(f'f{f}')) if last else f's_waitcnt vmcnt({nvm})'
                item = [wait, oproj(f, AF, WO + 8 * f)]
                if t == 4: item = ['s_waitcnt lgkmcnt(0)'] + item
                if q == 0 and t != 4: x16 = item
                else: x16b = item
                ex.setdefault(8 if (q == 0 and t != 4) else 15, []).append(wo_load(lv, f'f{f}', WO + 8 * f, f * 2048))
            if t == 0:
                ex[16] = ['s_waitcnt lgkmcnt(0)', 's_barrier']
            if t == 1:
                for i, p in enumerate((1, 5, 8, 12)): ex.setdefault(p, []).append(R_PART[i])
            if t == 2:
                ex.setdefault(1, []).append('s_waitcnt lgkmcnt(0)')
                for i, p in enumerate((1, 3, 5, 7, 9, 11, 13)): ex.setdefault(p, []).append(ADDS[i])
            if t == 3:
                for i, p in enumerate((0, 2, 4, 5, 7)): ex.setdefault(p, []).append(NORM[i])
                ex[16] = ['s_waitcnt lgkmcnt(0)', 's_barrier']
            if xfer and t < 3: ex.setdefault(14, []).extend(dma(t))
            if t == 4:
                ex.setdefault(1, []).extend([f'ds_read_b128 a[{AF}:{AF+3}], v{AAD}', f'v_add_u32 v{AAD}, 1152, v{AAD}'])
            if t == 6 and not last: ex[11] = q_reads(slow)
            if t == 7 and not last:
                ex['qx'] = ['s_waitcnt lgkmcnt(0)']
                ex[11] = mload()
                ex[16] = [f's_add_u32 s{S_WOC}, s{S_WOC}, {STEP}', f's_sub_u32 s{S_CNT}, s{S_CNT}, 1', f's_cmp_lg_u32 s{S_CNT}, 0']
            if last:
                for i, reg in enumerate(free.get(t, [])):
                    if todo:
                        st, f = todo.pop(0); where[(st, f)] = reg
                        ex.setdefault(11 + 3 * i, []).append(wo_load(lv, f's{st}f{f}', reg, f * 2048 + STEP))
                if t == 7:
                    def rows():
                        for i in range(5): lv.issue('x', f'buffer_load_dword v{SA+i}, v82, s[{S_X}:{S_X+3}], s59 offen offset:{256*i}')
                        for i in range(5): lv.issue('w', f'buffer_load_dword v{SA+5+i}, v82, s[{S_WR}:{S_WR+3}], 0 offen offset:{256*i}')
                    ex[3] = [f'v_lshlrev_b32 v82, 2, v{LANE}', f's_lshl_b32 s59, s2, 3', f's_add_u32 s59, s59, s{WAVE}', f's_mul_i32 s59, s59, {ROWB}', rows]
            tile(a, t, ex, slow, nxt=not (last and t == 7), kind={0: 'first', 1: 'second'}.get(t, 'std'), x16=x16, x16b=x16b)
            if t == 7 and slow and not last: a(f'v_mov_b32 v{MV}, v{T+15}')
        if last:
            assert not todo
            return lv, where
    a(f's_mov_b32 s{S_CNT}, 6\ns_cmp_eq_u32 s{S_MST}, 0\ns_cbranch_scc1 {lab}n_loop\n.p2align {ALIGN}\n{lab}x_loop:')
    body(False, True)
    a(f's_cbranch_scc1 {lab}x_loop\ns_branch {lab}_last\n.p2align {ALIGN}\n{lab}n_loop:')
    body(False, False)
    a(f's_cbranch_scc1 {lab}n_loop\n{lab}_last:')
    stamp(a, 's6')
    lv, where = body(True)
    if not slow: a(';PAD t')
    a('s_setprio 0\ns_nop 0')
    a(pv(SB, 7, 1))
    stamp(a, 's7')
    a('s_nop 9')
    for s in W_PART: a(s)
    a('s_waitcnt lgkmcnt(0)\ns_barrier')
    stamp(a, 'b1')
    for s in R_PART: a(s)
    a(f'''
    v_and_b32 v20, 15, v{LANE}
    v_bfe_u32 v21, v{LANE}, 4, 1
    v_mul_u32_u24 v21, {4*HROW + 64}, v21
    v_lshl_add_u32 v20, v20, 2, v21
    s_lshl_b32 s58, s{S_NT0}, 6
    s_add_u32 s58, s58, {LP}
    v_add_u32 v20, s58, v20
    v_lshrrev_b32 v21, 5, v{LANE}
    v_lshl_add_u32 v21, v21, 6, v20
    v_add_u32 v22, 128, v21
    ''')
    a('s_waitcnt lgkmcnt(2)'); a(ADDS[0]); a(ADDS[1]); a(ADDS[4]); a('s_waitcnt lgkmcnt(0)')
    for q in (2, 3, 5, 6): a(ADDS[q])
    a('s_nop 0'); a(NORM[0]); a('s_nop 0')
    for s in NORM[1:4]: a(s)
    lv.need('x', 'w')
    for i in range(5): unpack(a, 10 + 2 * i, i)
    a(f'''
    s_waitcnt lgkmcnt(0)
    s_barrier
    ds_read_b128 a[{QM}:{QM+3}], v{AAD} offset:1152
    ds_read_b128 a[{AF}:{AF+3}], v{AAD}
    v_mov_b32 v{T+8}, 0
    v_mov_b32 v{T+9}, {hx(ONES)}
    s_mul_i32 s58, s{WAVE}, {HROW}
    s_lshr_b32 s59, s{WAVE}, 2
    s_lshl_b32 s59, s59, 6
    s_add_u32 s58, s58, s59
    s_add_u32 s58, s58, {LP}
    v_lshl_add_u32 v{T+10}, v{LANE}, 3, s58
    ''')
    for i in range(5): a(f'v_dot2c_f32_bf16 v{T+8}, v{5+i}, v{T+9}')
    stamp(a, 'b2')
    a('s_waitcnt lgkmcnt(1)')
    for f in range(n):
        lv.need(f's8f{f}'); a(oproj(f, QM, where[(8, f)]))
    a('s_waitcnt lgkmcnt(0)')
    for f in range(n):
        lv.need(f'f{f}'); a(oproj(f, AF, WO + 8 * f))
    stamp(a, 'op')
    a(f's_nop {9 - n}')
    R = HROW // 256
    for p in range(2):
        A, B = OACC + 8 * p, OACC + 8 * p + 4
        for r in range(4): a(f'v_permlane32_swap_b32 v{A+r}, v{B+r}')
        for r in range(4): a(f'v_add_f32 v{A+r}, v{A+r}, v{B+r}')
        for r in (0, 2): a(f'ds_write2st64_b32 v{21+p}, v{A+r}, v{A+r+1} offset0:{r*R} offset1:{(r+1)*R}')
    if n == 5:
        A = OACC + 16
        for r in range(4): a(f'v_mov_b32 v{T+4+r}, v{A+r}')
        for r in range(4): a(f'v_permlane32_swap_b32 v{A+r}, v{T+4+r}')
        for r in range(4): a(f'v_add_f32 v{A+r}, v{A+r}, v{T+4+r}')
        for r in (0, 2): a(f'ds_write2st64_b32 v20, v{A+r}, v{A+r+1} offset0:{r*R+1} offset1:{(r+1)*R+1}')
    a(f's_branch L_tail\n;PAD -')

def warm(vm, i):
    vm.a(f's_add_u32 s58, s60, {i*8192}')
    vm.issue('warm', f'buffer_load_dwordx4 a[{WO+8*i}:{WO+3+8*i}], v{L16}, s[{S_WS}:{S_WS+3}], s58 offen{LDP}')

def dpp_reduce(a, op, regs):
    for c in ('row_shr:1', 'row_shr:2', 'row_shr:4', 'row_shr:8', 'row_bcast:15 row_mask:0xa', 'row_bcast:31 row_mask:0xc'):
        if len(regs) < 3: a(f's_nop {2 - len(regs)}')
        for r in regs:
            mask = '' if 'row_mask' in c else ' row_mask:0xf'
            a(f'{op}_dpp v{r}, v{r}, v{r} {c}{mask} bank_mask:0xf')

def bf_round(a, dst, src):
    a(f'v_cvt_pk_bf16_f32 v{dst}, v{src}, v{src}\nv_and_b32 v{dst}, 0xffff0000, v{dst}')
def unpack(a, lo, src):
    a(f'v_lshlrev_b32 v{lo}, 16, v{src}\nv_and_b32 v{lo+1}, 0xffff0000, v{src}')

def tail(a, stamp):
    XP, WP, XF, AT, HP, LN, OU = 0, 5, 10, 20, 30, 35, 60
    a(f'''
L_tail:
;PAD t
    v_mov_b32 v46, 0
    v_mov_b32 v47, 0
    s_waitcnt lgkmcnt(0)
    v_mov_b32 v48, 0
    v_mov_b32 v49, v{T+8}
    v_mov_b32 v51, v{T+9}
    s_barrier
    ''')
    for i in range(5): a(f'ds_read_b64 v[{AT+2*i}:{AT+2*i+1}], v{T+10} offset:{512*i}')
    stamp(a, 'attn')
    a(f'''
    s_mov_b32 s62, -1
    s_mov_b32 s63, 0
    s_lshl_b32 s59, s2, 3
    s_add_u32 s59, s59, s{WAVE}
    s_sub_u32 s69, 2047, s59
    s_lshl_b32 s58, s{WAVE}, 2
    s_add_u32 s58, s58, {X_KEY}
    v_mov_b32 v57, s58
    v_and_b32 v55, 7, v{LANE}
    s_mov_b32 s58, {X_KEY}
    v_lshl_add_u32 v55, v55, 2, s58
    s_mov_b32 s60, {GRAN_REP}
    v_mul_lo_u32 v56, s60, v{LANE}
    v_mov_b32 v52, {hx(f32(1.0/D))}
    ''')
    for i in range(5):
        a(f's_waitcnt lgkmcnt({4-i})\nv_pk_add_f32 v[{AT+2*i}:{AT+2*i+1}], v[{AT+2*i}:{AT+2*i+1}], v[{XF+2*i}:{XF+2*i+1}]')
        a(f'v_cvt_pk_bf16_f32 v{HP+i}, v{AT+2*i}, v{AT+2*i+1}')
        if i == 4: a(f'v_cndmask_b32 v{HP+4}, 0, v{HP+4}, s[62:63]')
        a(f'v_dot2c_f32_bf16 v46, v{HP+i}, v51\nv_dot2c_f32_bf16 v47, v{HP+i}, v{HP+i}\nv_dot2c_f32_bf16 v48, v{HP+i}, v{WP+i}')
    a(f'''
    s_lshl_b32 s60, s2, 7
    s_add_u32 s60, s60, {WS_GRAN}
    s_nop 0
    v_permlane32_swap_b32 v46, v47
    v_permlane32_swap_b32 v48, v49
    v_add_f32 v46, v46, v47
    v_add_f32 v48, v48, v49
    s_nop 1
    v_permlane16_swap_b32 v46, v48
    v_add_f32 v46, v46, v48
    ''')
    for c in (8, 4, 2, 1): a(f's_nop 1\nv_add_f32_dpp v46, v46, v46 row_ror:{c} row_mask:0xf bank_mask:0xf')
    a(f'''
    s_nop 0
    v_readlane_b32 s64, v46, 0
    v_readlane_b32 s65, v46, 32
    v_readlane_b32 s66, v46, 16
    v_readlane_b32 s67, v46, 48
    v_mul_f32 v46, s64, v52
    v_mul_f32 v47, s65, v52
    v_fma_f32 v47, -v46, v46, v47
    v_max_f32 v47, 0, v47
    ''')
    bf_round(a, 47, 47)
    a(f'v_add_f32 v47, {hx(f32(1e-5))}, v47')
    bf_round(a, 47, 47)
    a('v_sqrt_f32 v47, v47')
    bf_round(a, 46, 46)
    bf_round(a, 47, 47)
    a(f'''
    v_rcp_f32 v48, v47
    v_mov_b32 v53, s66
    v_fma_f32 v53, -v46, s67, v53
    v_mul_f32 v53, v53, v48
    v_cvt_pk_bf16_f32 v53, v53, v53
    v_ashrrev_i32 v54, 31, v53
    v_or_b32 v54, 0x80000000, v54
    v_xor_b32 v53, v53, v54
    v_lshrrev_b32 v53, 16, v53
    v_lshl_or_b32 v53, v53, 11, s69
    ds_write_b32 v57, v53
    s_getreg_b32 s58, hwreg(HW_REG_XCC_ID)
    s_and_b32 s58, s58, 7
    s_mul_i32 s58, s58, {GRAN_REP}
    s_and_b32 s64, s{WAVE}, 3
    s_lshl_b32 s64, s64, 13
    s_add_u32 s58, s58, s64
    s_add_u32 s64, s58, {WS_GRAN}
    v_lshlrev_b32 v65, 7, v{LANE}
    s_waitcnt lgkmcnt(0)
    s_barrier
    ds_read_b32 v54, v55
    s_mov_b32 s61, 0
    s_waitcnt lgkmcnt(0)
    v_cmp_gt_u32 vcc, v54, v53
    s_cbranch_vccnz L_notbest
    s_mov_b64 exec, 0xff
    buffer_store_dword v53, v56, s[{S_WS}:{S_WS+3}], s60 offen sc1
    s_mov_b64 exec, -1
    s_mov_b32 s61, 1
L_notbest:
    ''')
    stamp(a, 'gran')
    for c in (4, 2, 1): a(f'v_max_u32_dpp v54, v54, v54 row_ror:{c} row_mask:0xf bank_mask:0xf\ns_nop 1')
    a(f'v_readfirstlane_b32 s65, v54\ns_xor_b32 s65, s65, s{WAVE}\ns_and_b32 s65, s65, 4')
    a('v_sub_f32 v56, 0, v46\nv_mov_b32 v57, v56\nv_mov_b32 v49, v48')
    for i in range(5): unpack(a, XF + 2 * i, HP + i)
    for i in range(5): a(f'v_pk_add_f32 v[{AT+2*i}:{AT+2*i+1}], v[{XF+2*i}:{XF+2*i+1}], v[56:57]')
    for i in range(5): a(f'v_cvt_pk_bf16_f32 v{LN+i}, v{AT+2*i}, v{AT+2*i+1}')
    for i in range(5): unpack(a, AT + 2 * i, LN + i)
    for i in range(5): a(f'v_pk_mul_f32 v[{AT+2*i}:{AT+2*i+1}], v[{AT+2*i}:{AT+2*i+1}], v[48:49]')
    for i in range(5): a(f'v_cvt_pk_bf16_f32 v{LN+i}, v{AT+2*i}, v{AT+2*i+1}')
    a(f'''
    v_lshlrev_b32 v58, 2, v{LANE}
    s_cmp_eq_u32 s61, 1
    s_cbranch_scc0 L_norow
    s_mul_i32 s58, s2, 2304
    s_add_u32 s58, s58, {WS_ROWS}
    ''')
    for i in range(4): a(f'buffer_store_dword v{LN+i}, v58, s[{S_WS}:{S_WS+3}], s58 offen offset:{256*i} sc1')
    for i in range(4): a(f'buffer_store_dword v{HP+i}, v58, s[{S_WS}:{S_WS+3}], s58 offen offset:{1152+256*i} sc1')
    a(f'''
    s_mov_b32 exec_hi, 0
    buffer_store_dword v{LN+4}, v58, s[{S_WS}:{S_WS+3}], s58 offen offset:1024 sc1
    buffer_store_dword v{HP+4}, v58, s[{S_WS}:{S_WS+3}], s58 offen offset:{1152+1024} sc1
    s_mov_b32 exec_hi, -1
L_norow:
    ''')
    for i in range(5): unpack(a, AT + 2 * i, LN + i)
    for i in range(5): a(f'v_pk_add_f32 v[{AT+2*i}:{AT+2*i+1}], v[{AT+2*i}:{AT+2*i+1}], v[{XF+2*i}:{XF+2*i+1}]')
    for i in range(5): a(f'v_cvt_pk_bf16_f32 v{OU+i}, v{AT+2*i}, v{AT+2*i+1}')
    def out_row():
        for i in range(4): a(f'buffer_store_dword v{OU+i}, v58, s[{S_OUT}:{S_OUT+3}], s68 offen offset:{256*i}{OUTP}')
        a(f's_mov_b32 exec_hi, 0\nbuffer_store_dword v{OU+4}, v58, s[{S_OUT}:{S_OUT+3}], s68 offen offset:1024{OUTP}\ns_mov_b32 exec_hi, -1')
    a(f's_mul_i32 s68, s59, {ROWB}')
    if not DEFER:
        a('s_cmp_eq_u32 s61, 1\ns_cbranch_scc1 L_defer')
        out_row()
        a('L_defer:')
    elif DEFER == 2:
        a('s_cmp_eq_u32 s61, 1\ns_cbranch_scc1 L_defer\ns_cmp_eq_u32 s65, 0\ns_cbranch_scc1 L_defer')
        out_row()
        a('s_mov_b32 s61, 2\nL_defer:')
    stamp(a, 'rows')
    GW, DW = 0, 60
    a(f'''
    v_lshrrev_b32 v1, 4, v{LANE}
    v_bfe_u32 v2, v{LANE}, 2, 2
    v_and_b32 v3, 3, v{LANE}
    v_lshl_add_u32 v2, v1, 3, v2
    s_cmp_ge_u32 s{S_FS}, 144
    s_cbranch_scc1 L_nopre
    s_and_b32 s58, s{WAVE}, 1
    v_and_b32 v4, 1, v1
    v_xor_b32 v4, s58, v4
    v_lshlrev_b32 v4, 5, v4
    v_lshl_add_u32 v4, v2, 6, v4
    v_lshl_add_u32 v4, v3, 3, v4
    s_bfe_u32 s58, s{WAVE}, 0x10001
    s_mul_i32 s58, s58, {LU}
    s_lshr_b32 s60, s{WAVE}, 2
    s_mul_i32 s69, s60, {9*2048}
    s_add_u32 s58, s58, s69
    v_add_u32 v4, s58, v4
    v_mul_u32_u24 v5, {ROWB}, v2
    v_lshl_add_u32 v5, v3, 3, v5
    s_lshl_b32 s58, s{S_NT0}, 5
    s_add_u32 s58, s58, {LD}
    v_add_u32 v5, s58, v5
    ''')
    for i in range(9):
        a(f'ds_read_b64_tr_b16 a[{GW+4*i}:{GW+4*i+1}], v4 offset:{2048*i}\nds_read_b64_tr_b16 a[{GW+4*i+2}:{GW+4*i+3}], v4 offset:{2048*i+256}')
    for f in range(5):
        a(f'ds_read_b64_tr_b16 a[{DW+4*f}:{DW+4*f+1}], v5 offset:{32*f}\nds_read_b64_tr_b16 a[{DW+4*f+2}:{DW+4*f+3}], v5 offset:{32*f+4*ROWB}')
    a(f'''
L_nopre:
    s_cmp_lg_u32 s65, 0
    s_cbranch_scc1 L_polled
    s_mov_b32 s60, 0
L_poll:
    buffer_load_dword v66, v65, s[{S_WS}:{S_WS+3}], s64 offen sc1
    s_add_u32 s60, s60, 1
    s_waitcnt vmcnt(0)
    v_cmp_eq_u32 vcc, -1, v66
    s_and_b64 exec, exec, vcc
    s_cbranch_execz L_polldone
    s_cmp_gt_u32 s60, {SPIN}
    s_cbranch_scc1 L_polldone
    ''')
    if SPEC:
        a(f'''
        s_cmp_gt_u32 s60, {SPEC}
        s_cbranch_scc1 L_nospec
        s_mov_b64 s[66:67], exec
        s_mov_b64 exec, -1
        v_cndmask_b32 v67, v66, 0, s[66:67]
        ''')
        dpp_reduce(a, 'v_max_u32', [67])
        a(f'''
        s_nop 0
        v_readlane_b32 s62, v67, 63
        s_andn2_b32 s62, 2047, s62
        s_lshr_b32 s62, s62, 3
        s_mul_i32 s62, s62, 2304
        s_add_u32 s62, s62, {WS_ROWS}
        s_mov_b64 exec, 0x1ff
        buffer_load_dword v67, v65, s[{S_WS}:{S_WS+3}], s62 offen sc1
        s_mov_b64 exec, s[66:67]
        s_branch L_poll
L_nospec:
        ''')
    a(f'''
    s_sleep {POLL_SLEEP}
    s_branch L_poll
L_polldone:
    s_mov_b64 exec, -1
    s_nop 1
    ''')
    dpp_reduce(a, 'v_max_u32', [66])
    a(f'''
    s_and_b32 s58, s{WAVE}, 3
    s_lshl_b32 s58, s58, 2
    s_add_u32 s58, s58, {X_WIN}
    v_mov_b32 v8, s58
    s_mov_b32 exec_lo, 0
    s_mov_b32 exec_hi, 0x80000000
    ds_write_b32 v8, v66
    s_mov_b64 exec, -1
L_polled:
    v_mov_b32 v8, {X_WIN}
    s_waitcnt lgkmcnt(0)
    s_barrier
    ds_read_b128 v[10:13], v8
    s_waitcnt lgkmcnt(0)
    v_max_u32 v10, v10, v11
    v_max3_u32 v10, v10, v12, v13
    s_nop 0
    v_readfirstlane_b32 s62, v10
    s_and_b32 s63, s62, 2047
    s_sub_u32 s63, 2047, s63
    s_lshr_b32 s64, s63, 3
    s_mul_i32 s64, s64, 2304
    s_add_u32 s64, s64, {WS_ROWS}
    ''')
    stamp(a, 'win')
    a(f'''
    s_cmp_ge_u32 s{S_FS}, 144
    s_cbranch_scc1 L_noffn
    s_lshr_b32 s60, s{WAVE}, 2
    s_mul_i32 s60, s60, 576
    s_add_u32 s60, s60, s64
    s_mul_i32 s68, s{WAVE}, 576
    s_add_u32 m0, s68, {LP}
    s_mov_b32 s66, -1
    s_mov_b32 s67, 0xf
    v_lshlrev_b32 v6, 4, v1
    s_mov_b32 s65, 0
L_xsel:
    s_mov_b64 exec, s[66:67]
    buffer_load_dwordx4 v{L16}, s[{S_WS}:{S_WS+3}], s60 offen sc1 lds
    ''')
    XS = 10
    a(f'''
    s_mov_b64 exec, -1
    s_add_u32 s65, s65, 1
    s_lshl_b32 s58, s{WAVE}, 6
    s_add_u32 s58, s58, {X_G}
    v_add_u32 v7, s58, v6
    v_and_b32 v8, 31, v{LANE}
    s_mov_b32 s58, {X_G}
    v_lshl_add_u32 v9, v8, 2, s58
    s_lshl_b32 s58, s{WAVE}, 6
    s_add_u32 s58, s58, {X_ACT}
    v_lshl_add_u32 v8, v8, 1, s58
    v_add_u32 v51, s58, v6
    v_lshrrev_b32 v2, 3, v{LANE}
    v_mul_u32_u24 v2, 4608, v2
    v_and_b32 v3, 7, v{LANE}
    v_lshl_add_u32 v2, v3, 2, v2
    s_mul_i32 s58, s{S_NT0}, 9216
    s_lshl_b32 s69, s{S_FS}, 5
    s_add_u32 s58, s58, s69
    s_add_u32 s58, s58, {WS_PART}
    s_add_u32 s69, s68, {LP}
    v_add_u32 v52, s69, v6
    s_waitcnt vmcnt(0)
    ''')
    for i in range(9): a(f'ds_read_b128 v[{XS+4*i}:{XS+4*i+3}], v52 offset:{64*i}')
    for i in range(9):
        a(f's_waitcnt lgkmcnt({8-i})')
        a(f'v_mfma_f32_16x16x32_bf16 v[46:49], a[{GW+4*i}:{GW+4*i+3}], v[{XS+4*i}:{XS+4*i+3}], ' + ('0' if i == 0 else 'v[46:49]'))
        if i == 0: a(f'v_max_u32 v50, v{XS}, v{XS+1}\nv_max3_u32 v50, v50, v{XS+2}, v{XS+3}')
        else: a(f'v_max3_u32 v50, v50, v{XS+4*i}, v{XS+4*i+1}\nv_max3_u32 v50, v50, v{XS+4*i+2}, v{XS+4*i+3}')
    a(f'''
    v_cmp_eq_u32 vcc, -1, v50
    s_cbranch_vccz L_xok
    s_cmp_gt_u32 s65, {SPIN}
    s_cbranch_scc0 L_xsel
L_xok:
    ''')
    stamp(a, 'xin')
    a(f'''
    s_mul_i32 s68, s59, {ROWB}
    s_mov_b32 s66, 0x00010001
    s_mov_b32 s67, 0x00010001
    s_mov_b64 exec, s[66:67]
    ds_write_b128 v7, v[46:49]
    s_mov_b64 exec, -1
    s_waitcnt lgkmcnt(0)
    s_barrier
    ds_read2_b32 v[10:11], v9 offset0:0 offset1:64
    ds_read2_b32 v[12:13], v9 offset0:32 offset1:96
    s_waitcnt lgkmcnt(1)
    v_add_f32 v10, v10, v11
    ''')
    bf_round(a, 10, 10)
    a(f'''
    v_mul_f32 v11, {hx(f32(-math.log2(math.e)))}, v10
    v_exp_f32 v11, v11
    s_waitcnt lgkmcnt(0)
    v_add_f32 v12, v12, v13
    v_add_f32 v11, 1.0, v11
    v_rcp_f32 v11, v11
    ''')
    bf_round(a, 12, 12)
    a('v_mul_f32 v10, v10, v11')
    bf_round(a, 10, 10)
    a(f'''
    v_mul_f32 v10, v10, v12
    v_cvt_pk_bf16_f32 v10, v10, v10
    ds_write_b16 v8, v10
    s_waitcnt lgkmcnt(0)
    ds_read_b128 v[12:15], v51
    s_waitcnt lgkmcnt(0)
    ''')
    stamp(a, 'act')
    for f in range(5): a(f'v_mfma_f32_16x16x32_bf16 v[{16+4*f}:{19+4*f}], v[12:15], a[{DW+4*f}:{DW+4*f+3}], 0')
    a(f'''
    s_mov_b32 s64, 0xffff0000
    s_mov_b32 s65, 0
    s_mov_b32 s66, 0
    s_mov_b32 s67, 0xffff
    s_nop 0
    v_cndmask_b32 v16, v16, v20, s[64:65]
    s_mov_b32 s65, 0xffff0000
    s_mov_b32 s64, 0
    v_cndmask_b32 v16, v16, v24, s[66:67]
    s_add_u32 s69, s58, {4*9216}
    s_cmp_ge_u32 s{WAVE}, 4
    v_cndmask_b32 v16, v16, v28, s[64:65]
    buffer_store_dword v16, v2, s[{S_WS}:{S_WS+3}], s58 offen sc1
    s_cbranch_scc1 L_ffndone
    s_mov_b64 exec, 0xffff
    buffer_store_dword v32, v2, s[{S_WS}:{S_WS+3}], s69 offen sc1
L_ffndone:
    s_mov_b64 exec, -1
    s_branch L_last
L_noffn:
    s_sub_u32 s69, s{S_FS}, 144
    s_cmp_ge_u32 s69, 72
    s_cbranch_scc1 L_last
    s_cmp_lg_u32 s{WAVE}, 0
    s_cbranch_scc1 L_last
    s_cmp_eq_u32 s61, {[0, 2, 2][DEFER]}
    s_cbranch_scc1 L_finrow
    s_cmp_eq_u32 s63, s59
    s_cbranch_scc1 L_finrow
    ''')
    out_row()
    a(f'''
L_finrow:
    s_mov_b32 s61, {[0, 2, 2][DEFER]}
    s_lshl_b32 s58, s69, 4
    s_add_u32 s58, s58, s64
    v_and_b32 v1, 1, v{LANE}
    v_lshlrev_b32 v2, 3, v1
    s_lshr_b32 s65, s62, 11
    s_lshl_b32 s65, s65, 16
    s_not_b32 s66, s65
    s_ashr_i32 s66, s66, 31
    s_or_b32 s66, s66, 0x80000000
    s_xor_b32 s65, s65, s66
    s_and_b32 s65, s65, 0xffff0000
    v_mov_b32 v3, s65
    v_mul_f32 v3, {hx(f32(-math.log2(math.e)))}, v3
    v_exp_f32 v3, v3
    s_mul_i32 s60, s69, 4608
    s_add_u32 s60, s60, {WS_PART}
    v_add_f32 v3, 1.0, v3
    v_rcp_f32 v3, v3
    s_mov_b32 s65, 0
    v_mov_b32 v26, 0
    v_mov_b32 v27, 0
    v_mov_b32 v28, 0
    v_mov_b32 v29, 0
    ''')
    bf_round(a, 3, 3)
    a(f'''
L_fin0:
    buffer_load_dwordx2 v[4:5], v2, s[{S_WS}:{S_WS+3}], s58 offen sc1
    buffer_load_dwordx2 v[6:7], v2, s[{S_WS}:{S_WS+3}], s58 offen offset:1152 sc1
    s_add_u32 s65, s65, 1
    s_waitcnt vmcnt(0)
    v_max_u32 v8, v4, v5
    v_max3_u32 v8, v8, v6, v7
    v_cmp_eq_u32 vcc, -1, v8
    s_cbranch_vccz L_fin1
    s_cmp_gt_u32 s65, {SPIN}
    s_cbranch_scc0 L_fin0
L_fin1:
    s_sleep {FIN_SLEEP}
L_fin:
    ''')
    for i in range(4): a(f'buffer_load_dwordx4 v[{10+4*i}:{13+4*i}], v{L16}, s[{S_WS}:{S_WS+3}], s60 offen offset:{1024*i} sc1')
    a(f'''
    s_add_u32 s66, s60, 4096
    s_mov_b32 s67, exec_hi
    s_mov_b32 exec_hi, 0
    buffer_load_dwordx4 v[26:29], v{L16}, s[{S_WS}:{S_WS+3}], s66 offen sc1
    s_mov_b32 exec_hi, s67
    s_add_u32 s65, s65, 1
    s_waitcnt vmcnt(0)
    v_mov_b32 v8, v10
    ''')
    for i in range(11, 29, 2): a(f'v_max3_u32 v8, v8, v{i}, v{i+1}')
    a(f'''
    v_max_u32 v8, v8, v29
    v_cmp_eq_u32 vcc, -1, v8
    s_and_b64 exec, exec, vcc
    s_cbranch_execz L_finok
    s_cmp_gt_u32 s65, {SPIN}
    s_cbranch_scc1 L_finok
    s_sleep {FIN_SLEEP2}
    s_branch L_fin
L_finok:
    s_mov_b64 exec, -1
    ''')
    stamp(a, 'fin')
    a(f'''
    v_pk_add_f32 v[10:11], v[10:11], v[14:15]
    v_pk_add_f32 v[12:13], v[12:13], v[16:17]
    v_pk_add_f32 v[18:19], v[18:19], v[22:23]
    v_pk_add_f32 v[20:21], v[20:21], v[24:25]
    v_pk_add_f32 v[10:11], v[10:11], v[26:27]
    v_pk_add_f32 v[12:13], v[12:13], v[28:29]
    v_pk_add_f32 v[10:11], v[10:11], v[18:19]
    v_pk_add_f32 v[12:13], v[12:13], v[20:21]
    s_nop 0
    ''')
    for c in (8, 4, 2):
        for r in range(10, 14): a(f'v_add_f32_dpp v{r}, v{r}, v{r} row_ror:{c} row_mask:0xf bank_mask:0xf')
    for sw in ('v_permlane16_swap_b32', 'v_permlane32_swap_b32'):
        for r in range(4): a(f'v_mov_b32 v{14+r}, v{10+r}')
        for r in range(4): a(f'{sw} v{10+r}, v{14+r}')
        for r in range(4): a(f'v_add_f32 v{10+r}, v{10+r}, v{14+r}')
    a('v_cvt_pk_bf16_f32 v8, v10, v11\nv_cvt_pk_bf16_f32 v9, v12, v13')
    unpack(a, 10, 8); unpack(a, 12, 9)
    for r in range(4): a(f'v_mul_f32 v{10+r}, v3, v{10+r}')
    a('v_cvt_pk_bf16_f32 v8, v10, v11\nv_cvt_pk_bf16_f32 v9, v12, v13')
    unpack(a, 10, 8); unpack(a, 12, 9); unpack(a, 14, 4); unpack(a, 16, 5)
    for r in range(4): a(f'v_add_f32 v{10+r}, v{10+r}, v{14+r}')
    a('v_cvt_pk_bf16_f32 v8, v10, v11\nv_cvt_pk_bf16_f32 v9, v12, v13')
    unpack(a, 10, 8); unpack(a, 12, 9); unpack(a, 14, 6); unpack(a, 16, 7)
    for r in range(4): a(f'v_add_f32 v{10+r}, v{10+r}, v{14+r}')
    a(f'''
    v_cvt_pk_bf16_f32 v8, v10, v11
    v_cvt_pk_bf16_f32 v9, v12, v13
    s_mul_i32 s58, s63, {ROWB}
    s_lshl_b32 s60, s69, 4
    s_add_u32 s58, s58, s60
    s_mov_b64 exec, 3
    buffer_store_dwordx2 v[8:9], v2, s[{S_OUT}:{S_OUT+3}], s58 offen{OUTP}
    s_mov_b64 exec, -1
L_last:
    s_cmp_eq_u32 s61, {[0, 2, 2][DEFER]}
    s_cbranch_scc1 L_end
    s_cmp_eq_u32 s63, s59
    s_cbranch_scc1 L_end
    ''')
    out_row()
    a(';PAD -\nL_end:')
    stamp(a, 'end')
    a('s_endpgm')

def kv_load(vm, t, part=None):
    ws = f's[{S_WS}:{S_WS+3}]'
    if part in (None, 0): vm.issue(f'km{t}', f'buffer_load_dwordx4 a[{KM+4*t}:{KM+4*t+3}], v{L16}, {ws}, s67 offen{LDP}')
    if part in (None, 1): vm.issue(f'km{t}', f'buffer_load_dword a{KX+t}, v{T+14}, {ws}, s67 offen offset:{KV_X}{LDP}')
    m = 'vmask' in DIAG
    if part in (None, 2):
        if m: vm.a('s_mov_b64 exec, s[64:65]')
        vm.issue(f'v{t}', f'buffer_load_dwordx4 a[{VV+8*t}:{VV+8*t+3}], v83, {ws}, s67 offen offset:{KV_V}{LDP}')
        if m and part == 2: vm.a('s_mov_b64 exec, -1')
    if part in (None, 3):
        if m and part == 3: vm.a('s_mov_b64 exec, s[64:65]')
        vm.issue(f'v{t}', f'buffer_load_dwordx4 a[{VV+8*t+4}:{VV+8*t+7}], v83, {ws}, s67 offen offset:{KV_V+608}{LDP}')
        if m: vm.a('s_mov_b64 exec, -1')
        if t < 7: vm.a(f's_add_u32 s67, s67, {KVREC}\ns_cmp_ge_u32 s67, s63\ns_cselect_b32 s67, s62, s67')

def qprep(a, vm, stamp):
    a(f's_cmp_ge_u32 s{WAVE}, 4\ns_cbranch_scc1 L_nokmax')
    dpp_reduce(a, 'v_max_f32', [21])
    a(f'''
    s_lshl_b32 s58, s{WAVE}, 2
    s_add_u32 s58, s58, {X_WIN}
    v_mov_b32 v22, s58
    s_mov_b32 exec_lo, 0
    s_mov_b32 exec_hi, 0x80000000
    ds_write_b32 v22, v21
    s_mov_b64 exec, -1
L_nokmax:
    v_mov_b32 v22, {X_WIN}
    s_mov_b32 s68, -1
    s_mov_b32 s69, 0
    v_mov_b32 v18, 0
    s_waitcnt lgkmcnt(0)
    ''')
    vm.need('q')
    stamp(a, 'qin')
    a(f'''
    s_barrier
    ds_read2_b32 v[12:13], v8 offset0:0 offset1:1
    ds_read2_b32 v[14:15], v8 offset0:2 offset1:3
    ds_read_b32 v16, v7 offset:32
    ds_read_b128 v[20:23], v22
    ''')
    for t in range(PRE[0], PRE[0] + PRE[1]): kv_load(vm, t)
    stamp(a, 'q1')
    a(f'''
    s_waitcnt lgkmcnt(1)
    v_cndmask_b32 v17, 0, v16, s[68:69]
    v_dot2c_f32_bf16 v18, v12, v12
    v_dot2c_f32_bf16 v18, v13, v13
    v_dot2c_f32_bf16 v18, v14, v14
    v_dot2c_f32_bf16 v18, v15, v15
    v_dot2c_f32_bf16 v18, v17, v17
    s_waitcnt lgkmcnt(0)
    v_max3_f32 v20, v20, v21, v22
    s_lshl_b32 s59, s{WAVE}, 11
    v_mov_b32 v19, v18
    v_max_f32 v20, v20, v23
    s_nop 0
    v_permlane32_swap_b32 v18, v19
    v_add_f32 v18, v18, v19
    v_mul_f32 v18, v20, v18
    v_sqrt_f32 v18, v18
    s_add_u32 s59, s59, {LQ}
    v_add_u32 v24, s59, v{L16}
    v_mov_b32 v17, 0
    v_add_u32 v18, 0x1ffff, v18
    v_and_b32 v18, 0xffff0000, v18
    v_cmp_nge_f32 vcc, {hx(f32(M_LIMIT))}, v18
    v_lshrrev_b32 v19, 16, v18
    v_or_b32 v19, 0x8000, v19
    v_cndmask_b32 v16, v19, v16, s[68:69]
    s_cmp_lg_u64 vcc, 0
    s_cselect_b32 s58, 1, 0
    ds_write_b128 v24, v[12:15]
    v_mov_b32 v18, 0
    v_mov_b32 v19, v16
    ds_write_b128 v24, v[16:19] offset:1024
    s_lshl_b32 s59, s{WAVE}, 2
    s_add_u32 s59, s59, {X_FLAG}
    v_mov_b32 v26, s59
    v_mov_b32 v27, s58
    ds_write_b32 v26, v27
    ''')

def prologue(a, stamp):
    if FUSED:
        a(f'''
L_p1done:
;PAD p
        ''')
        stamp(a, 'qst')
        a(f'''
        s_lshl_b32 s57, s26, 7
        s_add_u32 s57, s57, {WS_GRAN}
        s_mov_b32 s96, s4
        s_mov_b32 s97, s5
        s_mov_b32 s98, 4
        s_mov_b32 s99, 0x20000
        v_mov_b32 v64, 0
        buffer_load_dword v61, v64, s[96:99], 0 offen sc1
        s_mov_b32 s{S_WS}, s6
        s_mov_b32 s{S_WS+1}, s7
        s_mov_b32 s{S_WS+2}, {WS_USED}
        s_mov_b32 s{S_WS+3}, 0x20000
        s_mov_b32 s59, {GRAN_REP}
        v_mul_lo_u32 v63, s59, v1
        v_mov_b32 v60, -1
        v_mov_b32 v62, v29
        ''')
    else:
        a('s_cmp_ge_u32 s2, 256\ns_cbranch_scc1 L_k2_exit')
    a(f'''
    s_load_dwordx2 s[16:17], s[0:1], {KA_WS}
    s_load_dwordx2 s[4:5], s[0:1], {KA_X}
    s_load_dwordx8 s[8:15], s[0:1], {KA_WR}
    s_load_dwordx2 s[6:7], s[0:1], {KA_OUT}
    ''')
    if not FUSED: stamp(a, 'start')
    a(f'''
    s_setprio 3
    v_lshrrev_b32 v1, 6, v0
    v_and_b32 v{LANE}, 63, v0
    v_and_b32 v5, 7, v0
    v_readfirstlane_b32 s{WAVE}, v1
    v_bfe_u32 v6, v0, 3, 2
    s_lshl_b32 s58, s2, 3
    s_add_u32 s61, s58, s{WAVE}
    s_mul_i32 s61, s61, {ROWB}
    v_mul_u32_u24 v7, 1168, v5
    v_mad_u32_u24 v7, v6, 36, v7
    s_mul_i32 s58, s{WAVE}, 144
    s_add_u32 s58, s58, {LQR}
    v_add_u32 v7, s58, v7
    v_lshrrev_b32 v4, 5, v{LANE}
    v_lshl_add_u32 v8, v4, 4, v7
    s_mul_i32 s68, s{WAVE}, 1168
    s_add_u32 s68, s68, {LQR}
    v_lshlrev_b32 v{L16}, 4, v{LANE}
    v_lshlrev_b32 v{T+14}, 2, v{LANE}
    v_and_b32 v3, 31, v{LANE}
    v_min_u32 v10, 18, v3
    v_lshlrev_b32 v10, 4, v10
    s_movk_i32 s62, 304
    v_mad_u32_u24 v10, v4, s62, v10
    s_mov_b32 s64, 0x0013ffff
    s_mov_b32 s65, 0x0013ffff
    v_mov_b32 v2, 0x7f000000
    v_cndmask_b32 v83, v{10 if 'vclamp' in DIAG else 2}, v10, s[64:65]
    s_bfe_u32 s60, s2, {ROTF}
    s_mul_i32 s62, s{WAVE}, {8*KVREC}
    s_add_u32 s62, s62, {WS_KV}
    s_mul_i32 s67, s60, {KVREC}
    s_add_u32 s67, s67, s62
    s_add_u32 s63, s62, {8*KVREC}
    ''')
    for i in range(72 if 'vmask' in DIAG else 8): a(f'v_accvgpr_write_b32 a{KX+i}, 0')
    if not FUSED: a('s_waitcnt lgkmcnt(0)')
    vm = Vm(a)
    def first_loads():
        ws = f's[{S_WS}:{S_WS+3}]'
        a('s_mov_b32 m0, s68\ns_mov_b64 exec, 0xff')
        vm.issue('q', f'buffer_load_dwordx4 v{L16}, {ws}, s61 offen offset:1024{LDP} lds')
        a('s_mov_b64 exec, -1')
        vm.issue('q', f'buffer_load_dwordx4 v{L16}, {ws}, s61 offen{LDP} lds')
        a('s_setprio 0')
        stamp(a, 'issued')
    if not FUSED:
        srd(a, S_WS, 16, 0, WS_USED)
        first_loads()
    def late_setup():
        a(f'''
        s_and_b32 s58, s2, 7
        s_lshr_b32 s59, s2, 3
        s_mul_i32 s{S_FS}, s58, 18
        s_add_u32 s{S_FS}, s{S_FS}, s59
        s_cmp_lt_u32 s59, 18
        s_cselect_b32 s{S_FS}, s{S_FS}, s2
        s_cselect_b32 s69, {D*F*2}, 0
        ''')
        for d, b in ((S_G, 10), (S_U, 12), (S_D, 14)):
            a(f's_mov_b32 s{d}, s{b}\ns_mov_b32 s{d+1}, s{b+1}\ns_mov_b32 s{d+2}, s69\ns_mov_b32 s{d+3}, 0x20000')
        srd(a, S_X, 4, 0, S * ROWB); srd(a, S_OUT, 6, 0, S * ROWB); srd(a, S_WR, 8, 0, ROWB)
        a(f'''
        s_mul_i32 s{S_GOFF}, s{WAVE}, {16*F*2}
        s_lshl_b32 s58, s{S_FS}, 6
        s_add_u32 s{S_GOFF}, s{S_GOFF}, s58
        s_mul_i32 s{S_DOFF}, s{S_FS}, 36864
        s_lshl_b32 s58, s{WAVE}, 10
        s_add_u32 s{S_DOFF}, s{S_DOFF}, s58
        s_mov_b32 s{S_MG}, s58
        s_cmp_lt_u32 s{WAVE}, 6
        s_cselect_b32 s{S_MST}, s69, 0
        s_mul_i32 s{S_NT0}, s{WAVE}, 5
        s_lshl_b32 s58, s{WAVE}, 2
        s_add_u32 s58, s58, 4
        s_cmp_lt_u32 s{WAVE}, 4
        s_cselect_b32 s{S_NT0}, s{S_NT0}, s58
        s_lshl_b32 s{S_WOC}, s{S_NT0}, 11
        s_add_u32 s{S_WOC}, s{S_WOC}, {WS_WO}
        s_mul_i32 s60, s59, 20736
        s_lshl_b32 s58, s{WAVE}, 10
        s_add_u32 s60, s60, s58
        s_add_u32 s60, s60, {WS_WO}
        v_lshrrev_b32 v24, 2, v{LANE}
        v_mul_u32_u24 v25, {F*2}, v24
        v_lshrrev_b32 v24, 4, v{LANE}
        v_and_b32 v26, 2, v24
        v_and_b32 v27, 3, v{LANE}
        v_xor_b32 v26, v26, v27
        v_lshl_add_u32 v{GUV}, v26, 4, v25
        v_mov_b32 v{IDXA}, 0xdddd
        v_mov_b32 v{IDXB}, 0x4444
        v_mov_b32 v25, 0xeeee
        v_and_b32 v26, 15, v{LANE}
        v_cmp_lt_u32 vcc, 7, v26
        v_mul_u32_u24 v27, 80, v3
        s_mul_i32 s58, s{WAVE}, 2560
        v_cndmask_b32 v{IDXB}, v{IDXB}, v25, vcc
        s_add_u32 s58, s58, {LP}
        v_add_u32 v27, s58, v27
        v_lshl_add_u32 v{WAD}, v4, 4, v27
        v_lshl_add_u32 v{WAD3}, v4, 3, v27
        v_add_u32 v{WAD3}, 64, v{WAD3}
        v_min_u32 v25, 9, v26
        v_mul_u32_u24 v27, 640, v24
        v_lshl_add_u32 v27, v25, 3, v27
        s_mul_i32 s58, s{WAVE}, 80
        s_add_u32 s58, s58, {LP}
        v_add_u32 v{RAD}, s58, v27
        s_mul_i32 s58, s{WAVE}, 144
        s_add_u32 s58, s58, {LO}
        v_lshlrev_b32 v27, 5, v24
        v_lshl_add_u32 v27, v26, 2, v27
        v_add_u32 v{OAD}, s58, v27
        v_mov_b32 v{OST}, 1152
        s_add_u32 s58, s58, {8*1152}
        v_lshl_add_u32 v27, v24, 2, s58
        v_cmp_eq_u32 vcc, 8, v26
        s_mov_b32 s58, {LDUM}
        v_lshl_add_u32 v28, v{LANE}, 2, s58
        v_cndmask_b32 v{OAD}, v{OAD}, v27, vcc
        v_cndmask_b32 v{OST}, v{OST}, 16, vcc
        v_cmp_lt_u32 vcc, 8, v26
        v_mul_u32_u24 v27, 144, v5
        v_bfe_u32 v25, v{LANE}, 3, 1
        v_cndmask_b32 v{OAD}, v{OAD}, v28, vcc
        v_cndmask_b32 v{OST}, v{OST}, 0, vcc
        v_lshl_add_u32 v27, v25, 6, v27
        v_lshl_add_u32 v27, v24, 4, v27
        v_add_u32 v{AAD}, {LO}, v27
        v_add_u32 v{QAD}, {LQ}, v{L16}
        ''')
        for i in range(OACC, OACC + 20): a(f'v_mov_b32 v{i}, 0')
    if not FUSED: late_setup()
    if FUSED:
        a(f'''
        s_getreg_b32 s58, hwreg(HW_REG_XCC_ID)
        s_and_b32 s58, s58, 7
        s_mul_i32 s58, s58, {GRAN_REP}
        s_add_u32 s58, s58, {WS_GRAN + 4}
        s_mul_i32 s59, s{WAVE}, {8 * 43}
        s_lshr_b32 s59, s59, 7
        v_add_u32 v24, s59, v{LANE}
        v_min_u32 v24, 21, v24
        v_add_u32 v24, 234, v24
        v_lshlrev_b32 v24, 7, v24
        s_mov_b32 s59, 0
        s_waitcnt vmcnt(0)
L_tag:
        v_cmp_ne_u32 vcc, 0, v61
        s_cbranch_vccnz L_tagok
        buffer_load_dword v61, v64, s[96:99], 0 offen sc1
        s_add_u32 s59, s59, 1
        s_cmp_gt_u32 s59, {SPIN}
        s_waitcnt vmcnt(0)
        s_cbranch_scc0 L_tag
L_tagok:
        ''')
        stamp(a, 'drain')
        a(f'''
        s_barrier
        s_cmp_lg_u32 s{WAVE}, 7
        s_cbranch_scc1 L_noflag
        s_mov_b64 exec, 0xff
        buffer_store_dwordx3 v[60:62], v63, s[{S_WS}:{S_WS+3}], s57 offen sc1
        s_mov_b64 exec, -1
L_noflag:
        ''')
        if LATE == 0:
            a('s_mov_b32 s57, s58\nv_mov_b32 v21, v24\ns_waitcnt lgkmcnt(0)')
            late_setup()
            a('s_mov_b32 s58, s57\nv_mov_b32 v24, v21')
            if WALK & 2: a(f';WALK t 8 s{WAVE} 0')
        else: a(f's_sleep {KPOLL_FIRST}')
        a(f'''
        s_mov_b32 s59, 0
        s_mov_b64 exec, 15
L_kpoll:
        buffer_load_dword v20, v24, s[{S_WS}:{S_WS+3}], s58 offen sc1
        s_add_u32 s59, s59, 1
        s_waitcnt vmcnt(0)
        v_cmp_ne_u32 vcc, v20, v61
        s_and_b64 exec, exec, vcc
        s_cbranch_execz L_kdone
        s_cmp_gt_u32 s59, {SPIN}
        s_cbranch_scc1 L_kdone
        s_sleep {KPOLL_SLEEP}
        s_branch L_kpoll
L_kdone:
        s_mov_b64 exec, -1
        ''')
        stamp(a, 'kin')
        for t in range(PRE[0]):
            a(f's_setprio {max(3 - t, 0)}'); kv_load(vm, t)
        a('s_mov_b32 s57, s58')
        if LATE == 1:
            a('s_waitcnt lgkmcnt(0)'); late_setup()
        a(f'''
        s_setprio 3
        s_cmp_ge_u32 s{WAVE}, 4
        s_cbranch_scc1 L_flagsin
        s_lshl_b32 s59, s{WAVE}, 13
        s_add_u32 s58, s57, s59
        v_lshlrev_b32 v24, 7, v{LANE}
        s_mov_b32 s59, 0
L_fpoll:
        buffer_load_dwordx2 v[20:21], v24, s[{S_WS}:{S_WS+3}], s58 offen sc1
        s_add_u32 s59, s59, 1
        s_waitcnt vmcnt(0)
        v_cmp_ne_u32 vcc, v20, v61
        s_and_b64 exec, exec, vcc
        s_cbranch_execz L_fdone
        s_cmp_gt_u32 s59, {SPIN}
        s_cbranch_scc1 L_fdone
        s_sleep {FPOLL_SLEEP}
        s_branch L_fpoll
L_fdone:
        s_mov_b64 exec, -1
L_flagsin:
        s_barrier
        ''')
        stamp(a, 'sync')
        first_loads()
        if LATE == 2:
            a('s_waitcnt lgkmcnt(0)'); late_setup()
    qprep(a, vm, stamp)
    a(f'''
    s_mov_b32 s58, {X_FLAG}
    v_lshl_add_u32 v26, v5, 2, s58
    ''')
    stamp(a, 'q2')
    for t in range(PRE[0] + PRE[1], sum(PRE)): kv_load(vm, t)
    stamp(a, 'q3')
    a(f'''
    s_waitcnt lgkmcnt(0)
    s_barrier
    ds_read_b32 v27, v26
    ''')
    stamp(a, 'bar')
    for r in q_reads(False): a(r)
    a(f'''
    s_waitcnt lgkmcnt(2)
    v_cmp_ne_u32 vcc, 0, v27
    ''')
    return vm

def true_max(a, vm):
    a('L_slow:')
    for t in range(sum(PRE), 8): kv_load(vm, t)
    a(f'''
    v_cndmask_b32 v16, 0, v16, s[68:69]
    v_mov_b32 v19, v16
    s_waitcnt lgkmcnt(0)
    s_barrier
    ds_write_b128 v24, v[16:19] offset:1024
    v_add_u32 v{QAD}, {LQ}, v{L16}
    s_lshl_b32 s58, s{WAVE}, 7
    s_add_u32 s58, s58, {X_PMAX}
    v_lshl_add_u32 v25, v3, 2, s58
    s_mov_b32 s{S_CNT}, 8
    s_waitcnt vmcnt(0) lgkmcnt(0)
    s_barrier
L_mx:
    ''')
    vm.q = []
    for r in q_reads(True): a(r)
    a(f'v_mov_b32 v{MV}, 0xff800000\ns_waitcnt lgkmcnt(0)')
    for t in range(8):
        a(qkx(SA, t)); a(qkm(SA, t)); a('s_nop 11')
        for r in range(0, 16, 2): a(f'v_max3_f32 v{MV}, v{MV}, v{SA+r}, v{SA+r+1}')
        a('s_nop 7')
    a(f'''
    v_mov_b32 v26, v{MV}
    s_nop 1
    v_permlane32_swap_b32 v{MV}, v26
    v_max_f32 v{MV}, v{MV}, v26
    ds_write_b32 v25, v{MV}
    v_add_u32 v25, 1024, v25
    s_sub_u32 s{S_CNT}, s{S_CNT}, 1
    s_cmp_lg_u32 s{S_CNT}, 0
    s_cbranch_scc1 L_mx
    v_and_b32 v3, 31, v{LANE}
    s_lshl_b32 s58, s{WAVE}, 10
    s_add_u32 s58, s58, {X_PMAX}
    v_lshl_add_u32 v25, v3, 2, s58
    s_waitcnt lgkmcnt(0)
    s_barrier
    ''')
    for i in range(4): a(f'ds_read2_b32 v[{2*i+8}:{2*i+9}], v25 offset0:{64*i} offset1:{64*i+32}')
    a(f'''
    s_mov_b32 s58, {X_MAX}
    v_lshl_add_u32 v82, v3, 2, s58
    s_lshl_b32 s58, s{WAVE}, 7
    v_add_u32 v25, s58, v82
    s_waitcnt lgkmcnt(0)
    v_max3_f32 v8, v8, v9, v10
    v_max3_f32 v8, v8, v11, v12
    v_max3_f32 v8, v8, v13, v14
    v_max_f32 v8, v8, v15
    ds_write_b32 v25, v8
    ''')
    if 'dumpm' in DIAG:
        a(f's_lshl_b32 s58, s2, 3\ns_add_u32 s58, s58, s{WAVE}\ns_lshl_b32 s58, s58, 7\ns_add_u32 s58, s58, {WS_STAMP}\nv_lshlrev_b32 v9, 2, v3\nbuffer_store_dword v8, v9, s[{S_WS}:{S_WS+3}], s58 offen\ns_waitcnt vmcnt(0)')
    a(f'''
    v_add_u32 v{QAD}, {LQ}, v{L16}
    s_waitcnt lgkmcnt(0)
    s_barrier
    ''')
    for r in q_reads(True): a(r)

def k2(name, stamp=nomark):
    import pads
    t = pads.apply(k2_(name, stamp))
    out, inloop = [], False
    for l in t.split('\n'):
        s = l.strip()
        if s.endswith('_loop:'): inloop = True
        if inloop:
            if 'nowo' in DIAG and s.startswith('buffer_load') and 'lds' not in s: continue
            if 'nodma' in DIAG and s.startswith('buffer_load') and 'lds' in s: continue
            if 'noop' in DIAG and '16x16x64' in s: continue
            if 'novm' in DIAG and 'vmcnt' in s: continue
            if 'nobar' in DIAG and s == 's_barrier': continue
            if 'nods' in DIAG and (s.startswith('ds_') or 'lgkmcnt' in s): continue
            if 'novalu' in DIAG and (s.startswith('v_pk') or s.startswith('v_add') or s.startswith('v_rcp') or s.startswith('v_cvt')): continue
            if 'nopv' in DIAG and '32x32x32' in s: continue
            if 'noqk' in DIAG and ('32x32x16' in s or ('32x32x8' in s and ' v[' in s[:32])): continue
            if 'noqx' in DIAG and ('32x32x8' in s and ' v[' in s[:32]): continue
            if 'noexp' in DIAG and s.startswith('v_exp'): l = l.replace('v_exp_f32', 'v_nop ;')
            if 'noprio' in DIAG and s.startswith('s_setprio'): continue
        if s.startswith('s_cbranch_scc1') and s.endswith('_loop'): inloop = False
        out.append(l)
    return '\n'.join(out)

def k2_(name, stamp=nomark):
    a = Asm()
    a(f'.globl {name}\n.p2align 8\n.type {name},@function\n{name}:')
    if FUSED:
        import k1
        k1.entry(a, stamp, 'L_k2_exit')
        def done(a): a('s_branch L_p1done')
        k1.phase1(a, True, stamp, done)
        a.l = k1.diag(a.text()).rstrip('\n').split('\n')
    vm = prologue(a, stamp)
    a(';PAD -')
    stamp(a, 'prol')
    a(f's_cbranch_vccnz L_slow\ns_cmp_ge_u32 s{WAVE}, 4\ns_cbranch_scc1 L_f4')
    q0 = list(vm.q)
    attention(a, 5, False, 'L_a5', vm, stamp, sum(PRE))
    a('L_f4:')
    vm.q = list(q0)
    attention(a, 4, False, 'L_a4', vm, stamp, sum(PRE))
    tail(a, stamp)
    vm.q = list(q0)
    true_max(a, vm)
    a(f's_cmp_ge_u32 s{WAVE}, 4\ns_cbranch_scc1 L_s4')
    attention(a, 5, True, 'L_b5', vm, nomark, 8)
    a('L_s4:')
    vm.q = []
    attention(a, 4, True, 'L_b4', vm, nomark, 8)
    a('L_k2_exit:\ns_endpgm')
    return a.text()
```

```python
from common import *

K1_LDS = 162816
TQ, TKV = 79, 96
ONES = 0x3f803f80
LOOK = 2
LA = 3
KV_VM, KV_KE, KV_VE = 16384, 32768, 32768 + 9216 + 64
XOFF = {'q': 65536, 'kv': 51328}
EX_OFF = 161920
ST = ' sc1'
QROW = 144
DIAG = set()
FUSED = False
TOUCH = 0
CODEPF = 1
XP, WP, GP = '', '', ' nt'
ROTC = (4, 4, 1)
PREW = 1
CLR_AT = 9
ROT = 1
WALK = 0

def bf_round(a, dst, src):
    a(f'v_cvt_pk_bf16_f32 v{dst}, v{src}, v{src}\nv_and_b32 v{dst}, 0xffff0000, v{dst}')

def rot_next(a, s, step, lim):
    a(f's_add_u32 s{s}, s{s}, {step}\ns_cmp_ge_u32 s{s}, {lim}\ns_cselect_b32 s{s}, 0, s{s}')

def mf16(d, x, y, first): return f'v_mfma_f32_16x16x32_bf16 v[{d}:{d+3}], {x}, {y}, ' + ('0' if first else f'v[{d}:{d+3}]')
def smf16(d, x, y, idx): return f'v_smfmac_f32_16x16x64_bf16 v[{d}:{d+3}], {x}, {y}, v{idx}'

BARS = [0, 1, 2, 3, 4, 5, 6, 7, 8]
def kloop(a, vm, reads, mfmas, issue, extra=None, walk=None):
    L = Lgkm(a)
    nxt = [2]
    def capture(upto):
        keep, a.l = a.l, []
        while nxt[0] <= upto:
            issue(nxt[0]); nxt[0] += 1
        got, a.l = a.l, keep
        chunks, cur, masked, seen = [], [], False, False
        for l in got:
            cur.append(l); w = l.strip()
            if w == 's_mov_b64 exec, -1': masked = False
            elif 'saveexec' in w or w.split()[1].startswith('exec'): masked = True
            if w.startswith('buffer_'): seen = True
            if seen and not masked: chunks.append(cur); cur, seen = [], False
        assert not masked
        if cur:
            if chunks: chunks[-1] += cur
            else: chunks.append(cur)
        return ['\n'.join(c) for c in chunks]
    def stage(t):
        if t % 2 == 0 and t // 2 in BARS:
            u = t // 2
            last = ([b for b in BARS if b > u] + [9])[0] - 1
            vm.need(*range(u, last + 1))
            a('s_barrier')
            STAMP(a, f'u{u}')
            return last
    for c in capture(([b for b in BARS if b > 0])[0] - 1 + LA - 1): a(c)
    if walk and WALK: a(walk)
    for t in range(LOOK):
        last = stage(t)
        for tag, ins in reads(t): L.issue(tag, ins)
        if last is not None:
            for c in capture(last + LA): a(c)
    for t in range(18):
        R = []
        if t + LOOK < 18:
            last = stage(t + LOOK)
            R = [('r', x) for x in reads(t + LOOK)]
            if last is not None: R += [('e', c) for c in capture(last + LA)]
        if extra: R += [('e', x) for x in extra(t)]
        for kind, x in weave([('m', x) for x in mfmas(t)], R):
            if kind == 'r': L.issue(*x)
            elif kind == 'e': a(x)
            else:
                L.need(*x[0]); a(x[1])

def stats_raw(GR, SX, V, M, T0):
    return f'''
    v_cndmask_b32 v{V}, 0, v{GR}, s[36:37]
    v_cndmask_b32 v{V}, v{V}, v{GR+1}, s[38:39]
    v_cndmask_b32 v{V}, v{V}, v{GR+2}, s[40:41]
    v_cndmask_b32 v{V}, v{V}, v{GR+3}, s[42:43]
    v_mov_b32 v{M}, v{SX}
    v_mov_b32 v{T0}, v{V}
    s_nop 1
    v_permlane32_swap_b32 v{SX}, v{M}
    v_permlane32_swap_b32 v{V}, v{T0}
    v_add_f32 v{M}, v{SX}, v{M}
    v_add_f32 v{V}, v{V}, v{T0}
    v_mov_b32 v{T0}, v{V}
    v_mul_f32 v{M}, {hx(f32(1.0/D))}, v{M}
    s_nop 0
    v_permlane16_swap_b32 v{V}, v{T0}
    v_add_f32 v{V}, v{V}, v{T0}
    '''

def stats_fin(V, M, T0, mul):
    r = lambda x: f'v_cvt_pk_bf16_f32 v{x}, v{x}, v{x}\nv_and_b32 v{x}, 0xffff0000, v{x}\n'
    return (f'v_mul_f32 v{T0}, v{M}, v{M}\nv_fma_f32 v{V}, v{V}, s58, -v{T0}\nv_max_f32 v{V}, 0, v{V}\n' + r(V)
            + f'v_add_f32 v{V}, {hx(f32(1e-5))}, v{V}\n' + r(V) + f'v_sqrt_f32 v{V}, v{V}\n' + r(M) + r(V)
            + f'v_rcp_f32 v{V}, v{V}\ns_nop 0\n' + (f'v_mul_f32 v{V}, {hx(f32(mul))}, v{V}\n' if mul != 1.0 else ''))
def lines(t): return [l.strip() for l in t.split('\n') if l.strip()]

def stat_consts(a, ONE, IDX, sx):
    for i in range(4): a(f'v_mov_b32 v{ONE+i}, {hx(ONES)}')
    for r in sx:
        for i in range(4): a(f'v_mov_b32 v{r+i}, 0')
    a(f'''
    v_mov_b32 v{IDX}, 0x4444
    v_mov_b32 v12, 0xeeee
    v_cmp_lt_u32 vcc, 7, v2
    s_mov_b32 s36, 0x00100001
    s_mov_b32 s37, 0x10000100
    v_cndmask_b32 v{IDX}, v{IDX}, v12, vcc
    s_lshl_b64 s[38:39], s[36:37], 1
    s_lshl_b64 s[40:41], s[36:37], 2
    s_lshl_b64 s[42:43], s[36:37], 3
    s_mov_b32 s58, {hx(f32(1.0/D))}
    ''')

def x_read_addr(a, XRA, base):
    a(f'''
    v_lshrrev_b32 v11, 1, v2
    v_xor_b32 v11, v11, v3
    v_lshlrev_b32 v11, 4, v11
    v_lshl_add_u32 v11, v2, 7, v11
    v_add_u32 v{XRA}, s{base}, v11
    v_xor_b32 v{XRA+1}, 64, v{XRA}
    ''')

def clears(vm, hs, R, flagw):
    a = vm.a
    a(f'''
    v_mov_b32 v{R}, -1
    v_mov_b32 v{R+1}, -1
    v_mov_b32 v{R+2}, -1
    v_mov_b32 v{R+3}, -1
    s_lshl_b32 s46, s{hs}, 11
    s_cmp_lt_u32 s{hs}, 2
    s_cselect_b32 s46, s46, 0x7f000000
    v_lshl_add_u32 v{R+5}, v1, 4, s46
    s_mul_i32 s47, s2, 3600
    s_add_u32 s47, s47, {WS_ROWS}
    ''')
    vm.issue('c', f'buffer_store_dwordx4 v[{R}:{R+3}], v{R+5}, s[32:35], s47 offen{ST}')
    a(f'v_cmp_gt_u32 vcc, {3600 - 1024}, v{R+5}\nv_mov_b32 v{R+4}, 0x7f000000\nv_lshrrev_b32 v{R+6}, 3, v1\nv_cndmask_b32 v{R+5}, v{R+4}, v{R+5}, vcc')
    vm.issue('c', f'buffer_store_dwordx4 v[{R}:{R+3}], v{R+5}, s[32:35], s47 offen offset:1024{ST}')
    a(f'''
    s_mov_b32 s50, {GRAN_REP}
    v_mul_lo_u32 v{R+6}, s50, v{R+6}
    v_and_b32 v{R+7}, 7, v1
    s_cmp_eq_u32 s{hs}, {flagw}
    s_cselect_b32 s46, 0, 0x7f000000
    v_lshl_add_u32 v{R+7}, v{R+7}, 4, s46
    v_add_u32 v{R+6}, v{R+7}, v{R+6}
    s_lshl_b32 s47, s26, 7
    s_add_u32 s47, s47, {WS_GRAN}
    ''')
    vm.issue('c', f'buffer_store_dwordx4 v[{R}:{R+3}], v{R+6}, s[32:35], s47 offen{ST}')

def q_common(a):
    a(f'''
    v_lshrrev_b32 v9, 3, v1
    v_and_b32 v10, 7, v1
    v_mul_u32_u24 v5, {ROWB}, v9
    s_and_b32 s24, s16, 1
    s_lshl_b32 s25, s24, 2
    v_and_b32 v11, 2, v9
    v_xor_b32 v11, v11, v10
    v_xor_b32 v11, s25, v11
    v_lshl_add_u32 v6, v11, 4, v5
    v_lshrrev_b32 v11, 1, v9
    v_xor_b32 v11, v11, v10
    v_xor_b32 v11, s25, v11
    v_lshl_add_u32 v7, v11, 4, v5
    s_mul_i32 s20, s17, {TQ}
    s_lshl_b32 s23, s16, 3
    s_add_u32 s23, s23, s20
    s_add_u32 s23, s23, 1
    s_mul_i32 s23, s23, {ROWB}
    s_mul_i32 s27, s16, {8*ROWB}
    s_lshl_b32 s44, s18, 7
    s_add_u32 s27, s27, s44
    s_lshl_b32 s21, s16, 10
    s_lshr_b32 s56, s16, 1
    s_mul_i32 s56, s56, 18432
    s_lshl_b32 s24, s24, 10
    s_add_u32 s56, s56, s24
    s_add_u32 s56, s56, {XOFF['q']}
    ''')
    if ROT:
        a(f'''
        s_mul_i32 s57, s18, {ROTC[0]}
        s_lshr_b32 s57, s57, 4
        s_mul_i32 s57, s57, {ROTC[1]}
        s_mul_i32 s19, s17, {ROTC[2]}
        s_add_u32 s19, s19, s57
        s_mul_i32 s57, s19, 57
        s_lshr_b32 s57, s57, 9
        s_mul_i32 s57, s57, 9
        s_sub_u32 s19, s19, s57
        s_lshl_b32 s57, s19, 7
        s_add_u32 s23, s23, s57
        s_mul_i32 s22, s19, {64*ROWB}
        s_add_u32 s27, s27, s22
        s_sub_u32 s19, 9, s19
        ''')

XG = {0: [0], 1: [1, 2], 2: [3, 4], 3: [5], 4: [6], 5: [7], 6: [8]}
LEAD = {0: [0, 1], 1: [], 2: [2, 3, 4], 3: [5], 4: [6, 7, 8]}
def q_issue(vm, u, small):
    a = vm.a
    if u > 8: return
    def xs(w):
        if ROT and w:
            a(f's_cmp_eq_u32 s19, {w}\ns_cselect_b32 s22, {ROWB}, 0\ns_sub_u32 s23, s23, s22' + ('\ns_sub_u32 s24, s24, s22' if small else ''))
        a(f's_add_u32 m0, s56, {w*2048 - w*128}\ns_nop 0')
        vm.issue(u, f'buffer_load_dwordx4 v7, s[28:31], s23 offen offset:{w*128}{XP} lds')
        if small:
            a(f's_add_u32 m0, s25, {w*2048 - w*128}\ns_mov_b64 exec, s[64:65]')
            vm.issue(u, f'buffer_load_dwordx4 v8, s[28:31], s24 offen offset:{w*128}{XP} lds')
            a('s_mov_b64 exec, -1')
    g = XG.get(u, [])
    if u == 0: xs(g[0]); g = g[1:]
    a(f's_add_u32 m0, s21, {(u % 8) * 8192}\ns_nop 0')
    vm.issue(u, f'buffer_load_dwordx4 v6, s[60:63], s27 offen{WP} lds')
    if u < 8:
        a(f's_add_u32 s27, s27, {64*ROWB}')
        if ROT: a(f's_cmp_eq_u32 s19, {u+1}\ns_cselect_b32 s22, {D*ROWB}, 0\ns_sub_u32 s27, s27, s22')
    for w in g: xs(w)

def q_first(a, vm, small):
    a(f's_setprio 3\ns_waitcnt lgkmcnt(0)\ns_sub_u32 s28, s28, {ROWB}\ns_subb_u32 s29, s29, 0')
    STAMP(a, 'karg')
    q_issue(vm, 0, small)
    a('s_setprio 2')
    q_issue(vm, 1, small)
    a('s_setprio 0')

def q_tra(a, TRA):
    a(f'''
    v_bfe_u32 v12, v1, 2, 2
    v_and_b32 v13, 3, v1
    v_lshl_add_u32 v9, v3, 3, v12
    v_lshlrev_b32 v9, 7, v9
    v_lshl_add_u32 v9, v13, 3, v9
    v_lshrrev_b32 v10, 1, v12
    v_and_b32 v11, 1, v3
    v_lshl_add_u32 v10, v11, 1, v10
    v_lshl_add_u32 v{TRA}, v10, 5, v9
    v_xor_b32 v{TRA}, s45, v{TRA}
    ''')

def q_big(a, stamp, done):
    ACC, WB, XB, TRA, XRA = 16, 0, 24, 32, 34
    vm = Vm(a)
    q_first(a, vm, False)
    stamp(a, 'issued')
    a(f'''
    v_and_b32 v2, 15, v1
    v_lshrrev_b32 v3, 4, v1
    s_lshr_b32 s46, s16, 1
    s_mul_i32 s47, s46, {2*18432}
    s_add_u32 s47, s47, {XOFF['q']}
    s_and_b32 s45, s16, 1
    s_lshl_b32 s45, s45, 6
    ''')
    x_read_addr(a, XRA, 47)
    q_tra(a, TRA)
    a(f'''
    v_xor_b32 v{TRA+1}, 32, v{TRA}
    s_lshl_b32 s46, s46, 5
    v_add_u32 v4, s46, v2
    v_mul_u32_u24 v5, {QROW}, v4
    v_lshl_add_u32 v5, v3, 3, v5
    v_add_u32 v5, s45, v5
    s_lshl_b32 s45, s45, 1
    s_add_u32 s45, s45, {EX_OFF}
    v_lshl_add_u32 v14, v3, 4, s45
    s_lshl_b32 s46, s46, 3
    s_add_u32 s46, s46, {EX_OFF + 256}
    v_lshl_add_u32 v15, v2, 3, s46
    ''')
    def reads(t):
        w, x, o = WB + 8 * (t % 3), XB + 8 * (t % 3), (t % 16) * 4096
        r = []
        for j in range(2):
            r.append(((t, 'x', j), f'ds_read_b128 a[{x+4*j}:{x+4*j+3}], v{XRA + t % 2} offset:{(t // 2) * 2048 + 18432 * j}'))
            r.append(((t, 'w', j), f'ds_read_b64_tr_b16 a[{w+4*j}:{w+4*j+1}], v{TRA+j} offset:{o}'))
            r.append(((t, 'w', j), f'ds_read_b64_tr_b16 a[{w+4*j+2}:{w+4*j+3}], v{TRA+j} offset:{o+512}'))
        return r
    def mfmas(t):
        w, x = WB + 8 * (t % 3), XB + 8 * (t % 3)
        return [([(t, 'x', i), (t, 'w', j)], mf16(ACC + 8 * i + 4 * j, ar(w + 4 * j, 4), ar(x + 4 * i, 4), t == 0)) for i, j in ((0, 0), (1, 0), (0, 1), (1, 1))]
    kloop(a, vm, reads, mfmas, lambda u: q_issue(vm, u, False), walk=';WALK p 4 s16 0')
    a(';PAD p')
    stamp(a, 'loop')
    CS, SS, P = 36, 44, 48
    a(f'''
    s_barrier
    ds_read_b128 v[{CS}:{CS+3}], v14
    ds_read_b128 v[{CS+4}:{CS+7}], v14 offset:64
    ds_read_b64 v[{SS}:{SS+1}], v15
    ds_read_b64 v[{SS+2}:{SS+3}], v15 offset:128
    s_waitcnt lgkmcnt(1)
    ''')
    for i in range(2):
        if i: a('s_waitcnt lgkmcnt(0)')
        for r in range(8): a(f'v_fma_f32 v{ACC+8*i+r}, -v{SS+2*i}, v{CS+r}, v{ACC+8*i+r}')
        for r in range(8): a(f'v_mul_f32 v{ACC+8*i+r}, v{SS+2*i+1}, v{ACC+8*i+r}')
        for r in range(4): a(f'v_cvt_pk_bf16_f32 v{P+4*i+r}, v{ACC+8*i+2*r}, v{ACC+8*i+2*r+1}')
        a(f'ds_write_b64 v5, v[{P+4*i}:{P+4*i+1}] offset:{16*QROW*i}\nds_write_b64 v5, v[{P+4*i+2}:{P+4*i+3}] offset:{16*QROW*i+32}')
    a('s_branch L_q_out\n;PAD -')

def q_out(a, done):
    a(f'''
L_q_out:
    v_lshrrev_b32 v9, 3, v1
    v_and_b32 v10, 7, v1
    s_lshl_b32 s46, s16, 3
    v_add_u32 v9, s46, v9
    v_mul_u32_u24 v11, {QROW}, v9
    v_lshl_add_u32 v11, v10, 4, v11
    v_mul_u32_u24 v12, {ROWB}, v9
    v_lshl_add_u32 v12, v10, 4, v12
    s_mul_i32 s46, s20, {ROWB}
    s_lshl_b32 s47, s18, 7
    s_add_u32 s46, s46, s47
    v_add_u32 v12, s46, v12
    v_add_u32 v13, {64*ROWB}, v12
    ''')
    srd(a, 32, 6, WS_Q, SZ_Q)
    a(f'''
    s_waitcnt lgkmcnt(0)
    ''')
    STAMP(a, 'qw')
    a(f'''
    s_barrier
    ds_read_b128 v[4:7], v11
    ds_read_b128 v[16:19], v11 offset:{64*QROW}
    v_cmp_gt_u32 vcc, 15, v9
    s_waitcnt lgkmcnt(1)
    buffer_store_dwordx4 v[4:7], v12, s[32:35], 0 offen{ST}
    s_and_b64 exec, exec, vcc
    s_cbranch_execz L_q_out2
    s_waitcnt lgkmcnt(0)
    buffer_store_dwordx4 v[16:19], v13, s[32:35], 0 offen{ST}
L_q_out2:
    s_mov_b64 exec, -1
    v_mov_b32 v29, 0
    ''')
    done(a)
    a(';PAD -')

def q_small(a, stamp, done):
    ACC, GJ, G4, SJ, S4, ONE, IDX, TRA, XRA, XR4, WG = 16, 20, 24, 28, 32, 36, 40, 41, 42, 44, 56
    WB, XJ, X4 = 0, 12, 44
    vm = Vm(a)
    a(f'''
    s_sub_u32 s59, s16, 4
    s_lshl_b32 s24, s59, 1
    v_lshrrev_b32 v11, 1, v9
    v_add_u32 v11, s24, v11
    v_xor_b32 v11, v11, v10
    v_lshl_add_u32 v8, v11, 4, v5
    s_lshl_b32 s24, s59, 2
    s_add_u32 s24, s24, s20
    s_add_u32 s24, s24, 65
    s_mul_i32 s24, s24, {ROWB}
    {'s_add_u32 s24, s24, s57' if ROT else ''}
    s_lshl_b32 s25, s59, 9
    s_add_u32 s25, s25, {XOFF['q'] + 4*18432}
    s_cmp_eq_u32 s59, 3
    s_cselect_b32 s64, 0x00ffffff, -1
    s_mov_b32 s65, 0
    ''')
    q_first(a, vm, True)
    stamp(a, 'issued')
    a('v_and_b32 v2, 15, v1\nv_lshrrev_b32 v3, 4, v1')
    stat_consts(a, ONE, IDX, (SJ, S4))
    a(f'''
    s_mov_b32 s47, {XOFF["q"] + 4*18432}
    s_cmp_eq_u32 s59, 3
    s_cbranch_scc0 L_qs_noones
    v_lshlrev_b32 v12, 4, v10
    v_add_u32 v12, s47, v12
    v_lshl_add_u32 v13, v9, 11, v12
    ds_write_b128 v13, v[{ONE}:{ONE+3}] offset:1920
    ds_write_b128 v12, v[{ONE}:{ONE+3}] offset:{8*2048+1920}
    ''')
    a(f'''
    s_waitcnt lgkmcnt(0)
L_qs_noones:
    ''')
    x_read_addr(a, XR4, 47)
    a(f's_mul_i32 s47, s59, 18432\ns_add_u32 s47, s47, {XOFF["q"]}\ns_lshl_b32 s45, s59, 5')
    x_read_addr(a, XRA, 47)
    q_tra(a, TRA)
    a(f'''
    v_add_u32 v4, 64, v2
    v_mul_u32_u24 v5, {QROW}, v4
    v_lshl_add_u32 v5, v3, 3, v5
    v_add_u32 v5, s45, v5
    s_lshl_b32 s45, s59, 6
    s_add_u32 s45, s45, {EX_OFF}
    v_lshl_add_u32 v14, v3, 4, s45
    s_lshl_b32 s46, s59, 7
    s_add_u32 s46, s46, {EX_OFF + 256}
    v_lshl_add_u32 v15, v2, 3, s46
    ''')
    srd(a, 32, 6, 0, WS_USED)
    srd(a, 8, 12, 0, D * ROWB)
    def chores():
        a(f'''
        s_lshl_b32 s66, s26, 2
        s_add_u32 s66, s66, s59
        s_and_b32 s51, s66, 1
        s_lshr_b32 s54, s66, 1
        s_mul_i32 s55, s54, 57
        s_lshr_b32 s55, s55, 11
        s_mul_i32 s45, s55, 36
        s_sub_u32 s54, s54, s45
        s_cmp_ge_u32 s55, 8
        s_cselect_b32 s45, 144, 18
        s_cselect_b32 s46, 36, 4
        s_cselect_b32 s52, 288, 36
        s_cselect_b32 s53, 18, 2
        s_mul_i32 s52, s52, {ROWB}
        s_mul_i32 s53, s53, {ROWB}
        s_mul_i32 s47, s55, 72
        s_cselect_b32 s47, 16, s47
        s_mul_i32 s45, s45, s51
        s_add_u32 s47, s47, s45
        v_mul_u32_u24 v9, s46, v3
        v_add_u32 v9, s47, v9
        v_mul_u32_u24 v9, {ROWB}, v9
        v_lshl_add_u32 v9, v2, 1, v9
        s_lshl_b32 s54, s54, 5
        s_cmp_ge_u32 s66, 648
        s_cselect_b32 s54, 0x7f000000, s54
        v_add_u32 v9, s54, v9
        s_add_u32 s54, s52, s53
        ''')
        for j in range(2):
            for q, so in enumerate(('0', 's52', 's53', 's54')):
                vm.issue('g', f'buffer_load_ushort v{WG+4*j+q}, v9, s[8:11], {so} offen offset:{ROWB*j}{GP}')
    chores()
    def issue(u):
        q_issue(vm, u, True)
        if u == CLR_AT:
            clears(vm, 59, 64, 2)
            if TOUCH:
                a(f's_mul_i32 s46, s20, {ROWB}\nv_mov_b32 v72, 0\ns_mov_b32 s8, s4\ns_mov_b32 s9, s5\ns_mov_b32 s10, 4\ns_mov_b32 s11, 0x20000')
                vm.issue('c', 'buffer_load_dword v73, v72, s[32:35], s46 offen sc1')
                vm.issue('c', 'buffer_load_dword v74, v72, s[8:11], 0 offen sc1')
    lead = lambda t: [u for u in LEAD.get(t, [t + 4]) if u < 18]
    q0 = list(vm.q)
    def loop(both):
        vm.q = list(q0)
        def reads(t):
            w, o = WB + 4 * (t % 3), (t % 16) * 4096
            r4 = lambda u: ((u, '4'), f'ds_read_b128 a[{X4+4*(u%10)}:{X4+4*(u%10)+3}], v{XR4 + u % 2} offset:{(u // 2) * 2048}')
            r = []
            for u in lead(t):
                r.append(((u, 'j'), f'ds_read_b128 a[{XJ+4*(u%8)}:{XJ+4*(u%8)+3}], v{XRA + u % 2} offset:{(u // 2) * 2048}'))
                if both: r.append(r4(u))
            if not both: r.append(r4(t))
            return r + [((t, 'w'), f'ds_read_b64_tr_b16 a[{w}:{w+1}], v{TRA} offset:{o}'),
                        ((t, 'w'), f'ds_read_b64_tr_b16 a[{w+2}:{w+3}], v{TRA} offset:{o+512}')]
        def mfmas(t):
            m = []
            for u in lead(t):
                xj, x4 = XJ + 4 * (u % 8), X4 + 4 * (u % 10)
                if u % 2:
                    m.append(([(u, 'j')], smf16(SJ, vr(ONE, 4), ar(xj - 4, 8), IDX)))
                    if both: m.append(([(u, '4')], smf16(S4, vr(ONE, 4), ar(x4 - 4, 8), IDX)))
                m.append(([(u, 'j')], mf16(GJ, ar(xj, 4), ar(xj, 4), u == 0)))
                if both: m.append(([(u, '4')], mf16(G4, ar(x4, 4), ar(x4, 4), u == 0)))
            return m + [([(t, '4'), (t, 'w')], mf16(ACC, ar(WB + 4 * (t % 3), 4), ar(X4 + 4 * (t % 10), 4), t == 0))]
        if both:
            zip2 = lambda x, y: [z for p in zip(lines(x), lines(y)) for z in p if not z.startswith('s_nop')]
            f1, f2 = zip2(stats_raw(GJ, SJ, 47, 46, 48), stats_raw(G4, S4, 51, 50, 52)), zip2(stats_fin(47, 46, 48, CQ), stats_fin(51, 50, 52, CQ))
        else: f1, f2 = lines(stats_raw(GJ, SJ, 47, 46, 48)), lines(stats_fin(47, 46, 48, CQ))
        h = len(f2) // 2
        fin = {14: ['s_nop 6'] + f1, 15: f2[:h], 16: f2[h:]}
        fin[17] = ['s_mov_b64 exec, 0xffff\nds_write_b64 v15, v[46:47]\n' + ('ds_write_b64 v15, v[50:51] offset:128\n' if both else '') + 's_mov_b64 exec, -1'] + [
            f'v_lshl_or_b32 v{WG+q}, v{WG+4+q}, 16, v{WG+q}' for q in range(4)] + [
            f's_lshl_b32 s45, s66, 10\ns_add_u32 s45, s45, {WS_WO}\ns_cmp_ge_u32 s66, 648\ns_cselect_b32 s45, 0x7f000000, s45\nv_lshl_add_u32 v9, v1, 4, s45']
        kloop(a, vm, reads, mfmas, issue, lambda t: fin.get(t, []))
    a('s_cmp_eq_u32 s59, 3\ns_cbranch_scc1 L_qs_both')
    loop(False)
    a('s_branch L_qs_join\nL_qs_both:')
    loop(True)
    a('L_qs_join:\n;PAD p')
    stamp(a, 'loop')
    a(f'''
    s_mov_b32 s48, 0x80008000
    s_mov_b32 s49, 0x80008000
    s_mov_b64 exec, s[48:49]
    ds_write_b128 v14, v[{ACC}:{ACC+3}]
    s_mov_b64 exec, -1
    buffer_store_dwordx4 v[{WG}:{WG+3}], v9, s[32:35], 0 offen{ST}
    s_mov_b32 s46, {EX_OFF + 256 + 512}
    v_lshl_add_u32 v15, v2, 3, s46
    s_waitcnt lgkmcnt(0)
    s_barrier
    ds_read_b64 v[50:51], v15
    ''')
    for r in range(4): a(f'v_mov_b32_dpp v{52+r}, v{ACC+r} row_newbcast:15 row_mask:0xf bank_mask:0xf')
    a('s_waitcnt lgkmcnt(0)')
    for r in range(4): a(f'v_fma_f32 v{ACC+r}, -v50, v{52+r}, v{ACC+r}')
    for r in range(4): a(f'v_mul_f32 v{ACC+r}, v51, v{ACC+r}')
    a(f'''
    v_cvt_pk_bf16_f32 v52, v{ACC}, v{ACC+1}
    v_cvt_pk_bf16_f32 v53, v{ACC+2}, v{ACC+3}
    ds_write_b64 v5, v[52:53]
    ''')
    q_out(a, done)

def kv_tra(a, TRA):
    a(f'''
    v_bfe_u32 v12, v1, 2, 2
    v_and_b32 v13, 3, v1
    v_lshrrev_b32 v9, 1, v3
    v_lshlrev_b32 v9, 4, v9
    v_and_b32 v10, 1, v3
    v_lshl_add_u32 v9, v10, 2, v9
    v_add_u32 v9, v9, v12
    v_lshlrev_b32 v9, 5, v9
    v_lshl_add_u32 v{TRA}, v13, 3, v9
    v_lshl_add_u32 v9, v3, 3, v12
    v_lshlrev_b32 v9, 4, v9
    v_and_b32 v10, 1, v13
    v_lshl_add_u32 v9, v10, 3, v9
    v_lshrrev_b32 v10, 1, v13
    v_mul_u32_u24 v10, {KV_VE-KV_KE}, v10
    v_add_u32 v{TRA+1}, v9, v10
    ''')

def kv_out(a, done):
    a(f'''
    s_lshl_b32 s46, s16, 10
    v_lshl_add_u32 v8, v1, 4, s46
    s_mul_i32 s47, s17, {3*KVREC}
    v_add_u32 v9, s47, v8
    s_waitcnt lgkmcnt(0)
    s_barrier
    ds_read_b128 v[4:7], v8
    v_mov_b32 v10, {EX_OFF + 256}
    ds_read_b128 v[12:15], v10
    ds_read_b64 v[16:17], v10 offset:16
    s_mov_b32 s34, {64*KVREC}
    v_cmp_gt_u32 vcc, {3*KVREC}, v8
    s_and_b64 exec, exec, vcc
    s_waitcnt lgkmcnt(2)
    buffer_store_dwordx4 v[4:7], v9, s[32:35], 0 offen{ST}
    s_mov_b64 exec, -1
    s_waitcnt lgkmcnt(0)
    v_max3_f32 v29, v12, v13, v14
    v_max3_f32 v29, v29, v15, v16
    v_max_f32 v29, v29, v17
    ''')
    done(a)

def kv_main(a, stamp, done):
    ACC, GR, SX, ONE, IDX, TRA, XRA = 16, 32, 36, 40, 44, 46, 48
    WB, XB = 0, 36
    vm = Vm(a)
    a(f'''
    v_lshrrev_b32 v9, 3, v1
    v_and_b32 v10, 7, v1
    v_lshrrev_b32 v11, 1, v9
    v_xor_b32 v11, v11, v10
    v_mul_u32_u24 v6, {ROWB}, v9
    v_lshl_add_u32 v6, v11, 4, v6
    v_xor_b32 v7, 64, v6
    v_add_u32 v7, {8*ROWB}, v7
    s_mul_i32 s20, s17, {TKV}
    s_lshl_b32 s21, s16, 4
    s_add_u32 s20, s20, s21
    s_add_u32 s23, s20, 1
    s_mul_i32 s23, s23, {ROWB}
    {"s_lshl_b32 s22, s18, 7" if ROT else ""}
    {"s_add_u32 s23, s23, s22" if ROT else ""}
    s_mul_i32 s21, s16, 18432
    s_add_u32 s21, s21, {XOFF['kv']}
    s_setprio 3
    s_waitcnt lgkmcnt(0)
    s_sub_u32 s28, s28, {ROWB}
    s_subb_u32 s29, s29, 0
    ''')
    def issue(u):
        if u > 8: return
        if ROT and u: a(f's_cmp_eq_u32 s19, {u}\ns_cselect_b32 s22, {ROWB}, 0\ns_sub_u32 s23, s23, s22')
        a(f's_add_u32 m0, s21, {u*2048 - u*128}\ns_nop 0')
        vm.issue(u, f'buffer_load_dwordx4 v6, s[28:31], s23 offen offset:{u*128}{XP} lds')
        a(f's_add_u32 m0, s21, {u*2048 + 1024 - u*128}\ns_nop 0')
        vm.issue(u, f'buffer_load_dwordx4 v7, s[28:31], s23 offen offset:{u*128}{XP} lds')
    issue(0); a('s_setprio 2'); issue(1); a('s_setprio 0')
    stamp(a, 'issued')
    a('v_and_b32 v2, 15, v1\nv_lshrrev_b32 v3, 4, v1')
    stat_consts(a, ONE, IDX, (SX,))
    x_read_addr(a, XRA, 21)
    kv_tra(a, TRA)
    srd(a, 32, 6, WS_KV, WS_WO - WS_KV)
    a(f'''
    s_mov_b32 s47, {EX_OFF}
    v_lshl_add_u32 v51, v3, 4, s47
    s_lshr_b32 s46, s16, 1
    s_mul_i32 s46, s46, {KVREC}
    s_and_b32 s47, s16, 1
    s_lshl_b32 s47, s47, 4
    v_add_u32 v4, s47, v2
    v_lshl_add_u32 v54, v4, 4, s46
    v_lshrrev_b32 v55, 1, v3
    v_lshl_add_u32 v54, v55, 9, v54
    v_and_b32 v55, 1, v3
    v_lshl_add_u32 v54, v55, 3, v54
    v_lshrrev_b32 v55, 3, v4
    v_mul_u32_u24 v55, 304, v55
    v_add_u32 v55, s46, v55
    v_and_b32 v56, 7, v4
    v_lshl_add_u32 v55, v56, 1, v55
    v_lshl_add_u32 v57, v3, 6, v55
    v_lshl_add_u32 v58, v4, 2, s46
    v_mov_b32 v59, 0x3f80
    ''')
    def reads(t):
        w, o = WB + 12 * (t % 3), (t % 16) * 1024
        return [((t, 'x'), f'ds_read_b128 a[{XB+4*(t%4)}:{XB+4*(t%4)+3}], v{XRA + t % 2} offset:{(t // 2) * 2048}'),
                ((t, 0), f'ds_read_b64_tr_b16 a[{w}:{w+1}], v{TRA} offset:{o}'),
                ((t, 0), f'ds_read_b64_tr_b16 a[{w+2}:{w+3}], v{TRA} offset:{o+256}'),
                ((t, 1), f'ds_read_b64_tr_b16 a[{w+4}:{w+5}], v{TRA} offset:{KV_VM+o}'),
                ((t, 1), f'ds_read_b64_tr_b16 a[{w+6}:{w+7}], v{TRA} offset:{KV_VM+o+256}'),
                ((t, 2), f'ds_read_b64_tr_b16 a[{w+8}:{w+9}], v{TRA+1} offset:{KV_KE+t*512}'),
                ((t, 2), f'ds_read_b64_tr_b16 a[{w+10}:{w+11}], v{TRA+1} offset:{KV_KE+t*512+64}')]
    def mfmas(t):
        w, x = WB + 12 * (t % 3), XB + 4 * (t % 4)
        m = [([(t, 'x')], smf16(SX, vr(ONE, 4), ar(x - 4, 8), IDX))] if t % 2 else []
        m += [([(t, 'x')], mf16(GR, ar(x, 4), ar(x, 4), t == 0))]
        return m + [([(t, 'x'), (t, j)], mf16(ACC + 4 * j, ar(w + 4 * j, 4), ar(x, 4), t == 0)) for j in range(3)]
    kloop(a, vm, reads, mfmas, issue, walk=';WALK k 4 s16 0')
    a(';PAD k')
    stamp(a, 'loop')
    a('s_nop 4')
    a(stats_raw(GR, SX, 48, 50, 49))
    a(stats_fin(48, 50, 49, 1.0))
    a('s_barrier')
    CS, P = 60, 72
    for j in range(3): a(f'ds_read_b128 v[{CS+4*j}:{CS+4*j+3}], v51 offset:{64*j}')
    a('s_mov_b32 s48, 0xffff0000\ns_mov_b32 s49, 0\ns_mov_b32 s50, 0\ns_mov_b32 s51, 0xffff0000')
    for j in range(3):
        a(f's_waitcnt lgkmcnt({2-j})')
        for i in range(4 * j, 4 * j + 4): a(f'v_fma_f32 v{ACC+i}, -v50, v{CS+i}, v{ACC+i}')
    for i in range(12): a(f'v_mul_f32 v{ACC+i}, v48, v{ACC+i}')
    for i in range(6): a(f'v_cvt_pk_bf16_f32 v{P+i}, v{ACC+2*i}, v{ACC+2*i+1}')
    a(f'''
    ds_write_b64 v54, v[{P}:{P+1}]
    ds_write_b16 v57, v{P+2} offset:{KV_V}
    ds_write_b16_d16_hi v57, v{P+2} offset:{KV_V+16}
    ds_write_b16 v57, v{P+3} offset:{KV_V+32}
    ds_write_b16_d16_hi v57, v{P+3} offset:{KV_V+48}
    s_mov_b64 exec, s[48:49]
    ds_write_b32 v58, v{P+5} offset:{KV_X}
    ds_write_b32 v58, v59 offset:{KV_X+128}
    s_mov_b64 exec, s[50:51]
    ds_write_b16 v55, v{P+5} offset:{KV_V+256}
    ds_write_b16_d16_hi v55, v{P+5} offset:{KV_V+272}
    ds_write_b16 v55, v59 offset:{KV_V+288}
    s_mov_b64 exec, -1
    v_cndmask_b32 v60, 0, v{P+5}, s[48:49]
    v_mov_b32 v61, 0
    v_dot2c_f32_bf16 v61, v{P}, v{P}
    v_dot2c_f32_bf16 v61, v{P+1}, v{P+1}
    v_dot2c_f32_bf16 v61, v60, v60
    s_nop 2
    v_mov_b32 v62, v61
    s_nop 1
    v_permlane32_swap_b32 v61, v62
    v_add_f32 v61, v61, v62
    v_mov_b32 v62, v61
    s_nop 1
    v_permlane16_swap_b32 v61, v62
    v_add_f32 v61, v61, v62
    s_nop 1
    v_max_f32_dpp v61, v61, v61 row_ror:8 row_mask:0xf bank_mask:0xf
    s_nop 1
    v_max_f32_dpp v61, v61, v61 row_ror:4 row_mask:0xf bank_mask:0xf
    s_nop 1
    v_max_f32_dpp v61, v61, v61 row_ror:2 row_mask:0xf bank_mask:0xf
    s_nop 1
    v_max_f32_dpp v61, v61, v61 row_ror:1 row_mask:0xf bank_mask:0xf
    s_lshl_b32 s46, s16, 2
    s_add_u32 s46, s46, {EX_OFF + 256}
    v_mov_b32 v62, s46
    ds_write_b32 v62, v61
    s_branch L_kv_out
;PAD -
    ''')

def kv_helper(a, stamp, done):
    ACC, ONE, TRA, WB = 16, 24, 28, 0
    vm = Vm(a)
    a(f'''
    s_sub_u32 s23, s16, 6
    v_lshrrev_b32 v2, 1, v1
    v_and_b32 v3, 0x13, v2
    v_bfe_u32 v4, v2, 2, 1
    v_bfe_u32 v5, v2, 3, 1
    v_lshl_add_u32 v3, v4, 3, v3
    v_lshl_add_u32 v3, v5, 2, v3
    v_mul_u32_u24 v3, 36, v3
    v_and_b32 v4, 1, v1
    v_lshl_add_u32 v6, v4, 4, v3
    v_mul_u32_u24 v7, 36, v1
    v_add_u32 v7, 20, v7
    {f's_mul_i32 s22, s18, {2*ROWB}' if ROT else 's_mov_b32 s22, 0'}
    s_mul_i32 s20, s23, {KV_VM}
    s_mul_i32 s21, s23, {KV_VE-KV_KE}
    s_add_u32 s21, s21, {KV_KE}
    s_setprio 3
    s_waitcnt lgkmcnt(0)
    s_cmp_eq_u32 s23, 0
    s_cselect_b32 s28, s8, s10
    s_cselect_b32 s29, s9, s11
    s_mov_b32 s30, {D*36}
    s_mov_b32 s31, 0x20000
    ''')
    def issue(u):
        if u == CLR_AT:
            clears(vm, 23, 32, 0)
            if TOUCH:
                a(f'v_mov_b32 v40, 0\ns_mov_b32 s8, s4\ns_mov_b32 s9, s5\ns_mov_b32 s10, 4\ns_mov_b32 s11, 0x20000\ns_mov_b32 s46, {WS_KV}')
                vm.issue('c', 'buffer_load_dword v41, v40, s[32:35], s46 offen sc1')
                vm.issue('c', 'buffer_load_dword v42, v40, s[8:11], 0 offen sc1')
        if u > 8: return
        a(f's_add_u32 m0, s21, {u*1024}\ns_nop 0')
        vm.issue(u, 'buffer_load_dwordx4 v7, s[28:31], s22 offen lds')
        a(f's_add_u32 m0, s20, {(u%8)*2048}\ns_nop 0')
        vm.issue(u, 'buffer_load_dwordx4 v6, s[28:31], s22 offen lds')
        a(f's_add_u32 m0, s20, {(u%8)*2048+1024}\ns_add_u32 s22, s22, {ROWB}')
        vm.issue(u, f'buffer_load_dwordx4 v6, s[28:31], s22 offen lds')
        if u < 8:
            a(f's_add_u32 s22, s22, {ROWB}')
            if ROT: a(f's_cmp_eq_u32 s19, {u+1}\ns_cselect_b32 s22, 0, s22')
    issue(0); a('s_setprio 2'); issue(1); a('s_setprio 0')
    a(f'''
    s_cmp_eq_u32 s26, 255
    s_cselect_b32 s46, s23, 0
    s_cmp_eq_u32 s46, 1
    s_cbranch_scc0 L_notag
    s_add_u32 s32, s6, {WS_NONCE}
    s_addc_u32 s33, s7, 0
    s_load_dword s46, s[32:33], 0
    s_mov_b32 s34, 4
    s_mov_b32 s35, 0x20000
    s_mov_b32 s8, s4
    s_mov_b32 s9, s5
    s_mov_b32 s10, 4
    s_mov_b32 s11, 0x20000
    v_mov_b32 v13, 0
    s_waitcnt lgkmcnt(0)
    s_add_u32 s46, s46, 1
    s_add_u32 s47, s46, 1
    s_cmp_lt_u32 s47, 2
    s_cselect_b32 s46, 1, s46
    v_mov_b32 v12, s46
    s_mov_b64 exec, 1
    buffer_store_dword v12, v13, s[8:11], 0 offen sc1
    buffer_store_dword v12, v13, s[32:35], 0 offen sc1
    s_mov_b64 exec, -1
L_notag:
    ''')
    srd(a, 32, 6, 0, WS_USED)
    a('v_lshrrev_b32 v3, 4, v1')
    kv_tra(a, TRA)
    a(f'v_add_u32 v{TRA}, s20, v{TRA}')
    for i in range(4): a(f'v_mov_b32 v{ONE+i}, {hx(ONES)}')
    def reads(t):
        w, o = WB + 8 * (t % 3), (t % 16) * 1024
        return [((t, 0), f'ds_read_b64_tr_b16 a[{w}:{w+1}], v{TRA} offset:{o}'),
                ((t, 0), f'ds_read_b64_tr_b16 a[{w+2}:{w+3}], v{TRA} offset:{o+256}'),
                ((t, 1), f'ds_read_b64_tr_b16 a[{w+4}:{w+5}], v{TRA+1} offset:{KV_KE+t*512}'),
                ((t, 1), f'ds_read_b64_tr_b16 a[{w+6}:{w+7}], v{TRA+1} offset:{KV_KE+t*512+64}')]
    def mfmas(t):
        w = WB + 8 * (t % 3)
        return [([(t, j)], mf16(ACC + 4 * j, ar(w + 4 * j, 4), vr(ONE, 4), t == 0)) for j in range(2)]
    kloop(a, vm, reads, mfmas, issue)
    a(f'''
    s_lshl_b32 s46, s23, 6
    s_add_u32 s46, s46, {EX_OFF}
    v_lshl_add_u32 v8, v3, 4, s46
    s_mov_b32 s46, {EX_OFF + 128}
    v_lshl_add_u32 v9, v3, 4, s46
    s_mov_b32 s48, 0x00010001
    s_mov_b32 s49, 0x00010001
    s_mov_b64 exec, s[48:49]
    s_nop 1
    ds_write_b128 v8, v[{ACC}:{ACC+3}]
    ds_write_b128 v9, v[{ACC+4}:{ACC+7}]
    s_mov_b64 exec, -1
    s_waitcnt lgkmcnt(0)
    s_barrier
    ''')
    srd(a, 32, 6, WS_KV, WS_WO - WS_KV)
    a('L_kv_out:\n;PAD k')
    kv_out(a, done)
    a(';PAD -')

def decode(a, rotate):
    a(f'''
    v_lshrrev_b32 v2, 6, v0
    v_and_b32 v1, 63, v0
    s_and_b32 s20, s2, 7
    v_readfirstlane_b32 s16, v2
    s_lshr_b32 s21, s2, 3
    s_mul_i32 s22, s20, 29
    s_mul_i32 s23, s20, 3
    s_cmp_eq_u32 s20, 7
    s_cselect_b32 s24, 1, 0
    s_add_u32 s22, s22, s24
    s_sub_u32 s23, s23, s24
    s_cmp_ge_u32 s20, 6
    s_cselect_b32 s24, 30, 29
    s_cmp_ge_u32 s21, s24
    s_cbranch_scc1 L_k1_kv
    s_add_u32 s26, s22, s21
    s_mul_i32 s17, s26, 57
    s_lshr_b32 s17, s17, 9
    s_mul_i32 s18, s17, 9
    s_sub_u32 s18, s26, s18
    ''')

def phase1(a, rotate, stamp, done):
    global STAMP
    STAMP = stamp
    decode(a, rotate)
    q_common(a)
    a('s_cmp_ge_u32 s16, 4\ns_cbranch_scc1 L_k1_qs')
    q_big(a, stamp, done)
    a('L_k1_qs:')
    q_small(a, stamp, done)
    a('L_k1_kv:\ns_sub_u32 s17, s21, s24\ns_add_u32 s17, s17, s23\ns_add_u32 s26, s17, 234')
    a('s_sub_u32 s19, s21, s24\ns_mul_i32 s18, s19, 3\ns_sub_u32 s19, 9, s18')
    a('s_cmp_ge_u32 s16, 6\ns_cbranch_scc1 L_k1_hkv')
    kv_main(a, stamp, done)
    a('L_k1_hkv:')
    kv_helper(a, stamp, done)

def entry(a, stamp, exit_label):
    a(f'''
    s_cmp_ge_u32 s2, 256
    s_cbranch_scc1 {exit_label}
    s_load_dwordx2 s[28:29], s[0:1], {KA_X}
    s_load_dwordx2 s[60:61], s[0:1], {KA_WQ}
    s_load_dwordx4 s[8:11], s[0:1], {KA_WK}
    s_load_dwordx2 s[12:13], s[0:1], {KA_WO}
    s_load_dwordx4 s[4:7], s[0:1], {KA_DBG}
    s_mov_b32 s30, {(S+1)*ROWB}
    s_mov_b32 s31, 0x20000
    s_mov_b32 s62, {D*ROWB}
    s_mov_b32 s63, 0x20000
    ''')
    stamp(a, 'start')
    if CODEPF:
        a(f'''
        s_getpc_b64 s[36:37]
        s_lshr_b32 s38, s2, 3
        s_mul_i32 s38, s38, 1280
        v_lshl_add_u32 v2, v0, 7, s38
        v_cmp_gt_u32 vcc, 10, v0
        s_and_saveexec_b64 s[38:39], vcc
        s_cbranch_execz L_nopf
        global_load_dword v83, v2, s[36:37]
L_nopf:
        s_mov_b64 exec, -1
        ''')

def diag(t):
    out = []
    for l in t.split('\n'):
        s = l.strip()
        if 'nomfma' in DIAG and 'mfma' in s: continue
        if 'nostat' in DIAG and ('smfmac_f32_16' in s and s.endswith(('v40', 'v44')) or ('mfma_f32_16x16x32' in s and s.split(', ')[1] == s.split(', ')[2])): continue
        if 'nostat4' in DIAG and (s.startswith('v_smfmac_f32_16x16x64_bf16 v[32:35], v[36') or s.startswith('v_mfma_f32_16x16x32_bf16 v[24:27], a[') and s.split(', ')[1] == s.split(', ')[2]): continue
        if 'nolgkm' in DIAG and s.startswith('s_waitcnt lgkmcnt') and not s.endswith('(0)'): continue
        if 'nord' in DIAG and s.startswith('ds_read') and ' a[' in s: continue
        if 'nodma' in DIAG and s.endswith('lds'): continue
        out.append(l)
    return '\n'.join(out)

def k1(name, rotate=True, stamp=nomark):
    a = Asm()
    a(f'.globl {name}\n.p2align 8\n.type {name},@function\n{name}:')
    entry(a, stamp, 'L_k1_exit')
    def done(a):
        stamp(a, 'end'); a('s_endpgm')
    phase1(a, rotate, stamp, done)
    a('L_k1_exit:\ns_endpgm')
    return diag(a.text())
```

```python
from common import *

LG, LU, LD = 0, 36864, 73728
LP = 110592
LO = LP + 20480
LQ = LO + 9 * 1152
LDUM = LQ + 8 * 2048
LX = LDUM + 1024
X_FLAG, X_KEY, X_WIN, X_G, X_ACT, X_MAX, X_PMAX = LX, LX + 32, LX + 64, LX + 128, LX + 640, LX + 1152, LP
K2_LDS = LX + 2304
HROW = 2560
LQR = LP
ONES = 0x3f803f80
M_LIMIT = 48.0
SPIN = 40000
POLL_SLEEP, FIN_SLEEP, FIN_SLEEP2 = 3, 28, 2

SA, SB, OACC, T = 0, 16, 32, 52
IDXA, IDXB, WAD, RAD, OAD, OST, AAD, L16, QAD, GUV, MV, LANE, WAD3, QXAD = 68, 69, 70, 71, 72, 73, 74, 75, 76, 77, 78, 79, 80, 81
NV = 84
KM, KX, VV, OO, WO, QM, QX, AF = 0, 32, 40, 104, 120, 160, 164, 168
NA = 172
S_WS, S_G, S_U, S_D, S_X, S_OUT, S_WR = 20, 24, 28, 32, 36, 40, 44
WAVE, S_FS, S_WOC, S_MG, S_MU, S_MD, S_MST, S_GOFF, S_DOFF, S_CNT, S_NT0 = 18, 19, 48, 49, 50, 51, 52, 53, 54, 55, 56
S_DST = 57
DIAG = set()
LDP = ' sc1'
FUSED = False
WOP = ' sc1'
QKORD = 0
PRIO = (3, 2, 1, 3, 3, 2, 1, 1)
MIDP = {3: (10, 0), 0: (10, 0)}
SPEC = 0
DEFER = 0
FFP = (' nt', ' nt', ' nt')
DMAT = ((0, 14), (1, 14), (2, 14))
SPLIT = 1
WALK = 0
TOUCH = 0
OUTP = ''
LATE = 0
ALIGN = 3
KPOLL_SLEEP, KPOLL_FIRST, FPOLL_SLEEP = 3, 8, 4
ROTF = 0x30003
PRE = (2, 1, 1)

def qk8(Y, slot, c): return f'v_mfma_f32_32x32x8bf16_1k v[{Y}:{Y+15}], a[{KX+(slot&~1)}:{KX+(slot&~1)+1}], a[{QX+2*(slot&1)}:{QX+2*(slot&1)+1}], {c}'
def qk16(Y, slot, c): return f'v_mfma_f32_32x32x16_bf16 v[{Y}:{Y+15}], a[{KM+4*slot}:{KM+4*slot+3}], a[{QM}:{QM+3}], {c}'
def qkx(Y, slot): return (qk16 if QKORD else qk8)(Y, slot, '0')
def qkm(Y, slot): return (qk8 if QKORD else qk16)(Y, slot, f'v[{Y}:{Y+15}]')
def pv(X, slot, s): return f'v_smfmac_f32_32x32x32_bf16 a[{OO}:{OO+15}], a[{VV+8*slot+4*s}:{VV+8*slot+4*s+3}], v[{X+8*s}:{X+8*s+7}], v{IDXA}'
def zero_o(): return f'v_mfma_f32_32x32x8bf16_1k a[{OO}:{OO+15}], a[{QX}:{QX+1}], a[{QX+2}:{QX+3}], 0'
def oproj(f, af, w): return f'v_smfmac_f32_16x16x64_bf16 v[{OACC+4*f}:{OACC+4*f+3}], a[{af}:{af+3}], a[{w}:{w+7}], v{IDXB}'
W_PART = [f'ds_write_b128 v{WAD}, a[{OO}:{OO+3}]', f'ds_write_b128 v{WAD}, a[{OO+4}:{OO+7}] offset:32', f'ds_write_b64 v{WAD3}, a[{OO+8}:{OO+9}]']
R_PART = [f'ds_read2st64_b64 v[{T+4*i}:{T+4*i+3}], v{RAD} offset0:{10*i} offset1:{10*i+5}' for i in range(4)]
def pka(d, x, y): return f'v_add_f32 v{T+d}, v{T+x}, v{T+y}\nv_add_f32 v{T+d+1}, v{T+x+1}, v{T+y+1}'
ADDS = [pka(0, 0, 2), pka(4, 4, 6), pka(8, 8, 10), pka(12, 12, 14), pka(0, 0, 4), pka(8, 8, 12), pka(0, 0, 8)]
NORM = [f'v_rcp_f32_dpp v{T+2}, v{T} row_newbcast:9 row_mask:0xf bank_mask:0xf',
        f'v_mul_f32 v{T}, v{T}, v{T+2}\nv_mul_f32 v{T+1}, v{T+1}, v{T+2}',
        f'v_cvt_pk_bf16_f32 v{T+4}, v{T}, v{T+1}',
        f'ds_write_b32 v{OAD}, v{T+4}',
        f'v_add_u32 v{OAD}, v{OST}, v{OAD}']

def tile(a, t, ex, slow, prev=True, nxt=True, kind='std', x16=None, x16b=None):
    X, Y = (SA, SB) if t % 2 == 0 else (SB, SA)
    m = {}
    def put(p, s): m.setdefault(p, []).append(s)
    p_pvb, p_x, p_qx, p_qm, p_pva = 2, 5, 6, 10, 14
    if kind == 'first': p_qx, p_qm, p_pva = 5, 9, 16
    if kind == 'second':
        p_pvb = 3
        if x16: p_x, p_qx, p_qm = 6, 7, 11
    if prev: put(p_pvb, pv(Y, (t - 1) % 8, 1))
    if x16:
        for s in x16: put(p_x, s)
    if x16b:
        for s in x16b: put(13, s)
    if nxt:
        put(p_qx, ('qx', qkx(Y, (t + 1) % 8))); put(p_qm, qkm(Y, (t + 1) % 8))
    if kind == 'first':
        for s in W_PART: put(p_qm, s)
        put(12, zero_o())
    put(p_pva, ('pa', pv(X, t, 0)))
    for p in range(17):
        for s in m.get(p, []):
            if isinstance(s, tuple):
                for e in ex.get(s[0], []): e() if callable(e) else a(e)
                s = s[1]
            s() if callable(s) else a(s)
        for e in ex.get(p, []): e() if callable(e) else a(e)
        if p < 16:
            if slow: a(f'v_sub_f32 v{X+p}, v{X+p}, v{MV}')
            a(f'v_exp_f32 v{X+p}, v{X+p}')

def wo_load(vm, tag, reg, soff_add):
    def th():
        vm.a(f's_add_u32 s58, s{S_WOC}, {soff_add}')
        vm.issue(tag, f'buffer_load_dwordx4 a[{reg}:{reg+3}], v{L16}, s[{S_WS}:{S_WS+3}], s58 offen{WOP}')
        vm.issue(tag, f'buffer_load_dwordx4 a[{reg+4}:{reg+7}], v{L16}, s[{S_WS}:{S_WS+3}], s58 offen offset:1024{WOP}')
    return th

def q_reads(slow):
    r = [f'ds_read_b128 a[{QM}:{QM+3}], v{QAD}', f'ds_read_b128 a[{QX}:{QX+3}], v{QAD} offset:1024', f'v_add_u32 v{QAD}, 2048, v{QAD}']
    return r

STEP = 36 * 2048
def attention(a, n, slow, lab, vm, stamp, pre):
    prio = dict(zip((1, 2, 3, 4, 5, 6, 7, 0), PRIO))
    def mload():
        return [f'ds_read_b32 v{T+15}, v82', 's_waitcnt lgkmcnt(0)', 'v_add_u32 v82, 128, v82'] if slow else []
    a('s_waitcnt lgkmcnt(0)')
    vm.need('km0')
    a(qkx(SA, 0)); a(qkm(SA, 0)); a(zero_o())
    if slow:
        a(f'ds_read_b32 v{MV}, v82\nv_add_u32 v82, 128, v82\ns_waitcnt lgkmcnt(0)')
    a('s_nop 3')
    for t in range(8):
        ex = {0: [f's_setprio {prio[t]}']}
        if t < 7: ex['qx'] = [lambda t=t: vm.need(f'km{t+1}')]
        ex['pa'] = [lambda t=t: vm.need(f'v{t}')]
        if t + pre < 8:
            for q in range(4): ex[1 + 4 * q] = [lambda t=t, q=q: kv_load(vm, t + pre, q)]
        if t == 5:
            for q in range(3): ex[1 + 3 * q] = [lambda q=q: warm(vm, q)]
            def touch():
                a(f's_lshl_b32 s58, s2, 3\ns_mul_i32 s58, s58, {ROWB}')
                vm.issue('t', f'buffer_load_dword a{WO+4}, v{T+14}, s[{S_WR}:{S_WR+3}], 0 offen')
                vm.issue('t', f'buffer_load_dword a{WO+5}, v{T+14}, s[{S_OUT}:{S_OUT+3}], s58 offen')
            if TOUCH: ex[10] = [touch]
            ex[12] = [wo_load(vm, 'f', WO, 0)]
        if t >= 6:
            ex[1] = [wo_load(vm, 'f', WO + 8 * (2 * t - 11), (2 * t - 11) * 2048)]
            if t == 6: ex[8] = [wo_load(vm, 'f', WO + 16, 2 * 2048)]
        if t == 6: ex[11] = q_reads(slow)
        if t == 7:
            ex['qx'] = ['s_waitcnt lgkmcnt(0)']
            if n == 5: ex[15] = [wo_load(vm, 'f', WO + 32, 4 * 2048)]
            ex[11] = mload()
            ex[16] = [f's_add_u32 s{S_WOC}, s{S_WOC}, {STEP}']
            for q in range(len([x for x in DMAT if x[0] > 4])): ex[16].append(lambda: vm.issue('pad', f'buffer_load_dword v{QXAD}, v{T+14}, s[{S_WR}:{S_WR+3}], 0 offen'))
        tile(a, t, ex, slow, prev=t > 0)
        if t == 7 and slow: a(f'v_mov_b32 v{MV}, v{T+15}')
    stamp(a, 's0')
    def dma(q):
        srdr, off, vo, so = ((S_G, LG, GUV, S_GOFF), (S_U, LU, GUV, S_GOFF), (S_D, LD, L16, S_DOFF))[q]
        r = [f's_add_u32 m0, s{S_MG}, {off}', 's_nop 0', f'buffer_load_dwordx4 v{vo}, s[{srdr}:{srdr+3}], s{so} offen{FFP[q]} lds']
        return r + [[], [f's_add_u32 s{S_GOFF}, s{S_GOFF}, {6*16*F*2}'], [f's_add_u32 s{S_MG}, s{S_MG}, 6144', f's_add_u32 s{S_DOFF}, s{S_DOFF}, 6144']][q]
    use = {4: [0], 5: [1], 6: [2], 7: [3, 4][:n - 3]}
    def body(last, xfer=False):
        lv = Vm(a)
        nvm = 2 * n - 2 + (3 if xfer else 0)
        if last:
            lv.q = [f'f{f}' for f in range(n) for _ in range(2)]
            free = {1: [KM, VV], 2: [VV + 8], 3: [KM + 8, VV + 16]}
            todo = [(8, f) for f in range(n)]
            where = {}
        for t in range(8):
            ex = {0: [f's_setprio {prio[t]}']}
            if t in MIDP: ex[MIDP[t][0]] = [f's_setprio {MIDP[t][1]}']
            x16, x16b = None, None
            for q, f in enumerate(use.get(t, [])):
                wait = (lambda f=f: lv.need(f'f{f}')) if last else f's_waitcnt vmcnt({nvm})'
                item = [wait, oproj(f, AF, WO + 8 * f)]
                if t == 4: item = ['s_waitcnt lgkmcnt(0)'] + item
                if q == 0 and t != 4: x16 = item
                else: x16b = item
                ex.setdefault(8 if (q == 0 and t != 4) else 15, []).append(wo_load(lv, f'f{f}', WO + 8 * f, f * 2048))
            if t == 0:
                ex[16] = ['s_waitcnt lgkmcnt(0)', 's_barrier']
            if t == 1:
                for i, p in enumerate((1, 5, 8, 12)): ex.setdefault(p, []).append(R_PART[i])
            if t == 2:
                ex.setdefault(1, []).append('s_waitcnt lgkmcnt(0)')
                for i, p in enumerate((1, 3, 5, 7, 9, 11, 13)): ex.setdefault(p, []).append(ADDS[i])
            if t == 3:
                for i, p in enumerate((0, 2, 4, 5, 7)): ex.setdefault(p, []).append(NORM[i])
                ex[16] = ['s_waitcnt lgkmcnt(0)', 's_barrier']
            for q, (tt, pp) in enumerate(DMAT):
                if xfer and t == tt: ex.setdefault(pp, []).extend(dma(q))
            if t == 4:
                ex.setdefault(1, []).extend([f'ds_read_b128 a[{AF}:{AF+3}], v{AAD}', f'v_add_u32 v{AAD}, 1152, v{AAD}'])
            if t == 6 and not last: ex[11] = q_reads(slow)
            if t == 7 and not last:
                ex['qx'] = ['s_waitcnt lgkmcnt(0)']
                ex[11] = mload()
                ex[16] = [f's_add_u32 s{S_WOC}, s{S_WOC}, {STEP}', f's_sub_u32 s{S_CNT}, s{S_CNT}, 1', f's_cmp_lg_u32 s{S_CNT}, 0']
            if last:
                for i, reg in enumerate(free.get(t, [])):
                    if todo:
                        st, f = todo.pop(0); where[(st, f)] = reg
                        ex.setdefault(11 + 3 * i, []).append(wo_load(lv, f's{st}f{f}', reg, f * 2048 + STEP))
                if t == 7:
                    def rows():
                        for i in range(5): lv.issue('x', f'buffer_load_dword v{SA+i}, v82, s[{S_X}:{S_X+3}], s59 offen offset:{256*i}')
                        for i in range(5): lv.issue('w', f'buffer_load_dword v{SA+5+i}, v82, s[{S_WR}:{S_WR+3}], 0 offen offset:{256*i}')
                    ex[3] = [f'v_lshlrev_b32 v82, 2, v{LANE}', f's_lshl_b32 s59, s2, 3', f's_add_u32 s59, s59, s{WAVE}', f's_mul_i32 s59, s59, {ROWB}', rows]
            tile(a, t, ex, slow, nxt=not (last and t == 7), kind={0: 'first', 1: 'second'}.get(t, 'std'), x16=x16, x16b=x16b)
            if t == 7 and slow and not last: a(f'v_mov_b32 v{MV}, v{T+15}')
        if last:
            assert not todo
            return lv, where
    a(f's_mov_b32 s{S_CNT}, 6\ns_cmp_eq_u32 s{S_MST}, 0\ns_cbranch_scc1 {lab}n_loop\n.p2align {ALIGN}\n{lab}x_loop:')
    body(False, True)
    a(f's_cbranch_scc1 {lab}x_loop\ns_branch {lab}_last\n.p2align {ALIGN}\n{lab}n_loop:')
    body(False, False)
    a(f's_cbranch_scc1 {lab}n_loop\n{lab}_last:')
    stamp(a, 's6')
    lv, where = body(True)
    if not slow: a(';PAD t')
    a('s_setprio 0\ns_nop 0')
    a(pv(SB, 7, 1))
    stamp(a, 's7')
    a('s_nop 9')
    for s in W_PART: a(s)
    a('s_waitcnt lgkmcnt(0)\ns_barrier')
    stamp(a, 'b1')
    for s in R_PART: a(s)
    a(f'''
    v_and_b32 v20, 15, v{LANE}
    v_bfe_u32 v21, v{LANE}, 4, 1
    v_mul_u32_u24 v21, {4*HROW + 64}, v21
    v_lshl_add_u32 v20, v20, 2, v21
    s_lshl_b32 s58, s{S_NT0}, 6
    s_add_u32 s58, s58, {LP}
    v_add_u32 v20, s58, v20
    v_lshrrev_b32 v21, 5, v{LANE}
    v_lshl_add_u32 v21, v21, 6, v20
    v_add_u32 v22, 128, v21
    ''')
    a('s_waitcnt lgkmcnt(2)'); a(ADDS[0]); a(ADDS[1]); a(ADDS[4]); a('s_waitcnt lgkmcnt(0)')
    for q in (2, 3, 5, 6): a(ADDS[q])
    a('s_nop 0'); a(NORM[0]); a('s_nop 0')
    for s in NORM[1:4]: a(s)
    lv.need('x', 'w')
    for i in range(5): unpack(a, 10 + 2 * i, i)
    a(f'''
    s_waitcnt lgkmcnt(0)
    s_barrier
    ds_read_b128 a[{QM}:{QM+3}], v{AAD} offset:1152
    ds_read_b128 a[{AF}:{AF+3}], v{AAD}
    v_mov_b32 v{T+8}, 0
    v_mov_b32 v{T+9}, {hx(ONES)}
    s_mul_i32 s58, s{WAVE}, {HROW}
    s_lshr_b32 s59, s{WAVE}, 2
    s_lshl_b32 s59, s59, 6
    s_add_u32 s58, s58, s59
    s_add_u32 s58, s58, {LP}
    v_lshl_add_u32 v{T+10}, v{LANE}, 3, s58
    ''')
    for i in range(5): a(f'v_dot2c_f32_bf16 v{T+8}, v{5+i}, v{T+9}')
    stamp(a, 'b2')
    a('s_waitcnt lgkmcnt(1)')
    for f in range(n):
        lv.need(f's8f{f}'); a(oproj(f, QM, where[(8, f)]))
    a('s_waitcnt lgkmcnt(0)')
    for f in range(n):
        lv.need(f'f{f}'); a(oproj(f, AF, WO + 8 * f))
    stamp(a, 'op')
    a(f's_nop {9 - n}')
    R = HROW // 256
    for p in range(2):
        A, B = OACC + 8 * p, OACC + 8 * p + 4
        for r in range(4): a(f'v_permlane32_swap_b32 v{A+r}, v{B+r}')
        for r in range(4): a(f'v_add_f32 v{A+r}, v{A+r}, v{B+r}')
        for r in (0, 2): a(f'ds_write2st64_b32 v{21+p}, v{A+r}, v{A+r+1} offset0:{r*R} offset1:{(r+1)*R}')
    if n == 5:
        A = OACC + 16
        for r in range(4): a(f'v_mov_b32 v{T+4+r}, v{A+r}')
        for r in range(4): a(f'v_permlane32_swap_b32 v{A+r}, v{T+4+r}')
        for r in range(4): a(f'v_add_f32 v{A+r}, v{A+r}, v{T+4+r}')
        for r in (0, 2): a(f'ds_write2st64_b32 v20, v{A+r}, v{A+r+1} offset0:{r*R+1} offset1:{(r+1)*R+1}')
    a(f's_branch L_tail\n;PAD -')

def warm(vm, i):
    vm.a(f's_add_u32 s58, s60, {i*8192}')
    vm.issue('warm', f'buffer_load_dwordx4 a[{WO+8*i}:{WO+3+8*i}], v{L16}, s[{S_WS}:{S_WS+3}], s58 offen{LDP}')

def dpp_reduce(a, op, regs):
    for c in ('row_shr:1', 'row_shr:2', 'row_shr:4', 'row_shr:8', 'row_bcast:15 row_mask:0xa', 'row_bcast:31 row_mask:0xc'):
        if len(regs) < 3: a(f's_nop {2 - len(regs)}')
        for r in regs:
            mask = '' if 'row_mask' in c else ' row_mask:0xf'
            a(f'{op}_dpp v{r}, v{r}, v{r} {c}{mask} bank_mask:0xf')

def bf_round(a, dst, src):
    a(f'v_cvt_pk_bf16_f32 v{dst}, v{src}, v{src}\nv_and_b32 v{dst}, 0xffff0000, v{dst}')
def unpack(a, lo, src):
    a(f'v_lshlrev_b32 v{lo}, 16, v{src}\nv_and_b32 v{lo+1}, 0xffff0000, v{src}')

def tail(a, stamp):
    XP, WP, XF, AT, HP, LN, OU = 0, 5, 10, 20, 30, 35, 60
    a(f'''
L_tail:
;PAD t
    v_mov_b32 v46, 0
    v_mov_b32 v47, 0
    s_waitcnt lgkmcnt(0)
    v_mov_b32 v48, 0
    v_mov_b32 v49, v{T+8}
    v_mov_b32 v51, v{T+9}
    s_barrier
    ''')
    for i in range(5): a(f'ds_read_b64 v[{AT+2*i}:{AT+2*i+1}], v{T+10} offset:{512*i}')
    stamp(a, 'attn')
    a(f'''
    s_mov_b32 s62, -1
    s_mov_b32 s63, 0
    s_lshl_b32 s59, s2, 3
    s_add_u32 s59, s59, s{WAVE}
    s_sub_u32 s69, 2047, s59
    s_lshl_b32 s58, s{WAVE}, 2
    s_add_u32 s58, s58, {X_KEY}
    v_mov_b32 v57, s58
    v_and_b32 v55, 7, v{LANE}
    s_mov_b32 s58, {X_KEY}
    v_lshl_add_u32 v55, v55, 2, s58
    s_mov_b32 s60, {GRAN_REP}
    v_mul_lo_u32 v56, s60, v{LANE}
    v_mov_b32 v52, {hx(f32(1.0/D))}
    ''')
    for i in range(5):
        a(f's_waitcnt lgkmcnt({4-i})\nv_pk_add_f32 v[{AT+2*i}:{AT+2*i+1}], v[{AT+2*i}:{AT+2*i+1}], v[{XF+2*i}:{XF+2*i+1}]')
        a(f'v_cvt_pk_bf16_f32 v{HP+i}, v{AT+2*i}, v{AT+2*i+1}')
        if i == 4: a(f'v_cndmask_b32 v{HP+4}, 0, v{HP+4}, s[62:63]')
        a(f'v_dot2c_f32_bf16 v46, v{HP+i}, v51\nv_dot2c_f32_bf16 v47, v{HP+i}, v{HP+i}\nv_dot2c_f32_bf16 v48, v{HP+i}, v{WP+i}')
    a(f'''
    s_lshl_b32 s60, s2, 7
    s_add_u32 s60, s60, {WS_GRAN}
    s_nop 0
    v_permlane32_swap_b32 v46, v47
    v_permlane32_swap_b32 v48, v49
    v_add_f32 v46, v46, v47
    v_add_f32 v48, v48, v49
    s_nop 1
    v_permlane16_swap_b32 v46, v48
    v_add_f32 v46, v46, v48
    ''')
    for c in (8, 4, 2, 1): a(f's_nop 1\nv_add_f32_dpp v46, v46, v46 row_ror:{c} row_mask:0xf bank_mask:0xf')
    a(f'''
    s_nop 0
    v_readlane_b32 s64, v46, 0
    v_readlane_b32 s65, v46, 32
    v_readlane_b32 s66, v46, 16
    v_readlane_b32 s67, v46, 48
    v_mul_f32 v46, s64, v52
    v_mul_f32 v47, s65, v52
    v_fma_f32 v47, -v46, v46, v47
    v_max_f32 v47, 0, v47
    ''')
    bf_round(a, 47, 47)
    a(f'v_add_f32 v47, {hx(f32(1e-5))}, v47')
    bf_round(a, 47, 47)
    a('v_sqrt_f32 v47, v47')
    bf_round(a, 46, 46)
    bf_round(a, 47, 47)
    a(f'''
    v_rcp_f32 v48, v47
    v_mov_b32 v53, s66
    v_fma_f32 v53, -v46, s67, v53
    v_mul_f32 v53, v53, v48
    v_cvt_pk_bf16_f32 v53, v53, v53
    v_ashrrev_i32 v54, 31, v53
    v_or_b32 v54, 0x80000000, v54
    v_xor_b32 v53, v53, v54
    v_lshrrev_b32 v53, 16, v53
    v_lshl_or_b32 v53, v53, 11, s69
    ds_write_b32 v57, v53
    s_getreg_b32 s58, hwreg(HW_REG_XCC_ID)
    s_and_b32 s58, s58, 7
    s_mul_i32 s58, s58, {GRAN_REP}
    s_and_b32 s64, s{WAVE}, 3
    s_lshl_b32 s64, s64, 13
    s_add_u32 s58, s58, s64
    s_add_u32 s64, s58, {WS_GRAN}
    v_lshlrev_b32 v65, 7, v{LANE}
    s_waitcnt lgkmcnt(0)
    s_barrier
    ds_read_b32 v54, v55
    s_mov_b32 s61, 0
    s_waitcnt lgkmcnt(0)
    v_cmp_gt_u32 vcc, v54, v53
    s_cbranch_vccnz L_notbest
    s_mov_b64 exec, 0xff
    buffer_store_dword v53, v56, s[{S_WS}:{S_WS+3}], s60 offen sc1
    s_mov_b64 exec, -1
    s_mov_b32 s61, 1
L_notbest:
    ''')
    stamp(a, 'gran')
    for c in (4, 2, 1): a(f'v_max_u32_dpp v54, v54, v54 row_ror:{c} row_mask:0xf bank_mask:0xf\ns_nop 1')
    a(f'v_readfirstlane_b32 s65, v54\ns_xor_b32 s65, s65, s{WAVE}\ns_and_b32 s65, s65, 4')
    a('v_sub_f32 v56, 0, v46\nv_mov_b32 v57, v56\nv_mov_b32 v49, v48')
    for i in range(5): unpack(a, XF + 2 * i, HP + i)
    for i in range(5): a(f'v_pk_add_f32 v[{AT+2*i}:{AT+2*i+1}], v[{XF+2*i}:{XF+2*i+1}], v[56:57]')
    for i in range(5): a(f'v_cvt_pk_bf16_f32 v{LN+i}, v{AT+2*i}, v{AT+2*i+1}')
    for i in range(5): unpack(a, AT + 2 * i, LN + i)
    for i in range(5): a(f'v_pk_mul_f32 v[{AT+2*i}:{AT+2*i+1}], v[{AT+2*i}:{AT+2*i+1}], v[48:49]')
    for i in range(5): a(f'v_cvt_pk_bf16_f32 v{LN+i}, v{AT+2*i}, v{AT+2*i+1}')
    a(f'''
    v_lshlrev_b32 v58, 2, v{LANE}
    s_cmp_eq_u32 s61, 1
    s_cbranch_scc0 L_norow
    s_mul_i32 s58, s2, 2304
    s_add_u32 s58, s58, {WS_ROWS}
    ''')
    for i in range(4): a(f'buffer_store_dword v{LN+i}, v58, s[{S_WS}:{S_WS+3}], s58 offen offset:{256*i} sc1')
    for i in range(4): a(f'buffer_store_dword v{HP+i}, v58, s[{S_WS}:{S_WS+3}], s58 offen offset:{1152+256*i} sc1')
    a(f'''
    s_mov_b32 exec_hi, 0
    buffer_store_dword v{LN+4}, v58, s[{S_WS}:{S_WS+3}], s58 offen offset:1024 sc1
    buffer_store_dword v{HP+4}, v58, s[{S_WS}:{S_WS+3}], s58 offen offset:{1152+1024} sc1
    s_mov_b32 exec_hi, -1
L_norow:
    ''')
    for i in range(5): unpack(a, AT + 2 * i, LN + i)
    for i in range(5): a(f'v_pk_add_f32 v[{AT+2*i}:{AT+2*i+1}], v[{AT+2*i}:{AT+2*i+1}], v[{XF+2*i}:{XF+2*i+1}]')
    for i in range(5): a(f'v_cvt_pk_bf16_f32 v{OU+i}, v{AT+2*i}, v{AT+2*i+1}')
    def out_row():
        for i in range(4): a(f'buffer_store_dword v{OU+i}, v58, s[{S_OUT}:{S_OUT+3}], s68 offen offset:{256*i}{OUTP}')
        a(f's_mov_b32 exec_hi, 0\nbuffer_store_dword v{OU+4}, v58, s[{S_OUT}:{S_OUT+3}], s68 offen offset:1024{OUTP}\ns_mov_b32 exec_hi, -1')
    a(f's_mul_i32 s68, s59, {ROWB}')
    if not DEFER:
        a('s_cmp_eq_u32 s61, 1\ns_cbranch_scc1 L_defer')
        out_row()
        a('L_defer:')
    elif DEFER == 2:
        a('s_cmp_eq_u32 s61, 1\ns_cbranch_scc1 L_defer\ns_cmp_eq_u32 s65, 0\ns_cbranch_scc1 L_defer')
        out_row()
        a('s_mov_b32 s61, 2\nL_defer:')
    stamp(a, 'rows')
    GW, DW = 0, 60
    a(f'''
    v_lshrrev_b32 v1, 4, v{LANE}
    v_bfe_u32 v2, v{LANE}, 2, 2
    v_and_b32 v3, 3, v{LANE}
    v_lshl_add_u32 v2, v1, 3, v2
    s_cmp_ge_u32 s{S_FS}, 144
    s_cbranch_scc1 L_nopre
    s_and_b32 s58, s{WAVE}, 1
    v_and_b32 v4, 1, v1
    v_xor_b32 v4, s58, v4
    v_lshlrev_b32 v4, 5, v4
    v_lshl_add_u32 v4, v2, 6, v4
    v_lshl_add_u32 v4, v3, 3, v4
    s_bfe_u32 s58, s{WAVE}, 0x10001
    s_mul_i32 s58, s58, {LU}
    s_lshr_b32 s60, s{WAVE}, 2
    s_mul_i32 s69, s60, {9*2048}
    s_add_u32 s58, s58, s69
    v_add_u32 v4, s58, v4
    v_mul_u32_u24 v5, {ROWB}, v2
    v_lshl_add_u32 v5, v3, 3, v5
    s_lshl_b32 s58, s{S_NT0}, 5
    s_add_u32 s58, s58, {LD}
    v_add_u32 v5, s58, v5
    ''')
    for i in range(9):
        a(f'ds_read_b64_tr_b16 a[{GW+4*i}:{GW+4*i+1}], v4 offset:{2048*i}\nds_read_b64_tr_b16 a[{GW+4*i+2}:{GW+4*i+3}], v4 offset:{2048*i+256}')
    for f in range(5):
        a(f'ds_read_b64_tr_b16 a[{DW+4*f}:{DW+4*f+1}], v5 offset:{32*f}\nds_read_b64_tr_b16 a[{DW+4*f+2}:{DW+4*f+3}], v5 offset:{32*f+4*ROWB}')
    a(f'''
L_nopre:
    s_cmp_lg_u32 s65, 0
    s_cbranch_scc1 L_polled
    s_mov_b32 s60, 0
L_poll:
    buffer_load_dword v66, v65, s[{S_WS}:{S_WS+3}], s64 offen sc1
    s_add_u32 s60, s60, 1
    s_waitcnt vmcnt(0)
    v_cmp_eq_u32 vcc, -1, v66
    s_and_b64 exec, exec, vcc
    s_cbranch_execz L_polldone
    s_cmp_gt_u32 s60, {SPIN}
    s_cbranch_scc1 L_polldone
    ''')
    if SPEC:
        a(f'''
        s_cmp_gt_u32 s60, {SPEC}
        s_cbranch_scc1 L_nospec
        s_mov_b64 s[66:67], exec
        s_mov_b64 exec, -1
        v_cndmask_b32 v67, v66, 0, s[66:67]
        ''')
        dpp_reduce(a, 'v_max_u32', [67])
        a(f'''
        s_nop 0
        v_readlane_b32 s62, v67, 63
        s_andn2_b32 s62, 2047, s62
        s_lshr_b32 s62, s62, 3
        s_mul_i32 s62, s62, 2304
        s_add_u32 s62, s62, {WS_ROWS}
        s_mov_b64 exec, 0x1ff
        buffer_load_dword v67, v65, s[{S_WS}:{S_WS+3}], s62 offen sc1
        s_mov_b64 exec, s[66:67]
        s_branch L_poll
L_nospec:
        ''')
    a(f'''
    s_sleep {POLL_SLEEP}
    s_branch L_poll
L_polldone:
    s_mov_b64 exec, -1
    s_nop 1
    ''')
    dpp_reduce(a, 'v_max_u32', [66])
    a(f'''
    s_and_b32 s58, s{WAVE}, 3
    s_lshl_b32 s58, s58, 2
    s_add_u32 s58, s58, {X_WIN}
    v_mov_b32 v8, s58
    s_mov_b32 exec_lo, 0
    s_mov_b32 exec_hi, 0x80000000
    ds_write_b32 v8, v66
    s_mov_b64 exec, -1
L_polled:
    v_mov_b32 v8, {X_WIN}
    s_waitcnt lgkmcnt(0)
    s_barrier
    ds_read_b128 v[10:13], v8
    s_waitcnt lgkmcnt(0)
    v_max_u32 v10, v10, v11
    v_max3_u32 v10, v10, v12, v13
    s_nop 0
    v_readfirstlane_b32 s62, v10
    s_and_b32 s63, s62, 2047
    s_sub_u32 s63, 2047, s63
    s_lshr_b32 s64, s63, 3
    s_mul_i32 s64, s64, 2304
    s_add_u32 s64, s64, {WS_ROWS}
    ''')
    stamp(a, 'win')
    a(f'''
    s_cmp_ge_u32 s{S_FS}, 144
    s_cbranch_scc1 L_noffn
    s_lshr_b32 s60, s{WAVE}, 2
    s_mul_i32 s60, s60, 576
    s_add_u32 s60, s60, s64
    s_mul_i32 s68, s{WAVE}, 576
    s_add_u32 m0, s68, {LP}
    s_mov_b32 s66, -1
    s_mov_b32 s67, 0xf
    v_lshlrev_b32 v6, 4, v1
    s_mov_b32 s65, 0
L_xsel:
    s_mov_b64 exec, s[66:67]
    buffer_load_dwordx4 v{L16}, s[{S_WS}:{S_WS+3}], s60 offen sc1 lds
    ''')
    XS = 10
    a(f'''
    s_mov_b64 exec, -1
    s_add_u32 s65, s65, 1
    s_lshl_b32 s58, s{WAVE}, 6
    s_add_u32 s58, s58, {X_G}
    v_add_u32 v7, s58, v6
    v_and_b32 v8, 31, v{LANE}
    s_mov_b32 s58, {X_G}
    v_lshl_add_u32 v9, v8, 2, s58
    s_lshl_b32 s58, s{WAVE}, 6
    s_add_u32 s58, s58, {X_ACT}
    v_lshl_add_u32 v8, v8, 1, s58
    v_add_u32 v51, s58, v6
    v_lshrrev_b32 v2, 3, v{LANE}
    v_mul_u32_u24 v2, 4608, v2
    v_and_b32 v3, 7, v{LANE}
    v_lshl_add_u32 v2, v3, 2, v2
    s_mul_i32 s58, s{S_NT0}, 9216
    s_lshl_b32 s69, s{S_FS}, 5
    s_add_u32 s58, s58, s69
    s_add_u32 s58, s58, {WS_PART}
    s_add_u32 s69, s68, {LP}
    v_add_u32 v52, s69, v6
    s_waitcnt vmcnt(0)
    ''')
    for i in range(9): a(f'ds_read_b128 v[{XS+4*i}:{XS+4*i+3}], v52 offset:{64*i}')
    for i in range(9):
        a(f's_waitcnt lgkmcnt({8-i})')
        a(f'v_mfma_f32_16x16x32_bf16 v[46:49], a[{GW+4*i}:{GW+4*i+3}], v[{XS+4*i}:{XS+4*i+3}], ' + ('0' if i == 0 else 'v[46:49]'))
        if i == 0: a(f'v_max_u32 v50, v{XS}, v{XS+1}\nv_max3_u32 v50, v50, v{XS+2}, v{XS+3}')
        else: a(f'v_max3_u32 v50, v50, v{XS+4*i}, v{XS+4*i+1}\nv_max3_u32 v50, v50, v{XS+4*i+2}, v{XS+4*i+3}')
    a(f'''
    v_cmp_eq_u32 vcc, -1, v50
    s_cbranch_vccz L_xok
    s_cmp_gt_u32 s65, {SPIN}
    s_cbranch_scc0 L_xsel
L_xok:
    ''')
    stamp(a, 'xin')
    a(f'''
    s_mul_i32 s68, s59, {ROWB}
    s_mov_b32 s66, 0x00010001
    s_mov_b32 s67, 0x00010001
    s_mov_b64 exec, s[66:67]
    ds_write_b128 v7, v[46:49]
    s_mov_b64 exec, -1
    s_waitcnt lgkmcnt(0)
    s_barrier
    ds_read2_b32 v[10:11], v9 offset0:0 offset1:64
    ds_read2_b32 v[12:13], v9 offset0:32 offset1:96
    s_waitcnt lgkmcnt(1)
    v_add_f32 v10, v10, v11
    ''')
    bf_round(a, 10, 10)
    a(f'''
    v_mul_f32 v11, {hx(f32(-math.log2(math.e)))}, v10
    v_exp_f32 v11, v11
    s_waitcnt lgkmcnt(0)
    v_add_f32 v12, v12, v13
    v_add_f32 v11, 1.0, v11
    v_rcp_f32 v11, v11
    ''')
    bf_round(a, 12, 12)
    a('v_mul_f32 v10, v10, v11')
    bf_round(a, 10, 10)
    a(f'''
    v_mul_f32 v10, v10, v12
    v_cvt_pk_bf16_f32 v10, v10, v10
    ds_write_b16 v8, v10
    s_waitcnt lgkmcnt(0)
    ds_read_b128 v[12:15], v51
    s_waitcnt lgkmcnt(0)
    ''')
    stamp(a, 'act')
    for f in range(5): a(f'v_mfma_f32_16x16x32_bf16 v[{16+4*f}:{19+4*f}], v[12:15], a[{DW+4*f}:{DW+4*f+3}], 0')
    a(f'''
    s_mov_b32 s64, 0xffff0000
    s_mov_b32 s65, 0
    s_mov_b32 s66, 0
    s_mov_b32 s67, 0xffff
    s_nop 0
    v_cndmask_b32 v16, v16, v20, s[64:65]
    s_mov_b32 s65, 0xffff0000
    s_mov_b32 s64, 0
    v_cndmask_b32 v16, v16, v24, s[66:67]
    s_add_u32 s69, s58, {4*9216}
    s_cmp_ge_u32 s{WAVE}, 4
    v_cndmask_b32 v16, v16, v28, s[64:65]
    buffer_store_dword v16, v2, s[{S_WS}:{S_WS+3}], s58 offen sc1
    s_cbranch_scc1 L_ffndone
    s_mov_b64 exec, 0xffff
    buffer_store_dword v32, v2, s[{S_WS}:{S_WS+3}], s69 offen sc1
L_ffndone:
    s_mov_b64 exec, -1
    s_branch L_last
L_noffn:
    s_sub_u32 s69, s{S_FS}, 144
    s_cmp_ge_u32 s69, 72
    s_cbranch_scc1 L_last
    s_cmp_lg_u32 s{WAVE}, 0
    s_cbranch_scc1 L_last
    s_cmp_eq_u32 s61, {[0, 2, 2][DEFER]}
    s_cbranch_scc1 L_finrow
    s_cmp_eq_u32 s63, s59
    s_cbranch_scc1 L_finrow
    ''')
    out_row()
    a(f'''
L_finrow:
    s_mov_b32 s61, {[0, 2, 2][DEFER]}
    s_lshl_b32 s58, s69, 4
    s_add_u32 s58, s58, s64
    v_and_b32 v1, 1, v{LANE}
    v_lshlrev_b32 v2, 3, v1
    s_lshr_b32 s65, s62, 11
    s_lshl_b32 s65, s65, 16
    s_not_b32 s66, s65
    s_ashr_i32 s66, s66, 31
    s_or_b32 s66, s66, 0x80000000
    s_xor_b32 s65, s65, s66
    s_and_b32 s65, s65, 0xffff0000
    v_mov_b32 v3, s65
    v_mul_f32 v3, {hx(f32(-math.log2(math.e)))}, v3
    v_exp_f32 v3, v3
    s_mul_i32 s60, s69, 4608
    s_add_u32 s60, s60, {WS_PART}
    v_add_f32 v3, 1.0, v3
    v_rcp_f32 v3, v3
    s_mov_b32 s65, 0
    v_mov_b32 v26, 0
    v_mov_b32 v27, 0
    v_mov_b32 v28, 0
    v_mov_b32 v29, 0
    ''')
    bf_round(a, 3, 3)
    a(f'''
L_fin0:
    buffer_load_dwordx2 v[4:5], v2, s[{S_WS}:{S_WS+3}], s58 offen sc1
    buffer_load_dwordx2 v[6:7], v2, s[{S_WS}:{S_WS+3}], s58 offen offset:1152 sc1
    s_add_u32 s65, s65, 1
    s_waitcnt vmcnt(0)
    v_max_u32 v8, v4, v5
    v_max3_u32 v8, v8, v6, v7
    v_cmp_eq_u32 vcc, -1, v8
    s_cbranch_vccz L_fin1
    s_cmp_gt_u32 s65, {SPIN}
    s_cbranch_scc0 L_fin0
L_fin1:
    s_sleep {FIN_SLEEP}
L_fin:
    ''')
    for i in range(4): a(f'buffer_load_dwordx4 v[{10+4*i}:{13+4*i}], v{L16}, s[{S_WS}:{S_WS+3}], s60 offen offset:{1024*i} sc1')
    a(f'''
    s_add_u32 s66, s60, 4096
    s_mov_b32 s67, exec_hi
    s_mov_b32 exec_hi, 0
    buffer_load_dwordx4 v[26:29], v{L16}, s[{S_WS}:{S_WS+3}], s66 offen sc1
    s_mov_b32 exec_hi, s67
    s_add_u32 s65, s65, 1
    s_waitcnt vmcnt(0)
    v_mov_b32 v8, v10
    ''')
    for i in range(11, 29, 2): a(f'v_max3_u32 v8, v8, v{i}, v{i+1}')
    a(f'''
    v_max_u32 v8, v8, v29
    v_cmp_eq_u32 vcc, -1, v8
    s_and_b64 exec, exec, vcc
    s_cbranch_execz L_finok
    s_cmp_gt_u32 s65, {SPIN}
    s_cbranch_scc1 L_finok
    s_sleep {FIN_SLEEP2}
    s_branch L_fin
L_finok:
    s_mov_b64 exec, -1
    ''')
    stamp(a, 'fin')
    a(f'''
    v_pk_add_f32 v[10:11], v[10:11], v[14:15]
    v_pk_add_f32 v[12:13], v[12:13], v[16:17]
    v_pk_add_f32 v[18:19], v[18:19], v[22:23]
    v_pk_add_f32 v[20:21], v[20:21], v[24:25]
    v_pk_add_f32 v[10:11], v[10:11], v[26:27]
    v_pk_add_f32 v[12:13], v[12:13], v[28:29]
    v_pk_add_f32 v[10:11], v[10:11], v[18:19]
    v_pk_add_f32 v[12:13], v[12:13], v[20:21]
    s_nop 0
    ''')
    for c in (8, 4, 2):
        for r in range(10, 14): a(f'v_add_f32_dpp v{r}, v{r}, v{r} row_ror:{c} row_mask:0xf bank_mask:0xf')
    for sw in ('v_permlane16_swap_b32', 'v_permlane32_swap_b32'):
        for r in range(4): a(f'v_mov_b32 v{14+r}, v{10+r}')
        for r in range(4): a(f'{sw} v{10+r}, v{14+r}')
        for r in range(4): a(f'v_add_f32 v{10+r}, v{10+r}, v{14+r}')
    a('v_cvt_pk_bf16_f32 v8, v10, v11\nv_cvt_pk_bf16_f32 v9, v12, v13')
    unpack(a, 10, 8); unpack(a, 12, 9)
    for r in range(4): a(f'v_mul_f32 v{10+r}, v3, v{10+r}')
    a('v_cvt_pk_bf16_f32 v8, v10, v11\nv_cvt_pk_bf16_f32 v9, v12, v13')
    unpack(a, 10, 8); unpack(a, 12, 9); unpack(a, 14, 4); unpack(a, 16, 5)
    for r in range(4): a(f'v_add_f32 v{10+r}, v{10+r}, v{14+r}')
    a('v_cvt_pk_bf16_f32 v8, v10, v11\nv_cvt_pk_bf16_f32 v9, v12, v13')
    unpack(a, 10, 8); unpack(a, 12, 9); unpack(a, 14, 6); unpack(a, 16, 7)
    for r in range(4): a(f'v_add_f32 v{10+r}, v{10+r}, v{14+r}')
    a(f'''
    v_cvt_pk_bf16_f32 v8, v10, v11
    v_cvt_pk_bf16_f32 v9, v12, v13
    s_mul_i32 s58, s63, {ROWB}
    s_lshl_b32 s60, s69, 4
    s_add_u32 s58, s58, s60
    s_mov_b64 exec, 3
    buffer_store_dwordx2 v[8:9], v2, s[{S_OUT}:{S_OUT+3}], s58 offen{OUTP}
    s_mov_b64 exec, -1
L_last:
    s_cmp_eq_u32 s61, {[0, 2, 2][DEFER]}
    s_cbranch_scc1 L_end
    s_cmp_eq_u32 s63, s59
    s_cbranch_scc1 L_end
    ''')
    out_row()
    a(';PAD -\nL_end:')
    stamp(a, 'end')
    a('s_endpgm')

def kv_load(vm, t, part=None):
    ws = f's[{S_WS}:{S_WS+3}]'
    if part in (None, 0): vm.issue(f'km{t}', f'buffer_load_dwordx4 a[{KM+4*t}:{KM+4*t+3}], v{L16}, {ws}, s67 offen{LDP}')
    if part in (None, 1): vm.issue(f'km{t}', f'buffer_load_dword a{KX+t}, v{T+14}, {ws}, s67 offen offset:{KV_X}{LDP}')
    m = 'vmask' in DIAG
    if part in (None, 2):
        if m: vm.a('s_mov_b64 exec, s[64:65]')
        vm.issue(f'v{t}', f'buffer_load_dwordx4 a[{VV+8*t}:{VV+8*t+3}], v83, {ws}, s67 offen offset:{KV_V}{LDP}')
        if m and part == 2: vm.a('s_mov_b64 exec, -1')
    if part in (None, 3):
        if m and part == 3: vm.a('s_mov_b64 exec, s[64:65]')
        vm.issue(f'v{t}', f'buffer_load_dwordx4 a[{VV+8*t+4}:{VV+8*t+7}], v83, {ws}, s67 offen offset:{KV_V+608}{LDP}')
        if m: vm.a('s_mov_b64 exec, -1')
        if t < 7: vm.a(f's_add_u32 s67, s67, {KVREC}\ns_cmp_ge_u32 s67, s63\ns_cselect_b32 s67, s62, s67')

def qprep(a, vm, stamp):
    a(f's_cmp_ge_u32 s{WAVE}, 4\ns_cbranch_scc1 L_nokmax')
    dpp_reduce(a, 'v_max_f32', [21])
    a(f'''
    s_lshl_b32 s58, s{WAVE}, 2
    s_add_u32 s58, s58, {X_WIN}
    v_mov_b32 v22, s58
    s_mov_b32 exec_lo, 0
    s_mov_b32 exec_hi, 0x80000000
    ds_write_b32 v22, v21
    s_mov_b64 exec, -1
L_nokmax:
    v_mov_b32 v22, {X_WIN}
    s_mov_b32 s68, -1
    s_mov_b32 s69, 0
    v_mov_b32 v18, 0
    s_waitcnt lgkmcnt(0)
    ''')
    if SPLIT:
        n = vm.count('q')
        a(f's_cmp_lt_u32 s{WAVE}, 4\ns_cbranch_scc1 L_qlow\ns_waitcnt vmcnt(0)\nL_qlow:\ns_waitcnt vmcnt({n})')
    else: vm.need('q')
    stamp(a, 'qin')
    a(f'''
    s_barrier
    ds_read2_b32 v[12:13], v8 offset0:0 offset1:1
    ds_read2_b32 v[14:15], v8 offset0:2 offset1:3
    ds_read_b32 v16, v7 offset:32
    ds_read_b128 v[20:23], v22
    ''')
    for t in range(PRE[0], PRE[0] + PRE[1]): kv_load(vm, t)
    stamp(a, 'q1')
    a(f'''
    s_waitcnt lgkmcnt(1)
    v_cndmask_b32 v17, 0, v16, s[68:69]
    v_dot2c_f32_bf16 v18, v12, v12
    v_dot2c_f32_bf16 v18, v13, v13
    v_dot2c_f32_bf16 v18, v14, v14
    v_dot2c_f32_bf16 v18, v15, v15
    v_dot2c_f32_bf16 v18, v17, v17
    s_waitcnt lgkmcnt(0)
    v_max3_f32 v20, v20, v21, v22
    s_lshl_b32 s59, s{WAVE}, 11
    v_mov_b32 v19, v18
    v_max_f32 v20, v20, v23
    s_nop 0
    v_permlane32_swap_b32 v18, v19
    v_add_f32 v18, v18, v19
    v_mul_f32 v18, v20, v18
    v_sqrt_f32 v18, v18
    s_add_u32 s59, s59, {LQ}
    v_add_u32 v24, s59, v{L16}
    v_mov_b32 v17, 0
    v_add_u32 v18, 0x1ffff, v18
    v_and_b32 v18, 0xffff0000, v18
    v_cmp_nge_f32 vcc, {hx(f32(M_LIMIT))}, v18
    v_lshrrev_b32 v19, 16, v18
    v_or_b32 v19, 0x8000, v19
    v_cndmask_b32 v16, v19, v16, s[68:69]
    s_cmp_lg_u64 vcc, 0
    s_cselect_b32 s58, 1, 0
    ds_write_b128 v24, v[12:15]
    v_mov_b32 v18, 0
    v_mov_b32 v19, v16
    ds_write_b128 v24, v[16:19] offset:1024
    s_lshl_b32 s59, s{WAVE}, 2
    s_add_u32 s59, s59, {X_FLAG}
    v_mov_b32 v26, s59
    v_mov_b32 v27, s58
    ds_write_b32 v26, v27
    ''')

def prologue(a, stamp):
    if FUSED:
        a(f'''
L_p1done:
;PAD p
        ''')
        stamp(a, 'qst')
        a(f'''
        s_lshl_b32 s57, s26, 7
        s_add_u32 s57, s57, {WS_GRAN}
        s_mov_b32 s96, s4
        s_mov_b32 s97, s5
        s_mov_b32 s98, 4
        s_mov_b32 s99, 0x20000
        v_mov_b32 v64, 0
        buffer_load_dword v61, v64, s[96:99], 0 offen sc1
        s_mov_b32 s{S_WS}, s6
        s_mov_b32 s{S_WS+1}, s7
        s_mov_b32 s{S_WS+2}, {WS_USED}
        s_mov_b32 s{S_WS+3}, 0x20000
        s_mov_b32 s59, {GRAN_REP}
        v_mul_lo_u32 v63, s59, v1
        v_mov_b32 v60, -1
        v_mov_b32 v62, v29
        ''')
    else:
        a('s_cmp_ge_u32 s2, 256\ns_cbranch_scc1 L_k2_exit')
    a(f'''
    s_load_dwordx2 s[16:17], s[0:1], {KA_WS}
    s_load_dwordx2 s[4:5], s[0:1], {KA_X}
    s_load_dwordx8 s[8:15], s[0:1], {KA_WR}
    s_load_dwordx2 s[6:7], s[0:1], {KA_OUT}
    ''')
    if not FUSED: stamp(a, 'start')
    a(f'''
    s_setprio 3
    v_lshrrev_b32 v1, 6, v0
    v_and_b32 v{LANE}, 63, v0
    v_and_b32 v5, 7, v0
    v_readfirstlane_b32 s{WAVE}, v1
    v_bfe_u32 v6, v0, 3, 2
    s_lshl_b32 s58, s2, 3
    s_add_u32 s61, s58, s{WAVE}
    s_mul_i32 s61, s61, {ROWB}
    v_mul_u32_u24 v7, 1168, v5
    v_mad_u32_u24 v7, v6, 36, v7
    s_mul_i32 s58, s{WAVE}, 144
    s_add_u32 s58, s58, {LQR}
    v_add_u32 v7, s58, v7
    v_lshrrev_b32 v4, 5, v{LANE}
    v_lshl_add_u32 v8, v4, 4, v7
    s_mul_i32 s68, s{WAVE}, 1168
    s_add_u32 s68, s68, {LQR}
    v_lshlrev_b32 v{L16}, 4, v{LANE}
    v_lshlrev_b32 v{T+14}, 2, v{LANE}
    v_and_b32 v3, 31, v{LANE}
    v_min_u32 v10, 18, v3
    v_lshlrev_b32 v10, 4, v10
    s_movk_i32 s62, 304
    v_mad_u32_u24 v10, v4, s62, v10
    s_mov_b32 s64, 0x0013ffff
    s_mov_b32 s65, 0x0013ffff
    v_mov_b32 v2, 0x7f000000
    v_cndmask_b32 v83, v{10 if 'vclamp' in DIAG else 2}, v10, s[64:65]
    s_bfe_u32 s60, s2, {ROTF}
    s_mul_i32 s62, s{WAVE}, {8*KVREC}
    s_add_u32 s62, s62, {WS_KV}
    s_mul_i32 s67, s60, {KVREC}
    s_add_u32 s67, s67, s62
    s_add_u32 s63, s62, {8*KVREC}
    ''')
    for i in range(72 if 'vmask' in DIAG else 8): a(f'v_accvgpr_write_b32 a{KX+i}, 0')
    if not FUSED: a('s_waitcnt lgkmcnt(0)')
    vm = Vm(a)
    def first_loads():
        qdma()
        a('s_setprio 0')
    def qdma():
        ws = f's[{S_WS}:{S_WS+3}]'
        a('s_mov_b32 m0, s68\ns_mov_b64 exec, 0xff')
        vm.issue('q', f'buffer_load_dwordx4 v{L16}, {ws}, s61 offen offset:1024{LDP} lds')
        a('s_mov_b64 exec, -1')
        vm.issue('q', f'buffer_load_dwordx4 v{L16}, {ws}, s61 offen{LDP} lds')
    if not FUSED:
        srd(a, S_WS, 16, 0, WS_USED)
        first_loads()
    def late_setup():
        a(f'''
        s_and_b32 s58, s2, 7
        s_lshr_b32 s59, s2, 3
        s_mul_i32 s{S_FS}, s58, 18
        s_add_u32 s{S_FS}, s{S_FS}, s59
        s_cmp_lt_u32 s59, 18
        s_cselect_b32 s{S_FS}, s{S_FS}, s2
        s_cselect_b32 s69, {D*F*2}, 0
        ''')
        for d, b in ((S_G, 10), (S_U, 12), (S_D, 14)):
            a(f's_mov_b32 s{d}, s{b}\ns_mov_b32 s{d+1}, s{b+1}\ns_mov_b32 s{d+2}, s69\ns_mov_b32 s{d+3}, 0x20000')
        srd(a, S_X, 4, 0, S * ROWB); srd(a, S_OUT, 6, 0, S * ROWB); srd(a, S_WR, 8, 0, ROWB)
        a(f'''
        s_mul_i32 s{S_GOFF}, s{WAVE}, {16*F*2}
        s_lshl_b32 s58, s{S_FS}, 6
        s_add_u32 s{S_GOFF}, s{S_GOFF}, s58
        s_mul_i32 s{S_DOFF}, s{S_FS}, 36864
        s_lshl_b32 s58, s{WAVE}, 10
        s_add_u32 s{S_DOFF}, s{S_DOFF}, s58
        s_mov_b32 s{S_MG}, s58
        s_cmp_lt_u32 s{WAVE}, 6
        s_cselect_b32 s{S_MST}, s69, 0
        s_mul_i32 s{S_NT0}, s{WAVE}, 5
        s_lshl_b32 s58, s{WAVE}, 2
        s_add_u32 s58, s58, 4
        s_cmp_lt_u32 s{WAVE}, 4
        s_cselect_b32 s{S_NT0}, s{S_NT0}, s58
        s_lshl_b32 s{S_WOC}, s{S_NT0}, 11
        s_add_u32 s{S_WOC}, s{S_WOC}, {WS_WO}
        s_mul_i32 s60, s59, 20736
        s_lshl_b32 s58, s{WAVE}, 10
        s_add_u32 s60, s60, s58
        s_add_u32 s60, s60, {WS_WO}
        v_lshrrev_b32 v24, 2, v{LANE}
        v_mul_u32_u24 v25, {F*2}, v24
        v_lshrrev_b32 v24, 4, v{LANE}
        v_and_b32 v26, 2, v24
        v_and_b32 v27, 3, v{LANE}
        v_xor_b32 v26, v26, v27
        v_lshl_add_u32 v{GUV}, v26, 4, v25
        v_mov_b32 v{IDXA}, 0xdddd
        v_mov_b32 v{IDXB}, 0x4444
        v_mov_b32 v25, 0xeeee
        v_and_b32 v26, 15, v{LANE}
        v_cmp_lt_u32 vcc, 7, v26
        v_mul_u32_u24 v27, 80, v3
        s_mul_i32 s58, s{WAVE}, 2560
        v_cndmask_b32 v{IDXB}, v{IDXB}, v25, vcc
        s_add_u32 s58, s58, {LP}
        v_add_u32 v27, s58, v27
        v_lshl_add_u32 v{WAD}, v4, 4, v27
        v_lshl_add_u32 v{WAD3}, v4, 3, v27
        v_add_u32 v{WAD3}, 64, v{WAD3}
        v_min_u32 v25, 9, v26
        v_mul_u32_u24 v27, 640, v24
        v_lshl_add_u32 v27, v25, 3, v27
        s_mul_i32 s58, s{WAVE}, 80
        s_add_u32 s58, s58, {LP}
        v_add_u32 v{RAD}, s58, v27
        s_mul_i32 s58, s{WAVE}, 144
        s_add_u32 s58, s58, {LO}
        v_lshlrev_b32 v27, 5, v24
        v_lshl_add_u32 v27, v26, 2, v27
        v_add_u32 v{OAD}, s58, v27
        v_mov_b32 v{OST}, 1152
        s_add_u32 s58, s58, {8*1152}
        v_lshl_add_u32 v27, v24, 2, s58
        v_cmp_eq_u32 vcc, 8, v26
        s_mov_b32 s58, {LDUM}
        v_lshl_add_u32 v28, v{LANE}, 2, s58
        v_cndmask_b32 v{OAD}, v{OAD}, v27, vcc
        v_cndmask_b32 v{OST}, v{OST}, 16, vcc
        v_cmp_lt_u32 vcc, 8, v26
        v_mul_u32_u24 v27, 144, v5
        v_bfe_u32 v25, v{LANE}, 3, 1
        v_cndmask_b32 v{OAD}, v{OAD}, v28, vcc
        v_cndmask_b32 v{OST}, v{OST}, 0, vcc
        v_lshl_add_u32 v27, v25, 6, v27
        v_lshl_add_u32 v27, v24, 4, v27
        v_add_u32 v{AAD}, {LO}, v27
        v_add_u32 v{QAD}, {LQ}, v{L16}
        ''')
        for i in range(OACC, OACC + 20): a(f'v_mov_b32 v{i}, 0')
    if not FUSED: late_setup()
    if FUSED:
        a(f'''
        s_getreg_b32 s58, hwreg(HW_REG_XCC_ID)
        s_and_b32 s58, s58, 7
        s_mul_i32 s58, s58, {GRAN_REP}
        s_add_u32 s58, s58, {WS_GRAN + 4}
        s_mul_i32 s59, s{WAVE}, {8 * 43}
        s_lshr_b32 s59, s59, 7
        v_add_u32 v24, s59, v{LANE}
        v_min_u32 v24, 21, v24
        v_add_u32 v24, 234, v24
        v_lshlrev_b32 v24, 7, v24
        s_mov_b32 s59, 0
        s_waitcnt vmcnt(0)
L_tag:
        v_cmp_ne_u32 vcc, 0, v61
        s_cbranch_vccnz L_tagok
        buffer_load_dword v61, v64, s[96:99], 0 offen sc1
        s_add_u32 s59, s59, 1
        s_cmp_gt_u32 s59, {SPIN}
        s_waitcnt vmcnt(0)
        s_cbranch_scc0 L_tag
L_tagok:
        ''')
        stamp(a, 'drain')
        a(f'''
        s_barrier
        s_cmp_lg_u32 s{WAVE}, 7
        s_cbranch_scc1 L_noflag
        s_mov_b64 exec, 0xff
        buffer_store_dwordx3 v[60:62], v63, s[{S_WS}:{S_WS+3}], s57 offen sc1
        s_mov_b64 exec, -1
L_noflag:
        ''')
        if LATE == 0:
            a('s_mov_b32 s57, s58\nv_mov_b32 v21, v24\ns_waitcnt lgkmcnt(0)')
            late_setup()
            a('s_mov_b32 s58, s57\nv_mov_b32 v24, v21')
            if WALK & 2: a(f';WALK t 8 s{WAVE} 0')
        else: a(f's_sleep {KPOLL_FIRST}')
        a(f'''
        ''')
        def kpoll():
            a(f'''
            s_mov_b32 s59, 0
            s_mov_b64 exec, 15
L_kpoll:
            buffer_load_dword v20, v24, s[{S_WS}:{S_WS+3}], s58 offen sc1
            s_add_u32 s59, s59, 1
            s_waitcnt vmcnt(0)
            v_cmp_ne_u32 vcc, v20, v61
            s_and_b64 exec, exec, vcc
            s_cbranch_execz L_kdone
            s_cmp_gt_u32 s59, {SPIN}
            s_cbranch_scc1 L_kdone
            s_sleep {KPOLL_SLEEP}
            s_branch L_kpoll
L_kdone:
            s_mov_b64 exec, -1
            ''')
            stamp(a, 'kin')
        def kfirst(top=3):
            q = list(vm.q)
            for t in range(PRE[0]):
                a(f's_setprio {max(top - t, 0)}'); kv_load(vm, t)
            a('s_setprio 3')
            return q
        def fpoll():
            a(f'''
            s_lshl_b32 s59, s{WAVE}, 13
            s_add_u32 s58, s58, s59
            v_lshlrev_b32 v24, 7, v{LANE}
            s_mov_b32 s59, 0
L_fpoll:
            buffer_load_dwordx2 v[20:21], v24, s[{S_WS}:{S_WS+3}], s58 offen sc1
            s_add_u32 s59, s59, 1
            s_waitcnt vmcnt(0)
            v_cmp_ne_u32 vcc, v20, v61
            s_and_b64 exec, exec, vcc
            s_cbranch_execz L_fdone
            s_cmp_gt_u32 s59, {SPIN}
            s_cbranch_scc1 L_fdone
            s_sleep {FPOLL_SLEEP}
            s_branch L_fpoll
L_fdone:
            s_mov_b64 exec, -1
            ''')
        if SPLIT:
            a(f's_cmp_lt_u32 s{WAVE}, 4\ns_cbranch_scc1 L_allflags')
            kpoll(); vm.q = kfirst()
            a('s_barrier')
            qdma()
            a('s_branch L_synced\nL_allflags:')
            vm.q = []
            fpoll()
            a('s_barrier')
            qdma(); kfirst(2)
            a('L_synced:\ns_setprio 0')
        else:
            kpoll(); kfirst()
            a(f's_cmp_ge_u32 s{WAVE}, 4\ns_cbranch_scc1 L_flagsin')
            fpoll()
            a('L_flagsin:\ns_barrier')
        stamp(a, 'sync')
        if not SPLIT: first_loads()
        if LATE == 2:
            a('s_waitcnt lgkmcnt(0)'); late_setup()
    qprep(a, vm, stamp)
    a(f'''
    s_mov_b32 s58, {X_FLAG}
    v_lshl_add_u32 v26, v5, 2, s58
    ''')
    stamp(a, 'q2')
    for t in range(PRE[0] + PRE[1], sum(PRE)): kv_load(vm, t)
    stamp(a, 'q3')
    a(f'''
    s_waitcnt lgkmcnt(0)
    s_barrier
    ds_read_b32 v27, v26
    ''')
    stamp(a, 'bar')
    for r in q_reads(False): a(r)
    a(f'''
    s_waitcnt lgkmcnt(2)
    v_cmp_ne_u32 vcc, 0, v27
    ''')
    return vm

def true_max(a, vm):
    a('L_slow:')
    for t in range(sum(PRE), 8): kv_load(vm, t)
    a(f'''
    v_cndmask_b32 v16, 0, v16, s[68:69]
    v_mov_b32 v19, v16
    s_waitcnt lgkmcnt(0)
    s_barrier
    ds_write_b128 v24, v[16:19] offset:1024
    v_add_u32 v{QAD}, {LQ}, v{L16}
    s_lshl_b32 s58, s{WAVE}, 7
    s_add_u32 s58, s58, {X_PMAX}
    v_lshl_add_u32 v25, v3, 2, s58
    s_mov_b32 s{S_CNT}, 8
    s_waitcnt vmcnt(0) lgkmcnt(0)
    s_barrier
L_mx:
    ''')
    vm.q = []
    for r in q_reads(True): a(r)
    a(f'v_mov_b32 v{MV}, 0xff800000\ns_waitcnt lgkmcnt(0)')
    for t in range(8):
        a(qkx(SA, t)); a(qkm(SA, t)); a('s_nop 11')
        for r in range(0, 16, 2): a(f'v_max3_f32 v{MV}, v{MV}, v{SA+r}, v{SA+r+1}')
        a('s_nop 7')
    a(f'''
    v_mov_b32 v26, v{MV}
    s_nop 1
    v_permlane32_swap_b32 v{MV}, v26
    v_max_f32 v{MV}, v{MV}, v26
    ds_write_b32 v25, v{MV}
    v_add_u32 v25, 1024, v25
    s_sub_u32 s{S_CNT}, s{S_CNT}, 1
    s_cmp_lg_u32 s{S_CNT}, 0
    s_cbranch_scc1 L_mx
    v_and_b32 v3, 31, v{LANE}
    s_lshl_b32 s58, s{WAVE}, 10
    s_add_u32 s58, s58, {X_PMAX}
    v_lshl_add_u32 v25, v3, 2, s58
    s_waitcnt lgkmcnt(0)
    s_barrier
    ''')
    for i in range(4): a(f'ds_read2_b32 v[{2*i+8}:{2*i+9}], v25 offset0:{64*i} offset1:{64*i+32}')
    a(f'''
    s_mov_b32 s58, {X_MAX}
    v_lshl_add_u32 v82, v3, 2, s58
    s_lshl_b32 s58, s{WAVE}, 7
    v_add_u32 v25, s58, v82
    s_waitcnt lgkmcnt(0)
    v_max3_f32 v8, v8, v9, v10
    v_max3_f32 v8, v8, v11, v12
    v_max3_f32 v8, v8, v13, v14
    v_max_f32 v8, v8, v15
    ds_write_b32 v25, v8
    ''')
    if 'dumpm' in DIAG:
        a(f's_lshl_b32 s58, s2, 3\ns_add_u32 s58, s58, s{WAVE}\ns_lshl_b32 s58, s58, 7\ns_add_u32 s58, s58, {WS_STAMP}\nv_lshlrev_b32 v9, 2, v3\nbuffer_store_dword v8, v9, s[{S_WS}:{S_WS+3}], s58 offen\ns_waitcnt vmcnt(0)')
    a(f'''
    v_add_u32 v{QAD}, {LQ}, v{L16}
    s_waitcnt lgkmcnt(0)
    s_barrier
    ''')
    for r in q_reads(True): a(r)

def k2(name, stamp=nomark):
    import pads
    t = pads.apply(k2_(name, stamp))
    out, inloop = [], False
    for l in t.split('\n'):
        s = l.strip()
        if s.endswith('_loop:'): inloop = True
        if inloop:
            if 'nowo' in DIAG and s.startswith('buffer_load') and 'lds' not in s: continue
            if 'nodma' in DIAG and s.startswith('buffer_load') and 'lds' in s: continue
            if 'noop' in DIAG and '16x16x64' in s: continue
            if 'novm' in DIAG and 'vmcnt' in s: continue
            if 'nobar' in DIAG and s == 's_barrier': continue
            if 'nods' in DIAG and (s.startswith('ds_') or 'lgkmcnt' in s): continue
            if 'novalu' in DIAG and (s.startswith('v_pk') or s.startswith('v_add') or s.startswith('v_rcp') or s.startswith('v_cvt')): continue
            if 'nopv' in DIAG and '32x32x32' in s: continue
            if 'noqk' in DIAG and ('32x32x16' in s or ('32x32x8' in s and ' v[' in s[:32])): continue
            if 'noqx' in DIAG and ('32x32x8' in s and ' v[' in s[:32]): continue
            if 'noexp' in DIAG and s.startswith('v_exp'): l = l.replace('v_exp_f32', 'v_nop ;')
            if 'noprio' in DIAG and s.startswith('s_setprio'): continue
        if s.startswith('s_cbranch_scc1') and s.endswith('_loop'): inloop = False
        out.append(l)
    return '\n'.join(out)

def k2_(name, stamp=nomark):
    a = Asm()
    a(f'.globl {name}\n.p2align 8\n.type {name},@function\n{name}:')
    if FUSED:
        import k1
        k1.entry(a, stamp, 'L_k2_exit')
        def done(a): a('s_branch L_p1done')
        k1.phase1(a, True, stamp, done)
        a.l = k1.diag(a.text()).rstrip('\n').split('\n')
    vm = prologue(a, stamp)
    a(';PAD -')
    stamp(a, 'prol')
    a(f's_cbranch_vccnz L_slow\ns_cmp_ge_u32 s{WAVE}, 4\ns_cbranch_scc1 L_f4')
    q0 = list(vm.q)
    attention(a, 5, False, 'L_a5', vm, stamp, sum(PRE))
    a('L_f4:')
    vm.q = list(q0)
    attention(a, 4, False, 'L_a4', vm, stamp, sum(PRE))
    tail(a, stamp)
    vm.q = list(q0)
    true_max(a, vm)
    a(f's_cmp_ge_u32 s{WAVE}, 4\ns_cbranch_scc1 L_s4')
    attention(a, 5, True, 'L_b5', vm, nomark, 8)
    a('L_s4:')
    vm.q = []
    attention(a, 4, True, 'L_b4', vm, nomark, 8)
    a('L_k2_exit:\ns_endpgm')
    return a.text()
```

```python
from build import *
import sys
marks = {'f': MF, 'b': M2B, 'c': M2C, 'n': None}.get(sys.argv[1], sys.argv[1].split(','))
for spec in sys.argv[2:]:
    name, _, kv = spec.partition(':')
    saved = []
    for p in filter(None, kv.split(',')):
        p = p.replace('@', ':')
        k, v = p.split('=')
        mod = k1 if k.startswith('k1.') else k2
        k = k.split('.')[-1]
        saved.append((mod, k, getattr(mod, k)))
        setattr(mod, k, set(v.split('+')) if k == 'DIAG' else eval(v.replace(';', ',')))
    open(f'v_{name}.s', 'w').write(fused(marks))
    for mod, k, v in saved: setattr(mod, k, v)
```

```python
from common import *

K1_LDS = 162816
TQ, TKV = 79, 96
ONES = 0x3f803f80
LOOK = 2
LA = 3
KV_VM, KV_KE, KV_VE = 16384, 32768, 32768 + 9216 + 64
XOFF = {'q': 65536, 'kv': 51328}
EX_OFF = 161920
ST = ' sc1'
QROW = 144
DIAG = set()
FUSED = False
TOUCH = 0
CODEPF = 1
XP, WP, GP = '', '', ' nt'
ROTC = (4, 4, 1)
PREW = 1
CLR_AT = 9
ROT = 1
WALK = 0

def bf_round(a, dst, src):
    a(f'v_cvt_pk_bf16_f32 v{dst}, v{src}, v{src}\nv_and_b32 v{dst}, 0xffff0000, v{dst}')

def rot_next(a, s, step, lim):
    a(f's_add_u32 s{s}, s{s}, {step}\ns_cmp_ge_u32 s{s}, {lim}\ns_cselect_b32 s{s}, 0, s{s}')

def mf16(d, x, y, first): return f'v_mfma_f32_16x16x32_bf16 v[{d}:{d+3}], {x}, {y}, ' + ('0' if first else f'v[{d}:{d+3}]')
def smf16(d, x, y, idx): return f'v_smfmac_f32_16x16x64_bf16 v[{d}:{d+3}], {x}, {y}, v{idx}'

BARS = [0, 1, 2, 3, 4, 5, 6, 7, 8]
def kloop(a, vm, reads, mfmas, issue, extra=None, walk=None):
    L = Lgkm(a)
    nxt = [2]
    def capture(upto):
        keep, a.l = a.l, []
        while nxt[0] <= upto:
            issue(nxt[0]); nxt[0] += 1
        got, a.l = a.l, keep
        chunks, cur, masked, seen = [], [], False, False
        for l in got:
            cur.append(l); w = l.strip()
            if w == 's_mov_b64 exec, -1': masked = False
            elif 'saveexec' in w or w.split()[1].startswith('exec'): masked = True
            if w.startswith('buffer_'): seen = True
            if seen and not masked: chunks.append(cur); cur, seen = [], False
        assert not masked
        if cur:
            if chunks: chunks[-1] += cur
            else: chunks.append(cur)
        return ['\n'.join(c) for c in chunks]
    def stage(t):
        if t % 2 == 0 and t // 2 in BARS:
            u = t // 2
            last = ([b for b in BARS if b > u] + [9])[0] - 1
            vm.need(*range(u, last + 1))
            a('s_barrier')
            STAMP(a, f'u{u}')
            return last
    for c in capture(([b for b in BARS if b > 0])[0] - 1 + LA - 1): a(c)
    if walk and WALK: a(walk)
    for t in range(LOOK):
        last = stage(t)
        for tag, ins in reads(t): L.issue(tag, ins)
        if last is not None:
            for c in capture(last + LA): a(c)
    for t in range(18):
        R = []
        if t + LOOK < 18:
            last = stage(t + LOOK)
            R = [('r', x) for x in reads(t + LOOK)]
            if last is not None: R += [('e', c) for c in capture(last + LA)]
        if extra: R += [('e', x) for x in extra(t)]
        for kind, x in weave([('m', x) for x in mfmas(t)], R):
            if kind == 'r': L.issue(*x)
            elif kind == 'e': a(x)
            else:
                L.need(*x[0]); a(x[1])

def stats_raw(GR, SX, V, M, T0):
    return f'''
    v_cndmask_b32 v{V}, 0, v{GR}, s[36:37]
    v_cndmask_b32 v{V}, v{V}, v{GR+1}, s[38:39]
    v_cndmask_b32 v{V}, v{V}, v{GR+2}, s[40:41]
    v_cndmask_b32 v{V}, v{V}, v{GR+3}, s[42:43]
    v_mov_b32 v{M}, v{SX}
    v_mov_b32 v{T0}, v{V}
    s_nop 1
    v_permlane32_swap_b32 v{SX}, v{M}
    v_permlane32_swap_b32 v{V}, v{T0}
    v_add_f32 v{M}, v{SX}, v{M}
    v_add_f32 v{V}, v{V}, v{T0}
    v_mov_b32 v{T0}, v{V}
    v_mul_f32 v{M}, {hx(f32(1.0/D))}, v{M}
    s_nop 0
    v_permlane16_swap_b32 v{V}, v{T0}
    v_add_f32 v{V}, v{V}, v{T0}
    '''

def stats_fin(V, M, T0, mul):
    r = lambda x: f'v_cvt_pk_bf16_f32 v{x}, v{x}, v{x}\nv_and_b32 v{x}, 0xffff0000, v{x}\n'
    return (f'v_mul_f32 v{T0}, v{M}, v{M}\nv_fma_f32 v{V}, v{V}, s58, -v{T0}\nv_max_f32 v{V}, 0, v{V}\n' + r(V)
            + f'v_add_f32 v{V}, {hx(f32(1e-5))}, v{V}\n' + r(V) + f'v_sqrt_f32 v{V}, v{V}\n' + r(M) + r(V)
            + f'v_rcp_f32 v{V}, v{V}\ns_nop 0\n' + (f'v_mul_f32 v{V}, {hx(f32(mul))}, v{V}\n' if mul != 1.0 else ''))
def lines(t): return [l.strip() for l in t.split('\n') if l.strip()]

def stat_consts(a, ONE, IDX, sx):
    for i in range(4): a(f'v_mov_b32 v{ONE+i}, {hx(ONES)}')
    for r in sx:
        for i in range(4): a(f'v_mov_b32 v{r+i}, 0')
    a(f'''
    v_mov_b32 v{IDX}, 0x4444
    v_mov_b32 v12, 0xeeee
    v_cmp_lt_u32 vcc, 7, v2
    s_mov_b32 s36, 0x00100001
    s_mov_b32 s37, 0x10000100
    v_cndmask_b32 v{IDX}, v{IDX}, v12, vcc
    s_lshl_b64 s[38:39], s[36:37], 1
    s_lshl_b64 s[40:41], s[36:37], 2
    s_lshl_b64 s[42:43], s[36:37], 3
    s_mov_b32 s58, {hx(f32(1.0/D))}
    ''')

def x_read_addr(a, XRA, base):
    a(f'''
    v_lshrrev_b32 v11, 1, v2
    v_xor_b32 v11, v11, v3
    v_lshlrev_b32 v11, 4, v11
    v_lshl_add_u32 v11, v2, 7, v11
    v_add_u32 v{XRA}, s{base}, v11
    v_xor_b32 v{XRA+1}, 64, v{XRA}
    ''')

def clears(vm, hs, R, flagw):
    a = vm.a
    a(f'''
    v_mov_b32 v{R}, -1
    v_mov_b32 v{R+1}, -1
    v_mov_b32 v{R+2}, -1
    v_mov_b32 v{R+3}, -1
    s_lshl_b32 s46, s{hs}, 11
    s_cmp_lt_u32 s{hs}, 2
    s_cselect_b32 s46, s46, 0x7f000000
    v_lshl_add_u32 v{R+5}, v1, 4, s46
    s_mul_i32 s47, s2, 3600
    s_add_u32 s47, s47, {WS_ROWS}
    ''')
    vm.issue('c', f'buffer_store_dwordx4 v[{R}:{R+3}], v{R+5}, s[32:35], s47 offen{ST}')
    a(f'v_cmp_gt_u32 vcc, {3600 - 1024}, v{R+5}\nv_mov_b32 v{R+4}, 0x7f000000\nv_lshrrev_b32 v{R+6}, 3, v1\nv_cndmask_b32 v{R+5}, v{R+4}, v{R+5}, vcc')
    vm.issue('c', f'buffer_store_dwordx4 v[{R}:{R+3}], v{R+5}, s[32:35], s47 offen offset:1024{ST}')
    a(f'''
    s_mov_b32 s50, {GRAN_REP}
    v_mul_lo_u32 v{R+6}, s50, v{R+6}
    v_and_b32 v{R+7}, 7, v1
    s_cmp_eq_u32 s{hs}, {flagw}
    s_cselect_b32 s46, 0, 0x7f000000
    v_lshl_add_u32 v{R+7}, v{R+7}, 4, s46
    v_add_u32 v{R+6}, v{R+7}, v{R+6}
    s_lshl_b32 s47, s26, 7
    s_add_u32 s47, s47, {WS_GRAN}
    ''')
    vm.issue('c', f'buffer_store_dwordx4 v[{R}:{R+3}], v{R+6}, s[32:35], s47 offen{ST}')

def q_common(a):
    a(f'''
    v_lshrrev_b32 v9, 3, v1
    v_and_b32 v10, 7, v1
    v_mul_u32_u24 v5, {ROWB}, v9
    s_and_b32 s24, s16, 1
    s_lshl_b32 s25, s24, 2
    v_and_b32 v11, 2, v9
    v_xor_b32 v11, v11, v10
    v_xor_b32 v11, s25, v11
    v_lshl_add_u32 v6, v11, 4, v5
    v_lshrrev_b32 v11, 1, v9
    v_xor_b32 v11, v11, v10
    v_xor_b32 v11, s25, v11
    v_lshl_add_u32 v7, v11, 4, v5
    s_mul_i32 s20, s17, {TQ}
    s_lshl_b32 s23, s16, 3
    s_add_u32 s23, s23, s20
    s_add_u32 s23, s23, 1
    s_mul_i32 s23, s23, {ROWB}
    s_mul_i32 s27, s16, {8*ROWB}
    s_lshl_b32 s44, s18, 7
    s_add_u32 s27, s27, s44
    s_lshl_b32 s21, s16, 10
    s_lshr_b32 s56, s16, 1
    s_mul_i32 s56, s56, 18432
    s_lshl_b32 s24, s24, 10
    s_add_u32 s56, s56, s24
    s_add_u32 s56, s56, {XOFF['q']}
    ''')
    if ROT:
        a(f'''
        s_mul_i32 s57, s18, {ROTC[0]}
        s_lshr_b32 s57, s57, 4
        s_mul_i32 s57, s57, {ROTC[1]}
        s_mul_i32 s19, s17, {ROTC[2]}
        s_add_u32 s19, s19, s57
        s_mul_i32 s57, s19, 57
        s_lshr_b32 s57, s57, 9
        s_mul_i32 s57, s57, 9
        s_sub_u32 s19, s19, s57
        s_lshl_b32 s57, s19, 7
        s_add_u32 s23, s23, s57
        s_mul_i32 s22, s19, {64*ROWB}
        s_add_u32 s27, s27, s22
        s_sub_u32 s19, 9, s19
        ''')

XG = {0: [0], 1: [1, 2], 2: [3, 4], 3: [5], 4: [6], 5: [7], 6: [8]}
LEAD = {0: [0, 1], 1: [], 2: [2, 3, 4], 3: [5], 4: [6, 7, 8]}
def q_issue(vm, u, small):
    a = vm.a
    if u > 8: return
    def xs(w):
        if ROT and w:
            a(f's_cmp_eq_u32 s19, {w}\ns_cselect_b32 s22, {ROWB}, 0\ns_sub_u32 s23, s23, s22' + ('\ns_sub_u32 s24, s24, s22' if small else ''))
        a(f's_add_u32 m0, s56, {w*2048 - w*128}\ns_nop 0')
        vm.issue(u, f'buffer_load_dwordx4 v7, s[28:31], s23 offen offset:{w*128}{XP} lds')
        if small:
            a(f's_add_u32 m0, s25, {w*2048 - w*128}\ns_mov_b64 exec, s[64:65]')
            vm.issue(u, f'buffer_load_dwordx4 v8, s[28:31], s24 offen offset:{w*128}{XP} lds')
            a('s_mov_b64 exec, -1')
    g = XG.get(u, [])
    if u == 0: xs(g[0]); g = g[1:]
    a(f's_add_u32 m0, s21, {(u % 8) * 8192}\ns_nop 0')
    vm.issue(u, f'buffer_load_dwordx4 v6, s[60:63], s27 offen{WP} lds')
    if u < 8:
        a(f's_add_u32 s27, s27, {64*ROWB}')
        if ROT: a(f's_cmp_eq_u32 s19, {u+1}\ns_cselect_b32 s22, {D*ROWB}, 0\ns_sub_u32 s27, s27, s22')
    for w in g: xs(w)

def q_first(a, vm, small):
    a(f's_setprio 3\ns_waitcnt lgkmcnt(0)\ns_sub_u32 s28, s28, {ROWB}\ns_subb_u32 s29, s29, 0')
    STAMP(a, 'karg')
    q_issue(vm, 0, small)
    a('s_setprio 2')
    q_issue(vm, 1, small)
    a('s_setprio 0')

def q_tra(a, TRA):
    a(f'''
    v_bfe_u32 v12, v1, 2, 2
    v_and_b32 v13, 3, v1
    v_lshl_add_u32 v9, v3, 3, v12
    v_lshlrev_b32 v9, 7, v9
    v_lshl_add_u32 v9, v13, 3, v9
    v_lshrrev_b32 v10, 1, v12
    v_and_b32 v11, 1, v3
    v_lshl_add_u32 v10, v11, 1, v10
    v_lshl_add_u32 v{TRA}, v10, 5, v9
    v_xor_b32 v{TRA}, s45, v{TRA}
    ''')

def q_big(a, stamp, done):
    ACC, WB, XB, TRA, XRA = 16, 0, 24, 32, 34
    vm = Vm(a)
    q_first(a, vm, False)
    stamp(a, 'issued')
    a(f'''
    v_and_b32 v2, 15, v1
    v_lshrrev_b32 v3, 4, v1
    s_lshr_b32 s46, s16, 1
    s_mul_i32 s47, s46, {2*18432}
    s_add_u32 s47, s47, {XOFF['q']}
    s_and_b32 s45, s16, 1
    s_lshl_b32 s45, s45, 6
    ''')
    x_read_addr(a, XRA, 47)
    q_tra(a, TRA)
    a(f'''
    v_xor_b32 v{TRA+1}, 32, v{TRA}
    s_lshl_b32 s46, s46, 5
    v_add_u32 v4, s46, v2
    v_mul_u32_u24 v5, {QROW}, v4
    v_lshl_add_u32 v5, v3, 3, v5
    v_add_u32 v5, s45, v5
    s_lshl_b32 s45, s45, 1
    s_add_u32 s45, s45, {EX_OFF}
    v_lshl_add_u32 v14, v3, 4, s45
    s_lshl_b32 s46, s46, 3
    s_add_u32 s46, s46, {EX_OFF + 256}
    v_lshl_add_u32 v15, v2, 3, s46
    ''')
    def reads(t):
        w, x, o = WB + 8 * (t % 3), XB + 8 * (t % 3), (t % 16) * 4096
        r = []
        for j in range(2):
            r.append(((t, 'x', j), f'ds_read_b128 a[{x+4*j}:{x+4*j+3}], v{XRA + t % 2} offset:{(t // 2) * 2048 + 18432 * j}'))
            r.append(((t, 'w', j), f'ds_read_b64_tr_b16 a[{w+4*j}:{w+4*j+1}], v{TRA+j} offset:{o}'))
            r.append(((t, 'w', j), f'ds_read_b64_tr_b16 a[{w+4*j+2}:{w+4*j+3}], v{TRA+j} offset:{o+512}'))
        return r
    def mfmas(t):
        w, x = WB + 8 * (t % 3), XB + 8 * (t % 3)
        return [([(t, 'x', i), (t, 'w', j)], mf16(ACC + 8 * i + 4 * j, ar(w + 4 * j, 4), ar(x + 4 * i, 4), t == 0)) for i, j in ((0, 0), (1, 0), (0, 1), (1, 1))]
    kloop(a, vm, reads, mfmas, lambda u: q_issue(vm, u, False), lambda t: q_out_addr() if t == 16 else [], walk=';WALK p 4 s16 0')
    a(';PAD p')
    stamp(a, 'loop')
    CS, SS, P = 36, 44, 48
    a(f'''
    s_barrier
    ds_read_b128 v[{CS}:{CS+3}], v14
    ds_read_b128 v[{CS+4}:{CS+7}], v14 offset:64
    ds_read_b64 v[{SS}:{SS+1}], v15
    ds_read_b64 v[{SS+2}:{SS+3}], v15 offset:128
    s_waitcnt lgkmcnt(1)
    ''')
    for i in range(2):
        if i: a('s_waitcnt lgkmcnt(0)')
        for r in range(8): a(f'v_fma_f32 v{ACC+8*i+r}, -v{SS+2*i}, v{CS+r}, v{ACC+8*i+r}')
        for r in range(8): a(f'v_mul_f32 v{ACC+8*i+r}, v{SS+2*i+1}, v{ACC+8*i+r}')
        for r in range(4): a(f'v_cvt_pk_bf16_f32 v{P+4*i+r}, v{ACC+8*i+2*r}, v{ACC+8*i+2*r+1}')
        a(f'ds_write_b64 v5, v[{P+4*i}:{P+4*i+1}] offset:{16*QROW*i}\nds_write_b64 v5, v[{P+4*i+2}:{P+4*i+3}] offset:{16*QROW*i+32}')
    a('s_branch L_q_out\n;PAD -')

def q_out_addr():
    return lines(f'''
    v_lshrrev_b32 v9, 3, v1
    v_and_b32 v10, 7, v1
    s_lshl_b32 s46, s16, 3
    v_add_u32 v9, s46, v9
    v_mul_u32_u24 v11, {QROW}, v9
    v_lshl_add_u32 v11, v10, 4, v11
    v_mul_u32_u24 v12, {ROWB}, v9
    v_lshl_add_u32 v12, v10, 4, v12
    s_mul_i32 s46, s20, {ROWB}
    s_lshl_b32 s47, s18, 7
    s_add_u32 s46, s46, s47
    v_add_u32 v12, s46, v12
    v_add_u32 v13, {64*ROWB}, v12
    s_mov_b32 s52, s6
    s_mov_b32 s53, s7
    s_mov_b32 s54, {SZ_Q}
    s_mov_b32 s55, 0x20000
    ''')

def q_out(a, done):
    a(f'''
L_q_out:
    ''')
    a(f'''
    s_waitcnt lgkmcnt(0)
    ''')
    STAMP(a, 'qw')
    a(f'''
    s_barrier
    ds_read_b128 v[4:7], v11
    ds_read_b128 v[16:19], v11 offset:{64*QROW}
    v_cmp_gt_u32 vcc, 15, v9
    s_waitcnt lgkmcnt(1)
    buffer_store_dwordx4 v[4:7], v12, s[52:55], 0 offen{ST}
    s_and_b64 exec, exec, vcc
    s_cbranch_execz L_q_out2
    s_waitcnt lgkmcnt(0)
    buffer_store_dwordx4 v[16:19], v13, s[52:55], 0 offen{ST}
L_q_out2:
    s_mov_b64 exec, -1
    v_mov_b32 v29, 0
    ''')
    done(a)
    a(';PAD -')

def q_small(a, stamp, done):
    ACC, GJ, G4, SJ, S4, ONE, IDX, TRA, XRA, XR4, WG = 16, 20, 24, 28, 32, 36, 40, 41, 42, 44, 56
    WB, XJ, X4 = 0, 12, 44
    vm = Vm(a)
    a(f'''
    s_sub_u32 s59, s16, 4
    s_lshl_b32 s24, s59, 1
    v_lshrrev_b32 v11, 1, v9
    v_add_u32 v11, s24, v11
    v_xor_b32 v11, v11, v10
    v_lshl_add_u32 v8, v11, 4, v5
    s_lshl_b32 s24, s59, 2
    s_add_u32 s24, s24, s20
    s_add_u32 s24, s24, 65
    s_mul_i32 s24, s24, {ROWB}
    {'s_add_u32 s24, s24, s57' if ROT else ''}
    s_lshl_b32 s25, s59, 9
    s_add_u32 s25, s25, {XOFF['q'] + 4*18432}
    s_cmp_eq_u32 s59, 3
    s_cselect_b32 s64, 0x00ffffff, -1
    s_mov_b32 s65, 0
    ''')
    q_first(a, vm, True)
    stamp(a, 'issued')
    a('v_and_b32 v2, 15, v1\nv_lshrrev_b32 v3, 4, v1')
    stat_consts(a, ONE, IDX, (SJ, S4))
    a(f'''
    s_mov_b32 s47, {XOFF["q"] + 4*18432}
    s_cmp_eq_u32 s59, 3
    s_cbranch_scc0 L_qs_noones
    v_lshlrev_b32 v12, 4, v10
    v_add_u32 v12, s47, v12
    v_lshl_add_u32 v13, v9, 11, v12
    ds_write_b128 v13, v[{ONE}:{ONE+3}] offset:1920
    ds_write_b128 v12, v[{ONE}:{ONE+3}] offset:{8*2048+1920}
    ''')
    a(f'''
    s_waitcnt lgkmcnt(0)
L_qs_noones:
    ''')
    x_read_addr(a, XR4, 47)
    a(f's_mul_i32 s47, s59, 18432\ns_add_u32 s47, s47, {XOFF["q"]}\ns_lshl_b32 s45, s59, 5')
    x_read_addr(a, XRA, 47)
    q_tra(a, TRA)
    a(f'''
    v_add_u32 v4, 64, v2
    v_mul_u32_u24 v5, {QROW}, v4
    v_lshl_add_u32 v5, v3, 3, v5
    v_add_u32 v5, s45, v5
    s_lshl_b32 s45, s59, 6
    s_add_u32 s45, s45, {EX_OFF}
    v_lshl_add_u32 v14, v3, 4, s45
    s_lshl_b32 s46, s59, 7
    s_add_u32 s46, s46, {EX_OFF + 256}
    v_lshl_add_u32 v15, v2, 3, s46
    ''')
    srd(a, 32, 6, 0, WS_USED)
    srd(a, 8, 12, 0, D * ROWB)
    def chores():
        a(f'''
        s_lshl_b32 s66, s26, 2
        s_add_u32 s66, s66, s59
        s_and_b32 s51, s66, 1
        s_lshr_b32 s54, s66, 1
        s_mul_i32 s55, s54, 57
        s_lshr_b32 s55, s55, 11
        s_mul_i32 s45, s55, 36
        s_sub_u32 s54, s54, s45
        s_cmp_ge_u32 s55, 8
        s_cselect_b32 s45, 144, 18
        s_cselect_b32 s46, 36, 4
        s_cselect_b32 s52, 288, 36
        s_cselect_b32 s53, 18, 2
        s_mul_i32 s52, s52, {ROWB}
        s_mul_i32 s53, s53, {ROWB}
        s_mul_i32 s47, s55, 72
        s_cselect_b32 s47, 16, s47
        s_mul_i32 s45, s45, s51
        s_add_u32 s47, s47, s45
        v_mul_u32_u24 v9, s46, v3
        v_add_u32 v9, s47, v9
        v_mul_u32_u24 v9, {ROWB}, v9
        v_lshl_add_u32 v9, v2, 1, v9
        s_lshl_b32 s54, s54, 5
        s_cmp_ge_u32 s66, 648
        s_cselect_b32 s54, 0x7f000000, s54
        v_add_u32 v9, s54, v9
        s_add_u32 s54, s52, s53
        ''')
        for j in range(2):
            for q, so in enumerate(('0', 's52', 's53', 's54')):
                vm.issue('g', f'buffer_load_ushort v{WG+4*j+q}, v9, s[8:11], {so} offen offset:{ROWB*j}{GP}')
    chores()
    def issue(u):
        q_issue(vm, u, True)
        if u == CLR_AT:
            for q in range(4): a(f'v_lshl_or_b32 v{WG+q}, v{WG+4+q}, 16, v{WG+q}')
            a(f's_lshl_b32 s45, s66, 10\ns_add_u32 s45, s45, {WS_WO}\ns_cmp_ge_u32 s66, 648\ns_cselect_b32 s45, 0x7f000000, s45\nv_lshl_add_u32 v72, v1, 4, s45')
            vm.issue('c', f'buffer_store_dwordx4 v[{WG}:{WG+3}], v72, s[32:35], 0 offen{ST}')
            clears(vm, 59, 64, 2)
            if TOUCH:
                a(f's_mul_i32 s46, s20, {ROWB}\nv_mov_b32 v72, 0\ns_mov_b32 s8, s4\ns_mov_b32 s9, s5\ns_mov_b32 s10, 4\ns_mov_b32 s11, 0x20000')
                vm.issue('c', 'buffer_load_dword v73, v72, s[32:35], s46 offen sc1')
                vm.issue('c', 'buffer_load_dword v74, v72, s[8:11], 0 offen sc1')
    lead = lambda t: [u for u in LEAD.get(t, [t + 4]) if u < 18]
    q0 = list(vm.q)
    def loop(both):
        vm.q = list(q0)
        def reads(t):
            w, o = WB + 4 * (t % 3), (t % 16) * 4096
            r4 = lambda u: ((u, '4'), f'ds_read_b128 a[{X4+4*(u%10)}:{X4+4*(u%10)+3}], v{XR4 + u % 2} offset:{(u // 2) * 2048}')
            r = []
            for u in lead(t):
                r.append(((u, 'j'), f'ds_read_b128 a[{XJ+4*(u%8)}:{XJ+4*(u%8)+3}], v{XRA + u % 2} offset:{(u // 2) * 2048}'))
                if both: r.append(r4(u))
            if not both: r.append(r4(t))
            return r + [((t, 'w'), f'ds_read_b64_tr_b16 a[{w}:{w+1}], v{TRA} offset:{o}'),
                        ((t, 'w'), f'ds_read_b64_tr_b16 a[{w+2}:{w+3}], v{TRA} offset:{o+512}')]
        def mfmas(t):
            m = []
            for u in lead(t):
                xj, x4 = XJ + 4 * (u % 8), X4 + 4 * (u % 10)
                if u % 2:
                    m.append(([(u, 'j')], smf16(SJ, vr(ONE, 4), ar(xj - 4, 8), IDX)))
                    if both: m.append(([(u, '4')], smf16(S4, vr(ONE, 4), ar(x4 - 4, 8), IDX)))
                m.append(([(u, 'j')], mf16(GJ, ar(xj, 4), ar(xj, 4), u == 0)))
                if both: m.append(([(u, '4')], mf16(G4, ar(x4, 4), ar(x4, 4), u == 0)))
            return m + [([(t, '4'), (t, 'w')], mf16(ACC, ar(WB + 4 * (t % 3), 4), ar(X4 + 4 * (t % 10), 4), t == 0))]
        if both:
            zip2 = lambda x, y: [z for p in zip(lines(x), lines(y)) for z in p if not z.startswith('s_nop')]
            f1, f2 = zip2(stats_raw(GJ, SJ, 47, 46, 48), stats_raw(G4, S4, 51, 50, 52)), zip2(stats_fin(47, 46, 48, CQ), stats_fin(51, 50, 52, CQ))
        else: f1, f2 = lines(stats_raw(GJ, SJ, 47, 46, 48)), lines(stats_fin(47, 46, 48, CQ))
        h = len(f2) // 2
        fin = {14: ['s_nop 6'] + f1, 15: f2[:h], 16: f2[h:]}
        fin[17] = ['s_mov_b64 exec, 0xffff\nds_write_b64 v15, v[46:47]\n' + ('ds_write_b64 v15, v[50:51] offset:128\n' if both else '') + 's_mov_b64 exec, -1']
        kloop(a, vm, reads, mfmas, issue, lambda t: fin.get(t, []))
    a('s_cmp_eq_u32 s59, 3\ns_cbranch_scc1 L_qs_both')
    loop(False)
    a('s_branch L_qs_join\nL_qs_both:')
    loop(True)
    a('L_qs_join:\n;PAD p')
    stamp(a, 'loop')
    a(f'''
    s_mov_b32 s48, 0x80008000
    s_mov_b32 s49, 0x80008000
    s_mov_b64 exec, s[48:49]
    s_nop 1
    ds_write_b128 v14, v[{ACC}:{ACC+3}]
    s_mov_b64 exec, -1
    s_mov_b32 s46, {EX_OFF + 256 + 512}
    v_lshl_add_u32 v15, v2, 3, s46
    s_waitcnt lgkmcnt(0)
    s_barrier
    ds_read_b64 v[50:51], v15
    ''')
    for l in q_out_addr(): a(l)
    for r in range(4): a(f'v_mov_b32_dpp v{52+r}, v{ACC+r} row_newbcast:15 row_mask:0xf bank_mask:0xf')
    a('s_waitcnt lgkmcnt(0)')
    for r in range(4): a(f'v_fma_f32 v{ACC+r}, -v50, v{52+r}, v{ACC+r}')
    for r in range(4): a(f'v_mul_f32 v{ACC+r}, v51, v{ACC+r}')
    a(f'''
    v_cvt_pk_bf16_f32 v52, v{ACC}, v{ACC+1}
    v_cvt_pk_bf16_f32 v53, v{ACC+2}, v{ACC+3}
    ds_write_b64 v5, v[52:53]
    ''')
    q_out(a, done)

def kv_tra(a, TRA):
    a(f'''
    v_bfe_u32 v12, v1, 2, 2
    v_and_b32 v13, 3, v1
    v_lshrrev_b32 v9, 1, v3
    v_lshlrev_b32 v9, 4, v9
    v_and_b32 v10, 1, v3
    v_lshl_add_u32 v9, v10, 2, v9
    v_add_u32 v9, v9, v12
    v_lshlrev_b32 v9, 5, v9
    v_lshl_add_u32 v{TRA}, v13, 3, v9
    v_lshl_add_u32 v9, v3, 3, v12
    v_lshlrev_b32 v9, 4, v9
    v_and_b32 v10, 1, v13
    v_lshl_add_u32 v9, v10, 3, v9
    v_lshrrev_b32 v10, 1, v13
    v_mul_u32_u24 v10, {KV_VE-KV_KE}, v10
    v_add_u32 v{TRA+1}, v9, v10
    ''')

def kv_out(a, done):
    a(f'''
    s_lshl_b32 s46, s16, 10
    v_lshl_add_u32 v8, v1, 4, s46
    s_mul_i32 s47, s17, {3*KVREC}
    v_add_u32 v9, s47, v8
    s_waitcnt lgkmcnt(0)
    s_barrier
    ds_read_b128 v[4:7], v8
    v_mov_b32 v10, {EX_OFF + 256}
    ds_read_b128 v[12:15], v10
    ds_read_b64 v[16:17], v10 offset:16
    s_mov_b32 s34, {64*KVREC}
    v_cmp_gt_u32 vcc, {3*KVREC}, v8
    s_and_b64 exec, exec, vcc
    s_waitcnt lgkmcnt(2)
    buffer_store_dwordx4 v[4:7], v9, s[32:35], 0 offen{ST}
    s_mov_b64 exec, -1
    s_waitcnt lgkmcnt(0)
    v_max3_f32 v29, v12, v13, v14
    v_max3_f32 v29, v29, v15, v16
    v_max_f32 v29, v29, v17
    ''')
    done(a)

def kv_main(a, stamp, done):
    ACC, GR, SX, ONE, IDX, TRA, XRA = 16, 32, 36, 40, 44, 46, 48
    WB, XB = 0, 36
    vm = Vm(a)
    a(f'''
    v_lshrrev_b32 v9, 3, v1
    v_and_b32 v10, 7, v1
    v_lshrrev_b32 v11, 1, v9
    v_xor_b32 v11, v11, v10
    v_mul_u32_u24 v6, {ROWB}, v9
    v_lshl_add_u32 v6, v11, 4, v6
    v_xor_b32 v7, 64, v6
    v_add_u32 v7, {8*ROWB}, v7
    s_mul_i32 s20, s17, {TKV}
    s_lshl_b32 s21, s16, 4
    s_add_u32 s20, s20, s21
    s_add_u32 s23, s20, 1
    s_mul_i32 s23, s23, {ROWB}
    {"s_lshl_b32 s22, s18, 7" if ROT else ""}
    {"s_add_u32 s23, s23, s22" if ROT else ""}
    s_mul_i32 s21, s16, 18432
    s_add_u32 s21, s21, {XOFF['kv']}
    s_setprio 3
    s_waitcnt lgkmcnt(0)
    s_sub_u32 s28, s28, {ROWB}
    s_subb_u32 s29, s29, 0
    ''')
    def issue(u):
        if u > 8: return
        if ROT and u: a(f's_cmp_eq_u32 s19, {u}\ns_cselect_b32 s22, {ROWB}, 0\ns_sub_u32 s23, s23, s22')
        a(f's_add_u32 m0, s21, {u*2048 - u*128}\ns_nop 0')
        vm.issue(u, f'buffer_load_dwordx4 v6, s[28:31], s23 offen offset:{u*128}{XP} lds')
        a(f's_add_u32 m0, s21, {u*2048 + 1024 - u*128}\ns_nop 0')
        vm.issue(u, f'buffer_load_dwordx4 v7, s[28:31], s23 offen offset:{u*128}{XP} lds')
    issue(0); a('s_setprio 2'); issue(1); a('s_setprio 0')
    stamp(a, 'issued')
    a('v_and_b32 v2, 15, v1\nv_lshrrev_b32 v3, 4, v1')
    stat_consts(a, ONE, IDX, (SX,))
    x_read_addr(a, XRA, 21)
    kv_tra(a, TRA)
    srd(a, 32, 6, WS_KV, WS_WO - WS_KV)
    a(f'''
    s_mov_b32 s47, {EX_OFF}
    v_lshl_add_u32 v51, v3, 4, s47
    s_lshr_b32 s46, s16, 1
    s_mul_i32 s46, s46, {KVREC}
    s_and_b32 s47, s16, 1
    s_lshl_b32 s47, s47, 4
    v_add_u32 v4, s47, v2
    v_lshl_add_u32 v54, v4, 4, s46
    v_lshrrev_b32 v55, 1, v3
    v_lshl_add_u32 v54, v55, 9, v54
    v_and_b32 v55, 1, v3
    v_lshl_add_u32 v54, v55, 3, v54
    v_lshrrev_b32 v55, 3, v4
    v_mul_u32_u24 v55, 304, v55
    v_add_u32 v55, s46, v55
    v_and_b32 v56, 7, v4
    v_lshl_add_u32 v55, v56, 1, v55
    v_lshl_add_u32 v57, v3, 6, v55
    v_lshl_add_u32 v58, v4, 2, s46
    v_mov_b32 v59, 0x3f80
    ''')
    def reads(t):
        w, o = WB + 12 * (t % 3), (t % 16) * 1024
        return [((t, 'x'), f'ds_read_b128 a[{XB+4*(t%4)}:{XB+4*(t%4)+3}], v{XRA + t % 2} offset:{(t // 2) * 2048}'),
                ((t, 0), f'ds_read_b64_tr_b16 a[{w}:{w+1}], v{TRA} offset:{o}'),
                ((t, 0), f'ds_read_b64_tr_b16 a[{w+2}:{w+3}], v{TRA} offset:{o+256}'),
                ((t, 1), f'ds_read_b64_tr_b16 a[{w+4}:{w+5}], v{TRA} offset:{KV_VM+o}'),
                ((t, 1), f'ds_read_b64_tr_b16 a[{w+6}:{w+7}], v{TRA} offset:{KV_VM+o+256}'),
                ((t, 2), f'ds_read_b64_tr_b16 a[{w+8}:{w+9}], v{TRA+1} offset:{KV_KE+t*512}'),
                ((t, 2), f'ds_read_b64_tr_b16 a[{w+10}:{w+11}], v{TRA+1} offset:{KV_KE+t*512+64}')]
    def mfmas(t):
        w, x = WB + 12 * (t % 3), XB + 4 * (t % 4)
        m = [([(t, 'x')], smf16(SX, vr(ONE, 4), ar(x - 4, 8), IDX))] if t % 2 else []
        m += [([(t, 'x')], mf16(GR, ar(x, 4), ar(x, 4), t == 0))]
        return m + [([(t, 'x'), (t, j)], mf16(ACC + 4 * j, ar(w + 4 * j, 4), ar(x, 4), t == 0)) for j in range(3)]
    kloop(a, vm, reads, mfmas, issue, walk=';WALK k 4 s16 0')
    a(';PAD k')
    stamp(a, 'loop')
    a('s_nop 4')
    a(stats_raw(GR, SX, 48, 50, 49))
    a(stats_fin(48, 50, 49, 1.0))
    a('s_barrier')
    CS, P = 60, 72
    for j in range(3): a(f'ds_read_b128 v[{CS+4*j}:{CS+4*j+3}], v51 offset:{64*j}')
    a('s_mov_b32 s48, 0xffff0000\ns_mov_b32 s49, 0\ns_mov_b32 s50, 0\ns_mov_b32 s51, 0xffff0000')
    for j in range(3):
        a(f's_waitcnt lgkmcnt({2-j})')
        for i in range(4 * j, 4 * j + 4): a(f'v_fma_f32 v{ACC+i}, -v50, v{CS+i}, v{ACC+i}')
    for i in range(12): a(f'v_mul_f32 v{ACC+i}, v48, v{ACC+i}')
    for i in range(6): a(f'v_cvt_pk_bf16_f32 v{P+i}, v{ACC+2*i}, v{ACC+2*i+1}')
    a(f'''
    ds_write_b64 v54, v[{P}:{P+1}]
    ds_write_b16 v57, v{P+2} offset:{KV_V}
    ds_write_b16_d16_hi v57, v{P+2} offset:{KV_V+16}
    ds_write_b16 v57, v{P+3} offset:{KV_V+32}
    ds_write_b16_d16_hi v57, v{P+3} offset:{KV_V+48}
    s_mov_b64 exec, s[48:49]
    ds_write_b32 v58, v{P+5} offset:{KV_X}
    ds_write_b32 v58, v59 offset:{KV_X+128}
    s_mov_b64 exec, s[50:51]
    ds_write_b16 v55, v{P+5} offset:{KV_V+256}
    ds_write_b16_d16_hi v55, v{P+5} offset:{KV_V+272}
    ds_write_b16 v55, v59 offset:{KV_V+288}
    s_mov_b64 exec, -1
    v_cndmask_b32 v60, 0, v{P+5}, s[48:49]
    v_mov_b32 v61, 0
    v_dot2c_f32_bf16 v61, v{P}, v{P}
    v_dot2c_f32_bf16 v61, v{P+1}, v{P+1}
    v_dot2c_f32_bf16 v61, v60, v60
    s_nop 2
    v_mov_b32 v62, v61
    s_nop 1
    v_permlane32_swap_b32 v61, v62
    v_add_f32 v61, v61, v62
    v_mov_b32 v62, v61
    s_nop 1
    v_permlane16_swap_b32 v61, v62
    v_add_f32 v61, v61, v62
    s_nop 1
    v_max_f32_dpp v61, v61, v61 row_ror:8 row_mask:0xf bank_mask:0xf
    s_nop 1
    v_max_f32_dpp v61, v61, v61 row_ror:4 row_mask:0xf bank_mask:0xf
    s_nop 1
    v_max_f32_dpp v61, v61, v61 row_ror:2 row_mask:0xf bank_mask:0xf
    s_nop 1
    v_max_f32_dpp v61, v61, v61 row_ror:1 row_mask:0xf bank_mask:0xf
    s_lshl_b32 s46, s16, 2
    s_add_u32 s46, s46, {EX_OFF + 256}
    v_mov_b32 v62, s46
    ds_write_b32 v62, v61
    s_branch L_kv_out
;PAD -
    ''')

def kv_helper(a, stamp, done):
    ACC, ONE, TRA, WB = 16, 24, 28, 0
    vm = Vm(a)
    a(f'''
    s_sub_u32 s23, s16, 6
    v_lshrrev_b32 v2, 1, v1
    v_and_b32 v3, 0x13, v2
    v_bfe_u32 v4, v2, 2, 1
    v_bfe_u32 v5, v2, 3, 1
    v_lshl_add_u32 v3, v4, 3, v3
    v_lshl_add_u32 v3, v5, 2, v3
    v_mul_u32_u24 v3, 36, v3
    v_and_b32 v4, 1, v1
    v_lshl_add_u32 v6, v4, 4, v3
    v_mul_u32_u24 v7, 36, v1
    v_add_u32 v7, 20, v7
    {f's_mul_i32 s22, s18, {2*ROWB}' if ROT else 's_mov_b32 s22, 0'}
    s_mul_i32 s20, s23, {KV_VM}
    s_mul_i32 s21, s23, {KV_VE-KV_KE}
    s_add_u32 s21, s21, {KV_KE}
    s_setprio 3
    s_waitcnt lgkmcnt(0)
    s_cmp_eq_u32 s23, 0
    s_cselect_b32 s28, s8, s10
    s_cselect_b32 s29, s9, s11
    s_mov_b32 s30, {D*36}
    s_mov_b32 s31, 0x20000
    ''')
    def issue(u):
        if u == CLR_AT:
            clears(vm, 23, 32, 0)
            if TOUCH:
                a(f'v_mov_b32 v40, 0\ns_mov_b32 s8, s4\ns_mov_b32 s9, s5\ns_mov_b32 s10, 4\ns_mov_b32 s11, 0x20000\ns_mov_b32 s46, {WS_KV}')
                vm.issue('c', 'buffer_load_dword v41, v40, s[32:35], s46 offen sc1')
                vm.issue('c', 'buffer_load_dword v42, v40, s[8:11], 0 offen sc1')
        if u > 8: return
        a(f's_add_u32 m0, s21, {u*1024}\ns_nop 0')
        vm.issue(u, 'buffer_load_dwordx4 v7, s[28:31], s22 offen lds')
        a(f's_add_u32 m0, s20, {(u%8)*2048}\ns_nop 0')
        vm.issue(u, 'buffer_load_dwordx4 v6, s[28:31], s22 offen lds')
        a(f's_add_u32 m0, s20, {(u%8)*2048+1024}\ns_add_u32 s22, s22, {ROWB}')
        vm.issue(u, f'buffer_load_dwordx4 v6, s[28:31], s22 offen lds')
        if u < 8:
            a(f's_add_u32 s22, s22, {ROWB}')
            if ROT: a(f's_cmp_eq_u32 s19, {u+1}\ns_cselect_b32 s22, 0, s22')
    issue(0); a('s_setprio 2'); issue(1); a('s_setprio 0')
    a(f'''
    s_cmp_eq_u32 s26, 255
    s_cselect_b32 s46, s23, 0
    s_cmp_eq_u32 s46, 1
    s_cbranch_scc0 L_notag
    s_add_u32 s32, s6, {WS_NONCE}
    s_addc_u32 s33, s7, 0
    s_load_dword s46, s[32:33], 0
    s_mov_b32 s34, 4
    s_mov_b32 s35, 0x20000
    s_mov_b32 s8, s4
    s_mov_b32 s9, s5
    s_mov_b32 s10, 4
    s_mov_b32 s11, 0x20000
    v_mov_b32 v13, 0
    s_waitcnt lgkmcnt(0)
    s_add_u32 s46, s46, 1
    s_add_u32 s47, s46, 1
    s_cmp_lt_u32 s47, 2
    s_cselect_b32 s46, 1, s46
    v_mov_b32 v12, s46
    s_mov_b64 exec, 1
    buffer_store_dword v12, v13, s[8:11], 0 offen sc1
    buffer_store_dword v12, v13, s[32:35], 0 offen sc1
    s_mov_b64 exec, -1
L_notag:
    ''')
    srd(a, 32, 6, 0, WS_USED)
    a('v_lshrrev_b32 v3, 4, v1')
    kv_tra(a, TRA)
    a(f'v_add_u32 v{TRA}, s20, v{TRA}')
    for i in range(4): a(f'v_mov_b32 v{ONE+i}, {hx(ONES)}')
    def reads(t):
        w, o = WB + 8 * (t % 3), (t % 16) * 1024
        return [((t, 0), f'ds_read_b64_tr_b16 a[{w}:{w+1}], v{TRA} offset:{o}'),
                ((t, 0), f'ds_read_b64_tr_b16 a[{w+2}:{w+3}], v{TRA} offset:{o+256}'),
                ((t, 1), f'ds_read_b64_tr_b16 a[{w+4}:{w+5}], v{TRA+1} offset:{KV_KE+t*512}'),
                ((t, 1), f'ds_read_b64_tr_b16 a[{w+6}:{w+7}], v{TRA+1} offset:{KV_KE+t*512+64}')]
    def mfmas(t):
        w = WB + 8 * (t % 3)
        return [([(t, j)], mf16(ACC + 4 * j, ar(w + 4 * j, 4), vr(ONE, 4), t == 0)) for j in range(2)]
    kloop(a, vm, reads, mfmas, issue)
    a(f'''
    s_lshl_b32 s46, s23, 6
    s_add_u32 s46, s46, {EX_OFF}
    v_lshl_add_u32 v8, v3, 4, s46
    s_mov_b32 s46, {EX_OFF + 128}
    v_lshl_add_u32 v9, v3, 4, s46
    s_mov_b32 s48, 0x00010001
    s_mov_b32 s49, 0x00010001
    s_mov_b64 exec, s[48:49]
    s_nop 1
    ds_write_b128 v8, v[{ACC}:{ACC+3}]
    ds_write_b128 v9, v[{ACC+4}:{ACC+7}]
    s_mov_b64 exec, -1
    s_waitcnt lgkmcnt(0)
    s_barrier
    ''')
    srd(a, 32, 6, WS_KV, WS_WO - WS_KV)
    a('L_kv_out:\n;PAD k')
    kv_out(a, done)
    a(';PAD -')

def decode(a, rotate):
    a(f'''
    v_lshrrev_b32 v2, 6, v0
    v_and_b32 v1, 63, v0
    s_and_b32 s20, s2, 7
    v_readfirstlane_b32 s16, v2
    s_lshr_b32 s21, s2, 3
    s_mul_i32 s22, s20, 29
    s_mul_i32 s23, s20, 3
    s_cmp_eq_u32 s20, 7
    s_cselect_b32 s24, 1, 0
    s_add_u32 s22, s22, s24
    s_sub_u32 s23, s23, s24
    s_cmp_ge_u32 s20, 6
    s_cselect_b32 s24, 30, 29
    s_cmp_ge_u32 s21, s24
    s_cbranch_scc1 L_k1_kv
    s_add_u32 s26, s22, s21
    s_mul_i32 s17, s26, 57
    s_lshr_b32 s17, s17, 9
    s_mul_i32 s18, s17, 9
    s_sub_u32 s18, s26, s18
    ''')

def phase1(a, rotate, stamp, done):
    global STAMP
    STAMP = stamp
    decode(a, rotate)
    q_common(a)
    a('s_cmp_ge_u32 s16, 4\ns_cbranch_scc1 L_k1_qs')
    q_big(a, stamp, done)
    a('L_k1_qs:')
    q_small(a, stamp, done)
    a('L_k1_kv:\ns_sub_u32 s17, s21, s24\ns_add_u32 s17, s17, s23\ns_add_u32 s26, s17, 234')
    a('s_sub_u32 s19, s21, s24\ns_mul_i32 s18, s19, 3\ns_sub_u32 s19, 9, s18')
    a('s_cmp_ge_u32 s16, 6\ns_cbranch_scc1 L_k1_hkv')
    kv_main(a, stamp, done)
    a('L_k1_hkv:')
    kv_helper(a, stamp, done)

def entry(a, stamp, exit_label):
    a(f'''
    s_cmp_ge_u32 s2, 256
    s_cbranch_scc1 {exit_label}
    s_load_dwordx2 s[28:29], s[0:1], {KA_X}
    s_load_dwordx2 s[60:61], s[0:1], {KA_WQ}
    s_load_dwordx4 s[8:11], s[0:1], {KA_WK}
    s_load_dwordx2 s[12:13], s[0:1], {KA_WO}
    s_load_dwordx4 s[4:7], s[0:1], {KA_DBG}
    s_mov_b32 s30, {(S+1)*ROWB}
    s_mov_b32 s31, 0x20000
    s_mov_b32 s62, {D*ROWB}
    s_mov_b32 s63, 0x20000
    ''')
    stamp(a, 'start')
    if CODEPF:
        a(f'''
        s_getpc_b64 s[36:37]
L_pf:
        s_lshr_b32 s38, s2, 3
        s_mul_i32 s38, s38, ((L_slow - L_pf + 4095) / 4096) * 128
        v_lshl_add_u32 v2, v0, 7, s38
        v_cmp_gt_u32 vcc, (L_slow - L_pf + 4095) / 4096, v0
        s_and_saveexec_b64 s[38:39], vcc
        s_cbranch_execz L_nopf
        global_load_dword v83, v2, s[36:37]
L_nopf:
        s_mov_b64 exec, -1
        ''')

def diag(t):
    out = []
    for l in t.split('\n'):
        s = l.strip()
        if 'nomfma' in DIAG and 'mfma' in s: continue
        if 'nostat' in DIAG and ('smfmac_f32_16' in s and s.endswith(('v40', 'v44')) or ('mfma_f32_16x16x32' in s and s.split(', ')[1] == s.split(', ')[2])): continue
        if 'nostat4' in DIAG and (s.startswith('v_smfmac_f32_16x16x64_bf16 v[32:35], v[36') or s.startswith('v_mfma_f32_16x16x32_bf16 v[24:27], a[') and s.split(', ')[1] == s.split(', ')[2]): continue
        if 'nolgkm' in DIAG and s.startswith('s_waitcnt lgkmcnt') and not s.endswith('(0)'): continue
        if 'nord' in DIAG and s.startswith('ds_read') and ' a[' in s: continue
        if 'nodma' in DIAG and s.endswith('lds'): continue
        out.append(l)
    return '\n'.join(out)

def k1(name, rotate=True, stamp=nomark):
    a = Asm()
    a(f'.globl {name}\n.p2align 8\n.type {name},@function\n{name}:')
    entry(a, stamp, 'L_k1_exit')
    def done(a):
        stamp(a, 'end'); a('s_endpgm')
    phase1(a, rotate, stamp, done)
    a('L_k1_exit:\ns_endpgm')
    return diag(a.text())
```

```python
from common import *

LG, LU, LD = 0, 36864, 73728
LP = 110592
LO = LP + 20480
LQ = LO + 9 * 1152
LDUM = LQ + 8 * 2048
LX = LDUM + 1024
X_FLAG, X_KEY, X_WIN, X_G, X_ACT, X_MAX, X_PMAX = LX, LX + 32, LX + 64, LX + 128, LX + 640, LX + 1152, LP
K2_LDS = LX + 2304
HROW = 2560
LQR = LP
ONES = 0x3f803f80
M_LIMIT = 48.0
SPIN = 40000
POLL_SLEEP, FIN_SLEEP, FIN_SLEEP2 = 3, 28, 2

SA, SB, OACC, T = 0, 16, 32, 52
IDXA, IDXB, WAD, RAD, OAD, OST, AAD, L16, QAD, GUV, MV, LANE, WAD3, QXAD = 68, 69, 70, 71, 72, 73, 74, 75, 76, 77, 78, 79, 80, 81
NV = 84
KM, KX, VV, OO, WO, QM, QX, AF = 0, 32, 40, 104, 120, 160, 164, 168
NA = 172
S_WS, S_G, S_U, S_D, S_X, S_OUT, S_WR = 20, 24, 28, 32, 36, 40, 44
WAVE, S_FS, S_WOC, S_MG, S_MU, S_MD, S_MST, S_GOFF, S_DOFF, S_CNT, S_NT0 = 18, 19, 48, 49, 50, 51, 52, 53, 54, 55, 56
S_DST = 57
DIAG = set()
LDP = ' sc1'
FUSED = False
WOP = ' sc1'
QKORD = 0
PRIO = (3, 2, 1, 3, 3, 2, 1, 1)
MIDP = {3: (10, 0), 0: (10, 0)}
SPEC = 0
DEFER = 0
WARMN = 0
RPOS, APOS, NPOS = (1, 5, 8, 12), (1, 3, 5, 7, 9, 11, 13), (0, 2, 4, 5, 7)
RTOUCH = 0
FPOLL_FIRST, KPOLL_F2, POLL_FIRST = 9, 6, 0
FFP = (' nt', ' nt', ' nt')
DMAT = ((0, 14), (1, 14), (2, 14))
SPLIT = 1
WALK = 0
TOUCH = 0
OUTP = ''
LATE = 0
ALIGN = 3
KPOLL_SLEEP, KPOLL_FIRST, FPOLL_SLEEP = 3, 8, 4
ROTF = 0x30003
PRE = (2, 1, 1)

def qk8(Y, slot, c): return f'v_mfma_f32_32x32x8bf16_1k v[{Y}:{Y+15}], a[{KX+(slot&~1)}:{KX+(slot&~1)+1}], a[{QX+2*(slot&1)}:{QX+2*(slot&1)+1}], {c}'
def qk16(Y, slot, c): return f'v_mfma_f32_32x32x16_bf16 v[{Y}:{Y+15}], a[{KM+4*slot}:{KM+4*slot+3}], a[{QM}:{QM+3}], {c}'
def qkx(Y, slot): return (qk16 if QKORD else qk8)(Y, slot, '0')
def qkm(Y, slot): return (qk8 if QKORD else qk16)(Y, slot, f'v[{Y}:{Y+15}]')
def pv(X, slot, s): return f'v_smfmac_f32_32x32x32_bf16 a[{OO}:{OO+15}], a[{VV+8*slot+4*s}:{VV+8*slot+4*s+3}], v[{X+8*s}:{X+8*s+7}], v{IDXA}'
def zero_o(): return f'v_mfma_f32_32x32x8bf16_1k a[{OO}:{OO+15}], a[{QX}:{QX+1}], a[{QX+2}:{QX+3}], 0'
def oproj(f, af, w): return f'v_smfmac_f32_16x16x64_bf16 v[{OACC+4*f}:{OACC+4*f+3}], a[{af}:{af+3}], a[{w}:{w+7}], v{IDXB}'
W_PART = [f'ds_write_b128 v{WAD}, a[{OO}:{OO+3}]', f'ds_write_b128 v{WAD}, a[{OO+4}:{OO+7}] offset:32', f'ds_write_b64 v{WAD3}, a[{OO+8}:{OO+9}]']
R_PART = [f'ds_read2st64_b64 v[{T+4*i}:{T+4*i+3}], v{RAD} offset0:{10*i} offset1:{10*i+5}' for i in range(4)]
def pka(d, x, y): return f'v_add_f32 v{T+d}, v{T+x}, v{T+y}\nv_add_f32 v{T+d+1}, v{T+x+1}, v{T+y+1}'
ADDS = [pka(0, 0, 2), pka(4, 4, 6), pka(8, 8, 10), pka(12, 12, 14), pka(0, 0, 4), pka(8, 8, 12), pka(0, 0, 8)]
NORM = [f'v_rcp_f32_dpp v{T+2}, v{T} row_newbcast:9 row_mask:0xf bank_mask:0xf',
        f'v_mul_f32 v{T}, v{T}, v{T+2}\nv_mul_f32 v{T+1}, v{T+1}, v{T+2}',
        f'v_cvt_pk_bf16_f32 v{T+4}, v{T}, v{T+1}',
        f'ds_write_b32 v{OAD}, v{T+4}',
        f'v_add_u32 v{OAD}, v{OST}, v{OAD}']

def tile(a, t, ex, slow, prev=True, nxt=True, kind='std', x16=None, x16b=None):
    X, Y = (SA, SB) if t % 2 == 0 else (SB, SA)
    m = {}
    def put(p, s): m.setdefault(p, []).append(s)
    p_pvb, p_x, p_qx, p_qm, p_pva = 2, 5, 6, 10, 14
    if kind == 'first': p_qx, p_qm, p_pva = 5, 9, 16
    if kind == 'second':
        p_pvb = 3
        if x16: p_x, p_qx, p_qm = 6, 7, 11
    if prev: put(p_pvb, pv(Y, (t - 1) % 8, 1))
    if x16:
        for s in x16: put(p_x, s)
    if x16b:
        for s in x16b: put(13, s)
    if nxt:
        put(p_qx, ('qx', qkx(Y, (t + 1) % 8))); put(p_qm, qkm(Y, (t + 1) % 8))
    if kind == 'first':
        for s in W_PART: put(p_qm, s)
        put(12, zero_o())
    put(p_pva, ('pa', pv(X, t, 0)))
    for p in range(17):
        for s in m.get(p, []):
            if isinstance(s, tuple):
                for e in ex.get(s[0], []): e() if callable(e) else a(e)
                s = s[1]
            s() if callable(s) else a(s)
        for e in ex.get(p, []): e() if callable(e) else a(e)
        if p < 16:
            if slow: a(f'v_sub_f32 v{X+p}, v{X+p}, v{MV}')
            a(f'v_exp_f32 v{X+p}, v{X+p}')

def wo_load(vm, tag, reg, soff_add):
    def th():
        vm.a(f's_add_u32 s58, s{S_WOC}, {soff_add}')
        vm.issue(tag, f'buffer_load_dwordx4 a[{reg}:{reg+3}], v{L16}, s[{S_WS}:{S_WS+3}], s58 offen{WOP}')
        vm.issue(tag, f'buffer_load_dwordx4 a[{reg+4}:{reg+7}], v{L16}, s[{S_WS}:{S_WS+3}], s58 offen offset:1024{WOP}')
    return th

def q_reads(slow):
    r = [f'ds_read_b128 a[{QM}:{QM+3}], v{QAD}', f'ds_read_b128 a[{QX}:{QX+3}], v{QAD} offset:1024', f'v_add_u32 v{QAD}, 2048, v{QAD}']
    return r

STEP = 36 * 2048
def attention(a, n, slow, lab, vm, stamp, pre):
    prio = dict(zip((1, 2, 3, 4, 5, 6, 7, 0), PRIO))
    def mload():
        return [f'ds_read_b32 v{T+15}, v82', 's_waitcnt lgkmcnt(0)', 'v_add_u32 v82, 128, v82'] if slow else []
    a('s_waitcnt lgkmcnt(0)')
    vm.need('km0')
    a(qkx(SA, 0)); a(qkm(SA, 0)); a(zero_o())
    if slow:
        a(f'ds_read_b32 v{MV}, v82\nv_add_u32 v82, 128, v82\ns_waitcnt lgkmcnt(0)')
    a('s_nop 3')
    for t in range(8):
        ex = {0: [f's_setprio {prio[t]}']}
        if t < 7: ex['qx'] = [lambda t=t: vm.need(f'km{t+1}')]
        ex['pa'] = [lambda t=t: vm.need(f'v{t}')]
        if t + pre < 8:
            for q in range(4): ex[1 + 4 * q] = [lambda t=t, q=q: kv_load(vm, t + pre, q)]
        if t == 5:
            for q in range(WARMN): ex[1 + 3 * q] = [lambda q=q: warm(vm, q)]
            def touch():
                a(f's_lshl_b32 s58, s2, 3\ns_mul_i32 s58, s58, {ROWB}')
                vm.issue('t', f'buffer_load_dword a{WO+4}, v{T+14}, s[{S_WR}:{S_WR+3}], 0 offen')
                vm.issue('t', f'buffer_load_dword a{WO+5}, v{T+14}, s[{S_OUT}:{S_OUT+3}], s58 offen')
            if TOUCH: ex[10] = [touch]
            ex[12] = [wo_load(vm, 'f', WO, 0)]
        if t >= 6:
            ex[1] = [wo_load(vm, 'f', WO + 8 * (2 * t - 11), (2 * t - 11) * 2048)]
            if t == 6: ex[8] = [wo_load(vm, 'f', WO + 16, 2 * 2048)]
        if t == 6: ex[11] = q_reads(slow)
        if t == 7:
            ex['qx'] = ['s_waitcnt lgkmcnt(0)']
            if n == 5: ex[15] = [wo_load(vm, 'f', WO + 32, 4 * 2048)]
            ex[11] = mload()
            ex[16] = [f's_add_u32 s{S_WOC}, s{S_WOC}, {STEP}']
            for q in range(len([x for x in DMAT if x[0] > 4])): ex[16].append(lambda: vm.issue('pad', f'buffer_load_dword v{QXAD}, v{T+14}, s[{S_WR}:{S_WR+3}], 0 offen'))
        tile(a, t, ex, slow, prev=t > 0)
        if t == 7 and slow: a(f'v_mov_b32 v{MV}, v{T+15}')
    stamp(a, 's0')
    def dma(q):
        srdr, off, vo, so = ((S_G, LG, GUV, S_GOFF), (S_U, LU, GUV, S_GOFF), (S_D, LD, L16, S_DOFF))[q]
        r = [f's_add_u32 m0, s{S_MG}, {off}', 's_nop 0', f'buffer_load_dwordx4 v{vo}, s[{srdr}:{srdr+3}], s{so} offen{FFP[q]} lds']
        return r + [[], [f's_add_u32 s{S_GOFF}, s{S_GOFF}, {6*16*F*2}'], [f's_add_u32 s{S_MG}, s{S_MG}, 6144', f's_add_u32 s{S_DOFF}, s{S_DOFF}, 6144']][q]
    use = {4: [0], 5: [1], 6: [2], 7: [3, 4][:n - 3]}
    def body(last, xfer=False):
        lv = Vm(a)
        nvm = 2 * n - 2 + (3 if xfer else 0)
        if last:
            lv.q = [f'f{f}' for f in range(n) for _ in range(2)]
            free = {1: [KM, VV], 2: [VV + 8], 3: [KM + 8, VV + 16]}
            todo = [(8, f) for f in range(n)]
            where = {}
        for t in range(8):
            ex = {0: [f's_setprio {prio[t]}']}
            if t in MIDP: ex[MIDP[t][0]] = [f's_setprio {MIDP[t][1]}']
            x16, x16b = None, None
            for q, f in enumerate(use.get(t, [])):
                wait = (lambda f=f: lv.need(f'f{f}')) if last else f's_waitcnt vmcnt({nvm})'
                item = [wait, oproj(f, AF, WO + 8 * f)]
                if t == 4: item = ['s_waitcnt lgkmcnt(0)'] + item
                if q == 0 and t != 4: x16 = item
                else: x16b = item
                ex.setdefault(8 if (q == 0 and t != 4) else 15, []).append(wo_load(lv, f'f{f}', WO + 8 * f, f * 2048))
            if t == 0:
                ex[16] = ['s_waitcnt lgkmcnt(0)', 's_barrier']
            if t == 1:
                for i, p in enumerate(RPOS): ex.setdefault(p, []).append(R_PART[i])
            if t == 2:
                ex.setdefault(1, []).append('s_waitcnt lgkmcnt(0)')
                for i, p in enumerate(APOS): ex.setdefault(p, []).append(ADDS[i])
            if t == 3:
                for i, p in enumerate(NPOS): ex.setdefault(p, []).append(NORM[i])
                ex[16] = ['s_waitcnt lgkmcnt(0)', 's_barrier']
            for q, (tt, pp) in enumerate(DMAT):
                if xfer and t == tt: ex.setdefault(pp, []).extend(dma(q))
            if t == 4:
                ex.setdefault(1, []).extend([f'ds_read_b128 a[{AF}:{AF+3}], v{AAD}', f'v_add_u32 v{AAD}, 1152, v{AAD}'])
            if t == 6 and not last: ex[11] = q_reads(slow)
            if t == 7 and not last:
                ex['qx'] = ['s_waitcnt lgkmcnt(0)']
                ex[11] = mload()
                ex[16] = [f's_add_u32 s{S_WOC}, s{S_WOC}, {STEP}', f's_sub_u32 s{S_CNT}, s{S_CNT}, 1', f's_cmp_lg_u32 s{S_CNT}, 0']
            if last:
                for i, reg in enumerate(free.get(t, [])):
                    if todo:
                        st, f = todo.pop(0); where[(st, f)] = reg
                        ex.setdefault(11 + 3 * i, []).append(wo_load(lv, f's{st}f{f}', reg, f * 2048 + STEP))
                if t == 7:
                    def rows():
                        for i in range(5): lv.issue('x', f'buffer_load_dword v{SA+i}, v82, s[{S_X}:{S_X+3}], s59 offen offset:{256*i}')
                        for i in range(5): lv.issue('w', f'buffer_load_dword v{SA+5+i}, v82, s[{S_WR}:{S_WR+3}], 0 offen offset:{256*i}')
                    ex[3] = [f'v_lshlrev_b32 v82, 2, v{LANE}', f's_lshl_b32 s59, s2, 3', f's_add_u32 s59, s59, s{WAVE}', f's_mul_i32 s59, s59, {ROWB}', rows]
            tile(a, t, ex, slow, nxt=not (last and t == 7), kind={0: 'first', 1: 'second'}.get(t, 'std'), x16=x16, x16b=x16b)
            if t == 7 and slow and not last: a(f'v_mov_b32 v{MV}, v{T+15}')
        if last:
            assert not todo
            return lv, where
    a(f's_mov_b32 s{S_CNT}, 6\ns_cmp_eq_u32 s{S_MST}, 0\ns_cbranch_scc1 {lab}n_loop\n.p2align {ALIGN}\n{lab}x_loop:')
    body(False, True)
    a(f's_cbranch_scc1 {lab}x_loop\ns_branch {lab}_last\n.p2align {ALIGN}\n{lab}n_loop:')
    body(False, False)
    a(f's_cbranch_scc1 {lab}n_loop\n{lab}_last:')
    stamp(a, 's6')
    lv, where = body(True)
    if not slow: a(';PAD t')
    a('s_setprio 0\ns_nop 0')
    a(pv(SB, 7, 1))
    stamp(a, 's7')
    a('s_nop 9')
    for s in W_PART: a(s)
    a('s_waitcnt lgkmcnt(0)\ns_barrier')
    stamp(a, 'b1')
    for s in R_PART: a(s)
    a(f'''
    v_and_b32 v20, 15, v{LANE}
    v_bfe_u32 v21, v{LANE}, 4, 1
    v_mul_u32_u24 v21, {4*HROW + 64}, v21
    v_lshl_add_u32 v20, v20, 2, v21
    s_lshl_b32 s58, s{S_NT0}, 6
    s_add_u32 s58, s58, {LP}
    v_add_u32 v20, s58, v20
    v_lshrrev_b32 v21, 5, v{LANE}
    v_lshl_add_u32 v21, v21, 6, v20
    v_add_u32 v22, 128, v21
    ''')
    a('s_waitcnt lgkmcnt(2)'); a(ADDS[0]); a(ADDS[1]); a(ADDS[4]); a('s_waitcnt lgkmcnt(0)')
    for q in (2, 3, 5, 6): a(ADDS[q])
    a('s_nop 0'); a(NORM[0]); a('s_nop 0')
    for s in NORM[1:4]: a(s)
    lv.need('x', 'w')
    for i in range(5): unpack(a, 10 + 2 * i, i)
    a(f'''
    s_waitcnt lgkmcnt(0)
    s_barrier
    ds_read_b128 a[{QM}:{QM+3}], v{AAD} offset:1152
    ds_read_b128 a[{AF}:{AF+3}], v{AAD}
    v_mov_b32 v{T+8}, 0
    v_mov_b32 v{T+9}, {hx(ONES)}
    s_mul_i32 s58, s{WAVE}, {HROW}
    s_lshr_b32 s59, s{WAVE}, 2
    s_lshl_b32 s59, s59, 6
    s_add_u32 s58, s58, s59
    s_add_u32 s58, s58, {LP}
    v_lshl_add_u32 v{T+10}, v{LANE}, 3, s58
    ''')
    for i in range(5): a(f'v_dot2c_f32_bf16 v{T+8}, v{5+i}, v{T+9}')
    stamp(a, 'b2')
    a('s_waitcnt lgkmcnt(1)')
    for f in range(n):
        lv.need(f's8f{f}'); a(oproj(f, QM, where[(8, f)]))
    a('s_waitcnt lgkmcnt(0)')
    for f in range(n):
        lv.need(f'f{f}'); a(oproj(f, AF, WO + 8 * f))
    stamp(a, 'op')
    a(f's_nop {9 - n}')
    R = HROW // 256
    for p in range(2):
        A, B = OACC + 8 * p, OACC + 8 * p + 4
        for r in range(4): a(f'v_permlane32_swap_b32 v{A+r}, v{B+r}')
        for r in range(4): a(f'v_add_f32 v{A+r}, v{A+r}, v{B+r}')
        for r in (0, 2): a(f'ds_write2st64_b32 v{21+p}, v{A+r}, v{A+r+1} offset0:{r*R} offset1:{(r+1)*R}')
    if n == 5:
        A = OACC + 16
        for r in range(4): a(f'v_mov_b32 v{T+4+r}, v{A+r}')
        for r in range(4): a(f'v_permlane32_swap_b32 v{A+r}, v{T+4+r}')
        for r in range(4): a(f'v_add_f32 v{A+r}, v{A+r}, v{T+4+r}')
        for r in (0, 2): a(f'ds_write2st64_b32 v20, v{A+r}, v{A+r+1} offset0:{r*R+1} offset1:{(r+1)*R+1}')
    a(f's_branch L_tail\n;PAD -')

def warm(vm, i):
    vm.a(f's_add_u32 s58, s60, {i*8192}')
    vm.issue('warm', f'buffer_load_dwordx4 a[{WO+8*i}:{WO+3+8*i}], v{L16}, s[{S_WS}:{S_WS+3}], s58 offen{LDP}')

def dpp_reduce(a, op, regs):
    for c in ('row_shr:1', 'row_shr:2', 'row_shr:4', 'row_shr:8', 'row_bcast:15 row_mask:0xa', 'row_bcast:31 row_mask:0xc'):
        if len(regs) < 3: a(f's_nop {2 - len(regs)}')
        for r in regs:
            mask = '' if 'row_mask' in c else ' row_mask:0xf'
            a(f'{op}_dpp v{r}, v{r}, v{r} {c}{mask} bank_mask:0xf')

def bf_round(a, dst, src):
    a(f'v_cvt_pk_bf16_f32 v{dst}, v{src}, v{src}\nv_and_b32 v{dst}, 0xffff0000, v{dst}')
def unpack(a, lo, src):
    a(f'v_lshlrev_b32 v{lo}, 16, v{src}\nv_and_b32 v{lo+1}, 0xffff0000, v{src}')

def tail(a, stamp):
    XP, WP, XF, AT, HP, LN, OU = 0, 5, 10, 20, 30, 35, 60
    a(f'''
L_tail:
;PAD t
    v_mov_b32 v46, 0
    v_mov_b32 v47, 0
    s_waitcnt lgkmcnt(0)
    v_mov_b32 v48, 0
    v_mov_b32 v49, v{T+8}
    v_mov_b32 v51, v{T+9}
    s_barrier
    ''')
    for i in range(5): a(f'ds_read_b64 v[{AT+2*i}:{AT+2*i+1}], v{T+10} offset:{512*i}')
    stamp(a, 'attn')
    a(f'''
    s_mov_b32 s62, -1
    s_mov_b32 s63, 0
    s_lshl_b32 s59, s2, 3
    s_add_u32 s59, s59, s{WAVE}
    s_sub_u32 s69, 2047, s59
    s_lshl_b32 s58, s{WAVE}, 2
    s_add_u32 s58, s58, {X_KEY}
    v_mov_b32 v57, s58
    v_and_b32 v55, 7, v{LANE}
    s_mov_b32 s58, {X_KEY}
    v_lshl_add_u32 v55, v55, 2, s58
    s_mov_b32 s60, {GRAN_REP}
    v_mul_lo_u32 v56, s60, v{LANE}
    v_mov_b32 v52, {hx(f32(1.0/D))}
    ''')
    for i in range(5):
        a(f's_waitcnt lgkmcnt({4-i})\nv_pk_add_f32 v[{AT+2*i}:{AT+2*i+1}], v[{AT+2*i}:{AT+2*i+1}], v[{XF+2*i}:{XF+2*i+1}]')
        a(f'v_cvt_pk_bf16_f32 v{HP+i}, v{AT+2*i}, v{AT+2*i+1}')
        if i == 4: a(f'v_cndmask_b32 v{HP+4}, 0, v{HP+4}, s[62:63]')
        a(f'v_dot2c_f32_bf16 v46, v{HP+i}, v51\nv_dot2c_f32_bf16 v47, v{HP+i}, v{HP+i}\nv_dot2c_f32_bf16 v48, v{HP+i}, v{WP+i}')
    a(f'''
    s_lshl_b32 s60, s2, 7
    s_add_u32 s60, s60, {WS_GRAN}
    s_nop 0
    v_permlane32_swap_b32 v46, v47
    v_permlane32_swap_b32 v48, v49
    v_add_f32 v46, v46, v47
    v_add_f32 v48, v48, v49
    s_nop 1
    v_permlane16_swap_b32 v46, v48
    v_add_f32 v46, v46, v48
    ''')
    for c in (8, 4, 2, 1): a(f's_nop 1\nv_add_f32_dpp v46, v46, v46 row_ror:{c} row_mask:0xf bank_mask:0xf')
    a(f'''
    s_nop 0
    v_readlane_b32 s64, v46, 0
    v_readlane_b32 s65, v46, 32
    v_readlane_b32 s66, v46, 16
    v_readlane_b32 s67, v46, 48
    v_mul_f32 v46, s64, v52
    v_mul_f32 v47, s65, v52
    v_fma_f32 v47, -v46, v46, v47
    v_max_f32 v47, 0, v47
    ''')
    bf_round(a, 47, 47)
    a(f'v_add_f32 v47, {hx(f32(1e-5))}, v47')
    bf_round(a, 47, 47)
    a('v_sqrt_f32 v47, v47')
    bf_round(a, 46, 46)
    bf_round(a, 47, 47)
    a(f'''
    v_rcp_f32 v48, v47
    v_mov_b32 v53, s66
    v_fma_f32 v53, -v46, s67, v53
    v_mul_f32 v53, v53, v48
    v_cvt_pk_bf16_f32 v53, v53, v53
    v_ashrrev_i32 v54, 31, v53
    v_or_b32 v54, 0x80000000, v54
    v_xor_b32 v53, v53, v54
    v_lshrrev_b32 v53, 16, v53
    v_lshl_or_b32 v53, v53, 11, s69
    ds_write_b32 v57, v53
    s_getreg_b32 s58, hwreg(HW_REG_XCC_ID)
    s_and_b32 s58, s58, 7
    s_mul_i32 s58, s58, {GRAN_REP}
    s_and_b32 s64, s{WAVE}, 3
    s_lshl_b32 s64, s64, 13
    s_add_u32 s58, s58, s64
    s_add_u32 s64, s58, {WS_GRAN}
    v_lshlrev_b32 v65, 7, v{LANE}
    s_waitcnt lgkmcnt(0)
    s_barrier
    ds_read_b32 v54, v55
    s_mov_b32 s61, 0
    s_waitcnt lgkmcnt(0)
    v_cmp_gt_u32 vcc, v54, v53
    s_cbranch_vccnz L_notbest
    s_mov_b64 exec, 0xff
    buffer_store_dword v53, v56, s[{S_WS}:{S_WS+3}], s60 offen sc1
    s_mov_b64 exec, -1
    s_mov_b32 s61, 1
L_notbest:
    ''')
    stamp(a, 'gran')
    for c in (4, 2, 1): a(f'v_max_u32_dpp v54, v54, v54 row_ror:{c} row_mask:0xf bank_mask:0xf\ns_nop 1')
    a(f'v_readfirstlane_b32 s65, v54\ns_xor_b32 s65, s65, s{WAVE}\ns_and_b32 s65, s65, 4')
    a('v_sub_f32 v56, 0, v46\nv_mov_b32 v57, v56\nv_mov_b32 v49, v48')
    for i in range(5): unpack(a, XF + 2 * i, HP + i)
    for i in range(5): a(f'v_pk_add_f32 v[{AT+2*i}:{AT+2*i+1}], v[{XF+2*i}:{XF+2*i+1}], v[56:57]')
    for i in range(5): a(f'v_cvt_pk_bf16_f32 v{LN+i}, v{AT+2*i}, v{AT+2*i+1}')
    for i in range(5): unpack(a, AT + 2 * i, LN + i)
    for i in range(5): a(f'v_pk_mul_f32 v[{AT+2*i}:{AT+2*i+1}], v[{AT+2*i}:{AT+2*i+1}], v[48:49]')
    for i in range(5): a(f'v_cvt_pk_bf16_f32 v{LN+i}, v{AT+2*i}, v{AT+2*i+1}')
    a(f'''
    v_lshlrev_b32 v58, 2, v{LANE}
    s_cmp_eq_u32 s61, 1
    s_cbranch_scc0 L_norow
    s_mul_i32 s58, s2, 2304
    s_add_u32 s58, s58, {WS_ROWS}
    ''')
    for i in range(4): a(f'buffer_store_dword v{LN+i}, v58, s[{S_WS}:{S_WS+3}], s58 offen offset:{256*i} sc1')
    for i in range(4): a(f'buffer_store_dword v{HP+i}, v58, s[{S_WS}:{S_WS+3}], s58 offen offset:{1152+256*i} sc1')
    a(f'''
    s_mov_b32 exec_hi, 0
    buffer_store_dword v{LN+4}, v58, s[{S_WS}:{S_WS+3}], s58 offen offset:1024 sc1
    buffer_store_dword v{HP+4}, v58, s[{S_WS}:{S_WS+3}], s58 offen offset:{1152+1024} sc1
    s_mov_b32 exec_hi, -1
L_norow:
    ''')
    for i in range(5): unpack(a, AT + 2 * i, LN + i)
    for i in range(5): a(f'v_pk_add_f32 v[{AT+2*i}:{AT+2*i+1}], v[{AT+2*i}:{AT+2*i+1}], v[{XF+2*i}:{XF+2*i+1}]')
    for i in range(5): a(f'v_cvt_pk_bf16_f32 v{OU+i}, v{AT+2*i}, v{AT+2*i+1}')
    def out_row():
        for i in range(4): a(f'buffer_store_dword v{OU+i}, v58, s[{S_OUT}:{S_OUT+3}], s68 offen offset:{256*i}{OUTP}')
        a(f's_mov_b32 exec_hi, 0\nbuffer_store_dword v{OU+4}, v58, s[{S_OUT}:{S_OUT+3}], s68 offen offset:1024{OUTP}\ns_mov_b32 exec_hi, -1')
    a(f's_mul_i32 s68, s59, {ROWB}')
    if not DEFER:
        a('s_cmp_eq_u32 s61, 1\ns_cbranch_scc1 L_defer')
        out_row()
        a('L_defer:')
    elif DEFER == 2:
        a('s_cmp_eq_u32 s61, 1\ns_cbranch_scc1 L_defer\ns_cmp_eq_u32 s65, 0\ns_cbranch_scc1 L_defer')
        out_row()
        a('s_mov_b32 s61, 2\nL_defer:')
    stamp(a, 'rows')
    GW, DW = 0, 60
    a(f'''
    v_lshrrev_b32 v1, 4, v{LANE}
    v_bfe_u32 v2, v{LANE}, 2, 2
    v_and_b32 v3, 3, v{LANE}
    v_lshl_add_u32 v2, v1, 3, v2
    s_cmp_ge_u32 s{S_FS}, 144
    s_cbranch_scc1 L_nopre
    s_and_b32 s58, s{WAVE}, 1
    v_and_b32 v4, 1, v1
    v_xor_b32 v4, s58, v4
    v_lshlrev_b32 v4, 5, v4
    v_lshl_add_u32 v4, v2, 6, v4
    v_lshl_add_u32 v4, v3, 3, v4
    s_bfe_u32 s58, s{WAVE}, 0x10001
    s_mul_i32 s58, s58, {LU}
    s_lshr_b32 s60, s{WAVE}, 2
    s_mul_i32 s69, s60, {9*2048}
    s_add_u32 s58, s58, s69
    v_add_u32 v4, s58, v4
    v_mul_u32_u24 v5, {ROWB}, v2
    v_lshl_add_u32 v5, v3, 3, v5
    s_lshl_b32 s58, s{S_NT0}, 5
    s_add_u32 s58, s58, {LD}
    v_add_u32 v5, s58, v5
    ''')
    for i in range(9):
        a(f'ds_read_b64_tr_b16 a[{GW+4*i}:{GW+4*i+1}], v4 offset:{2048*i}\nds_read_b64_tr_b16 a[{GW+4*i+2}:{GW+4*i+3}], v4 offset:{2048*i+256}')
    for f in range(5):
        a(f'ds_read_b64_tr_b16 a[{DW+4*f}:{DW+4*f+1}], v5 offset:{32*f}\nds_read_b64_tr_b16 a[{DW+4*f+2}:{DW+4*f+3}], v5 offset:{32*f+4*ROWB}')
    a(f'''
L_nopre:
    s_cmp_lg_u32 s65, 0
    s_cbranch_scc1 {'L_touch' if RTOUCH else 'L_polled'}
    s_mov_b32 s60, 0
    {f's_sleep {POLL_FIRST}' if POLL_FIRST else ''}
L_poll:
    buffer_load_dword v66, v65, s[{S_WS}:{S_WS+3}], s64 offen sc1
    s_add_u32 s60, s60, 1
    s_waitcnt vmcnt(0)
    v_cmp_eq_u32 vcc, -1, v66
    s_and_b64 exec, exec, vcc
    s_cbranch_execz L_polldone
    s_cmp_gt_u32 s60, {SPIN}
    s_cbranch_scc1 L_polldone
    ''')
    if SPEC:
        a(f'''
        s_cmp_gt_u32 s60, {SPEC}
        s_cbranch_scc1 L_nospec
        s_mov_b64 s[66:67], exec
        s_mov_b64 exec, -1
        v_cndmask_b32 v67, v66, 0, s[66:67]
        ''')
        dpp_reduce(a, 'v_max_u32', [67])
        a(f'''
        s_nop 0
        v_readlane_b32 s62, v67, 63
        s_andn2_b32 s62, 2047, s62
        s_lshr_b32 s62, s62, 3
        s_mul_i32 s62, s62, 2304
        s_add_u32 s62, s62, {WS_ROWS}
        s_mov_b64 exec, 0x1ff
        buffer_load_dword v67, v65, s[{S_WS}:{S_WS+3}], s62 offen sc1
        s_mov_b64 exec, s[66:67]
        s_branch L_poll
L_nospec:
        ''')
    a(f'''
    s_sleep {POLL_SLEEP}
    s_branch L_poll
L_polldone:
    s_mov_b64 exec, -1
    s_nop 1
    ''')
    dpp_reduce(a, 'v_max_u32', [66])
    a(f'''
    s_and_b32 s58, s{WAVE}, 3
    s_lshl_b32 s58, s58, 2
    s_add_u32 s58, s58, {X_WIN}
    v_mov_b32 v8, s58
    s_mov_b32 exec_lo, 0
    s_mov_b32 exec_hi, 0x80000000
    ds_write_b32 v8, v66
    s_mov_b64 exec, -1
    ''')
    if RTOUCH:
        a(f'''
        s_branch L_polled
L_touch:
        s_and_b32 s58, s{WAVE}, 3
        s_lshl_b32 s58, s58, 1
        s_and_b32 s60, s2, 0xf8
        s_add_u32 s58, s58, s60
        s_mul_i32 s58, s58, 2304
        s_add_u32 s58, s58, {WS_ROWS}
        v_add_u32 v67, {2304 - 9*128}, v65
        v_cmp_lt_u32 vcc, 8, v{LANE}
        s_nop 1
        v_cndmask_b32 v67, v65, v67, vcc
        s_mov_b64 exec, 0x3ffff
        buffer_load_dword v66, v67, s[{S_WS}:{S_WS+3}], s58 offen sc1
        s_mov_b64 exec, -1
        ''')
    a(f'''
L_polled:
    v_mov_b32 v8, {X_WIN}
    s_waitcnt lgkmcnt(0)
    s_barrier
    ds_read_b128 v[10:13], v8
    s_waitcnt lgkmcnt(0)
    v_max_u32 v10, v10, v11
    v_max3_u32 v10, v10, v12, v13
    s_nop 0
    v_readfirstlane_b32 s62, v10
    s_and_b32 s63, s62, 2047
    s_sub_u32 s63, 2047, s63
    s_lshr_b32 s64, s63, 3
    s_mul_i32 s64, s64, 2304
    s_add_u32 s64, s64, {WS_ROWS}
    ''')
    stamp(a, 'win')
    a(f'''
    s_cmp_ge_u32 s{S_FS}, 144
    s_cbranch_scc1 L_noffn
    s_lshr_b32 s60, s{WAVE}, 2
    s_mul_i32 s60, s60, 576
    s_add_u32 s60, s60, s64
    s_mul_i32 s68, s{WAVE}, 576
    s_add_u32 m0, s68, {LP}
    s_mov_b32 s66, -1
    s_mov_b32 s67, 0xf
    v_lshlrev_b32 v6, 4, v1
    s_mov_b32 s65, 0
L_xsel:
    s_mov_b64 exec, s[66:67]
    buffer_load_dwordx4 v{L16}, s[{S_WS}:{S_WS+3}], s60 offen sc1 lds
    ''')
    XS = 10
    a(f'''
    s_mov_b64 exec, -1
    s_add_u32 s65, s65, 1
    s_lshl_b32 s58, s{WAVE}, 6
    s_add_u32 s58, s58, {X_G}
    v_add_u32 v7, s58, v6
    v_and_b32 v8, 31, v{LANE}
    s_mov_b32 s58, {X_G}
    v_lshl_add_u32 v9, v8, 2, s58
    s_lshl_b32 s58, s{WAVE}, 6
    s_add_u32 s58, s58, {X_ACT}
    v_lshl_add_u32 v8, v8, 1, s58
    v_add_u32 v51, s58, v6
    v_lshrrev_b32 v2, 3, v{LANE}
    v_mul_u32_u24 v2, 4608, v2
    v_and_b32 v3, 7, v{LANE}
    v_lshl_add_u32 v2, v3, 2, v2
    s_mul_i32 s58, s{S_NT0}, 9216
    s_lshl_b32 s69, s{S_FS}, 5
    s_add_u32 s58, s58, s69
    s_add_u32 s58, s58, {WS_PART}
    s_add_u32 s69, s68, {LP}
    v_add_u32 v52, s69, v6
    s_waitcnt vmcnt(0)
    ''')
    for i in range(9): a(f'ds_read_b128 v[{XS+4*i}:{XS+4*i+3}], v52 offset:{64*i}')
    for i in range(9):
        a(f's_waitcnt lgkmcnt({8-i})')
        a(f'v_mfma_f32_16x16x32_bf16 v[46:49], a[{GW+4*i}:{GW+4*i+3}], v[{XS+4*i}:{XS+4*i+3}], ' + ('0' if i == 0 else 'v[46:49]'))
        if i == 0: a(f'v_max_u32 v50, v{XS}, v{XS+1}\nv_max3_u32 v50, v50, v{XS+2}, v{XS+3}')
        else: a(f'v_max3_u32 v50, v50, v{XS+4*i}, v{XS+4*i+1}\nv_max3_u32 v50, v50, v{XS+4*i+2}, v{XS+4*i+3}')
    a(f'''
    v_cmp_eq_u32 vcc, -1, v50
    s_cbranch_vccz L_xok
    s_cmp_gt_u32 s65, {SPIN}
    s_cbranch_scc0 L_xsel
L_xok:
    ''')
    stamp(a, 'xin')
    a(f'''
    s_mul_i32 s68, s59, {ROWB}
    s_mov_b32 s66, 0x00010001
    s_mov_b32 s67, 0x00010001
    s_mov_b64 exec, s[66:67]
    ds_write_b128 v7, v[46:49]
    s_mov_b64 exec, -1
    s_waitcnt lgkmcnt(0)
    s_barrier
    ds_read2_b32 v[10:11], v9 offset0:0 offset1:64
    ds_read2_b32 v[12:13], v9 offset0:32 offset1:96
    s_waitcnt lgkmcnt(1)
    v_add_f32 v10, v10, v11
    ''')
    bf_round(a, 10, 10)
    a(f'''
    v_mul_f32 v11, {hx(f32(-math.log2(math.e)))}, v10
    v_exp_f32 v11, v11
    s_waitcnt lgkmcnt(0)
    v_add_f32 v12, v12, v13
    v_add_f32 v11, 1.0, v11
    v_rcp_f32 v11, v11
    ''')
    bf_round(a, 12, 12)
    a('v_mul_f32 v10, v10, v11')
    bf_round(a, 10, 10)
    a(f'''
    v_mul_f32 v10, v10, v12
    v_cvt_pk_bf16_f32 v10, v10, v10
    ds_write_b16 v8, v10
    s_waitcnt lgkmcnt(0)
    ds_read_b128 v[12:15], v51
    s_waitcnt lgkmcnt(0)
    ''')
    stamp(a, 'act')
    for f in range(5): a(f'v_mfma_f32_16x16x32_bf16 v[{16+4*f}:{19+4*f}], v[12:15], a[{DW+4*f}:{DW+4*f+3}], 0')
    a(f'''
    s_mov_b32 s64, 0xffff0000
    s_mov_b32 s65, 0
    s_mov_b32 s66, 0
    s_mov_b32 s67, 0xffff
    s_nop 0
    v_cndmask_b32 v16, v16, v20, s[64:65]
    s_mov_b32 s65, 0xffff0000
    s_mov_b32 s64, 0
    v_cndmask_b32 v16, v16, v24, s[66:67]
    s_add_u32 s69, s58, {4*9216}
    s_cmp_ge_u32 s{WAVE}, 4
    v_cndmask_b32 v16, v16, v28, s[64:65]
    buffer_store_dword v16, v2, s[{S_WS}:{S_WS+3}], s58 offen sc1
    s_cbranch_scc1 L_ffndone
    s_mov_b64 exec, 0xffff
    buffer_store_dword v32, v2, s[{S_WS}:{S_WS+3}], s69 offen sc1
L_ffndone:
    s_mov_b64 exec, -1
    s_branch L_last
L_noffn:
    s_sub_u32 s69, s{S_FS}, 144
    s_cmp_ge_u32 s69, 72
    s_cbranch_scc1 L_last
    s_cmp_lg_u32 s{WAVE}, 0
    s_cbranch_scc1 L_last
    s_cmp_eq_u32 s61, {[0, 2, 2][DEFER]}
    s_cbranch_scc1 L_finrow
    s_cmp_eq_u32 s63, s59
    s_cbranch_scc1 L_finrow
    ''')
    out_row()
    a(f'''
L_finrow:
    s_mov_b32 s61, {[0, 2, 2][DEFER]}
    s_lshl_b32 s58, s69, 4
    s_add_u32 s58, s58, s64
    v_and_b32 v1, 1, v{LANE}
    v_lshlrev_b32 v2, 3, v1
    v_bfe_u32 v1, v{LANE}, 4, 1
    v_lshl_add_u32 v2, v1, 2, v2
    v_lshrrev_b32 v1, 5, v{LANE}
    v_lshl_add_u32 v2, v1, 1, v2
    s_lshr_b32 s65, s62, 11
    s_lshl_b32 s65, s65, 16
    s_not_b32 s66, s65
    s_ashr_i32 s66, s66, 31
    s_or_b32 s66, s66, 0x80000000
    s_xor_b32 s65, s65, s66
    s_and_b32 s65, s65, 0xffff0000
    v_mov_b32 v3, s65
    v_mul_f32 v3, {hx(f32(-math.log2(math.e)))}, v3
    v_exp_f32 v3, v3
    s_mul_i32 s60, s69, 4608
    s_add_u32 s60, s60, {WS_PART}
    v_add_f32 v3, 1.0, v3
    v_rcp_f32 v3, v3
    s_mov_b32 s65, 0
    v_mov_b32 v26, 0
    v_mov_b32 v27, 0
    v_mov_b32 v28, 0
    v_mov_b32 v29, 0
    v_mov_b32 v30, 0
    ''')
    bf_round(a, 3, 3)
    a(f'''
L_fin0:
    buffer_load_dwordx4 v[10:13], v30, s[{S_WS}:{S_WS+3}], s58 offen sc1
    buffer_load_dwordx4 v[14:17], v30, s[{S_WS}:{S_WS+3}], s58 offen offset:1152 sc1
    s_add_u32 s65, s65, 1
    s_waitcnt vmcnt(0)
    v_max3_u32 v8, v10, v11, v12
    v_max3_u32 v8, v8, v13, v14
    v_max3_u32 v8, v8, v15, v16
    v_max_u32 v8, v8, v17
    v_cmp_eq_u32 vcc, -1, v8
    s_cbranch_vccz L_fin1
    s_cmp_gt_u32 s65, {SPIN}
    s_cbranch_scc0 L_fin0
L_fin1:
    buffer_load_ushort v4, v2, s[{S_WS}:{S_WS+3}], s58 offen sc1
    buffer_load_ushort v5, v2, s[{S_WS}:{S_WS+3}], s58 offen offset:1152 sc1
    s_mul_i32 s59, s63, {ROWB}
    s_lshl_b32 s64, s69, 4
    s_add_u32 s59, s59, s64
    s_sleep {FIN_SLEEP}
L_fin:
    ''')
    for i in range(4): a(f'buffer_load_dwordx4 v[{10+4*i}:{13+4*i}], v{L16}, s[{S_WS}:{S_WS+3}], s60 offen offset:{1024*i} sc1')
    a(f'''
    s_add_u32 s66, s60, 4096
    s_mov_b32 s67, exec_hi
    s_mov_b32 exec_hi, 0
    buffer_load_dwordx4 v[26:29], v{L16}, s[{S_WS}:{S_WS+3}], s66 offen sc1
    s_mov_b32 exec_hi, s67
    s_add_u32 s65, s65, 1
    s_waitcnt vmcnt(0)
    v_mov_b32 v8, v10
    ''')
    for i in range(11, 29, 2): a(f'v_max3_u32 v8, v8, v{i}, v{i+1}')
    a(f'''
    v_max_u32 v8, v8, v29
    v_cmp_eq_u32 vcc, -1, v8
    s_and_b64 exec, exec, vcc
    s_cbranch_execz L_finok
    s_cmp_gt_u32 s65, {SPIN}
    s_cbranch_scc1 L_finok
    s_sleep {FIN_SLEEP2}
    s_branch L_fin
L_finok:
    s_mov_b64 exec, -1
    ''')
    stamp(a, 'fin')
    a(f'''
    v_pk_add_f32 v[10:11], v[10:11], v[14:15]
    v_pk_add_f32 v[12:13], v[12:13], v[16:17]
    v_pk_add_f32 v[18:19], v[18:19], v[22:23]
    v_pk_add_f32 v[20:21], v[20:21], v[24:25]
    v_pk_add_f32 v[10:11], v[10:11], v[26:27]
    v_pk_add_f32 v[12:13], v[12:13], v[28:29]
    v_pk_add_f32 v[10:11], v[10:11], v[18:19]
    v_pk_add_f32 v[12:13], v[12:13], v[20:21]
    v_lshlrev_b32 v4, 16, v4
    v_lshlrev_b32 v5, 16, v5
    v_permlane32_swap_b32 v10, v11
    v_permlane32_swap_b32 v12, v13
    v_add_f32 v10, v10, v11
    v_add_f32 v12, v12, v13
    s_mov_b32 s64, 0x00030003
    s_mov_b32 s65, 0x00030003
    v_permlane16_swap_b32 v10, v12
    v_add_f32 v10, v10, v12
    ''')
    for c in (8, 4, 2): a(f's_nop 1\nv_add_f32_dpp v10, v10, v10 row_ror:{c} row_mask:0xf bank_mask:0xf')
    bf_round(a, 10, 10)
    a('v_mul_f32 v10, v3, v10')
    bf_round(a, 10, 10)
    a('v_add_f32 v10, v4, v10')
    bf_round(a, 10, 10)
    a(f'''
    v_add_f32 v10, v5, v10
    v_cvt_pk_bf16_f32 v10, v10, v10
    s_mov_b64 exec, s[64:65]
    buffer_store_short v10, v2, s[{S_OUT}:{S_OUT+3}], s59 offen{OUTP}
    s_branch L_end
L_last:
    s_cmp_eq_u32 s61, {[0, 2, 2][DEFER]}
    s_cbranch_scc1 L_end
    s_cmp_eq_u32 s63, s59
    s_cbranch_scc1 L_end
    ''')
    out_row()
    a(';PAD -\nL_end:')
    stamp(a, 'end')
    a('s_endpgm')

def kv_load(vm, t, part=None):
    ws = f's[{S_WS}:{S_WS+3}]'
    if part in (None, 0): vm.issue(f'km{t}', f'buffer_load_dwordx4 a[{KM+4*t}:{KM+4*t+3}], v{L16}, {ws}, s67 offen{LDP}')
    if part in (None, 1): vm.issue(f'km{t}', f'buffer_load_dword a{KX+t}, v{T+14}, {ws}, s67 offen offset:{KV_X}{LDP}')
    m = 'vmask' in DIAG
    if part in (None, 2):
        if m: vm.a('s_mov_b64 exec, s[64:65]')
        vm.issue(f'v{t}', f'buffer_load_dwordx4 a[{VV+8*t}:{VV+8*t+3}], v83, {ws}, s67 offen offset:{KV_V}{LDP}')
        if m and part == 2: vm.a('s_mov_b64 exec, -1')
    if part in (None, 3):
        if m and part == 3: vm.a('s_mov_b64 exec, s[64:65]')
        vm.issue(f'v{t}', f'buffer_load_dwordx4 a[{VV+8*t+4}:{VV+8*t+7}], v83, {ws}, s67 offen offset:{KV_V+608}{LDP}')
        if m: vm.a('s_mov_b64 exec, -1')
        if t < 7: vm.a(f's_add_u32 s67, s67, {KVREC}\ns_cmp_ge_u32 s67, s63\ns_cselect_b32 s67, s62, s67')

def qprep(a, vm, stamp):
    a(f's_cmp_ge_u32 s{WAVE}, 4\ns_cbranch_scc1 L_nokmax')
    dpp_reduce(a, 'v_max_f32', [21])
    a(f'''
    s_lshl_b32 s58, s{WAVE}, 2
    s_add_u32 s58, s58, {X_WIN}
    v_mov_b32 v22, s58
    s_mov_b32 exec_lo, 0
    s_mov_b32 exec_hi, 0x80000000
    ds_write_b32 v22, v21
    s_mov_b64 exec, -1
L_nokmax:
    v_mov_b32 v22, {X_WIN}
    s_mov_b32 s68, -1
    s_mov_b32 s69, 0
    v_mov_b32 v18, 0
    s_waitcnt lgkmcnt(0)
    ''')
    if SPLIT:
        n = vm.count('q')
        a(f's_cmp_lt_u32 s{WAVE}, 4\ns_cbranch_scc1 L_qlow\ns_waitcnt vmcnt(0)\nL_qlow:\ns_waitcnt vmcnt({n})')
    else: vm.need('q')
    stamp(a, 'qin')
    a(f'''
    s_barrier
    ds_read2_b32 v[12:13], v8 offset0:0 offset1:1
    ds_read2_b32 v[14:15], v8 offset0:2 offset1:3
    ds_read_b32 v16, v7 offset:32
    ds_read_b128 v[20:23], v22
    ''')
    for t in range(PRE[0], PRE[0] + PRE[1]): kv_load(vm, t)
    stamp(a, 'q1')
    a(f'''
    s_waitcnt lgkmcnt(1)
    v_cndmask_b32 v17, 0, v16, s[68:69]
    v_dot2c_f32_bf16 v18, v12, v12
    v_dot2c_f32_bf16 v18, v13, v13
    v_dot2c_f32_bf16 v18, v14, v14
    v_dot2c_f32_bf16 v18, v15, v15
    v_dot2c_f32_bf16 v18, v17, v17
    s_waitcnt lgkmcnt(0)
    v_max3_f32 v20, v20, v21, v22
    s_lshl_b32 s59, s{WAVE}, 11
    v_mov_b32 v19, v18
    v_max_f32 v20, v20, v23
    s_nop 0
    v_permlane32_swap_b32 v18, v19
    v_add_f32 v18, v18, v19
    v_mul_f32 v18, v20, v18
    v_sqrt_f32 v18, v18
    s_add_u32 s59, s59, {LQ}
    v_add_u32 v24, s59, v{L16}
    v_mov_b32 v17, 0
    v_add_u32 v18, 0x1ffff, v18
    v_and_b32 v18, 0xffff0000, v18
    v_cmp_nge_f32 vcc, {hx(f32(M_LIMIT))}, v18
    v_lshrrev_b32 v19, 16, v18
    v_or_b32 v19, 0x8000, v19
    v_cndmask_b32 v16, v19, v16, s[68:69]
    s_cmp_lg_u64 vcc, 0
    s_cselect_b32 s58, 1, 0
    ds_write_b128 v24, v[12:15]
    v_mov_b32 v18, 0
    v_mov_b32 v19, v16
    ds_write_b128 v24, v[16:19] offset:1024
    s_lshl_b32 s59, s{WAVE}, 2
    s_add_u32 s59, s59, {X_FLAG}
    v_mov_b32 v26, s59
    v_mov_b32 v27, s58
    ds_write_b32 v26, v27
    ''')

def prologue(a, stamp):
    if FUSED:
        a(f'''
L_p1done:
;PAD p
        ''')
        stamp(a, 'qst')
        a(f'''
        s_lshl_b32 s57, s26, 7
        s_add_u32 s57, s57, {WS_GRAN}
        s_mov_b32 s96, s4
        s_mov_b32 s97, s5
        s_mov_b32 s98, 4
        s_mov_b32 s99, 0x20000
        v_mov_b32 v64, 0
        buffer_load_dword v61, v64, s[96:99], 0 offen sc1
        s_mov_b32 s{S_WS}, s6
        s_mov_b32 s{S_WS+1}, s7
        s_mov_b32 s{S_WS+2}, {WS_USED}
        s_mov_b32 s{S_WS+3}, 0x20000
        s_mov_b32 s59, {GRAN_REP}
        v_mul_lo_u32 v63, s59, v1
        v_mov_b32 v60, -1
        v_mov_b32 v62, v29
        ''')
    else:
        a('s_cmp_ge_u32 s2, 256\ns_cbranch_scc1 L_k2_exit')
    a(f'''
    s_load_dwordx2 s[16:17], s[0:1], {KA_WS}
    s_load_dwordx2 s[4:5], s[0:1], {KA_X}
    s_load_dwordx8 s[8:15], s[0:1], {KA_WR}
    s_load_dwordx2 s[6:7], s[0:1], {KA_OUT}
    ''')
    if not FUSED: stamp(a, 'start')
    a(f'''
    s_setprio 3
    v_lshrrev_b32 v1, 6, v0
    v_and_b32 v{LANE}, 63, v0
    v_and_b32 v5, 7, v0
    v_readfirstlane_b32 s{WAVE}, v1
    v_bfe_u32 v6, v0, 3, 2
    s_lshl_b32 s58, s2, 3
    s_add_u32 s61, s58, s{WAVE}
    s_mul_i32 s61, s61, {ROWB}
    v_mul_u32_u24 v7, 1168, v5
    v_mad_u32_u24 v7, v6, 36, v7
    s_mul_i32 s58, s{WAVE}, 144
    s_add_u32 s58, s58, {LQR}
    v_add_u32 v7, s58, v7
    v_lshrrev_b32 v4, 5, v{LANE}
    v_lshl_add_u32 v8, v4, 4, v7
    s_mul_i32 s68, s{WAVE}, 1168
    s_add_u32 s68, s68, {LQR}
    v_lshlrev_b32 v{L16}, 4, v{LANE}
    v_lshlrev_b32 v{T+14}, 2, v{LANE}
    v_and_b32 v3, 31, v{LANE}
    v_min_u32 v10, 18, v3
    v_lshlrev_b32 v10, 4, v10
    s_movk_i32 s62, 304
    v_mad_u32_u24 v10, v4, s62, v10
    s_mov_b32 s64, 0x0013ffff
    s_mov_b32 s65, 0x0013ffff
    v_mov_b32 v2, 0x7f000000
    v_cndmask_b32 v83, v{10 if 'vclamp' in DIAG else 2}, v10, s[64:65]
    s_bfe_u32 s60, s2, {ROTF}
    s_mul_i32 s62, s{WAVE}, {8*KVREC}
    s_add_u32 s62, s62, {WS_KV}
    s_mul_i32 s67, s60, {KVREC}
    s_add_u32 s67, s67, s62
    s_add_u32 s63, s62, {8*KVREC}
    ''')
    for i in range(72 if 'vmask' in DIAG else 8): a(f'v_accvgpr_write_b32 a{KX+i}, 0')
    if not FUSED: a('s_waitcnt lgkmcnt(0)')
    vm = Vm(a)
    def first_loads():
        qdma()
        a('s_setprio 0')
    def qdma():
        ws = f's[{S_WS}:{S_WS+3}]'
        a('s_mov_b32 m0, s68\ns_mov_b64 exec, 0xff')
        vm.issue('q', f'buffer_load_dwordx4 v{L16}, {ws}, s61 offen offset:1024{LDP} lds')
        a('s_mov_b64 exec, -1')
        vm.issue('q', f'buffer_load_dwordx4 v{L16}, {ws}, s61 offen{LDP} lds')
    if not FUSED:
        srd(a, S_WS, 16, 0, WS_USED)
        first_loads()
    def late_setup():
        a(f'''
        s_and_b32 s58, s2, 7
        s_lshr_b32 s59, s2, 3
        s_mul_i32 s{S_FS}, s58, 18
        s_add_u32 s{S_FS}, s{S_FS}, s59
        s_cmp_lt_u32 s59, 18
        s_cselect_b32 s{S_FS}, s{S_FS}, s2
        s_cselect_b32 s69, {D*F*2}, 0
        ''')
        for d, b in ((S_G, 10), (S_U, 12), (S_D, 14)):
            a(f's_mov_b32 s{d}, s{b}\ns_mov_b32 s{d+1}, s{b+1}\ns_mov_b32 s{d+2}, s69\ns_mov_b32 s{d+3}, 0x20000')
        srd(a, S_X, 4, 0, S * ROWB); srd(a, S_OUT, 6, 0, S * ROWB); srd(a, S_WR, 8, 0, ROWB)
        a(f'''
        s_mul_i32 s{S_GOFF}, s{WAVE}, {16*F*2}
        s_lshl_b32 s58, s{S_FS}, 6
        s_add_u32 s{S_GOFF}, s{S_GOFF}, s58
        s_mul_i32 s{S_DOFF}, s{S_FS}, 36864
        s_lshl_b32 s58, s{WAVE}, 10
        s_add_u32 s{S_DOFF}, s{S_DOFF}, s58
        s_mov_b32 s{S_MG}, s58
        s_cmp_lt_u32 s{WAVE}, 6
        s_cselect_b32 s{S_MST}, s69, 0
        s_mul_i32 s{S_NT0}, s{WAVE}, 5
        s_lshl_b32 s58, s{WAVE}, 2
        s_add_u32 s58, s58, 4
        s_cmp_lt_u32 s{WAVE}, 4
        s_cselect_b32 s{S_NT0}, s{S_NT0}, s58
        s_lshl_b32 s{S_WOC}, s{S_NT0}, 11
        s_add_u32 s{S_WOC}, s{S_WOC}, {WS_WO}
        s_mul_i32 s60, s59, 20736
        s_lshl_b32 s58, s{WAVE}, 10
        s_add_u32 s60, s60, s58
        s_add_u32 s60, s60, {WS_WO}
        v_lshrrev_b32 v24, 2, v{LANE}
        v_mul_u32_u24 v25, {F*2}, v24
        v_lshrrev_b32 v24, 4, v{LANE}
        v_and_b32 v26, 2, v24
        v_and_b32 v27, 3, v{LANE}
        v_xor_b32 v26, v26, v27
        v_lshl_add_u32 v{GUV}, v26, 4, v25
        v_mov_b32 v{IDXA}, 0xdddd
        v_mov_b32 v{IDXB}, 0x4444
        v_mov_b32 v25, 0xeeee
        v_and_b32 v26, 15, v{LANE}
        v_cmp_lt_u32 vcc, 7, v26
        v_mul_u32_u24 v27, 80, v3
        s_mul_i32 s58, s{WAVE}, 2560
        v_cndmask_b32 v{IDXB}, v{IDXB}, v25, vcc
        s_add_u32 s58, s58, {LP}
        v_add_u32 v27, s58, v27
        v_lshl_add_u32 v{WAD}, v4, 4, v27
        v_lshl_add_u32 v{WAD3}, v4, 3, v27
        v_add_u32 v{WAD3}, 64, v{WAD3}
        v_min_u32 v25, 9, v26
        v_mul_u32_u24 v27, 640, v24
        v_lshl_add_u32 v27, v25, 3, v27
        s_mul_i32 s58, s{WAVE}, 80
        s_add_u32 s58, s58, {LP}
        v_add_u32 v{RAD}, s58, v27
        s_mul_i32 s58, s{WAVE}, 144
        s_add_u32 s58, s58, {LO}
        v_lshlrev_b32 v27, 5, v24
        v_lshl_add_u32 v27, v26, 2, v27
        v_add_u32 v{OAD}, s58, v27
        v_mov_b32 v{OST}, 1152
        s_add_u32 s58, s58, {8*1152}
        v_lshl_add_u32 v27, v24, 2, s58
        v_cmp_eq_u32 vcc, 8, v26
        s_mov_b32 s58, {LDUM}
        v_lshl_add_u32 v28, v{LANE}, 2, s58
        v_cndmask_b32 v{OAD}, v{OAD}, v27, vcc
        v_cndmask_b32 v{OST}, v{OST}, 16, vcc
        v_cmp_lt_u32 vcc, 8, v26
        v_mul_u32_u24 v27, 144, v5
        v_bfe_u32 v25, v{LANE}, 3, 1
        v_cndmask_b32 v{OAD}, v{OAD}, v28, vcc
        v_cndmask_b32 v{OST}, v{OST}, 0, vcc
        v_lshl_add_u32 v27, v25, 6, v27
        v_lshl_add_u32 v27, v24, 4, v27
        v_add_u32 v{AAD}, {LO}, v27
        v_add_u32 v{QAD}, {LQ}, v{L16}
        ''')
        for i in range(OACC, OACC + 20): a(f'v_mov_b32 v{i}, 0')
    if not FUSED: late_setup()
    if FUSED:
        a(f'''
        s_getreg_b32 s58, hwreg(HW_REG_XCC_ID)
        s_and_b32 s58, s58, 7
        s_mul_i32 s58, s58, {GRAN_REP}
        s_add_u32 s58, s58, {WS_GRAN + 4}
        s_mul_i32 s59, s{WAVE}, {8 * 43}
        s_lshr_b32 s59, s59, 7
        v_add_u32 v24, s59, v{LANE}
        v_min_u32 v24, 21, v24
        v_add_u32 v24, 234, v24
        v_lshlrev_b32 v24, 7, v24
        s_mov_b32 s59, 0
        s_waitcnt vmcnt(0)
L_tag:
        v_cmp_ne_u32 vcc, 0, v61
        s_cbranch_vccnz L_tagok
        buffer_load_dword v61, v64, s[96:99], 0 offen sc1
        s_add_u32 s59, s59, 1
        s_cmp_gt_u32 s59, {SPIN}
        s_waitcnt vmcnt(0)
        s_cbranch_scc0 L_tag
L_tagok:
        ''')
        stamp(a, 'drain')
        a(f'''
        s_barrier
        s_cmp_lg_u32 s{WAVE}, 7
        s_cbranch_scc1 L_noflag
        s_mov_b64 exec, 0xff
        buffer_store_dwordx3 v[60:62], v63, s[{S_WS}:{S_WS+3}], s57 offen sc1
        s_mov_b64 exec, -1
L_noflag:
        ''')
        if LATE == 0:
            a('s_mov_b32 s57, s58\nv_mov_b32 v21, v24\ns_waitcnt lgkmcnt(0)')
            late_setup()
            a('s_mov_b32 s58, s57\nv_mov_b32 v24, v21')
            if WALK & 2: a(f';WALK t 8 s{WAVE} 0')
        else: a(f's_sleep {KPOLL_FIRST}')
        a(f'''
        ''')
        def kpoll():
            a(f'''
            s_mov_b32 s59, 0
            s_mov_b64 exec, 15
            {f's_sleep {KPOLL_F2}' if KPOLL_F2 else ''}
L_kpoll:
            buffer_load_dword v20, v24, s[{S_WS}:{S_WS+3}], s58 offen sc1
            s_add_u32 s59, s59, 1
            s_waitcnt vmcnt(0)
            v_cmp_ne_u32 vcc, v20, v61
            s_and_b64 exec, exec, vcc
            s_cbranch_execz L_kdone
            s_cmp_gt_u32 s59, {SPIN}
            s_cbranch_scc1 L_kdone
            s_sleep {KPOLL_SLEEP}
            s_branch L_kpoll
L_kdone:
            s_mov_b64 exec, -1
            ''')
            stamp(a, 'kin')
        def kfirst(top=3):
            q = list(vm.q)
            for t in range(PRE[0]):
                a(f's_setprio {max(top - t, 0)}'); kv_load(vm, t)
            a('s_setprio 3')
            return q
        def fpoll():
            a(f'''
            s_lshl_b32 s59, s{WAVE}, 13
            s_add_u32 s58, s58, s59
            v_lshlrev_b32 v24, 7, v{LANE}
            s_mov_b32 s59, 0
            {f's_sleep {FPOLL_FIRST}' if FPOLL_FIRST else ''}
L_fpoll:
            buffer_load_dwordx2 v[20:21], v24, s[{S_WS}:{S_WS+3}], s58 offen sc1
            s_add_u32 s59, s59, 1
            s_waitcnt vmcnt(0)
            v_cmp_ne_u32 vcc, v20, v61
            s_and_b64 exec, exec, vcc
            s_cbranch_execz L_fdone
            s_cmp_gt_u32 s59, {SPIN}
            s_cbranch_scc1 L_fdone
            s_sleep {FPOLL_SLEEP}
            s_branch L_fpoll
L_fdone:
            s_mov_b64 exec, -1
            ''')
        if SPLIT:
            a(f's_cmp_lt_u32 s{WAVE}, 4\ns_cbranch_scc1 L_allflags')
            kpoll(); vm.q = kfirst()
            a('s_barrier')
            qdma()
            a('s_branch L_synced\nL_allflags:')
            vm.q = []
            fpoll()
            a('s_barrier')
            qdma(); kfirst(2)
            a('L_synced:\ns_setprio 0')
        else:
            kpoll(); kfirst()
            a(f's_cmp_ge_u32 s{WAVE}, 4\ns_cbranch_scc1 L_flagsin')
            fpoll()
            a('L_flagsin:\ns_barrier')
        stamp(a, 'sync')
        if not SPLIT: first_loads()
        if LATE == 2:
            a('s_waitcnt lgkmcnt(0)'); late_setup()
    qprep(a, vm, stamp)
    a(f'''
    s_mov_b32 s58, {X_FLAG}
    v_lshl_add_u32 v26, v5, 2, s58
    ''')
    stamp(a, 'q2')
    for t in range(PRE[0] + PRE[1], sum(PRE)): kv_load(vm, t)
    stamp(a, 'q3')
    a(f'''
    s_waitcnt lgkmcnt(0)
    s_barrier
    ds_read_b32 v27, v26
    ''')
    stamp(a, 'bar')
    for r in q_reads(False): a(r)
    a(f'''
    s_waitcnt lgkmcnt(2)
    v_cmp_ne_u32 vcc, 0, v27
    ''')
    return vm

def true_max(a, vm):
    a('L_slow:')
    for t in range(sum(PRE), 8): kv_load(vm, t)
    a(f'''
    v_cndmask_b32 v16, 0, v16, s[68:69]
    v_mov_b32 v19, v16
    s_waitcnt lgkmcnt(0)
    s_barrier
    ds_write_b128 v24, v[16:19] offset:1024
    v_add_u32 v{QAD}, {LQ}, v{L16}
    s_lshl_b32 s58, s{WAVE}, 7
    s_add_u32 s58, s58, {X_PMAX}
    v_lshl_add_u32 v25, v3, 2, s58
    s_mov_b32 s{S_CNT}, 8
    s_waitcnt vmcnt(0) lgkmcnt(0)
    s_barrier
L_mx:
    ''')
    vm.q = []
    for r in q_reads(True): a(r)
    a(f'v_mov_b32 v{MV}, 0xff800000\ns_waitcnt lgkmcnt(0)')
    for t in range(8):
        a(qkx(SA, t)); a(qkm(SA, t)); a('s_nop 11')
        for r in range(0, 16, 2): a(f'v_max3_f32 v{MV}, v{MV}, v{SA+r}, v{SA+r+1}')
        a('s_nop 7')
    a(f'''
    v_mov_b32 v26, v{MV}
    s_nop 1
    v_permlane32_swap_b32 v{MV}, v26
    v_max_f32 v{MV}, v{MV}, v26
    ds_write_b32 v25, v{MV}
    v_add_u32 v25, 1024, v25
    s_sub_u32 s{S_CNT}, s{S_CNT}, 1
    s_cmp_lg_u32 s{S_CNT}, 0
    s_cbranch_scc1 L_mx
    v_and_b32 v3, 31, v{LANE}
    s_lshl_b32 s58, s{WAVE}, 10
    s_add_u32 s58, s58, {X_PMAX}
    v_lshl_add_u32 v25, v3, 2, s58
    s_waitcnt lgkmcnt(0)
    s_barrier
    ''')
    for i in range(4): a(f'ds_read2_b32 v[{2*i+8}:{2*i+9}], v25 offset0:{64*i} offset1:{64*i+32}')
    a(f'''
    s_mov_b32 s58, {X_MAX}
    v_lshl_add_u32 v82, v3, 2, s58
    s_lshl_b32 s58, s{WAVE}, 7
    v_add_u32 v25, s58, v82
    s_waitcnt lgkmcnt(0)
    v_max3_f32 v8, v8, v9, v10
    v_max3_f32 v8, v8, v11, v12
    v_max3_f32 v8, v8, v13, v14
    v_max_f32 v8, v8, v15
    ds_write_b32 v25, v8
    ''')
    if 'dumpm' in DIAG:
        a(f's_lshl_b32 s58, s2, 3\ns_add_u32 s58, s58, s{WAVE}\ns_lshl_b32 s58, s58, 7\ns_add_u32 s58, s58, {WS_STAMP}\nv_lshlrev_b32 v9, 2, v3\nbuffer_store_dword v8, v9, s[{S_WS}:{S_WS+3}], s58 offen\ns_waitcnt vmcnt(0)')
    a(f'''
    v_add_u32 v{QAD}, {LQ}, v{L16}
    s_waitcnt lgkmcnt(0)
    s_barrier
    ''')
    for r in q_reads(True): a(r)

def k2(name, stamp=nomark):
    import pads
    t = pads.apply(k2_(name, stamp))
    out, inloop = [], False
    for l in t.split('\n'):
        s = l.strip()
        if s.endswith('_loop:'): inloop = True
        if inloop:
            if 'nowo' in DIAG and s.startswith('buffer_load') and 'lds' not in s: continue
            if 'nodma' in DIAG and s.startswith('buffer_load') and 'lds' in s: continue
            if 'noop' in DIAG and '16x16x64' in s: continue
            if 'novm' in DIAG and 'vmcnt' in s: continue
            if 'nobar' in DIAG and s == 's_barrier': continue
            if 'nods' in DIAG and (s.startswith('ds_') or 'lgkmcnt' in s): continue
            if 'novalu' in DIAG and (s.startswith('v_pk') or s.startswith('v_add') or s.startswith('v_rcp') or s.startswith('v_cvt')): continue
            if 'nopv' in DIAG and '32x32x32' in s: continue
            if 'noqk' in DIAG and ('32x32x16' in s or ('32x32x8' in s and ' v[' in s[:32])): continue
            if 'noqx' in DIAG and ('32x32x8' in s and ' v[' in s[:32]): continue
            if 'noexp' in DIAG and s.startswith('v_exp'): l = l.replace('v_exp_f32', 'v_nop ;')
            if 'noprio' in DIAG and s.startswith('s_setprio'): continue
        if s.startswith('s_cbranch_scc1') and s.endswith('_loop'): inloop = False
        out.append(l)
    return '\n'.join(out)

def k2_(name, stamp=nomark):
    a = Asm()
    a(f'.globl {name}\n.p2align 8\n.type {name},@function\n{name}:')
    if FUSED:
        import k1
        k1.entry(a, stamp, 'L_k2_exit')
        def done(a): a('s_branch L_p1done')
        k1.phase1(a, True, stamp, done)
        a.l = k1.diag(a.text()).rstrip('\n').split('\n')
    vm = prologue(a, stamp)
    a(';PAD -')
    stamp(a, 'prol')
    a(f's_cbranch_vccnz L_slow\ns_cmp_ge_u32 s{WAVE}, 4\ns_cbranch_scc1 L_f4')
    q0 = list(vm.q)
    attention(a, 5, False, 'L_a5', vm, stamp, sum(PRE))
    a('L_f4:')
    vm.q = list(q0)
    attention(a, 4, False, 'L_a4', vm, stamp, sum(PRE))
    tail(a, stamp)
    vm.q = list(q0)
    true_max(a, vm)
    a(f's_cmp_ge_u32 s{WAVE}, 4\ns_cbranch_scc1 L_s4')
    attention(a, 5, True, 'L_b5', vm, nomark, 8)
    a('L_s4:')
    vm.q = []
    attention(a, 4, True, 'L_b4', vm, nomark, 8)
    a('L_k2_exit:\ns_endpgm')
    return a.text()
```

```python
S, D, H, DH, F = 2048, 576, 32, 18, 4608
ROWB = D * 2

KA_X, KA_WQ, KA_WK, KA_WV, KA_WO, KA_BX, KA_WR, KA_WG, KA_WU, KA_WD, KA_OUT, KA_DBG, KA_WS = [8 * i for i in range(13)]

WS_Q    = 0x000000; SZ_Q  = S * ROWB
WS_KV   = 0x240000; KVREC = 2304; KV_X = 2176; KV_V = 1024; VG = 288
WS_KMAX = 0x268000; SZ_KMAX = 176 * 4
WS_WO   = 0x269000; SZ_WO = 9 * 36 * 2048
WS_GRAN = 0x310000; GRAN_SP = 128; GRAN_REP = 256 * GRAN_SP + 256
WS_ROWS = 0x360000; SZ_ROWS = 256 * 2304
WS_PART = WS_ROWS + SZ_ROWS; SZ_PART = 72 * 144 * 32
WS_NONCE = 0x30F000
WS_STAMP = 0x500000
WS_USED = 0x600000

import math
CQ = DH ** -0.5 * math.log2(math.e)

import struct
def f32(x): return struct.unpack('<I', struct.pack('<f', x))[0]
def hx(x): return hex(x & 0xffffffff)

class Asm:
    def __init__(self): self.l = []
    def __call__(self, s):
        for line in s.strip('\n').split('\n'):
            line = line.strip()
            if not line: continue
            if line.startswith(';PAD') or line.startswith(';WALK') or line.endswith(':') or line.startswith('.'): self.l.append(line)
            elif line.startswith(';'): continue
            else: self.l.append('    ' + line)
    def text(self): return '\n'.join(self.l) + '\n'

def vr(b, n=1, k='v'): return f'{k}{b}' if n == 1 else f'{k}[{b}:{b+n-1}]'
def ar(b, n=1): return vr(b, n, 'a')
def sr(b, n=1): return vr(b, n, 's')

def srd(a, d, base, off, size):
    if off:
        a(f's_add_u32 s{d}, s{base}, {hex(off)}\ns_addc_u32 s{d+1}, s{base+1}, 0')
    elif d != base:
        a(f's_mov_b32 s{d}, s{base}\ns_mov_b32 s{d+1}, s{base+1}')
    a(f's_mov_b32 s{d+2}, {hex(size)}\ns_mov_b32 s{d+3}, 0x20000')

def kdesc(name, vgpr, acc, sgpr=102):
    return f'''.p2align 6
.amdhsa_kernel {name}
  .amdhsa_next_free_vgpr {vgpr}
  .amdhsa_next_free_sgpr {sgpr}
  .amdhsa_accum_offset {acc}
  .amdhsa_group_segment_fixed_size 0
  .amdhsa_kernarg_size 104
  .amdhsa_user_sgpr_count 2
  .amdhsa_user_sgpr_kernarg_segment_ptr 1
  .amdhsa_system_sgpr_workgroup_id_x 1
  .amdhsa_float_denorm_mode_32 3
.end_amdhsa_kernel
'''

class Lgkm:
    def __init__(self, a): self.a, self.q = a, []
    def issue(self, tag, ins):
        self.a(ins); self.q.append(tag)
    def need(self, *tags):
        last = max((i for i, t in enumerate(self.q) if t in tags), default=-1)
        if last >= 0:
            n = len(self.q) - 1 - last
            self.a(f's_waitcnt lgkmcnt({min(n, 15)})')
            if n <= 15: self.q = self.q[last + 1:]
            else: self.q = self.q[-15:]
    def drain(self):
        self.a('s_waitcnt lgkmcnt(0)'); self.q = []

def weave(main, fill):
    out, n, m, k = [], len(main), len(fill), 0
    for i, x in enumerate(main):
        out.append(x)
        while k < m and (k + 1) * n <= (i + 1) * m + (n - 1) * 0: out.append(fill[k]); k += 1
    out += fill[k:]
    return out

class Vm:
    def __init__(self, a): self.a, self.q = a, []
    def issue(self, tag, ins):
        self.a(ins); self.q.append(tag)
    def count(self, *tags):
        last = max((i for i, t in enumerate(self.q) if t in tags), default=-1)
        if last < 0: return None
        n = len(self.q) - 1 - last
        assert n <= 63
        self.q = self.q[last + 1:]
        return n
    def need(self, *tags):
        n = self.count(*tags)
        if n is not None: self.a(f's_waitcnt vmcnt({n})')

class Marks:
    def __init__(self, names, wsreg, wavereg, base):
        self.names, self.wsreg, self.wavereg, self.base = names, wsreg, wavereg, base
    def __call__(self, a, name):
        if name == 'start':
            a('s_memrealtime s[70:71]\ns_memtime s[72:73]')
            for q in range(16): a(f's_mov_b32 s{80+q}, 0')
            return
        if name == 'pre':
            if name in self.names: a('s_memrealtime s[74:75]')
            return
        if name == 'karg' and 'pre' in self.names: a(f's_mov_b32 s{80 + self.names.index("pre")}, s74')
        if name in self.names:
            i = self.names.index(name)
            a(f's_memrealtime s[76:77]\ns_memtime s[78:79]\ns_waitcnt lgkmcnt(0)\ns_mov_b32 s{80+i}, s76\ns_mov_b32 s{88+i}, s78')
        if name == 'end':
            a('s_mov_b32 s80, s70\ns_mov_b32 s88, s72\ns_mov_b64 exec, 1')
            srd(a, 72, self.wsreg, self.base, 256 * 8 * 64)
            a(f's_lshl_b32 s76, s2, 3\ns_add_u32 s76, s76, s{self.wavereg}\ns_lshl_b32 s76, s76, 6\nv_mov_b32 v0, 0')
            for q in range(16):
                a(f'v_mov_b32 v1, s{80+q}\nbuffer_store_dword v1, v0, s[72:75], s76 offen offset:{4*q}')
def nomark(a, name): pass
```

```python
from common import *

K1_LDS = 162816
TQ, TKV = 79, 96
ONES = 0x3f803f80
LOOK = 2
LA = 3
KV_VM, KV_KE, KV_VE = 16384, 32768, 32768 + 9216 + 64
XOFF = {'q': 65536, 'kv': 51328}
EX_OFF = 161920
ST = ' sc1'
QROW = 144
DIAG = set()
FUSED = False
TOUCH = 0
CODEPF = 1
QPRE = -1
MAP2 = 0
XP, WP, GP = '', '', ' nt'
ROTC = (4, 4, 1)
PREW = 1
CLR_AT = 9
ROT = 1
WALK = 0

def bf_round(a, dst, src):
    a(f'v_cvt_pk_bf16_f32 v{dst}, v{src}, v{src}\nv_and_b32 v{dst}, 0xffff0000, v{dst}')

def rot_next(a, s, step, lim):
    a(f's_add_u32 s{s}, s{s}, {step}\ns_cmp_ge_u32 s{s}, {lim}\ns_cselect_b32 s{s}, 0, s{s}')

def mf16(d, x, y, first): return f'v_mfma_f32_16x16x32_bf16 v[{d}:{d+3}], {x}, {y}, ' + ('0' if first else f'v[{d}:{d+3}]')
def smf16(d, x, y, idx): return f'v_smfmac_f32_16x16x64_bf16 v[{d}:{d+3}], {x}, {y}, v{idx}'

BARS = [0, 1, 2, 3, 4, 5, 6, 7, 8]
def kloop(a, vm, reads, mfmas, issue, extra=None, walk=None):
    L = Lgkm(a)
    nxt = [2]
    def capture(upto):
        keep, a.l = a.l, []
        while nxt[0] <= upto:
            issue(nxt[0]); nxt[0] += 1
        got, a.l = a.l, keep
        chunks, cur, masked, seen = [], [], False, False
        for l in got:
            cur.append(l); w = l.strip()
            if w == 's_mov_b64 exec, -1': masked = False
            elif 'saveexec' in w or w.split()[1].startswith('exec'): masked = True
            if w.startswith('buffer_'): seen = True
            if seen and not masked: chunks.append(cur); cur, seen = [], False
        assert not masked
        if cur:
            if chunks: chunks[-1] += cur
            else: chunks.append(cur)
        return ['\n'.join(c) for c in chunks]
    def stage(t):
        if t % 2 == 0 and t // 2 in BARS:
            u = t // 2
            last = ([b for b in BARS if b > u] + [9])[0] - 1
            vm.need(*range(u, last + 1))
            a('s_barrier')
            STAMP(a, f'u{u}')
            return last
    for c in capture(([b for b in BARS if b > 0])[0] - 1 + LA - 1): a(c)
    if walk and WALK: a(walk)
    for t in range(LOOK):
        last = stage(t)
        for tag, ins in reads(t): L.issue(tag, ins)
        if last is not None:
            for c in capture(last + LA): a(c)
    for t in range(18):
        R = []
        if t + LOOK < 18:
            last = stage(t + LOOK)
            R = [('r', x) for x in reads(t + LOOK)]
            if last is not None: R += [('e', c) for c in capture(last + LA)]
        if extra: R += [('e', x) for x in extra(t)]
        for kind, x in weave([('m', x) for x in mfmas(t)], R):
            if kind == 'r': L.issue(*x)
            elif kind == 'e': a(x)
            else:
                L.need(*x[0]); a(x[1])

def stats_raw(GR, SX, V, M, T0):
    return f'''
    v_cndmask_b32 v{V}, 0, v{GR}, s[36:37]
    v_cndmask_b32 v{V}, v{V}, v{GR+1}, s[38:39]
    v_cndmask_b32 v{V}, v{V}, v{GR+2}, s[40:41]
    v_cndmask_b32 v{V}, v{V}, v{GR+3}, s[42:43]
    v_mov_b32 v{M}, v{SX}
    v_mov_b32 v{T0}, v{V}
    s_nop 1
    v_permlane32_swap_b32 v{SX}, v{M}
    v_permlane32_swap_b32 v{V}, v{T0}
    v_add_f32 v{M}, v{SX}, v{M}
    v_add_f32 v{V}, v{V}, v{T0}
    v_mov_b32 v{T0}, v{V}
    v_mul_f32 v{M}, {hx(f32(1.0/D))}, v{M}
    s_nop 0
    v_permlane16_swap_b32 v{V}, v{T0}
    v_add_f32 v{V}, v{V}, v{T0}
    '''

def stats_fin(V, M, T0, mul):
    r = lambda x: f'v_cvt_pk_bf16_f32 v{x}, v{x}, v{x}\nv_and_b32 v{x}, 0xffff0000, v{x}\n'
    return (f'v_mul_f32 v{T0}, v{M}, v{M}\nv_fma_f32 v{V}, v{V}, s58, -v{T0}\nv_max_f32 v{V}, 0, v{V}\n' + r(V)
            + f'v_add_f32 v{V}, {hx(f32(1e-5))}, v{V}\n' + r(V) + f'v_sqrt_f32 v{V}, v{V}\n' + r(M) + r(V)
            + f'v_rcp_f32 v{V}, v{V}\ns_nop 0\n' + (f'v_mul_f32 v{V}, {hx(f32(mul))}, v{V}\n' if mul != 1.0 else ''))
def lines(t): return [l.strip() for l in t.split('\n') if l.strip()]

def stat_consts(a, ONE, IDX, sx):
    for i in range(4): a(f'v_mov_b32 v{ONE+i}, {hx(ONES)}')
    for r in sx:
        for i in range(4): a(f'v_mov_b32 v{r+i}, 0')
    a(f'''
    v_mov_b32 v{IDX}, 0x4444
    v_mov_b32 v12, 0xeeee
    v_cmp_lt_u32 vcc, 7, v2
    s_mov_b32 s36, 0x00100001
    s_mov_b32 s37, 0x10000100
    v_cndmask_b32 v{IDX}, v{IDX}, v12, vcc
    s_lshl_b64 s[38:39], s[36:37], 1
    s_lshl_b64 s[40:41], s[36:37], 2
    s_lshl_b64 s[42:43], s[36:37], 3
    s_mov_b32 s58, {hx(f32(1.0/D))}
    ''')

def x_read_addr(a, XRA, base):
    a(f'''
    v_lshrrev_b32 v11, 1, v2
    v_xor_b32 v11, v11, v3
    v_lshlrev_b32 v11, 4, v11
    v_lshl_add_u32 v11, v2, 7, v11
    v_add_u32 v{XRA}, s{base}, v11
    v_xor_b32 v{XRA+1}, 64, v{XRA}
    ''')

def clears(vm, hs, R, flagw):
    a = vm.a
    a(f'''
    v_mov_b32 v{R}, -1
    v_mov_b32 v{R+1}, -1
    v_mov_b32 v{R+2}, -1
    v_mov_b32 v{R+3}, -1
    s_lshl_b32 s46, s{hs}, 11
    s_cmp_lt_u32 s{hs}, 2
    s_cselect_b32 s46, s46, 0x7f000000
    v_lshl_add_u32 v{R+5}, v1, 4, s46
    s_mul_i32 s47, s2, 3600
    s_add_u32 s47, s47, {WS_ROWS}
    ''')
    vm.issue('c', f'buffer_store_dwordx4 v[{R}:{R+3}], v{R+5}, s[32:35], s47 offen{ST}')
    a(f'v_cmp_gt_u32 vcc, {3600 - 1024}, v{R+5}\nv_mov_b32 v{R+4}, 0x7f000000\nv_lshrrev_b32 v{R+6}, 3, v1\nv_cndmask_b32 v{R+5}, v{R+4}, v{R+5}, vcc')
    vm.issue('c', f'buffer_store_dwordx4 v[{R}:{R+3}], v{R+5}, s[32:35], s47 offen offset:1024{ST}')
    a(f'''
    s_mov_b32 s50, {GRAN_REP}
    v_mul_lo_u32 v{R+6}, s50, v{R+6}
    v_and_b32 v{R+7}, 7, v1
    s_cmp_eq_u32 s{hs}, {flagw}
    s_cselect_b32 s46, 0, 0x7f000000
    v_lshl_add_u32 v{R+7}, v{R+7}, 4, s46
    v_add_u32 v{R+6}, v{R+7}, v{R+6}
    s_lshl_b32 s47, s26, 7
    s_add_u32 s47, s47, {WS_GRAN}
    ''')
    vm.issue('c', f'buffer_store_dwordx4 v[{R}:{R+3}], v{R+6}, s[32:35], s47 offen{ST}')

def q_common(a):
    a(f'''
    v_lshrrev_b32 v9, 3, v1
    v_and_b32 v10, 7, v1
    v_mul_u32_u24 v5, {ROWB}, v9
    s_and_b32 s24, s16, 1
    s_lshl_b32 s25, s24, 2
    v_and_b32 v11, 2, v9
    v_xor_b32 v11, v11, v10
    v_xor_b32 v11, s25, v11
    v_lshl_add_u32 v6, v11, 4, v5
    v_lshrrev_b32 v11, 1, v9
    v_xor_b32 v11, v11, v10
    v_xor_b32 v11, s25, v11
    v_lshl_add_u32 v7, v11, 4, v5
    s_mul_i32 s20, s17, {TQ}
    s_lshl_b32 s23, s16, 3
    s_add_u32 s23, s23, s20
    s_add_u32 s23, s23, 1
    s_mul_i32 s23, s23, {ROWB}
    s_mul_i32 s27, s16, {8*ROWB}
    s_lshl_b32 s44, s18, 7
    s_add_u32 s27, s27, s44
    s_lshl_b32 s21, s16, 10
    s_lshr_b32 s56, s16, 1
    s_mul_i32 s56, s56, 18432
    s_lshl_b32 s24, s24, 10
    s_add_u32 s56, s56, s24
    s_add_u32 s56, s56, {XOFF['q']}
    ''')
    if ROT:
        a(f'''
        s_mul_i32 s57, s18, {ROTC[0]}
        s_lshr_b32 s57, s57, 4
        s_mul_i32 s57, s57, {ROTC[1]}
        s_mul_i32 s19, s17, {ROTC[2]}
        s_add_u32 s19, s19, s57
        s_mul_i32 s57, s19, 57
        s_lshr_b32 s57, s57, 9
        s_mul_i32 s57, s57, 9
        s_sub_u32 s19, s19, s57
        s_lshl_b32 s57, s19, 7
        s_add_u32 s23, s23, s57
        s_mul_i32 s22, s19, {64*ROWB}
        s_add_u32 s27, s27, s22
        s_sub_u32 s19, 9, s19
        ''')

XG = {0: [0], 1: [1, 2], 2: [3, 4], 3: [5], 4: [6], 5: [7], 6: [8]}
LEAD = {0: [0, 1], 1: [], 2: [2, 3, 4], 3: [5], 4: [6, 7, 8]}
def q_issue(vm, u, small):
    a = vm.a
    if u > 8: return
    def xs(w):
        if ROT and w:
            a(f's_cmp_eq_u32 s19, {w}\ns_cselect_b32 s22, {ROWB}, 0\ns_sub_u32 s23, s23, s22' + ('\ns_sub_u32 s24, s24, s22' if small else ''))
        a(f's_add_u32 m0, s56, {w*2048 - w*128}\ns_nop 0')
        vm.issue(u, f'buffer_load_dwordx4 v7, s[28:31], s23 offen offset:{w*128}{XP} lds')
        if small:
            a(f's_add_u32 m0, s25, {w*2048 - w*128}\ns_mov_b64 exec, s[64:65]')
            vm.issue(u, f'buffer_load_dwordx4 v8, s[28:31], s24 offen offset:{w*128}{XP} lds')
            a('s_mov_b64 exec, -1')
    g = XG.get(u, [])
    if u == 0: xs(g[0]); g = g[1:]
    a(f's_add_u32 m0, s21, {(u % 8) * 8192}\ns_nop 0')
    vm.issue(u, f'buffer_load_dwordx4 v6, s[60:63], s27 offen{WP} lds')
    if u < 8:
        a(f's_add_u32 s27, s27, {64*ROWB}')
        if ROT: a(f's_cmp_eq_u32 s19, {u+1}\ns_cselect_b32 s22, {D*ROWB}, 0\ns_sub_u32 s27, s27, s22')
    for w in g: xs(w)

PFN = [0]
def code_pf(a):
    PFN[0] += 1; k = PFN[0]
    a(f'''
    s_cmp_lg_u32 s16, 0
    s_cbranch_scc1 L_nopf{k}
    s_getpc_b64 s[36:37]
L_pf{k}:
    s_sub_u32 s36, s36, L_pf{k} - L_entry
    s_subb_u32 s37, s37, 0
    s_lshr_b32 s38, s2, 3
    s_mul_i32 s38, s38, ((L_slow - L_entry + 4095) / 4096) * 128
    v_lshl_add_u32 v2, v1, 7, s38
    s_bfm_b64 exec, (L_slow - L_entry + 4095) / 4096, 0
    global_load_dword v83, v2, s[36:37]
    s_mov_b64 exec, -1
L_nopf{k}:
    ''')

def q_first(a, vm, small):
    STAMP(a, 'pre')
    a(f's_setprio 3\ns_waitcnt lgkmcnt(0)\ns_sub_u32 s28, s28, {ROWB}\ns_subb_u32 s29, s29, 0')
    STAMP(a, 'karg')
    q_issue(vm, 0, small)
    if CODEPF and not small: code_pf(a)
    a('s_setprio 2')
    q_issue(vm, 1, small)
    a('s_setprio 0')

def q_tra(a, TRA):
    a(f'''
    v_bfe_u32 v12, v1, 2, 2
    v_and_b32 v13, 3, v1
    v_lshl_add_u32 v9, v3, 3, v12
    v_lshlrev_b32 v9, 7, v9
    v_lshl_add_u32 v9, v13, 3, v9
    v_lshrrev_b32 v10, 1, v12
    v_and_b32 v11, 1, v3
    v_lshl_add_u32 v10, v11, 1, v10
    v_lshl_add_u32 v{TRA}, v10, 5, v9
    v_xor_b32 v{TRA}, s45, v{TRA}
    ''')

def q_big(a, stamp, done):
    ACC, WB, XB, TRA, XRA = 16, 0, 24, 32, 34
    vm = Vm(a)
    q_first(a, vm, False)
    stamp(a, 'issued')
    a(f'''
    v_and_b32 v2, 15, v1
    v_lshrrev_b32 v3, 4, v1
    s_lshr_b32 s46, s16, 1
    s_mul_i32 s47, s46, {2*18432}
    s_add_u32 s47, s47, {XOFF['q']}
    s_and_b32 s45, s16, 1
    s_lshl_b32 s45, s45, 6
    ''')
    x_read_addr(a, XRA, 47)
    q_tra(a, TRA)
    a(f'''
    v_xor_b32 v{TRA+1}, 32, v{TRA}
    s_lshl_b32 s46, s46, 5
    v_add_u32 v4, s46, v2
    v_mul_u32_u24 v5, {QROW}, v4
    v_lshl_add_u32 v5, v3, 3, v5
    v_add_u32 v5, s45, v5
    s_lshl_b32 s45, s45, 1
    s_add_u32 s45, s45, {EX_OFF}
    v_lshl_add_u32 v14, v3, 4, s45
    s_lshl_b32 s46, s46, 3
    s_add_u32 s46, s46, {EX_OFF + 256}
    v_lshl_add_u32 v15, v2, 3, s46
    ''')
    def reads(t):
        w, x, o = WB + 8 * (t % 3), XB + 8 * (t % 3), (t % 16) * 4096
        r = []
        for j in range(2):
            r.append(((t, 'x', j), f'ds_read_b128 a[{x+4*j}:{x+4*j+3}], v{XRA + t % 2} offset:{(t // 2) * 2048 + 18432 * j}'))
            r.append(((t, 'w', j), f'ds_read_b64_tr_b16 a[{w+4*j}:{w+4*j+1}], v{TRA+j} offset:{o}'))
            r.append(((t, 'w', j), f'ds_read_b64_tr_b16 a[{w+4*j+2}:{w+4*j+3}], v{TRA+j} offset:{o+512}'))
        return r
    def mfmas(t):
        w, x = WB + 8 * (t % 3), XB + 8 * (t % 3)
        return [([(t, 'x', i), (t, 'w', j)], mf16(ACC + 8 * i + 4 * j, ar(w + 4 * j, 4), ar(x + 4 * i, 4), t == 0)) for i, j in ((0, 0), (1, 0), (0, 1), (1, 1))]
    def issue(u):
        if u == QPRE:
            for l in q_out_addr(): a(l)
            a(f'v_add_u32 v36, {32*ROWB}, v12')
            vm.issue('p', f'buffer_store_dwordx4 v[4:7], v12, s[52:55], 0 offen{ST}')
            vm.issue('p', f'buffer_store_dwordx4 v[4:7], v36, s[52:55], 0 offen{ST}')
            a('v_cmp_gt_u32 vcc, 15, v9\nv_mov_b32 v36, 0x7f000000\ns_nop 0\nv_cndmask_b32 v36, v36, v13, vcc')
            vm.issue('p', f'buffer_store_dwordx4 v[4:7], v36, s[52:55], 0 offen{ST}')
        q_issue(vm, u, False)
    kloop(a, vm, reads, mfmas, issue, lambda t: q_out_addr() if t == 16 and QPRE < 0 else [], walk=';WALK p 4 s16 0')
    a(';PAD p')
    stamp(a, 'loop')
    CS, SS, P = 36, 44, 48
    a(f'''
    s_barrier
    ds_read_b128 v[{CS}:{CS+3}], v14
    ds_read_b128 v[{CS+4}:{CS+7}], v14 offset:64
    ds_read_b64 v[{SS}:{SS+1}], v15
    ds_read_b64 v[{SS+2}:{SS+3}], v15 offset:128
    s_waitcnt lgkmcnt(1)
    ''')
    for i in range(2):
        if i: a('s_waitcnt lgkmcnt(0)')
        for r in range(8): a(f'v_fma_f32 v{ACC+8*i+r}, -v{SS+2*i}, v{CS+r}, v{ACC+8*i+r}')
        for r in range(8): a(f'v_mul_f32 v{ACC+8*i+r}, v{SS+2*i+1}, v{ACC+8*i+r}')
        for r in range(4): a(f'v_cvt_pk_bf16_f32 v{P+4*i+r}, v{ACC+8*i+2*r}, v{ACC+8*i+2*r+1}')
        a(f'ds_write_b64 v5, v[{P+4*i}:{P+4*i+1}] offset:{16*QROW*i}\nds_write_b64 v5, v[{P+4*i+2}:{P+4*i+3}] offset:{16*QROW*i+32}')
    a('s_branch L_q_out\n;PAD -')

def q_out_addr():
    return lines(f'''
    v_lshrrev_b32 v9, 3, v1
    v_and_b32 v10, 7, v1
    s_lshl_b32 s46, s16, 3
    v_add_u32 v9, s46, v9
    v_mul_u32_u24 v11, {QROW}, v9
    v_lshl_add_u32 v11, v10, 4, v11
    v_mul_u32_u24 v12, {ROWB}, v9
    v_lshl_add_u32 v12, v10, 4, v12
    s_mul_i32 s46, s20, {ROWB}
    s_lshl_b32 s47, s18, 7
    s_add_u32 s46, s46, s47
    v_add_u32 v12, s46, v12
    v_add_u32 v13, {64*ROWB}, v12
    s_mov_b32 s52, s6
    s_mov_b32 s53, s7
    s_mov_b32 s54, {SZ_Q}
    s_mov_b32 s55, 0x20000
    ''')

def q_out(a, done):
    a(f'''
L_q_out:
    ''')
    a(f'''
    s_waitcnt lgkmcnt(0)
    ''')
    STAMP(a, 'qw')
    a(f'''
    s_barrier
    ds_read_b128 v[4:7], v11
    ds_read_b128 v[16:19], v11 offset:{64*QROW}
    v_cmp_gt_u32 vcc, 15, v9
    s_waitcnt lgkmcnt(1)
    buffer_store_dwordx4 v[4:7], v12, s[52:55], 0 offen{ST}
    s_and_b64 exec, exec, vcc
    s_cbranch_execz L_q_out2
    s_waitcnt lgkmcnt(0)
    buffer_store_dwordx4 v[16:19], v13, s[52:55], 0 offen{ST}
L_q_out2:
    s_mov_b64 exec, -1
    v_mov_b32 v29, 0
    ''')
    done(a)
    a(';PAD -')

def q_small(a, stamp, done):
    ACC, GJ, G4, SJ, S4, ONE, IDX, TRA, XRA, XR4, WG = 16, 20, 24, 28, 32, 36, 40, 41, 42, 44, 56
    WB, XJ, X4 = 0, 12, 44
    vm = Vm(a)
    a(f'''
    s_sub_u32 s59, s16, 4
    s_lshl_b32 s24, s59, 1
    v_lshrrev_b32 v11, 1, v9
    v_add_u32 v11, s24, v11
    v_xor_b32 v11, v11, v10
    v_lshl_add_u32 v8, v11, 4, v5
    s_lshl_b32 s24, s59, 2
    s_add_u32 s24, s24, s20
    s_add_u32 s24, s24, 65
    s_mul_i32 s24, s24, {ROWB}
    {'s_add_u32 s24, s24, s57' if ROT else ''}
    s_lshl_b32 s25, s59, 9
    s_add_u32 s25, s25, {XOFF['q'] + 4*18432}
    s_cmp_eq_u32 s59, 3
    s_cselect_b32 s64, 0x00ffffff, -1
    s_mov_b32 s65, 0
    ''')
    q_first(a, vm, True)
    stamp(a, 'issued')
    a('v_and_b32 v2, 15, v1\nv_lshrrev_b32 v3, 4, v1')
    stat_consts(a, ONE, IDX, (SJ, S4))
    a(f'''
    s_mov_b32 s47, {XOFF["q"] + 4*18432}
    s_cmp_eq_u32 s59, 3
    s_cbranch_scc0 L_qs_noones
    v_lshlrev_b32 v12, 4, v10
    v_add_u32 v12, s47, v12
    v_lshl_add_u32 v13, v9, 11, v12
    ds_write_b128 v13, v[{ONE}:{ONE+3}] offset:1920
    ds_write_b128 v12, v[{ONE}:{ONE+3}] offset:{8*2048+1920}
    ''')
    a(f'''
    s_waitcnt lgkmcnt(0)
L_qs_noones:
    ''')
    x_read_addr(a, XR4, 47)
    a(f's_mul_i32 s47, s59, 18432\ns_add_u32 s47, s47, {XOFF["q"]}\ns_lshl_b32 s45, s59, 5')
    x_read_addr(a, XRA, 47)
    q_tra(a, TRA)
    a(f'''
    v_add_u32 v4, 64, v2
    v_mul_u32_u24 v5, {QROW}, v4
    v_lshl_add_u32 v5, v3, 3, v5
    v_add_u32 v5, s45, v5
    s_lshl_b32 s45, s59, 6
    s_add_u32 s45, s45, {EX_OFF}
    v_lshl_add_u32 v14, v3, 4, s45
    s_lshl_b32 s46, s59, 7
    s_add_u32 s46, s46, {EX_OFF + 256}
    v_lshl_add_u32 v15, v2, 3, s46
    ''')
    srd(a, 32, 6, 0, WS_USED)
    srd(a, 8, 12, 0, D * ROWB)
    def chores():
        a(f'''
        s_lshl_b32 s66, s26, 2
        s_add_u32 s66, s66, s59
        s_and_b32 s51, s66, 1
        s_lshr_b32 s54, s66, 1
        s_mul_i32 s55, s54, 57
        s_lshr_b32 s55, s55, 11
        s_mul_i32 s45, s55, 36
        s_sub_u32 s54, s54, s45
        s_cmp_ge_u32 s55, 8
        s_cselect_b32 s45, 144, 18
        s_cselect_b32 s46, 36, 4
        s_cselect_b32 s52, 288, 36
        s_cselect_b32 s53, 18, 2
        s_mul_i32 s52, s52, {ROWB}
        s_mul_i32 s53, s53, {ROWB}
        s_mul_i32 s47, s55, 72
        s_cselect_b32 s47, 16, s47
        s_mul_i32 s45, s45, s51
        s_add_u32 s47, s47, s45
        v_mul_u32_u24 v9, s46, v3
        v_add_u32 v9, s47, v9
        v_mul_u32_u24 v9, {ROWB}, v9
        v_lshl_add_u32 v9, v2, 1, v9
        s_lshl_b32 s54, s54, 5
        s_cmp_ge_u32 s66, 648
        s_cselect_b32 s54, 0x7f000000, s54
        v_add_u32 v9, s54, v9
        s_add_u32 s54, s52, s53
        ''')
        for j in range(2):
            for q, so in enumerate(('0', 's52', 's53', 's54')):
                vm.issue('g', f'buffer_load_ushort v{WG+4*j+q}, v9, s[8:11], {so} offen offset:{ROWB*j}{GP}')
    chores()
    def issue(u):
        q_issue(vm, u, True)
        if u == CLR_AT:
            for q in range(4): a(f'v_lshl_or_b32 v{WG+q}, v{WG+4+q}, 16, v{WG+q}')
            a(f's_lshl_b32 s45, s66, 10\ns_add_u32 s45, s45, {WS_WO}\ns_cmp_ge_u32 s66, 648\ns_cselect_b32 s45, 0x7f000000, s45\nv_lshl_add_u32 v72, v1, 4, s45')
            vm.issue('c', f'buffer_store_dwordx4 v[{WG}:{WG+3}], v72, s[32:35], 0 offen{ST}')
            clears(vm, 59, 64, 2)
            if TOUCH:
                a(f's_mul_i32 s46, s20, {ROWB}\nv_mov_b32 v72, 0\ns_mov_b32 s8, s4\ns_mov_b32 s9, s5\ns_mov_b32 s10, 4\ns_mov_b32 s11, 0x20000')
                vm.issue('c', 'buffer_load_dword v73, v72, s[32:35], s46 offen sc1')
                vm.issue('c', 'buffer_load_dword v74, v72, s[8:11], 0 offen sc1')
    lead = lambda t: [u for u in LEAD.get(t, [t + 4]) if u < 18]
    q0 = list(vm.q)
    def loop(both):
        vm.q = list(q0)
        def reads(t):
            w, o = WB + 4 * (t % 3), (t % 16) * 4096
            r4 = lambda u: ((u, '4'), f'ds_read_b128 a[{X4+4*(u%10)}:{X4+4*(u%10)+3}], v{XR4 + u % 2} offset:{(u // 2) * 2048}')
            r = []
            for u in lead(t):
                r.append(((u, 'j'), f'ds_read_b128 a[{XJ+4*(u%8)}:{XJ+4*(u%8)+3}], v{XRA + u % 2} offset:{(u // 2) * 2048}'))
                if both: r.append(r4(u))
            if not both: r.append(r4(t))
            return r + [((t, 'w'), f'ds_read_b64_tr_b16 a[{w}:{w+1}], v{TRA} offset:{o}'),
                        ((t, 'w'), f'ds_read_b64_tr_b16 a[{w+2}:{w+3}], v{TRA} offset:{o+512}')]
        def mfmas(t):
            m = []
            for u in lead(t):
                xj, x4 = XJ + 4 * (u % 8), X4 + 4 * (u % 10)
                if u % 2:
                    m.append(([(u, 'j')], smf16(SJ, vr(ONE, 4), ar(xj - 4, 8), IDX)))
                    if both: m.append(([(u, '4')], smf16(S4, vr(ONE, 4), ar(x4 - 4, 8), IDX)))
                m.append(([(u, 'j')], mf16(GJ, ar(xj, 4), ar(xj, 4), u == 0)))
                if both: m.append(([(u, '4')], mf16(G4, ar(x4, 4), ar(x4, 4), u == 0)))
            return m + [([(t, '4'), (t, 'w')], mf16(ACC, ar(WB + 4 * (t % 3), 4), ar(X4 + 4 * (t % 10), 4), t == 0))]
        if both:
            zip2 = lambda x, y: [z for p in zip(lines(x), lines(y)) for z in p if not z.startswith('s_nop')]
            f1, f2 = zip2(stats_raw(GJ, SJ, 47, 46, 48), stats_raw(G4, S4, 51, 50, 52)), zip2(stats_fin(47, 46, 48, CQ), stats_fin(51, 50, 52, CQ))
        else: f1, f2 = lines(stats_raw(GJ, SJ, 47, 46, 48)), lines(stats_fin(47, 46, 48, CQ))
        h = len(f2) // 2
        fin = {14: ['s_nop 6'] + f1, 15: f2[:h], 16: f2[h:]}
        fin[17] = ['s_mov_b64 exec, 0xffff\nds_write_b64 v15, v[46:47]\n' + ('ds_write_b64 v15, v[50:51] offset:128\n' if both else '') + 's_mov_b64 exec, -1']
        kloop(a, vm, reads, mfmas, issue, lambda t: fin.get(t, []))
    a('s_cmp_eq_u32 s59, 3\ns_cbranch_scc1 L_qs_both')
    loop(False)
    a('s_branch L_qs_join\nL_qs_both:')
    loop(True)
    a('L_qs_join:\n;PAD p')
    stamp(a, 'loop')
    a(f'''
    s_mov_b32 s48, 0x80008000
    s_mov_b32 s49, 0x80008000
    s_mov_b64 exec, s[48:49]
    s_nop 1
    ds_write_b128 v14, v[{ACC}:{ACC+3}]
    s_mov_b64 exec, -1
    s_mov_b32 s46, {EX_OFF + 256 + 512}
    v_lshl_add_u32 v15, v2, 3, s46
    s_waitcnt lgkmcnt(0)
    s_barrier
    ds_read_b64 v[50:51], v15
    ''')
    for l in q_out_addr(): a(l)
    for r in range(4): a(f'v_mov_b32_dpp v{52+r}, v{ACC+r} row_newbcast:15 row_mask:0xf bank_mask:0xf')
    a('s_waitcnt lgkmcnt(0)')
    for r in range(4): a(f'v_fma_f32 v{ACC+r}, -v50, v{52+r}, v{ACC+r}')
    for r in range(4): a(f'v_mul_f32 v{ACC+r}, v51, v{ACC+r}')
    a(f'''
    v_cvt_pk_bf16_f32 v52, v{ACC}, v{ACC+1}
    v_cvt_pk_bf16_f32 v53, v{ACC+2}, v{ACC+3}
    ds_write_b64 v5, v[52:53]
    ''')
    q_out(a, done)

def kv_tra(a, TRA):
    a(f'''
    v_bfe_u32 v12, v1, 2, 2
    v_and_b32 v13, 3, v1
    v_lshrrev_b32 v9, 1, v3
    v_lshlrev_b32 v9, 4, v9
    v_and_b32 v10, 1, v3
    v_lshl_add_u32 v9, v10, 2, v9
    v_add_u32 v9, v9, v12
    v_lshlrev_b32 v9, 5, v9
    v_lshl_add_u32 v{TRA}, v13, 3, v9
    v_lshl_add_u32 v9, v3, 3, v12
    v_lshlrev_b32 v9, 4, v9
    v_and_b32 v10, 1, v13
    v_lshl_add_u32 v9, v10, 3, v9
    v_lshrrev_b32 v10, 1, v13
    v_mul_u32_u24 v10, {KV_VE-KV_KE}, v10
    v_add_u32 v{TRA+1}, v9, v10
    ''')

def kv_out(a, done):
    a(f'''
    s_lshl_b32 s46, s16, 10
    v_lshl_add_u32 v8, v1, 4, s46
    s_mul_i32 s47, s17, {3*KVREC}
    v_add_u32 v9, s47, v8
    s_waitcnt lgkmcnt(0)
    s_barrier
    ds_read_b128 v[4:7], v8
    v_mov_b32 v10, {EX_OFF + 256}
    ds_read_b128 v[12:15], v10
    ds_read_b64 v[16:17], v10 offset:16
    s_mov_b32 s34, {64*KVREC}
    v_cmp_gt_u32 vcc, {3*KVREC}, v8
    s_and_b64 exec, exec, vcc
    s_waitcnt lgkmcnt(2)
    buffer_store_dwordx4 v[4:7], v9, s[32:35], 0 offen{ST}
    s_mov_b64 exec, -1
    s_waitcnt lgkmcnt(0)
    v_max3_f32 v29, v12, v13, v14
    v_max3_f32 v29, v29, v15, v16
    v_max_f32 v29, v29, v17
    ''')
    done(a)

def kv_main(a, stamp, done):
    ACC, GR, SX, ONE, IDX, TRA, XRA = 16, 32, 36, 40, 44, 46, 48
    WB, XB = 0, 36
    vm = Vm(a)
    a(f'''
    v_lshrrev_b32 v9, 3, v1
    v_and_b32 v10, 7, v1
    v_lshrrev_b32 v11, 1, v9
    v_xor_b32 v11, v11, v10
    v_mul_u32_u24 v6, {ROWB}, v9
    v_lshl_add_u32 v6, v11, 4, v6
    v_xor_b32 v7, 64, v6
    v_add_u32 v7, {8*ROWB}, v7
    s_mul_i32 s20, s17, {TKV}
    s_lshl_b32 s21, s16, 4
    s_add_u32 s20, s20, s21
    s_add_u32 s23, s20, 1
    s_mul_i32 s23, s23, {ROWB}
    {"s_lshl_b32 s22, s18, 7" if ROT else ""}
    {"s_add_u32 s23, s23, s22" if ROT else ""}
    s_mul_i32 s21, s16, 18432
    s_add_u32 s21, s21, {XOFF['kv']}
    s_setprio 3
    s_waitcnt lgkmcnt(0)
    s_sub_u32 s28, s28, {ROWB}
    s_subb_u32 s29, s29, 0
    ''')
    def issue(u):
        if u > 8: return
        if ROT and u: a(f's_cmp_eq_u32 s19, {u}\ns_cselect_b32 s22, {ROWB}, 0\ns_sub_u32 s23, s23, s22')
        a(f's_add_u32 m0, s21, {u*2048 - u*128}\ns_nop 0')
        vm.issue(u, f'buffer_load_dwordx4 v6, s[28:31], s23 offen offset:{u*128}{XP} lds')
        a(f's_add_u32 m0, s21, {u*2048 + 1024 - u*128}\ns_nop 0')
        vm.issue(u, f'buffer_load_dwordx4 v7, s[28:31], s23 offen offset:{u*128}{XP} lds')
    issue(0)
    if CODEPF: code_pf(a)
    a('s_setprio 2'); issue(1); a('s_setprio 0')
    stamp(a, 'issued')
    a('v_and_b32 v2, 15, v1\nv_lshrrev_b32 v3, 4, v1')
    stat_consts(a, ONE, IDX, (SX,))
    x_read_addr(a, XRA, 21)
    kv_tra(a, TRA)
    srd(a, 32, 6, WS_KV, WS_WO - WS_KV)
    a(f'''
    s_mov_b32 s47, {EX_OFF}
    v_lshl_add_u32 v51, v3, 4, s47
    s_lshr_b32 s46, s16, 1
    s_mul_i32 s46, s46, {KVREC}
    s_and_b32 s47, s16, 1
    s_lshl_b32 s47, s47, 4
    v_add_u32 v4, s47, v2
    v_lshl_add_u32 v54, v4, 4, s46
    v_lshrrev_b32 v55, 1, v3
    v_lshl_add_u32 v54, v55, 9, v54
    v_and_b32 v55, 1, v3
    v_lshl_add_u32 v54, v55, 3, v54
    v_lshrrev_b32 v55, 3, v4
    v_mul_u32_u24 v55, 304, v55
    v_add_u32 v55, s46, v55
    v_and_b32 v56, 7, v4
    v_lshl_add_u32 v55, v56, 1, v55
    v_lshl_add_u32 v57, v3, 6, v55
    v_lshl_add_u32 v58, v4, 2, s46
    v_mov_b32 v59, 0x3f80
    ''')
    def reads(t):
        w, o = WB + 12 * (t % 3), (t % 16) * 1024
        return [((t, 'x'), f'ds_read_b128 a[{XB+4*(t%4)}:{XB+4*(t%4)+3}], v{XRA + t % 2} offset:{(t // 2) * 2048}'),
                ((t, 0), f'ds_read_b64_tr_b16 a[{w}:{w+1}], v{TRA} offset:{o}'),
                ((t, 0), f'ds_read_b64_tr_b16 a[{w+2}:{w+3}], v{TRA} offset:{o+256}'),
                ((t, 1), f'ds_read_b64_tr_b16 a[{w+4}:{w+5}], v{TRA} offset:{KV_VM+o}'),
                ((t, 1), f'ds_read_b64_tr_b16 a[{w+6}:{w+7}], v{TRA} offset:{KV_VM+o+256}'),
                ((t, 2), f'ds_read_b64_tr_b16 a[{w+8}:{w+9}], v{TRA+1} offset:{KV_KE+t*512}'),
                ((t, 2), f'ds_read_b64_tr_b16 a[{w+10}:{w+11}], v{TRA+1} offset:{KV_KE+t*512+64}')]
    def mfmas(t):
        w, x = WB + 12 * (t % 3), XB + 4 * (t % 4)
        m = [([(t, 'x')], smf16(SX, vr(ONE, 4), ar(x - 4, 8), IDX))] if t % 2 else []
        m += [([(t, 'x')], mf16(GR, ar(x, 4), ar(x, 4), t == 0))]
        return m + [([(t, 'x'), (t, j)], mf16(ACC + 4 * j, ar(w + 4 * j, 4), ar(x, 4), t == 0)) for j in range(3)]
    kloop(a, vm, reads, mfmas, issue, walk=';WALK k 4 s16 0')
    a(';PAD k')
    stamp(a, 'loop')
    a('s_nop 4')
    a(stats_raw(GR, SX, 48, 50, 49))
    a(stats_fin(48, 50, 49, 1.0))
    a('s_barrier')
    CS, P = 60, 72
    for j in range(3): a(f'ds_read_b128 v[{CS+4*j}:{CS+4*j+3}], v51 offset:{64*j}')
    a('s_mov_b32 s48, 0xffff0000\ns_mov_b32 s49, 0\ns_mov_b32 s50, 0\ns_mov_b32 s51, 0xffff0000')
    for j in range(3):
        a(f's_waitcnt lgkmcnt({2-j})')
        for i in range(4 * j, 4 * j + 4): a(f'v_fma_f32 v{ACC+i}, -v50, v{CS+i}, v{ACC+i}')
    for i in range(12): a(f'v_mul_f32 v{ACC+i}, v48, v{ACC+i}')
    for i in range(6): a(f'v_cvt_pk_bf16_f32 v{P+i}, v{ACC+2*i}, v{ACC+2*i+1}')
    a(f'''
    ds_write_b64 v54, v[{P}:{P+1}]
    ds_write_b16 v57, v{P+2} offset:{KV_V}
    ds_write_b16_d16_hi v57, v{P+2} offset:{KV_V+16}
    ds_write_b16 v57, v{P+3} offset:{KV_V+32}
    ds_write_b16_d16_hi v57, v{P+3} offset:{KV_V+48}
    s_mov_b64 exec, s[48:49]
    ds_write_b32 v58, v{P+5} offset:{KV_X}
    ds_write_b32 v58, v59 offset:{KV_X+128}
    s_mov_b64 exec, s[50:51]
    ds_write_b16 v55, v{P+5} offset:{KV_V+256}
    ds_write_b16_d16_hi v55, v{P+5} offset:{KV_V+272}
    ds_write_b16 v55, v59 offset:{KV_V+288}
    s_mov_b64 exec, -1
    v_cndmask_b32 v60, 0, v{P+5}, s[48:49]
    v_mov_b32 v61, 0
    v_dot2c_f32_bf16 v61, v{P}, v{P}
    v_dot2c_f32_bf16 v61, v{P+1}, v{P+1}
    v_dot2c_f32_bf16 v61, v60, v60
    s_nop 2
    v_mov_b32 v62, v61
    s_nop 1
    v_permlane32_swap_b32 v61, v62
    v_add_f32 v61, v61, v62
    v_mov_b32 v62, v61
    s_nop 1
    v_permlane16_swap_b32 v61, v62
    v_add_f32 v61, v61, v62
    s_nop 1
    v_max_f32_dpp v61, v61, v61 row_ror:8 row_mask:0xf bank_mask:0xf
    s_nop 1
    v_max_f32_dpp v61, v61, v61 row_ror:4 row_mask:0xf bank_mask:0xf
    s_nop 1
    v_max_f32_dpp v61, v61, v61 row_ror:2 row_mask:0xf bank_mask:0xf
    s_nop 1
    v_max_f32_dpp v61, v61, v61 row_ror:1 row_mask:0xf bank_mask:0xf
    s_lshl_b32 s46, s16, 2
    s_add_u32 s46, s46, {EX_OFF + 256}
    v_mov_b32 v62, s46
    ds_write_b32 v62, v61
    s_branch L_kv_out
;PAD -
    ''')

def kv_helper(a, stamp, done):
    ACC, ONE, TRA, WB = 16, 24, 28, 0
    vm = Vm(a)
    a(f'''
    s_sub_u32 s23, s16, 6
    v_lshrrev_b32 v2, 1, v1
    v_and_b32 v3, 0x13, v2
    v_bfe_u32 v4, v2, 2, 1
    v_bfe_u32 v5, v2, 3, 1
    v_lshl_add_u32 v3, v4, 3, v3
    v_lshl_add_u32 v3, v5, 2, v3
    v_mul_u32_u24 v3, 36, v3
    v_and_b32 v4, 1, v1
    v_lshl_add_u32 v6, v4, 4, v3
    v_mul_u32_u24 v7, 36, v1
    v_add_u32 v7, 20, v7
    {f's_mul_i32 s22, s18, {2*ROWB}' if ROT else 's_mov_b32 s22, 0'}
    s_mul_i32 s20, s23, {KV_VM}
    s_mul_i32 s21, s23, {KV_VE-KV_KE}
    s_add_u32 s21, s21, {KV_KE}
    s_setprio 3
    s_waitcnt lgkmcnt(0)
    s_cmp_eq_u32 s23, 0
    s_cselect_b32 s28, s8, s10
    s_cselect_b32 s29, s9, s11
    s_mov_b32 s30, {D*36}
    s_mov_b32 s31, 0x20000
    ''')
    def issue(u):
        if u == CLR_AT:
            clears(vm, 23, 32, 0)
            if TOUCH:
                a(f'v_mov_b32 v40, 0\ns_mov_b32 s8, s4\ns_mov_b32 s9, s5\ns_mov_b32 s10, 4\ns_mov_b32 s11, 0x20000\ns_mov_b32 s46, {WS_KV}')
                vm.issue('c', 'buffer_load_dword v41, v40, s[32:35], s46 offen sc1')
                vm.issue('c', 'buffer_load_dword v42, v40, s[8:11], 0 offen sc1')
        if u > 8: return
        a(f's_add_u32 m0, s21, {u*1024}\ns_nop 0')
        vm.issue(u, 'buffer_load_dwordx4 v7, s[28:31], s22 offen lds')
        a(f's_add_u32 m0, s20, {(u%8)*2048}\ns_nop 0')
        vm.issue(u, 'buffer_load_dwordx4 v6, s[28:31], s22 offen lds')
        a(f's_add_u32 m0, s20, {(u%8)*2048+1024}\ns_add_u32 s22, s22, {ROWB}')
        vm.issue(u, f'buffer_load_dwordx4 v6, s[28:31], s22 offen lds')
        if u < 8:
            a(f's_add_u32 s22, s22, {ROWB}')
            if ROT: a(f's_cmp_eq_u32 s19, {u+1}\ns_cselect_b32 s22, 0, s22')
    issue(0); a('s_setprio 2'); issue(1); a('s_setprio 0')
    a(f'''
    s_cmp_eq_u32 s26, 255
    s_cselect_b32 s46, s23, 0
    s_cmp_eq_u32 s46, 1
    s_cbranch_scc0 L_notag
    s_add_u32 s32, s6, {WS_NONCE}
    s_addc_u32 s33, s7, 0
    s_load_dword s46, s[32:33], 0
    s_mov_b32 s34, 4
    s_mov_b32 s35, 0x20000
    s_mov_b32 s8, s4
    s_mov_b32 s9, s5
    s_mov_b32 s10, 4
    s_mov_b32 s11, 0x20000
    v_mov_b32 v13, 0
    s_waitcnt lgkmcnt(0)
    s_add_u32 s46, s46, 1
    s_add_u32 s47, s46, 1
    s_cmp_lt_u32 s47, 2
    s_cselect_b32 s46, 1, s46
    v_mov_b32 v12, s46
    s_mov_b64 exec, 1
    buffer_store_dword v12, v13, s[8:11], 0 offen sc1
    buffer_store_dword v12, v13, s[32:35], 0 offen sc1
    s_mov_b64 exec, -1
L_notag:
    ''')
    srd(a, 32, 6, 0, WS_USED)
    a('v_lshrrev_b32 v3, 4, v1')
    kv_tra(a, TRA)
    a(f'v_add_u32 v{TRA}, s20, v{TRA}')
    for i in range(4): a(f'v_mov_b32 v{ONE+i}, {hx(ONES)}')
    def reads(t):
        w, o = WB + 8 * (t % 3), (t % 16) * 1024
        return [((t, 0), f'ds_read_b64_tr_b16 a[{w}:{w+1}], v{TRA} offset:{o}'),
                ((t, 0), f'ds_read_b64_tr_b16 a[{w+2}:{w+3}], v{TRA} offset:{o+256}'),
                ((t, 1), f'ds_read_b64_tr_b16 a[{w+4}:{w+5}], v{TRA+1} offset:{KV_KE+t*512}'),
                ((t, 1), f'ds_read_b64_tr_b16 a[{w+6}:{w+7}], v{TRA+1} offset:{KV_KE+t*512+64}')]
    def mfmas(t):
        w = WB + 8 * (t % 3)
        return [([(t, j)], mf16(ACC + 4 * j, ar(w + 4 * j, 4), vr(ONE, 4), t == 0)) for j in range(2)]
    kloop(a, vm, reads, mfmas, issue)
    a(f'''
    s_lshl_b32 s46, s23, 6
    s_add_u32 s46, s46, {EX_OFF}
    v_lshl_add_u32 v8, v3, 4, s46
    s_mov_b32 s46, {EX_OFF + 128}
    v_lshl_add_u32 v9, v3, 4, s46
    s_mov_b32 s48, 0x00010001
    s_mov_b32 s49, 0x00010001
    s_mov_b64 exec, s[48:49]
    s_nop 1
    ds_write_b128 v8, v[{ACC}:{ACC+3}]
    ds_write_b128 v9, v[{ACC+4}:{ACC+7}]
    s_mov_b64 exec, -1
    s_waitcnt lgkmcnt(0)
    s_barrier
    ''')
    srd(a, 32, 6, WS_KV, WS_WO - WS_KV)
    a('L_kv_out:\n;PAD k')
    kv_out(a, done)
    a(';PAD -')

def decode(a, rotate):
    a(f'''
    v_lshrrev_b32 v2, 6, v0
    v_and_b32 v1, 63, v0
    s_and_b32 s20, s2, 7
    v_readfirstlane_b32 s16, v2
    s_lshr_b32 s21, s2, 3
    s_cmp_lt_u32 s16, 4
    s_cbranch_scc1 L_older
    s_setprio 1
L_older:
    s_mul_i32 s22, s20, 29
    s_mul_i32 s23, s20, 3
    s_cmp_eq_u32 s20, 7
    s_cselect_b32 s24, 1, 0
    s_add_u32 s22, s22, s24
    s_sub_u32 s23, s23, s24
    s_cmp_ge_u32 s20, 6
    s_cselect_b32 s24, 30, 29
    s_cmp_ge_u32 s21, s24
    s_cbranch_scc1 L_k1_kv
    ''')
    if MAP2:
        a('''
        s_lshr_b32 s22, s20, 1
        s_mul_i32 s22, s22, 29
        s_add_u32 s22, s22, s21
        s_and_b32 s20, s20, 1
        s_mul_i32 s26, s20, 117
        s_add_u32 s26, s26, s22
        s_mul_i32 s17, s22, 57
        s_lshr_b32 s17, s17, 9
        s_mul_i32 s18, s17, 9
        s_sub_u32 s18, s22, s18
        s_lshl_b32 s17, s17, 1
        s_sub_u32 s22, 5, s20
        s_cmp_ge_u32 s18, s22
        s_addc_u32 s17, s17, 0
        s_cmp_ge_u32 s18, s22
        s_cselect_b32 s22, -5, 0
        s_mul_i32 s20, s20, 5
        s_add_u32 s18, s18, s22
        s_add_u32 s18, s18, s20
        ''')
    else:
        a('''
        s_add_u32 s26, s22, s21
        s_mul_i32 s17, s26, 57
        s_lshr_b32 s17, s17, 9
        s_mul_i32 s18, s17, 9
        s_sub_u32 s18, s26, s18
        ''')

def phase1(a, rotate, stamp, done):
    global STAMP
    STAMP = stamp
    decode(a, rotate)
    q_common(a)
    a('s_cmp_ge_u32 s16, 4\ns_cbranch_scc1 L_k1_qs')
    q_big(a, stamp, done)
    a('L_k1_qs:')
    q_small(a, stamp, done)
    a('L_k1_kv:\ns_sub_u32 s17, s21, s24\ns_add_u32 s17, s17, s23\ns_add_u32 s26, s17, 234')
    a('s_sub_u32 s19, s21, s24\ns_mul_i32 s18, s19, 3\ns_sub_u32 s19, 9, s18')
    a('s_cmp_ge_u32 s16, 6\ns_cbranch_scc1 L_k1_hkv')
    kv_main(a, stamp, done)
    a('L_k1_hkv:')
    kv_helper(a, stamp, done)

def entry(a, stamp, exit_label):
    PFN[0] = 0
    a(f'''
L_entry:
    s_cmp_ge_u32 s2, 256
    s_cbranch_scc1 {exit_label}
    s_load_dwordx2 s[28:29], s[0:1], {KA_X}
    s_load_dwordx2 s[60:61], s[0:1], {KA_WQ}
    s_load_dwordx4 s[8:11], s[0:1], {KA_WK}
    s_load_dwordx2 s[12:13], s[0:1], {KA_WO}
    s_load_dwordx4 s[4:7], s[0:1], {KA_DBG}
    s_mov_b32 s30, {(S+1)*ROWB}
    s_mov_b32 s31, 0x20000
    s_mov_b32 s62, {D*ROWB}
    s_mov_b32 s63, 0x20000
    ''')
    stamp(a, 'start')

def diag(t):
    out = []
    for l in t.split('\n'):
        s = l.strip()
        if 'nomfma' in DIAG and 'mfma' in s: continue
        if 'nostat' in DIAG and ('smfmac_f32_16' in s and s.endswith(('v40', 'v44')) or ('mfma_f32_16x16x32' in s and s.split(', ')[1] == s.split(', ')[2])): continue
        if 'nostat4' in DIAG and (s.startswith('v_smfmac_f32_16x16x64_bf16 v[32:35], v[36') or s.startswith('v_mfma_f32_16x16x32_bf16 v[24:27], a[') and s.split(', ')[1] == s.split(', ')[2]): continue
        if 'nolgkm' in DIAG and s.startswith('s_waitcnt lgkmcnt') and not s.endswith('(0)'): continue
        if 'nord' in DIAG and s.startswith('ds_read') and ' a[' in s: continue
        if 'nodma' in DIAG and s.endswith('lds'): continue
        out.append(l)
    return '\n'.join(out)

def k1(name, rotate=True, stamp=nomark):
    a = Asm()
    a(f'.globl {name}\n.p2align 8\n.type {name},@function\n{name}:')
    entry(a, stamp, 'L_k1_exit')
    def done(a):
        stamp(a, 'end'); a('s_endpgm')
    phase1(a, rotate, stamp, done)
    a('L_k1_exit:\ns_endpgm')
    return diag(a.text())
```

```python
from common import *

LG, LU, LD = 0, 36864, 73728
LP = 110592
LO = LP + 20480
LQ = LO + 9 * 1152
LDUM = LQ + 8 * 2048
LX = LDUM + 1024
X_FLAG, X_KEY, X_WIN, X_G, X_ACT, X_MAX, X_PMAX = LX, LX + 32, LX + 64, LX + 128, LX + 640, LX + 1152, LP
K2_LDS = LX + 2304
HROW = 2560
LQR = LP
ONES = 0x3f803f80
M_LIMIT = 48.0
SPIN = 40000
POLL_SLEEP, FIN_SLEEP, FIN_SLEEP2 = 3, 28, 2

SA, SB, OACC, T = 0, 16, 32, 52
IDXA, IDXB, WAD, RAD, OAD, OST, AAD, L16, QAD, GUV, MV, LANE, WAD3, QXAD = 68, 69, 70, 71, 72, 73, 74, 75, 76, 77, 78, 79, 80, 81
NV = 84
KM, KX, VV, OO, WO, QM, QX, AF = 0, 32, 40, 104, 120, 160, 164, 168
NA = 172
S_WS, S_G, S_U, S_D, S_X, S_OUT, S_WR = 20, 24, 28, 32, 36, 40, 44
WAVE, S_FS, S_WOC, S_MG, S_MU, S_MD, S_MST, S_GOFF, S_DOFF, S_CNT, S_NT0 = 18, 19, 48, 49, 50, 51, 52, 53, 54, 55, 56
S_DST = 57
DIAG = set()
LDP = ' sc1'
FUSED = False
WOP = ' sc1'
QKORD = 0
PRIO = (3, 1, 0, 3, 3, 2, 1, 1)
MIDP5 = {1: (8, 2), 0: (10, 0)}
PRIO4, MIDP4 = (3, 2, 1, 3, 3, 2, 1, 1), {3: (12, 0), 0: (10, 0)}
SPEC = 0
DEFER = 0
F0AT = ((5, 12), (6, 1), (6, 8), (7, 1), (7, 15))
KVPOS = (1, 5, 9, 13)
QTOUCH = 0
POLL_AT = 0
RED4 = 1
WARMN = 0
RPOS, APOS, NPOS = (1, 5, 8, 12), (1, 3, 5, 7, 9, 11, 13), (0, 2, 4, 5, 7)
RTOUCH = 0
FPOLL_FIRST, KPOLL_F2, POLL_FIRST = 9, 6, 0
FFP = (' nt', ' nt', ' nt')
DMAT = ((0, 14), (1, 14), (2, 14))
SPLIT = 1
WALK = 0
TOUCH = 0
OUTP = ''
LATE = 0
ALIGN = 3
KPOLL_SLEEP, KPOLL_FIRST, FPOLL_SLEEP = 3, 8, 4
ROTF = 0x30003
PRE = (2, 1, 1)

def qk8(Y, slot, c): return f'v_mfma_f32_32x32x8bf16_1k v[{Y}:{Y+15}], a[{KX+(slot&~1)}:{KX+(slot&~1)+1}], a[{QX+2*(slot&1)}:{QX+2*(slot&1)+1}], {c}'
def qk16(Y, slot, c): return f'v_mfma_f32_32x32x16_bf16 v[{Y}:{Y+15}], a[{KM+4*slot}:{KM+4*slot+3}], a[{QM}:{QM+3}], {c}'
def qkx(Y, slot): return (qk16 if QKORD else qk8)(Y, slot, '0')
def qkm(Y, slot): return (qk8 if QKORD else qk16)(Y, slot, f'v[{Y}:{Y+15}]')
def pv(X, slot, s): return f'v_smfmac_f32_32x32x32_bf16 a[{OO}:{OO+15}], a[{VV+8*slot+4*s}:{VV+8*slot+4*s+3}], v[{X+8*s}:{X+8*s+7}], v{IDXA}'
def zero_o(): return f'v_mfma_f32_32x32x8bf16_1k a[{OO}:{OO+15}], a[{QX}:{QX+1}], a[{QX+2}:{QX+3}], 0'
def oproj(f, af, w): return f'v_smfmac_f32_16x16x64_bf16 v[{OACC+4*f}:{OACC+4*f+3}], a[{af}:{af+3}], a[{w}:{w+7}], v{IDXB}'
W_PART = [f'ds_write_b128 v{WAD}, a[{OO}:{OO+3}]', f'ds_write_b128 v{WAD}, a[{OO+4}:{OO+7}] offset:32', f'ds_write_b64 v{WAD3}, a[{OO+8}:{OO+9}]']
R_PART = [f'ds_read2st64_b64 v[{T+4*i}:{T+4*i+3}], v{RAD} offset0:{10*i} offset1:{10*i+5}' for i in range(4)]
def pka(d, x, y): return f'v_add_f32 v{T+d}, v{T+x}, v{T+y}\nv_add_f32 v{T+d+1}, v{T+x+1}, v{T+y+1}'
ADDS = [pka(0, 0, 2), pka(4, 4, 6), pka(8, 8, 10), pka(12, 12, 14), pka(0, 0, 4), pka(8, 8, 12), pka(0, 0, 8)]
NORM = [f'v_rcp_f32_dpp v{T+2}, v{T} row_newbcast:9 row_mask:0xf bank_mask:0xf',
        f'v_mul_f32 v{T}, v{T}, v{T+2}\nv_mul_f32 v{T+1}, v{T+1}, v{T+2}',
        f'v_cvt_pk_bf16_f32 v{T+4}, v{T}, v{T+1}',
        f'ds_write_b32 v{OAD}, v{T+4}',
        f'v_add_u32 v{OAD}, v{OST}, v{OAD}']

RA2, RAX, OA2, OAX, XS_, XR_ = OACC + 16, OACC + 17, OACC + 18, OACC + 19, QXAD, OST
def red4():
    ad = lambda d, x, y: f'v_add_f32 v{d}, v{x}, v{y}'
    rx = lambda i: f'ds_read2st64_b32 v[{T+2*i}:{T+2*i+1}], v{RAX} offset0:{20*i} offset1:{20*i+10}'
    rm = lambda r, i: f'ds_read2st64_b64 v[{r}:{r+3}], v{RA2} offset0:{10*i} offset1:{10*i+5}'
    pa = lambda d, x, y: ad(d, x, y) + '\n' + ad(d + 1, x + 1, y + 1)
    return {1: {1: rx(0), 3: rx(1), 5: rx(2), 7: rx(3), 9: rm(T + 8, 0), 11: rm(T + 12, 1),
                13: 's_waitcnt lgkmcnt(2)\n' + ad(T, T, T + 1) + '\n' + ad(T + 2, T + 2, T + 3), 14: ad(T + 4, T + 4, T + 5) + '\n' + ad(T + 6, T + 6, T + 7),
                15: ad(T, T, T + 2) + '\n' + ad(T + 4, T + 4, T + 6)},
            2: {1: ad(XS_, T, T + 4), 2: rm(T, 2), 3: rm(T + 4, 3), 4: f'v_rcp_f32_dpp v{XR_}, v{XS_} quad_perm:[2,2,2,2] row_mask:0xf bank_mask:0xf',
                5: 's_waitcnt lgkmcnt(2)\n' + pa(T + 8, T + 8, T + 10), 7: pa(T + 12, T + 12, T + 14), 8: f'v_mul_f32 v{XS_}, v{XS_}, v{XR_}',
                9: pa(T + 8, T + 8, T + 12), 11: f'v_cvt_pk_bf16_f32 v{XS_}, v{XS_}, v{XS_}', 12: 's_waitcnt lgkmcnt(0)\n' + pa(T, T, T + 2),
                13: f'ds_write_b16 v{OAX}, v{XS_}', 15: pa(T + 4, T + 4, T + 6)},
            3: {0: pa(T, T, T + 4), 2: pa(T, T, T + 8), 4: f'v_mul_f32 v{T}, v{T}, v{XR_}\nv_mul_f32 v{T+1}, v{T+1}, v{XR_}',
                5: f'v_cvt_pk_bf16_f32 v{T+4}, v{T}, v{T+1}', 7: f'ds_write_b32 v{OA2}, v{T+4}', 8: f'v_add_u32 v{OAX}, 16, v{OAX}', 9: f'v_add_u32 v{OA2}, 1152, v{OA2}'}}

def tile(a, t, ex, slow, prev=True, nxt=True, kind='std', x16=None, x16b=None):
    X, Y = (SA, SB) if t % 2 == 0 else (SB, SA)
    m = {}
    def put(p, s): m.setdefault(p, []).append(s)
    p_pvb, p_x, p_qx, p_qm, p_pva = 2, 5, 6, 10, 14
    if kind == 'first': p_qx, p_qm, p_pva = 5, 9, 16
    if kind == 'second':
        p_pvb = 3
        if x16: p_x, p_qx, p_qm = 6, 7, 11
    if prev: put(p_pvb, pv(Y, (t - 1) % 8, 1))
    if x16:
        for s in x16: put(p_x, s)
    if x16b:
        for s in x16b: put(13, s)
    if nxt:
        put(p_qx, ('qx', qkx(Y, (t + 1) % 8))); put(p_qm, qkm(Y, (t + 1) % 8))
    if kind == 'first':
        for s in W_PART: put(p_qm, s)
        put(12, zero_o())
    put(p_pva, ('pa', pv(X, t, 0)))
    for p in range(17):
        for s in m.get(p, []):
            if isinstance(s, tuple):
                for e in ex.get(s[0], []): e() if callable(e) else a(e)
                s = s[1]
            s() if callable(s) else a(s)
        for e in ex.get(p, []): e() if callable(e) else a(e)
        if p < 16:
            if slow: a(f'v_sub_f32 v{X+p}, v{X+p}, v{MV}')
            a(f'v_exp_f32 v{X+p}, v{X+p}')

def wo_load(vm, tag, reg, soff_add):
    def th():
        vm.a(f's_add_u32 s58, s{S_WOC}, {soff_add}')
        vm.issue(tag, f'buffer_load_dwordx4 a[{reg}:{reg+3}], v{L16}, s[{S_WS}:{S_WS+3}], s58 offen{WOP}')
        vm.issue(tag, f'buffer_load_dwordx4 a[{reg+4}:{reg+7}], v{L16}, s[{S_WS}:{S_WS+3}], s58 offen offset:1024{WOP}')
    return th

def q_reads(slow):
    r = [f'ds_read_b128 a[{QM}:{QM+3}], v{QAD}', f'ds_read_b128 a[{QX}:{QX+3}], v{QAD} offset:1024', f'v_add_u32 v{QAD}, 2048, v{QAD}']
    return r

STEP = 36 * 2048
def attention(a, n, slow, lab, vm, stamp, pre):
    prio = dict(zip((1, 2, 3, 4, 5, 6, 7, 0), PRIO if n == 5 or not PRIO4 else PRIO4))
    MIDP = MIDP5 if n == 5 or not PRIO4 else MIDP4
    def mload():
        return [f'ds_read_b32 v{T+15}, v82', 's_waitcnt lgkmcnt(0)', 'v_add_u32 v82, 128, v82'] if slow else []
    a('s_waitcnt lgkmcnt(0)')
    vm.need('km0')
    a(qkx(SA, 0)); a(qkm(SA, 0)); a(zero_o())
    if slow:
        a(f'ds_read_b32 v{MV}, v82\nv_add_u32 v82, 128, v82\ns_waitcnt lgkmcnt(0)')
    a('s_nop 3')
    for t in range(8):
        ex = {0: [f's_setprio {prio[t]}']}
        if t < 7: ex['qx'] = [lambda t=t: vm.need(f'km{t+1}')]
        ex['pa'] = [lambda t=t: vm.need(f'v{t}')]
        if t + pre < 8:
            for q in range(4): ex.setdefault(KVPOS[q], []).append(lambda t=t, q=q: kv_load(vm, t + pre, q))
        if t == 5:
            for q in range(WARMN): ex[1 + 3 * q] = [lambda q=q: warm(vm, q)]
            def touch():
                a(f's_lshl_b32 s58, s2, 3\ns_mul_i32 s58, s58, {ROWB}')
                vm.issue('t', f'buffer_load_dword a{WO+4}, v{T+14}, s[{S_WR}:{S_WR+3}], 0 offen')
                vm.issue('t', f'buffer_load_dword a{WO+5}, v{T+14}, s[{S_OUT}:{S_OUT+3}], s58 offen')
            if TOUCH: ex[10] = [touch]
        for f, (tt, pp) in enumerate(F0AT[:n]):
            if tt == t: ex.setdefault(pp, []).append(wo_load(vm, 'f', WO + 8 * f, f * 2048))
        if t == 6: ex[11] = q_reads(slow)
        if t == 7:
            ex['qx'] = ['s_waitcnt lgkmcnt(0)']
            ex[11] = mload()
            ex[16] = [f's_add_u32 s{S_WOC}, s{S_WOC}, {STEP}']
            for q in range(len([x for x in DMAT if x[0] > 4])): ex[16].append(lambda: vm.issue('pad', f'buffer_load_dword a{AF}, v{T+14}, s[{S_WR}:{S_WR+3}], 0 offen'))
        tile(a, t, ex, slow, prev=t > 0)
        if t == 7 and slow: a(f'v_mov_b32 v{MV}, v{T+15}')
    stamp(a, 's0')
    def dma(q):
        srdr, off, vo, so = ((S_G, LG, GUV, S_GOFF), (S_U, LU, GUV, S_GOFF), (S_D, LD, L16, S_DOFF))[q]
        r = [f's_add_u32 m0, s{S_MG}, {off}', 's_nop 0', f'buffer_load_dwordx4 v{vo}, s[{srdr}:{srdr+3}], s{so} offen{FFP[q]} lds']
        return r + [[], [f's_add_u32 s{S_GOFF}, s{S_GOFF}, {6*16*F*2}'], [f's_add_u32 s{S_MG}, s{S_MG}, 6144', f's_add_u32 s{S_DOFF}, s{S_DOFF}, 6144']][q]
    use = {4: [0], 5: [1], 6: [2], 7: [3, 4][:n - 3]}
    def body(last, xfer=False):
        lv = Vm(a)
        nvm = 2 * n - 2 + (3 if xfer else 0)
        if last:
            lv.q = [f'f{f}' for f in range(n) for _ in range(2)]
            free = {1: [KM, VV], 2: [VV + 8], 3: [KM + 8, VV + 16]}
            todo = [(8, f) for f in range(n)]
            where = {}
        for t in range(8):
            ex = {0: [f's_setprio {prio[t]}']}
            if t in MIDP: ex[MIDP[t][0]] = [f's_setprio {MIDP[t][1]}']
            x16, x16b = None, None
            for q, f in enumerate(use.get(t, [])):
                wait = (lambda f=f: lv.need(f'f{f}')) if last else f's_waitcnt vmcnt({nvm})'
                item = [wait, oproj(f, AF, WO + 8 * f)]
                if t == 4: item = ['s_waitcnt lgkmcnt(0)'] + item
                if q == 0 and t != 4: x16 = item
                else: x16b = item
                ex.setdefault(8 if (q == 0 and t != 4) else 15, []).append(wo_load(lv, f'f{f}', WO + 8 * f, f * 2048))
            if t == 0:
                ex[16] = ['s_waitcnt lgkmcnt(0)', 's_barrier']
            if RED4:
                if n == 4:
                    for p, x in red4().get(t, {}).items(): ex.setdefault(p, []).append(x)
            elif t == 1:
                for i, p in enumerate(RPOS): ex.setdefault(p, []).append(R_PART[i])
            elif t == 2:
                ex.setdefault(1, []).append('s_waitcnt lgkmcnt(0)')
                for i, p in enumerate(APOS): ex.setdefault(p, []).append(ADDS[i])
            elif t == 3:
                for i, p in enumerate(NPOS): ex.setdefault(p, []).append(NORM[i])
            if t == 3:
                ex[16] = ['s_waitcnt lgkmcnt(0)', 's_barrier']
            for q, (tt, pp) in enumerate(DMAT):
                if xfer and t == tt: ex.setdefault(pp, []).extend(dma(q))
            if t == 4:
                ex.setdefault(1, []).extend([f'ds_read_b128 a[{AF}:{AF+3}], v{AAD}', f'v_add_u32 v{AAD}, 1152, v{AAD}'])
            if t == 6 and not last: ex[11] = q_reads(slow)
            if t == 7 and not last:
                ex['qx'] = ['s_waitcnt lgkmcnt(0)']
                ex[11] = mload()
                ex[16] = [f's_add_u32 s{S_WOC}, s{S_WOC}, {STEP}', f's_sub_u32 s{S_CNT}, s{S_CNT}, 1', f's_cmp_lg_u32 s{S_CNT}, 0']
            if last:
                for i, reg in enumerate(free.get(t, [])):
                    if todo:
                        st, f = todo.pop(0); where[(st, f)] = reg
                        ex.setdefault(11 + 3 * i, []).append(wo_load(lv, f's{st}f{f}', reg, f * 2048 + STEP))
                if t == 7:
                    def rows():
                        lv.issue('x', f'buffer_load_dwordx4 v[0:3], v{L16}, s[{S_X}:{S_X+3}], s59 offen')
                        lv.issue('x', f'buffer_load_dword v4, v82, s[{S_X}:{S_X+3}], s59 offen offset:1024')
                        lv.issue('w', f'buffer_load_dwordx4 v[6:9], v{L16}, s[{S_WR}:{S_WR+3}], 0 offen')
                        lv.issue('w', f'buffer_load_dword v10, v82, s[{S_WR}:{S_WR+3}], 0 offen offset:1024')
                    ex[3] = [f'v_lshlrev_b32 v82, 2, v{LANE}', f's_lshl_b32 s59, s2, 3', f's_add_u32 s59, s59, s{WAVE}', f's_mul_i32 s59, s59, {ROWB}', rows]
            tile(a, t, ex, slow, nxt=not (last and t == 7), kind={0: 'first', 1: 'second'}.get(t, 'std'), x16=x16, x16b=x16b)
            if t == 7 and slow and not last: a(f'v_mov_b32 v{MV}, v{T+15}')
        if last:
            assert not todo
            return lv, where
    a(f's_mov_b32 s{S_CNT}, 6\ns_cmp_eq_u32 s{S_MST}, 0\ns_cbranch_scc1 {lab}n_loop\n.p2align {ALIGN}\n{lab}x_loop:')
    body(False, True)
    a(f's_cbranch_scc1 {lab}x_loop\ns_branch {lab}_last\n.p2align {ALIGN}\n{lab}n_loop:')
    body(False, False)
    a(f's_cbranch_scc1 {lab}n_loop\n{lab}_last:')
    stamp(a, 's6')
    lv, where = body(True)
    if not slow: a(';PAD t')
    a('s_setprio 0\ns_nop 0')
    a(pv(SB, 7, 1))
    stamp(a, 's7')
    a('s_nop 9')
    for s in W_PART: a(s)
    a('s_waitcnt lgkmcnt(0)\ns_barrier')
    stamp(a, 'b1')
    for s in R_PART: a(s)
    a(f'''
    v_and_b32 v22, 15, v{LANE}
    v_bfe_u32 v23, v{LANE}, 4, 1
    v_mul_u32_u24 v23, {4*HROW + 64}, v23
    v_lshl_add_u32 v22, v22, 2, v23
    s_lshl_b32 s58, s{S_NT0}, 6
    s_add_u32 s58, s58, {LP}
    v_add_u32 v22, s58, v22
    v_lshrrev_b32 v23, 5, v{LANE}
    v_lshl_add_u32 v23, v23, 6, v22
    v_add_u32 v24, 128, v23
    ''')
    a('s_waitcnt lgkmcnt(2)'); a(ADDS[0]); a(ADDS[1]); a(ADDS[4]); a('s_waitcnt lgkmcnt(0)')
    for q in (2, 3, 5, 6): a(ADDS[q])
    a('s_nop 0'); a(NORM[0]); a('s_nop 0')
    for s in NORM[1:4]: a(s)
    lv.need('x', 'w')
    for i in range(5): unpack(a, 12 + 2 * i, i)
    a(f'''
    s_waitcnt lgkmcnt(0)
    s_barrier
    ds_read_b128 a[{QM}:{QM+3}], v{AAD} offset:1152
    ds_read_b128 a[{AF}:{AF+3}], v{AAD}
    v_mov_b32 v{T+8}, 0
    v_mov_b32 v{T+9}, {hx(ONES)}
    s_mul_i32 s58, s{WAVE}, {HROW}
    s_lshr_b32 s59, s{WAVE}, 2
    s_lshl_b32 s59, s59, 6
    s_add_u32 s58, s58, s59
    s_add_u32 s58, s58, {LP}
    v_lshl_add_u32 v{T+10}, v{LANE}, 5, s58
    v_lshl_add_u32 v{T+11}, v{LANE}, 3, s58
    ''')
    for i in range(5): a(f'v_dot2c_f32_bf16 v{T+8}, v{6+i}, v{T+9}')
    stamp(a, 'b2')
    a('s_waitcnt lgkmcnt(1)')
    for f in range(n):
        lv.need(f's8f{f}'); a(oproj(f, QM, where[(8, f)]))
    a('s_waitcnt lgkmcnt(0)')
    for f in range(n):
        lv.need(f'f{f}'); a(oproj(f, AF, WO + 8 * f))
    stamp(a, 'op')
    a(f's_nop {9 - n}')
    R = HROW // 256
    for p in range(2):
        A, B = OACC + 8 * p, OACC + 8 * p + 4
        for r in range(4): a(f'v_permlane32_swap_b32 v{A+r}, v{B+r}')
        for r in range(4): a(f'v_add_f32 v{A+r}, v{A+r}, v{B+r}')
        for r in (0, 2): a(f'ds_write2st64_b32 v{23+p}, v{A+r}, v{A+r+1} offset0:{r*R} offset1:{(r+1)*R}')
    if n == 5:
        A = OACC + 16
        for r in range(4): a(f'v_mov_b32 v{T+4+r}, v{A+r}')
        for r in range(4): a(f'v_permlane32_swap_b32 v{A+r}, v{T+4+r}')
        for r in range(4): a(f'v_add_f32 v{A+r}, v{A+r}, v{T+4+r}')
        for r in (0, 2): a(f'ds_write2st64_b32 v22, v{A+r}, v{A+r+1} offset0:{r*R+1} offset1:{(r+1)*R+1}')
    a(f's_branch L_tail\n;PAD -')

def warm(vm, i):
    vm.a(f's_add_u32 s58, s60, {i*8192}')
    vm.issue('warm', f'buffer_load_dwordx4 a[{WO+8*i}:{WO+3+8*i}], v{L16}, s[{S_WS}:{S_WS+3}], s58 offen{LDP}')

def dpp_reduce(a, op, regs):
    for c in ('row_shr:1', 'row_shr:2', 'row_shr:4', 'row_shr:8', 'row_bcast:15 row_mask:0xa', 'row_bcast:31 row_mask:0xc'):
        if len(regs) < 3: a(f's_nop {2 - len(regs)}')
        for r in regs:
            mask = '' if 'row_mask' in c else ' row_mask:0xf'
            a(f'{op}_dpp v{r}, v{r}, v{r} {c}{mask} bank_mask:0xf')

def bf_round(a, dst, src):
    a(f'v_cvt_pk_bf16_f32 v{dst}, v{src}, v{src}\nv_and_b32 v{dst}, 0xffff0000, v{dst}')
def unpack(a, lo, src):
    a(f'v_lshlrev_b32 v{lo}, 16, v{src}\nv_and_b32 v{lo+1}, 0xffff0000, v{src}')

def tail(a, stamp):
    XP, WP, XF, AT, HP, LN, OU = 0, 6, 12, 22, 32, 38, 60
    a(f'''
L_tail:
;PAD t
    v_mov_b32 v46, 0
    v_mov_b32 v47, 0
    s_waitcnt lgkmcnt(0)
    v_mov_b32 v48, 0
    v_mov_b32 v49, v{T+8}
    v_mov_b32 v51, v{T+9}
    s_barrier
    ''')
    a(f'ds_read_b128 v[{AT}:{AT+3}], v{T+10}\nds_read_b128 v[{AT+4}:{AT+7}], v{T+10} offset:16\nds_read_b64 v[{AT+8}:{AT+9}], v{T+11} offset:2048')
    stamp(a, 'attn')
    a(f'''
    s_mov_b32 s62, -1
    s_mov_b32 s63, 0
    s_lshl_b32 s59, s2, 3
    s_add_u32 s59, s59, s{WAVE}
    s_sub_u32 s69, 2047, s59
    s_lshl_b32 s58, s{WAVE}, 2
    s_add_u32 s58, s58, {X_KEY}
    v_mov_b32 v57, s58
    v_and_b32 v55, 7, v{LANE}
    s_mov_b32 s58, {X_KEY}
    v_lshl_add_u32 v55, v55, 2, s58
    s_mov_b32 s60, {GRAN_REP}
    v_mul_lo_u32 v56, s60, v{LANE}
    v_mov_b32 v52, {hx(f32(1.0/D))}
    ''')
    for i in range(5):
        if i % 2 == 0: a(f's_waitcnt lgkmcnt({2 - i // 2})')
        a(f'v_pk_add_f32 v[{AT+2*i}:{AT+2*i+1}], v[{AT+2*i}:{AT+2*i+1}], v[{XF+2*i}:{XF+2*i+1}]')
        a(f'v_cvt_pk_bf16_f32 v{HP+i}, v{AT+2*i}, v{AT+2*i+1}')
        if i == 4: a(f'v_cndmask_b32 v{HP+4}, 0, v{HP+4}, s[62:63]')
        a(f'v_dot2c_f32_bf16 v46, v{HP+i}, v51\nv_dot2c_f32_bf16 v47, v{HP+i}, v{HP+i}\nv_dot2c_f32_bf16 v48, v{HP+i}, v{WP+i}')
    a(f'''
    s_lshl_b32 s60, s2, 7
    s_add_u32 s60, s60, {WS_GRAN}
    s_nop 0
    v_permlane32_swap_b32 v46, v47
    v_permlane32_swap_b32 v48, v49
    v_add_f32 v46, v46, v47
    v_add_f32 v48, v48, v49
    s_nop 1
    v_permlane16_swap_b32 v46, v48
    v_add_f32 v46, v46, v48
    ''')
    for c in (8, 4, 2, 1): a(f's_nop 1\nv_add_f32_dpp v46, v46, v46 row_ror:{c} row_mask:0xf bank_mask:0xf')
    a(f'''
    s_nop 0
    v_readlane_b32 s64, v46, 0
    v_readlane_b32 s65, v46, 32
    v_readlane_b32 s66, v46, 16
    v_readlane_b32 s67, v46, 48
    v_mul_f32 v46, s64, v52
    v_mul_f32 v47, s65, v52
    v_fma_f32 v47, -v46, v46, v47
    v_max_f32 v47, 0, v47
    ''')
    bf_round(a, 47, 47)
    a(f'v_add_f32 v47, {hx(f32(1e-5))}, v47')
    bf_round(a, 47, 47)
    a('v_sqrt_f32 v47, v47')
    bf_round(a, 46, 46)
    bf_round(a, 47, 47)
    a(f'''
    v_rcp_f32 v48, v47
    v_mov_b32 v53, s66
    v_fma_f32 v53, -v46, s67, v53
    v_mul_f32 v53, v53, v48
    v_cvt_pk_bf16_f32 v53, v53, v53
    v_ashrrev_i32 v54, 31, v53
    v_or_b32 v54, 0x80000000, v54
    v_xor_b32 v53, v53, v54
    v_lshrrev_b32 v53, 16, v53
    v_lshl_or_b32 v53, v53, 11, s69
    ds_write_b32 v57, v53
    s_getreg_b32 s58, hwreg(HW_REG_XCC_ID)
    s_and_b32 s58, s58, 7
    s_mul_i32 s58, s58, {GRAN_REP}
    s_and_b32 s64, s{WAVE}, 3
    s_lshl_b32 s64, s64, 13
    s_add_u32 s58, s58, s64
    s_add_u32 s64, s58, {WS_GRAN}
    v_lshlrev_b32 v65, 7, v{LANE}
    s_waitcnt lgkmcnt(0)
    s_barrier
    ds_read_b32 v54, v55
    s_mov_b32 s61, 0
    s_waitcnt lgkmcnt(0)
    v_cmp_gt_u32 vcc, v54, v53
    s_cbranch_vccnz L_notbest
    s_mov_b64 exec, 0xff
    buffer_store_dword v53, v56, s[{S_WS}:{S_WS+3}], s60 offen sc1
    s_mov_b64 exec, -1
    s_mov_b32 s61, 1
L_notbest:
    ''')
    stamp(a, 'gran')
    for c in (4, 2, 1): a(f'v_max_u32_dpp v54, v54, v54 row_ror:{c} row_mask:0xf bank_mask:0xf\ns_nop 1')
    a(f'v_readfirstlane_b32 s65, v54\ns_xor_b32 s65, s65, s{WAVE}\ns_and_b32 s65, s65, 4')
    def first_poll(k):
        if POLL_AT == k: a(f's_cmp_lg_u32 s65, 0\ns_cbranch_scc1 L_nofirst\nbuffer_load_dword v66, v65, s[{S_WS}:{S_WS+3}], s64 offen sc1\nL_nofirst:')
    a('v_sub_f32 v56, 0, v46\nv_mov_b32 v57, v56\nv_mov_b32 v49, v48')
    for i in range(5): unpack(a, XF + 2 * i, HP + i)
    for i in range(5): a(f'v_pk_add_f32 v[{AT+2*i}:{AT+2*i+1}], v[{XF+2*i}:{XF+2*i+1}], v[56:57]')
    for i in range(5): a(f'v_cvt_pk_bf16_f32 v{LN+i}, v{AT+2*i}, v{AT+2*i+1}')
    first_poll(1)
    for i in range(5): unpack(a, AT + 2 * i, LN + i)
    for i in range(5): a(f'v_pk_mul_f32 v[{AT+2*i}:{AT+2*i+1}], v[{AT+2*i}:{AT+2*i+1}], v[48:49]')
    for i in range(5): a(f'v_cvt_pk_bf16_f32 v{LN+i}, v{AT+2*i}, v{AT+2*i+1}')
    a(f'''
    v_lshlrev_b32 v58, 2, v{LANE}
    s_cmp_eq_u32 s61, 1
    s_cbranch_scc0 L_norow
    s_mul_i32 s58, s2, 2304
    s_add_u32 s58, s58, {WS_ROWS}
    ''')
    a(f'''
    buffer_store_dwordx4 v[{LN}:{LN+3}], v{L16}, s[{S_WS}:{S_WS+3}], s58 offen sc1
    buffer_store_dwordx4 v[{HP}:{HP+3}], v{L16}, s[{S_WS}:{S_WS+3}], s58 offen offset:1152 sc1
    s_mov_b32 exec_hi, 0
    buffer_store_dword v{LN+4}, v58, s[{S_WS}:{S_WS+3}], s58 offen offset:1024 sc1
    buffer_store_dword v{HP+4}, v58, s[{S_WS}:{S_WS+3}], s58 offen offset:{1152+1024} sc1
    s_mov_b32 exec_hi, -1
L_norow:
    ''')
    first_poll(2)
    for i in range(5): unpack(a, AT + 2 * i, LN + i)
    for i in range(5): a(f'v_pk_add_f32 v[{AT+2*i}:{AT+2*i+1}], v[{AT+2*i}:{AT+2*i+1}], v[{XF+2*i}:{XF+2*i+1}]')
    for i in range(5): a(f'v_cvt_pk_bf16_f32 v{OU+i}, v{AT+2*i}, v{AT+2*i+1}')
    def out_row():
        a(f'buffer_store_dwordx4 v[{OU}:{OU+3}], v{L16}, s[{S_OUT}:{S_OUT+3}], s68 offen{OUTP}')
        a(f's_mov_b32 exec_hi, 0\nbuffer_store_dword v{OU+4}, v58, s[{S_OUT}:{S_OUT+3}], s68 offen offset:1024{OUTP}\ns_mov_b32 exec_hi, -1')
    first_poll(3)
    a(f's_mul_i32 s68, s59, {ROWB}')
    if not DEFER:
        a('s_cmp_eq_u32 s61, 1\ns_cbranch_scc1 L_defer')
        out_row()
        a('L_defer:')
    elif DEFER == 2:
        a('s_cmp_eq_u32 s61, 1\ns_cbranch_scc1 L_defer\ns_cmp_eq_u32 s65, 0\ns_cbranch_scc1 L_defer')
        out_row()
        a('s_mov_b32 s61, 2\nL_defer:')
    stamp(a, 'rows')
    GW, DW = 0, 60
    a(f'''
    v_lshrrev_b32 v1, 4, v{LANE}
    v_bfe_u32 v2, v{LANE}, 2, 2
    v_and_b32 v3, 3, v{LANE}
    v_lshl_add_u32 v2, v1, 3, v2
    s_cmp_ge_u32 s{S_FS}, 144
    s_cbranch_scc1 L_nopre
    s_and_b32 s58, s{WAVE}, 1
    v_and_b32 v4, 1, v1
    v_xor_b32 v4, s58, v4
    v_lshlrev_b32 v4, 5, v4
    v_lshl_add_u32 v4, v2, 6, v4
    v_lshl_add_u32 v4, v3, 3, v4
    s_bfe_u32 s58, s{WAVE}, 0x10001
    s_mul_i32 s58, s58, {LU}
    s_lshr_b32 s60, s{WAVE}, 2
    s_mul_i32 s69, s60, {9*2048}
    s_add_u32 s58, s58, s69
    v_add_u32 v4, s58, v4
    v_mul_u32_u24 v5, {ROWB}, v2
    v_lshl_add_u32 v5, v3, 3, v5
    s_lshl_b32 s58, s{S_NT0}, 5
    s_add_u32 s58, s58, {LD}
    v_add_u32 v5, s58, v5
    ''')
    for i in range(9):
        a(f'ds_read_b64_tr_b16 a[{GW+4*i}:{GW+4*i+1}], v4 offset:{2048*i}\nds_read_b64_tr_b16 a[{GW+4*i+2}:{GW+4*i+3}], v4 offset:{2048*i+256}')
    for f in range(5):
        a(f'ds_read_b64_tr_b16 a[{DW+4*f}:{DW+4*f+1}], v5 offset:{32*f}\nds_read_b64_tr_b16 a[{DW+4*f+2}:{DW+4*f+3}], v5 offset:{32*f+4*ROWB}')
    a(f'''
L_nopre:
    s_cmp_lg_u32 s65, 0
    s_cbranch_scc1 {'L_touch' if RTOUCH else 'L_polled'}
    s_mov_b32 s60, 0
    {f's_sleep {POLL_FIRST}' if POLL_FIRST else ''}
    {'s_waitcnt vmcnt(2)' if POLL_AT else ''}
    {'s_branch L_pollchk' if POLL_AT else ''}
L_poll:
    buffer_load_dword v66, v65, s[{S_WS}:{S_WS+3}], s64 offen sc1
    s_add_u32 s60, s60, 1
    s_waitcnt vmcnt(0)
L_pollchk:
    v_cmp_eq_u32 vcc, -1, v66
    s_and_b64 exec, exec, vcc
    s_cbranch_execz L_polldone
    s_cmp_gt_u32 s60, {SPIN}
    s_cbranch_scc1 L_polldone
    ''')
    if SPEC:
        a(f'''
        s_cmp_gt_u32 s60, {SPEC}
        s_cbranch_scc1 L_nospec
        s_mov_b64 s[66:67], exec
        s_mov_b64 exec, -1
        v_cndmask_b32 v67, v66, 0, s[66:67]
        ''')
        dpp_reduce(a, 'v_max_u32', [67])
        a(f'''
        s_nop 0
        v_readlane_b32 s62, v67, 63
        s_andn2_b32 s62, 2047, s62
        s_lshr_b32 s62, s62, 3
        s_mul_i32 s62, s62, 2304
        s_add_u32 s62, s62, {WS_ROWS}
        s_mov_b64 exec, 0x1ff
        buffer_load_dword v67, v65, s[{S_WS}:{S_WS+3}], s62 offen sc1
        s_mov_b64 exec, s[66:67]
        s_branch L_poll
L_nospec:
        ''')
    a(f'''
    s_sleep {POLL_SLEEP}
    s_branch L_poll
L_polldone:
    s_mov_b64 exec, -1
    s_nop 1
    ''')
    dpp_reduce(a, 'v_max_u32', [66])
    a(f'''
    s_and_b32 s58, s{WAVE}, 3
    s_lshl_b32 s58, s58, 2
    s_add_u32 s58, s58, {X_WIN}
    v_mov_b32 v8, s58
    s_mov_b32 exec_lo, 0
    s_mov_b32 exec_hi, 0x80000000
    ds_write_b32 v8, v66
    s_mov_b64 exec, -1
    ''')
    if QTOUCH:
        a(f'''
        v_readlane_b32 s62, v66, 63
        s_andn2_b32 s62, 2047, s62
        s_lshr_b32 s62, s62, 3
        s_mul_i32 s62, s62, 2304
        s_add_u32 s62, s62, {WS_ROWS}
        s_mov_b64 exec, 0x1ff
        buffer_load_dword v67, v65, s[{S_WS}:{S_WS+3}], s62 offen sc1
        s_mov_b64 exec, -1
        ''')
    if RTOUCH:
        a(f'''
        s_branch L_polled
L_touch:
        s_and_b32 s58, s{WAVE}, 3
        s_lshl_b32 s58, s58, 1
        s_and_b32 s60, s2, 0xf8
        s_add_u32 s58, s58, s60
        s_mul_i32 s58, s58, 2304
        s_add_u32 s58, s58, {WS_ROWS}
        v_add_u32 v67, {2304 - 9*128}, v65
        v_cmp_lt_u32 vcc, 8, v{LANE}
        s_nop 1
        v_cndmask_b32 v67, v65, v67, vcc
        s_mov_b64 exec, 0x3ffff
        buffer_load_dword v66, v67, s[{S_WS}:{S_WS+3}], s58 offen sc1
        s_mov_b64 exec, -1
        ''')
    a(f'''
L_polled:
    v_mov_b32 v8, {X_WIN}
    s_waitcnt lgkmcnt(0)
    s_barrier
    ds_read_b128 v[10:13], v8
    s_waitcnt lgkmcnt(0)
    v_max_u32 v10, v10, v11
    v_max3_u32 v10, v10, v12, v13
    s_nop 0
    v_readfirstlane_b32 s62, v10
    s_and_b32 s63, s62, 2047
    s_sub_u32 s63, 2047, s63
    s_lshr_b32 s64, s63, 3
    s_mul_i32 s64, s64, 2304
    s_add_u32 s64, s64, {WS_ROWS}
    ''')
    stamp(a, 'win')
    a(f'''
    s_cmp_ge_u32 s{S_FS}, 144
    s_cbranch_scc1 L_noffn
    s_lshr_b32 s60, s{WAVE}, 2
    s_mul_i32 s60, s60, 576
    s_add_u32 s60, s60, s64
    s_mul_i32 s68, s{WAVE}, 576
    s_add_u32 m0, s68, {LP}
    s_mov_b32 s66, -1
    s_mov_b32 s67, 0xf
    v_lshlrev_b32 v6, 4, v1
    s_mov_b32 s65, 0
L_xsel:
    s_mov_b64 exec, s[66:67]
    buffer_load_dwordx4 v{L16}, s[{S_WS}:{S_WS+3}], s60 offen sc1 lds
    ''')
    XS = 10
    a(f'''
    s_mov_b64 exec, -1
    s_add_u32 s65, s65, 1
    s_lshl_b32 s58, s{WAVE}, 6
    s_add_u32 s58, s58, {X_G}
    v_add_u32 v7, s58, v6
    v_and_b32 v8, 31, v{LANE}
    s_mov_b32 s58, {X_G}
    v_lshl_add_u32 v9, v8, 2, s58
    s_lshl_b32 s58, s{WAVE}, 6
    s_add_u32 s58, s58, {X_ACT}
    v_lshl_add_u32 v8, v8, 1, s58
    v_add_u32 v51, s58, v6
    v_lshrrev_b32 v2, 3, v{LANE}
    v_mul_u32_u24 v2, 4608, v2
    v_and_b32 v3, 7, v{LANE}
    v_lshl_add_u32 v2, v3, 2, v2
    s_mul_i32 s58, s{S_NT0}, 9216
    s_lshl_b32 s69, s{S_FS}, 5
    s_add_u32 s58, s58, s69
    s_add_u32 s58, s58, {WS_PART}
    s_add_u32 s69, s68, {LP}
    v_add_u32 v52, s69, v6
    s_waitcnt vmcnt(0)
    ''')
    for i in range(9): a(f'ds_read_b128 v[{XS+4*i}:{XS+4*i+3}], v52 offset:{64*i}')
    for i in range(9):
        a(f's_waitcnt lgkmcnt({8-i})')
        a(f'v_mfma_f32_16x16x32_bf16 v[46:49], a[{GW+4*i}:{GW+4*i+3}], v[{XS+4*i}:{XS+4*i+3}], ' + ('0' if i == 0 else 'v[46:49]'))
        if i == 0: a(f'v_max_u32 v50, v{XS}, v{XS+1}\nv_max3_u32 v50, v50, v{XS+2}, v{XS+3}')
        else: a(f'v_max3_u32 v50, v50, v{XS+4*i}, v{XS+4*i+1}\nv_max3_u32 v50, v50, v{XS+4*i+2}, v{XS+4*i+3}')
    a(f'''
    v_cmp_eq_u32 vcc, -1, v50
    s_cbranch_vccz L_xok
    s_cmp_gt_u32 s65, {SPIN}
    s_cbranch_scc0 L_xsel
L_xok:
    ''')
    stamp(a, 'xin')
    a(f'''
    s_mul_i32 s68, s59, {ROWB}
    s_mov_b32 s66, 0x00010001
    s_mov_b32 s67, 0x00010001
    s_mov_b64 exec, s[66:67]
    ds_write_b128 v7, v[46:49]
    s_mov_b64 exec, -1
    s_waitcnt lgkmcnt(0)
    s_barrier
    ds_read2_b32 v[10:11], v9 offset0:0 offset1:64
    ds_read2_b32 v[12:13], v9 offset0:32 offset1:96
    s_waitcnt lgkmcnt(1)
    v_add_f32 v10, v10, v11
    ''')
    bf_round(a, 10, 10)
    a(f'''
    v_mul_f32 v11, {hx(f32(-math.log2(math.e)))}, v10
    v_exp_f32 v11, v11
    s_waitcnt lgkmcnt(0)
    v_add_f32 v12, v12, v13
    v_add_f32 v11, 1.0, v11
    v_rcp_f32 v11, v11
    ''')
    bf_round(a, 12, 12)
    a('v_mul_f32 v10, v10, v11')
    bf_round(a, 10, 10)
    a(f'''
    v_mul_f32 v10, v10, v12
    v_cvt_pk_bf16_f32 v10, v10, v10
    ds_write_b16 v8, v10
    s_waitcnt lgkmcnt(0)
    ds_read_b128 v[12:15], v51
    s_waitcnt lgkmcnt(0)
    ''')
    stamp(a, 'act')
    for f in range(5): a(f'v_mfma_f32_16x16x32_bf16 v[{16+4*f}:{19+4*f}], v[12:15], a[{DW+4*f}:{DW+4*f+3}], 0')
    a(f'''
    s_mov_b32 s64, 0xffff0000
    s_mov_b32 s65, 0
    s_mov_b32 s66, 0
    s_mov_b32 s67, 0xffff
    s_nop 0
    v_cndmask_b32 v16, v16, v20, s[64:65]
    s_mov_b32 s65, 0xffff0000
    s_mov_b32 s64, 0
    v_cndmask_b32 v16, v16, v24, s[66:67]
    s_add_u32 s69, s58, {4*9216}
    s_cmp_ge_u32 s{WAVE}, 4
    v_cndmask_b32 v16, v16, v28, s[64:65]
    buffer_store_dword v16, v2, s[{S_WS}:{S_WS+3}], s58 offen sc1
    s_cbranch_scc1 L_ffndone
    s_mov_b64 exec, 0xffff
    buffer_store_dword v32, v2, s[{S_WS}:{S_WS+3}], s69 offen sc1
L_ffndone:
    s_mov_b64 exec, -1
    s_branch L_last
L_noffn:
    s_sub_u32 s69, s{S_FS}, 144
    s_cmp_ge_u32 s69, 72
    s_cbranch_scc1 L_last
    s_cmp_lg_u32 s{WAVE}, 0
    s_cbranch_scc1 L_last
    s_cmp_eq_u32 s61, {[0, 2, 2][DEFER]}
    s_cbranch_scc1 L_finrow
    s_cmp_eq_u32 s63, s59
    s_cbranch_scc1 L_finrow
    ''')
    out_row()
    a(f'''
L_finrow:
    s_mov_b32 s61, {[0, 2, 2][DEFER]}
    s_lshl_b32 s58, s69, 4
    s_add_u32 s58, s58, s64
    v_and_b32 v1, 1, v{LANE}
    v_lshlrev_b32 v2, 3, v1
    v_bfe_u32 v1, v{LANE}, 4, 1
    v_lshl_add_u32 v2, v1, 2, v2
    v_lshrrev_b32 v1, 5, v{LANE}
    v_lshl_add_u32 v2, v1, 1, v2
    s_lshr_b32 s65, s62, 11
    s_lshl_b32 s65, s65, 16
    s_not_b32 s66, s65
    s_ashr_i32 s66, s66, 31
    s_or_b32 s66, s66, 0x80000000
    s_xor_b32 s65, s65, s66
    s_and_b32 s65, s65, 0xffff0000
    v_mov_b32 v3, s65
    v_mul_f32 v3, {hx(f32(-math.log2(math.e)))}, v3
    v_exp_f32 v3, v3
    s_mul_i32 s60, s69, 4608
    s_add_u32 s60, s60, {WS_PART}
    v_add_f32 v3, 1.0, v3
    v_rcp_f32 v3, v3
    s_mov_b32 s65, 0
    v_mov_b32 v26, 0
    v_mov_b32 v27, 0
    v_mov_b32 v28, 0
    v_mov_b32 v29, 0
    v_mov_b32 v30, 0
    ''')
    bf_round(a, 3, 3)
    a(f'''
L_fin0:
    buffer_load_dwordx4 v[10:13], v30, s[{S_WS}:{S_WS+3}], s58 offen sc1
    buffer_load_dwordx4 v[14:17], v30, s[{S_WS}:{S_WS+3}], s58 offen offset:1152 sc1
    s_add_u32 s65, s65, 1
    s_waitcnt vmcnt(0)
    v_max3_u32 v8, v10, v11, v12
    v_max3_u32 v8, v8, v13, v14
    v_max3_u32 v8, v8, v15, v16
    v_max_u32 v8, v8, v17
    v_cmp_eq_u32 vcc, -1, v8
    s_cbranch_vccz L_fin1
    s_cmp_gt_u32 s65, {SPIN}
    s_cbranch_scc0 L_fin0
L_fin1:
    buffer_load_ushort v4, v2, s[{S_WS}:{S_WS+3}], s58 offen sc1
    buffer_load_ushort v5, v2, s[{S_WS}:{S_WS+3}], s58 offen offset:1152 sc1
    s_mul_i32 s59, s63, {ROWB}
    s_lshl_b32 s64, s69, 4
    s_add_u32 s59, s59, s64
    s_sleep {FIN_SLEEP}
L_fin:
    ''')
    for i in range(4): a(f'buffer_load_dwordx4 v[{10+4*i}:{13+4*i}], v{L16}, s[{S_WS}:{S_WS+3}], s60 offen offset:{1024*i} sc1')
    a(f'''
    s_add_u32 s66, s60, 4096
    s_mov_b32 s67, exec_hi
    s_mov_b32 exec_hi, 0
    buffer_load_dwordx4 v[26:29], v{L16}, s[{S_WS}:{S_WS+3}], s66 offen sc1
    s_mov_b32 exec_hi, s67
    s_add_u32 s65, s65, 1
    s_waitcnt vmcnt(0)
    v_mov_b32 v8, v10
    ''')
    for i in range(11, 29, 2): a(f'v_max3_u32 v8, v8, v{i}, v{i+1}')
    a(f'''
    v_max_u32 v8, v8, v29
    v_cmp_eq_u32 vcc, -1, v8
    s_and_b64 exec, exec, vcc
    s_cbranch_execz L_finok
    s_cmp_gt_u32 s65, {SPIN}
    s_cbranch_scc1 L_finok
    s_sleep {FIN_SLEEP2}
    s_branch L_fin
L_finok:
    s_mov_b64 exec, -1
    ''')
    stamp(a, 'fin')
    a(f'''
    v_pk_add_f32 v[10:11], v[10:11], v[14:15]
    v_pk_add_f32 v[12:13], v[12:13], v[16:17]
    v_pk_add_f32 v[18:19], v[18:19], v[22:23]
    v_pk_add_f32 v[20:21], v[20:21], v[24:25]
    v_pk_add_f32 v[10:11], v[10:11], v[26:27]
    v_pk_add_f32 v[12:13], v[12:13], v[28:29]
    v_pk_add_f32 v[10:11], v[10:11], v[18:19]
    v_pk_add_f32 v[12:13], v[12:13], v[20:21]
    v_lshlrev_b32 v4, 16, v4
    v_lshlrev_b32 v5, 16, v5
    v_permlane32_swap_b32 v10, v11
    v_permlane32_swap_b32 v12, v13
    v_add_f32 v10, v10, v11
    v_add_f32 v12, v12, v13
    s_mov_b32 s64, 0x00030003
    s_mov_b32 s65, 0x00030003
    v_permlane16_swap_b32 v10, v12
    v_add_f32 v10, v10, v12
    ''')
    for c in (8, 4, 2): a(f's_nop 1\nv_add_f32_dpp v10, v10, v10 row_ror:{c} row_mask:0xf bank_mask:0xf')
    bf_round(a, 10, 10)
    a('v_mul_f32 v10, v3, v10')
    bf_round(a, 10, 10)
    a('v_add_f32 v10, v4, v10')
    bf_round(a, 10, 10)
    a(f'''
    v_add_f32 v10, v5, v10
    v_cvt_pk_bf16_f32 v10, v10, v10
    s_mov_b64 exec, s[64:65]
    buffer_store_short v10, v2, s[{S_OUT}:{S_OUT+3}], s59 offen{OUTP}
    s_branch L_end
L_last:
    s_cmp_eq_u32 s61, {[0, 2, 2][DEFER]}
    s_cbranch_scc1 L_end
    s_cmp_eq_u32 s63, s59
    s_cbranch_scc1 L_end
    ''')
    out_row()
    a(';PAD -\nL_end:')
    stamp(a, 'end')
    a('s_endpgm')

def kv_load(vm, t, part=None):
    ws = f's[{S_WS}:{S_WS+3}]'
    if part in (None, 0): vm.issue(f'km{t}', f'buffer_load_dwordx4 a[{KM+4*t}:{KM+4*t+3}], v{L16}, {ws}, s67 offen{LDP}')
    if part in (None, 1): vm.issue(f'km{t}', f'buffer_load_dword a{KX+t}, v{T+14}, {ws}, s67 offen offset:{KV_X}{LDP}')
    m = 'vmask' in DIAG
    if part in (None, 2):
        if m: vm.a('s_mov_b64 exec, s[64:65]')
        vm.issue(f'v{t}', f'buffer_load_dwordx4 a[{VV+8*t}:{VV+8*t+3}], v83, {ws}, s67 offen offset:{KV_V}{LDP}')
        if m and part == 2: vm.a('s_mov_b64 exec, -1')
    if part in (None, 3):
        if m and part == 3: vm.a('s_mov_b64 exec, s[64:65]')
        vm.issue(f'v{t}', f'buffer_load_dwordx4 a[{VV+8*t+4}:{VV+8*t+7}], v83, {ws}, s67 offen offset:{KV_V+608}{LDP}')
        if m: vm.a('s_mov_b64 exec, -1')
        if t < 7: vm.a(f's_add_u32 s67, s67, {KVREC}\ns_cmp_ge_u32 s67, s63\ns_cselect_b32 s67, s62, s67')

def qprep(a, vm, stamp):
    a(f's_cmp_ge_u32 s{WAVE}, 4\ns_cbranch_scc1 L_nokmax')
    dpp_reduce(a, 'v_max_f32', [21])
    a(f'''
    s_lshl_b32 s58, s{WAVE}, 2
    s_add_u32 s58, s58, {X_WIN}
    v_mov_b32 v22, s58
    s_mov_b32 exec_lo, 0
    s_mov_b32 exec_hi, 0x80000000
    ds_write_b32 v22, v21
    s_mov_b64 exec, -1
L_nokmax:
    v_mov_b32 v22, {X_WIN}
    s_mov_b32 s68, -1
    s_mov_b32 s69, 0
    v_mov_b32 v18, 0
    s_waitcnt lgkmcnt(0)
    ''')
    if SPLIT:
        n = vm.count('q')
        a(f's_cmp_lt_u32 s{WAVE}, 4\ns_cbranch_scc1 L_qlow\ns_waitcnt vmcnt(0)\nL_qlow:\ns_waitcnt vmcnt({n})')
    else: vm.need('q')
    stamp(a, 'qin')
    a(f'''
    s_barrier
    ds_read2_b32 v[12:13], v8 offset0:0 offset1:1
    ds_read2_b32 v[14:15], v8 offset0:2 offset1:3
    ds_read_b32 v16, v7 offset:32
    ds_read_b128 v[20:23], v22
    ''')
    for t in range(PRE[0], PRE[0] + PRE[1]): kv_load(vm, t)
    stamp(a, 'q1')
    a(f'''
    s_waitcnt lgkmcnt(1)
    v_cndmask_b32 v17, 0, v16, s[68:69]
    v_dot2c_f32_bf16 v18, v12, v12
    v_dot2c_f32_bf16 v18, v13, v13
    v_dot2c_f32_bf16 v18, v14, v14
    v_dot2c_f32_bf16 v18, v15, v15
    v_dot2c_f32_bf16 v18, v17, v17
    s_waitcnt lgkmcnt(0)
    v_max3_f32 v20, v20, v21, v22
    s_lshl_b32 s59, s{WAVE}, 11
    v_mov_b32 v19, v18
    v_max_f32 v20, v20, v23
    s_nop 0
    v_permlane32_swap_b32 v18, v19
    v_add_f32 v18, v18, v19
    v_mul_f32 v18, v20, v18
    v_sqrt_f32 v18, v18
    s_add_u32 s59, s59, {LQ}
    v_add_u32 v24, s59, v{L16}
    v_mov_b32 v17, 0
    v_add_u32 v18, 0x1ffff, v18
    v_and_b32 v18, 0xffff0000, v18
    v_cmp_nge_f32 vcc, {hx(f32(M_LIMIT))}, v18
    v_lshrrev_b32 v19, 16, v18
    v_or_b32 v19, 0x8000, v19
    v_cndmask_b32 v16, v19, v16, s[68:69]
    s_cmp_lg_u64 vcc, 0
    s_cselect_b32 s58, 1, 0
    ds_write_b128 v24, v[12:15]
    v_mov_b32 v18, 0
    v_mov_b32 v19, v16
    ds_write_b128 v24, v[16:19] offset:1024
    s_lshl_b32 s59, s{WAVE}, 2
    s_add_u32 s59, s59, {X_FLAG}
    v_mov_b32 v26, s59
    v_mov_b32 v27, s58
    ds_write_b32 v26, v27
    ''')

def prologue(a, stamp):
    if FUSED:
        a(f'''
L_p1done:
;PAD p
        ''')
        stamp(a, 'qst')
        a(f'''
        s_lshl_b32 s57, s26, 7
        s_add_u32 s57, s57, {WS_GRAN}
        s_mov_b32 s96, s4
        s_mov_b32 s97, s5
        s_mov_b32 s98, 4
        s_mov_b32 s99, 0x20000
        v_mov_b32 v64, 0
        buffer_load_dword v61, v64, s[96:99], 0 offen sc1
        s_mov_b32 s{S_WS}, s6
        s_mov_b32 s{S_WS+1}, s7
        s_mov_b32 s{S_WS+2}, {WS_USED}
        s_mov_b32 s{S_WS+3}, 0x20000
        s_mov_b32 s59, {GRAN_REP}
        v_mul_lo_u32 v63, s59, v1
        v_mov_b32 v60, -1
        v_mov_b32 v62, v29
        ''')
    else:
        a('s_cmp_ge_u32 s2, 256\ns_cbranch_scc1 L_k2_exit')
    a(f'''
    s_load_dwordx2 s[16:17], s[0:1], {KA_WS}
    s_load_dwordx2 s[4:5], s[0:1], {KA_X}
    s_load_dwordx8 s[8:15], s[0:1], {KA_WR}
    s_load_dwordx2 s[6:7], s[0:1], {KA_OUT}
    ''')
    if not FUSED: stamp(a, 'start')
    a(f'''
    s_setprio 3
    v_lshrrev_b32 v1, 6, v0
    v_and_b32 v{LANE}, 63, v0
    v_and_b32 v5, 7, v0
    v_readfirstlane_b32 s{WAVE}, v1
    v_bfe_u32 v6, v0, 3, 2
    s_lshl_b32 s58, s2, 3
    s_add_u32 s61, s58, s{WAVE}
    s_mul_i32 s61, s61, {ROWB}
    v_mul_u32_u24 v7, 1168, v5
    v_mad_u32_u24 v7, v6, 36, v7
    s_mul_i32 s58, s{WAVE}, 144
    s_add_u32 s58, s58, {LQR}
    v_add_u32 v7, s58, v7
    v_lshrrev_b32 v4, 5, v{LANE}
    v_lshl_add_u32 v8, v4, 4, v7
    s_mul_i32 s68, s{WAVE}, 1168
    s_add_u32 s68, s68, {LQR}
    v_lshlrev_b32 v{L16}, 4, v{LANE}
    v_lshlrev_b32 v{T+14}, 2, v{LANE}
    v_and_b32 v3, 31, v{LANE}
    v_min_u32 v10, 18, v3
    v_lshlrev_b32 v10, 4, v10
    s_movk_i32 s62, 304
    v_mad_u32_u24 v10, v4, s62, v10
    s_mov_b32 s64, 0x0013ffff
    s_mov_b32 s65, 0x0013ffff
    v_mov_b32 v2, 0x7f000000
    v_cndmask_b32 v83, v{10 if 'vclamp' in DIAG else 2}, v10, s[64:65]
    s_bfe_u32 s60, s2, {ROTF}
    s_mul_i32 s62, s{WAVE}, {8*KVREC}
    s_add_u32 s62, s62, {WS_KV}
    s_mul_i32 s67, s60, {KVREC}
    s_add_u32 s67, s67, s62
    s_add_u32 s63, s62, {8*KVREC}
    ''')
    for i in range(72 if 'vmask' in DIAG else 8): a(f'v_accvgpr_write_b32 a{KX+i}, 0')
    if not FUSED: a('s_waitcnt lgkmcnt(0)')
    vm = Vm(a)
    def first_loads():
        qdma()
        a('s_setprio 0')
    def qdma():
        ws = f's[{S_WS}:{S_WS+3}]'
        a('s_mov_b32 m0, s68\ns_mov_b64 exec, 0xff')
        vm.issue('q', f'buffer_load_dwordx4 v{L16}, {ws}, s61 offen offset:1024{LDP} lds')
        a('s_mov_b64 exec, -1')
        vm.issue('q', f'buffer_load_dwordx4 v{L16}, {ws}, s61 offen{LDP} lds')
    if not FUSED:
        srd(a, S_WS, 16, 0, WS_USED)
        first_loads()
    def late_setup():
        a(f'''
        s_and_b32 s58, s2, 7
        s_lshr_b32 s59, s2, 3
        s_mul_i32 s{S_FS}, s58, 18
        s_add_u32 s{S_FS}, s{S_FS}, s59
        s_cmp_lt_u32 s59, 18
        s_cselect_b32 s{S_FS}, s{S_FS}, s2
        s_cselect_b32 s69, {D*F*2}, 0
        ''')
        for d, b in ((S_G, 10), (S_U, 12), (S_D, 14)):
            a(f's_mov_b32 s{d}, s{b}\ns_mov_b32 s{d+1}, s{b+1}\ns_mov_b32 s{d+2}, s69\ns_mov_b32 s{d+3}, 0x20000')
        srd(a, S_X, 4, 0, S * ROWB); srd(a, S_OUT, 6, 0, S * ROWB); srd(a, S_WR, 8, 0, ROWB)
        a(f'''
        s_mul_i32 s{S_GOFF}, s{WAVE}, {16*F*2}
        s_lshl_b32 s58, s{S_FS}, 6
        s_add_u32 s{S_GOFF}, s{S_GOFF}, s58
        s_mul_i32 s{S_DOFF}, s{S_FS}, 36864
        s_lshl_b32 s58, s{WAVE}, 10
        s_add_u32 s{S_DOFF}, s{S_DOFF}, s58
        s_mov_b32 s{S_MG}, s58
        s_cmp_lt_u32 s{WAVE}, 6
        s_cselect_b32 s{S_MST}, s69, 0
        s_mul_i32 s{S_NT0}, s{WAVE}, 5
        s_lshl_b32 s58, s{WAVE}, 2
        s_add_u32 s58, s58, 4
        s_cmp_lt_u32 s{WAVE}, 4
        s_cselect_b32 s{S_NT0}, s{S_NT0}, s58
        s_lshl_b32 s{S_WOC}, s{S_NT0}, 11
        s_add_u32 s{S_WOC}, s{S_WOC}, {WS_WO}
        s_mul_i32 s60, s59, 20736
        s_lshl_b32 s58, s{WAVE}, 10
        s_add_u32 s60, s60, s58
        s_add_u32 s60, s60, {WS_WO}
        v_lshrrev_b32 v24, 2, v{LANE}
        v_mul_u32_u24 v25, {F*2}, v24
        v_lshrrev_b32 v24, 4, v{LANE}
        v_and_b32 v26, 2, v24
        v_and_b32 v27, 3, v{LANE}
        v_xor_b32 v26, v26, v27
        v_lshl_add_u32 v{GUV}, v26, 4, v25
        v_mov_b32 v{IDXA}, 0xdddd
        v_mov_b32 v{IDXB}, 0x4444
        v_mov_b32 v25, 0xeeee
        v_and_b32 v26, 15, v{LANE}
        v_cmp_lt_u32 vcc, 7, v26
        v_mul_u32_u24 v27, 80, v3
        s_mul_i32 s58, s{WAVE}, 2560
        v_cndmask_b32 v{IDXB}, v{IDXB}, v25, vcc
        s_add_u32 s58, s58, {LP}
        v_add_u32 v27, s58, v27
        v_lshl_add_u32 v{WAD}, v4, 4, v27
        v_lshl_add_u32 v{WAD3}, v4, 3, v27
        v_add_u32 v{WAD3}, 64, v{WAD3}
        v_min_u32 v25, 9, v26
        v_mul_u32_u24 v27, 640, v24
        v_lshl_add_u32 v27, v25, 3, v27
        s_mul_i32 s58, s{WAVE}, 80
        s_add_u32 s58, s58, {LP}
        v_add_u32 v{RAD}, s58, v27
        s_mul_i32 s58, s{WAVE}, 144
        s_add_u32 s58, s58, {LO}
        v_lshlrev_b32 v27, 5, v24
        v_lshl_add_u32 v27, v26, 2, v27
        v_add_u32 v{OAD}, s58, v27
        v_mov_b32 v{OST}, 1152
        s_add_u32 s58, s58, {8*1152}
        v_lshl_add_u32 v27, v24, 2, s58
        v_cmp_eq_u32 vcc, 8, v26
        s_mov_b32 s58, {LDUM}
        v_lshl_add_u32 v28, v{LANE}, 2, s58
        v_cndmask_b32 v{OAD}, v{OAD}, v27, vcc
        v_cndmask_b32 v{OST}, v{OST}, 16, vcc
        v_cmp_lt_u32 vcc, 8, v26
        v_mul_u32_u24 v27, 144, v5
        v_bfe_u32 v25, v{LANE}, 3, 1
        v_cndmask_b32 v{OAD}, v{OAD}, v28, vcc
        v_cndmask_b32 v{OST}, v{OST}, 0, vcc
        v_lshl_add_u32 v27, v25, 6, v27
        v_lshl_add_u32 v27, v24, 4, v27
        v_add_u32 v{AAD}, {LO}, v27
        v_add_u32 v{QAD}, {LQ}, v{L16}
        ''')
        for i in range(OACC, OACC + 20): a(f'v_mov_b32 v{i}, 0')
        if RED4:
            a(f'''
            v_mad_u32_u24 v{OAD}, v{OST}, 7, v{OAD}
            s_cmp_lt_u32 s{WAVE}, 4
            s_cbranch_scc1 L_nored4
            s_sub_u32 s58, s{WAVE}, 4
            v_lshrrev_b32 v25, 3, v{LANE}
            s_mul_i32 s59, s58, 640
            s_add_u32 s59, s59, {LP}
            v_mul_u32_u24 v27, 80, v25
            v_add_u32 v27, s59, v27
            v_lshl_add_u32 v{RA2}, v5, 3, v27
            v_and_b32 v28, 3, v{LANE}
            v_lshl_add_u32 v{RAX}, v28, 2, v27
            v_add_u32 v{RAX}, 64, v{RAX}
            v_mul_u32_u24 v27, 144, v25
            s_lshl_b32 s59, s58, 5
            s_add_u32 s59, s59, {LO}
            v_add_u32 v28, s59, v27
            v_lshl_add_u32 v{OA2}, v5, 2, v28
            s_lshl_b32 s59, s58, 2
            s_add_u32 s59, s59, {LO + 8*1152}
            v_add_u32 v28, s59, v27
            v_lshl_add_u32 v28, v5, 1, v28
            s_mov_b32 s59, {LDUM}
            v_lshl_add_u32 v27, v{LANE}, 1, s59
            v_cmp_gt_u32 vcc, 2, v5
            s_nop 1
            v_cndmask_b32 v{OAX}, v27, v28, vcc
L_nored4:
            ''')
    if not FUSED: late_setup()
    if FUSED:
        a(f'''
        s_getreg_b32 s58, hwreg(HW_REG_XCC_ID)
        s_and_b32 s58, s58, 7
        s_mul_i32 s58, s58, {GRAN_REP}
        s_add_u32 s58, s58, {WS_GRAN + 4}
        s_mul_i32 s59, s{WAVE}, {8 * 43}
        s_lshr_b32 s59, s59, 7
        v_add_u32 v24, s59, v{LANE}
        v_min_u32 v24, 21, v24
        v_add_u32 v24, 234, v24
        v_lshlrev_b32 v24, 7, v24
        s_mov_b32 s59, 0
        s_waitcnt vmcnt(0)
L_tag:
        v_cmp_ne_u32 vcc, 0, v61
        s_cbranch_vccnz L_tagok
        buffer_load_dword v61, v64, s[96:99], 0 offen sc1
        s_add_u32 s59, s59, 1
        s_cmp_gt_u32 s59, {SPIN}
        s_waitcnt vmcnt(0)
        s_cbranch_scc0 L_tag
L_tagok:
        ''')
        stamp(a, 'drain')
        a(f'''
        s_barrier
        s_cmp_lg_u32 s{WAVE}, 7
        s_cbranch_scc1 L_noflag
        s_mov_b64 exec, 0xff
        buffer_store_dwordx3 v[60:62], v63, s[{S_WS}:{S_WS+3}], s57 offen sc1
        s_mov_b64 exec, -1
L_noflag:
        ''')
        if LATE == 0:
            a('s_mov_b32 s57, s58\nv_mov_b32 v21, v24\ns_waitcnt lgkmcnt(0)')
            late_setup()
            a('s_mov_b32 s58, s57\nv_mov_b32 v24, v21')
            if WALK & 2: a(f';WALK t 8 s{WAVE} 0')
        else: a(f's_sleep {KPOLL_FIRST}')
        a(f'''
        ''')
        def kpoll():
            a(f'''
            s_mov_b32 s59, 0
            s_mov_b64 exec, 15
            {f's_sleep {KPOLL_F2}' if KPOLL_F2 else ''}
L_kpoll:
            buffer_load_dword v20, v24, s[{S_WS}:{S_WS+3}], s58 offen sc1
            s_add_u32 s59, s59, 1
            s_waitcnt vmcnt(0)
            v_cmp_ne_u32 vcc, v20, v61
            s_and_b64 exec, exec, vcc
            s_cbranch_execz L_kdone
            s_cmp_gt_u32 s59, {SPIN}
            s_cbranch_scc1 L_kdone
            s_sleep {KPOLL_SLEEP}
            s_branch L_kpoll
L_kdone:
            s_mov_b64 exec, -1
            ''')
            stamp(a, 'kin')
        def kfirst(top=3):
            q = list(vm.q)
            for t in range(PRE[0]):
                a(f's_setprio {max(top - t, 0)}'); kv_load(vm, t)
            a('s_setprio 3')
            return q
        def fpoll():
            a(f'''
            s_lshl_b32 s59, s{WAVE}, 13
            s_add_u32 s58, s58, s59
            v_lshlrev_b32 v24, 7, v{LANE}
            s_mov_b32 s59, 0
            {f's_sleep {FPOLL_FIRST}' if FPOLL_FIRST else ''}
L_fpoll:
            buffer_load_dwordx2 v[20:21], v24, s[{S_WS}:{S_WS+3}], s58 offen sc1
            s_add_u32 s59, s59, 1
            s_waitcnt vmcnt(0)
            v_cmp_ne_u32 vcc, v20, v61
            s_and_b64 exec, exec, vcc
            s_cbranch_execz L_fdone
            s_cmp_gt_u32 s59, {SPIN}
            s_cbranch_scc1 L_fdone
            s_sleep {FPOLL_SLEEP}
            s_branch L_fpoll
L_fdone:
            s_mov_b64 exec, -1
            ''')
        if SPLIT:
            a(f's_cmp_lt_u32 s{WAVE}, 4\ns_cbranch_scc1 L_allflags')
            kpoll(); vm.q = kfirst()
            a('s_barrier')
            qdma()
            a('s_branch L_synced\nL_allflags:')
            vm.q = []
            fpoll()
            a('s_barrier')
            qdma(); kfirst(2)
            a('L_synced:\ns_setprio 0')
        else:
            kpoll(); kfirst()
            a(f's_cmp_ge_u32 s{WAVE}, 4\ns_cbranch_scc1 L_flagsin')
            fpoll()
            a('L_flagsin:\ns_barrier')
        stamp(a, 'sync')
        if not SPLIT: first_loads()
        if LATE == 2:
            a('s_waitcnt lgkmcnt(0)'); late_setup()
    qprep(a, vm, stamp)
    a(f'''
    s_mov_b32 s58, {X_FLAG}
    v_lshl_add_u32 v26, v5, 2, s58
    ''')
    stamp(a, 'q2')
    for t in range(PRE[0] + PRE[1], sum(PRE)): kv_load(vm, t)
    stamp(a, 'q3')
    a(f'''
    s_waitcnt lgkmcnt(0)
    s_barrier
    ds_read_b32 v27, v26
    ''')
    stamp(a, 'bar')
    for r in q_reads(False): a(r)
    a(f'''
    s_waitcnt lgkmcnt(2)
    v_cmp_ne_u32 vcc, 0, v27
    ''')
    return vm

def true_max(a, vm):
    a('L_slow:')
    for t in range(sum(PRE), 8): kv_load(vm, t)
    a(f'''
    v_cndmask_b32 v16, 0, v16, s[68:69]
    v_mov_b32 v19, v16
    s_waitcnt lgkmcnt(0)
    s_barrier
    ds_write_b128 v24, v[16:19] offset:1024
    v_add_u32 v{QAD}, {LQ}, v{L16}
    s_lshl_b32 s58, s{WAVE}, 7
    s_add_u32 s58, s58, {X_PMAX}
    v_lshl_add_u32 v25, v3, 2, s58
    s_mov_b32 s{S_CNT}, 8
    s_waitcnt vmcnt(0) lgkmcnt(0)
    s_barrier
L_mx:
    ''')
    vm.q = []
    for r in q_reads(True): a(r)
    a(f'v_mov_b32 v{MV}, 0xff800000\ns_waitcnt lgkmcnt(0)')
    for t in range(8):
        a(qkx(SA, t)); a(qkm(SA, t)); a('s_nop 11')
        for r in range(0, 16, 2): a(f'v_max3_f32 v{MV}, v{MV}, v{SA+r}, v{SA+r+1}')
        a('s_nop 7')
    a(f'''
    v_mov_b32 v26, v{MV}
    s_nop 1
    v_permlane32_swap_b32 v{MV}, v26
    v_max_f32 v{MV}, v{MV}, v26
    ds_write_b32 v25, v{MV}
    v_add_u32 v25, 1024, v25
    s_sub_u32 s{S_CNT}, s{S_CNT}, 1
    s_cmp_lg_u32 s{S_CNT}, 0
    s_cbranch_scc1 L_mx
    v_and_b32 v3, 31, v{LANE}
    s_lshl_b32 s58, s{WAVE}, 10
    s_add_u32 s58, s58, {X_PMAX}
    v_lshl_add_u32 v25, v3, 2, s58
    s_waitcnt lgkmcnt(0)
    s_barrier
    ''')
    for i in range(4): a(f'ds_read2_b32 v[{2*i+8}:{2*i+9}], v25 offset0:{64*i} offset1:{64*i+32}')
    a(f'''
    s_mov_b32 s58, {X_MAX}
    v_lshl_add_u32 v82, v3, 2, s58
    s_lshl_b32 s58, s{WAVE}, 7
    v_add_u32 v25, s58, v82
    s_waitcnt lgkmcnt(0)
    v_max3_f32 v8, v8, v9, v10
    v_max3_f32 v8, v8, v11, v12
    v_max3_f32 v8, v8, v13, v14
    v_max_f32 v8, v8, v15
    ds_write_b32 v25, v8
    ''')
    if 'dumpm' in DIAG:
        a(f's_lshl_b32 s58, s2, 3\ns_add_u32 s58, s58, s{WAVE}\ns_lshl_b32 s58, s58, 7\ns_add_u32 s58, s58, {WS_STAMP}\nv_lshlrev_b32 v9, 2, v3\nbuffer_store_dword v8, v9, s[{S_WS}:{S_WS+3}], s58 offen\ns_waitcnt vmcnt(0)')
    a(f'''
    v_add_u32 v{QAD}, {LQ}, v{L16}
    s_waitcnt lgkmcnt(0)
    s_barrier
    ''')
    for r in q_reads(True): a(r)

def k2(name, stamp=nomark):
    import pads
    t = pads.apply(k2_(name, stamp))
    if 'jitter' in DIAG:
        L, n = [], 0
        def jit():
            nonlocal n; n += 1
            return [f'    s_mul_i32 s100, s100, 1664525', '    s_add_u32 s100, s100, 1013904223', '    s_lshr_b32 s101, s100, 26', f'    s_cmp_gt_u32 s101, 15', f'    s_cbranch_scc1 L_jd{n}',
                    f'L_j{n}:', '    s_sleep 2', '    s_sub_u32 s101, s101, 1', '    s_cmp_gt_i32 s101, 0', f'    s_cbranch_scc1 L_j{n}', f'L_jd{n}:']
        for l in t.split('\n'):
            w = l.strip()
            if w == 's_barrier': L += jit() + [l] + jit()
            elif w.startswith('s_load_dwordx2 s[28:29]'): L += ['    s_memtime s[100:101]', '    s_waitcnt lgkmcnt(0)', l]
            elif w.startswith('buffer_store') and 'sc1' in w and 'dwordx3' not in w and False: L += jit() + [l]
            else: L.append(l)
        t = '\n'.join(L)
    out, inloop = [], False
    for l in t.split('\n'):
        s = l.strip()
        if s.endswith('_loop:'): inloop = True
        if inloop:
            if 'nowo' in DIAG and s.startswith('buffer_load') and 'lds' not in s: continue
            if 'nodma' in DIAG and s.startswith('buffer_load') and 'lds' in s: continue
            if 'noop' in DIAG and '16x16x64' in s: continue
            if 'novm' in DIAG and 'vmcnt' in s: continue
            if 'nobar' in DIAG and s == 's_barrier': continue
            if 'nods' in DIAG and (s.startswith('ds_') or 'lgkmcnt' in s): continue
            if 'novalu' in DIAG and (s.startswith('v_pk') or s.startswith('v_add') or s.startswith('v_rcp') or s.startswith('v_cvt')): continue
            if 'nopv' in DIAG and '32x32x32' in s: continue
            if 'noqk' in DIAG and ('32x32x16' in s or ('32x32x8' in s and ' v[' in s[:32])): continue
            if 'noqx' in DIAG and ('32x32x8' in s and ' v[' in s[:32]): continue
            if 'noexp' in DIAG and s.startswith('v_exp'): l = l.replace('v_exp_f32', 'v_nop ;')
            if 'noprio' in DIAG and s.startswith('s_setprio'): continue
        if s.startswith('s_cbranch_scc1') and s.endswith('_loop'): inloop = False
        out.append(l)
    return '\n'.join(out)

def k2_(name, stamp=nomark):
    a = Asm()
    a(f'.globl {name}\n.p2align 8\n.type {name},@function\n{name}:')
    if FUSED:
        import k1
        k1.entry(a, stamp, 'L_k2_exit')
        def done(a): a('s_branch L_p1done')
        k1.phase1(a, True, stamp, done)
        a.l = k1.diag(a.text()).rstrip('\n').split('\n')
    vm = prologue(a, stamp)
    a(';PAD -')
    stamp(a, 'prol')
    a(f's_cbranch_vccnz L_slow\ns_cmp_ge_u32 s{WAVE}, 4\ns_cbranch_scc1 L_f4')
    q0 = list(vm.q)
    attention(a, 5, False, 'L_a5', vm, stamp, sum(PRE))
    a('L_f4:')
    vm.q = list(q0)
    attention(a, 4, False, 'L_a4', vm, stamp, sum(PRE))
    tail(a, stamp)
    vm.q = list(q0)
    true_max(a, vm)
    a(f's_cmp_ge_u32 s{WAVE}, 4\ns_cbranch_scc1 L_s4')
    attention(a, 5, True, 'L_b5', vm, nomark, 8)
    a('L_s4:')
    vm.q = []
    attention(a, 4, True, 'L_b4', vm, nomark, 8)
    a('L_k2_exit:\ns_endpgm')
    return a.text()
```

```python
import sys
from common import *
import k1
NAME = 'sequential_preLN__grouped_kv_mqa__moe_arch_mod__prompt'
HDR = open('cdna_kernels/' + NAME + '.s.ref').read().split('; Override')[0]

DOC = """;
;
"""
def assemble(parts):
    t = HDR
    for n, _, g, b, l, _, _ in parts:
        t += f'; @launch kernel={n} grid=({g},1,1) block=({b},1,1) lds={l}\n'
    t += DOC
    t += '.amdgcn_target "amdgcn-amd-amdhsa--gfx950"\n.text\n'
    done = set()
    for n, txt, *_ in parts:
        if n not in done: t += txt
        done.add(n)
    t += '.section .rodata,"a"\n'
    done = set()
    for n, _, _, _, _, v, acc in parts:
        if n not in done: t += kdesc(n, v, acc)
        done.add(n)
    return t

import k2
def full(m1=None, m2=None, extra=()):
    s1 = Marks(m1, 6, 16, WS_STAMP) if m1 else nomark
    s2 = Marks(m2, 16, k2.WAVE, WS_STAMP + 0x40000) if m2 else nomark
    t = assemble([('proj_kernel', k1.k1('proj_kernel', stamp=s1), 256, 512, k1.K1_LDS, 152, 84),
                  ('attn_kernel', k2.k2('attn_kernel', stamp=s2), 256, 512, k2.K2_LDS, k2.NV + k2.NA, k2.NV)] + list(extra))
    if m1: t += f'; marks1 {" ".join(m1)}\n'
    return t
def fused(m2=None, as_list=True):
    k1.FUSED = k2.FUSED = True
    s2 = Marks(m2, 16, k2.WAVE, WS_STAMP + 0x40000) if m2 else nomark
    n = NAME + '_kernel'
    t = assemble([(n, k2.k2(n, stamp=s2), 256, 512, max(k1.K1_LDS, k2.K2_LDS), k2.NV + k2.NA, k2.NV)])
    if not as_list: t = t.replace(f'; @launch kernel={n} ', '; @launch ')
    if m2: t += f'; marks1 start\n'
    k1.FUSED = k2.FUSED = False
    return t
MF = ['start', 'loop', 'flag', 'sync', 'prol', 's0', 'gran', 'end']
M1 = ['start', 'issued', 'loop', 'end']
M2 = ['start', 'prol', 's0', 's6', 'attn', 'gran', 'win', 'end']
M2A = ['start', 'issued', 'bar', 'prol', 's6', 's7', 'b2', 'end']
M2B = ['start', 's7', 'b1', 'b2', 'op', 'attn', 'gran', 'end']
M2C = ['start', 'gran', 'rows', 'win', 'xin', 'act', 'fin', 'end']

if __name__ == '__main__':
    open('cdna_kernels/' + NAME + '.s', 'w').write(fused(as_list=False))
    open('fused.s', 'w').write(fused())
    open('fused_st.s', 'w').write(fused(MF))
    open('fused_sta.s', 'w').write(fused(['start', 'u0', 'loop', 'qw', 'drain', 'flag', 'sync', 'end']))
    open('fused_stb.s', 'w').write(fused(['start', 'sync', 'qin', 'q1', 'q2', 'q3', 'bar', 'end']))
    open('fused_stc.s', 'w').write(fused(M2B))
    open('fused_std.s', 'w').write(fused(M2C))
```

```python
from common import *

K1_LDS = 162816
TQ, TKV = 79, 96
ONES = 0x3f803f80
LOOK = 2
LA = 3
KV_VM, KV_KE, KV_VE = 16384, 32768, 32768 + 9216 + 64
XOFF = {'q': 65536, 'kv': 51328}
EX_OFF = 161920
ST = ' sc1'
QROW = 144
DIAG = set()
FUSED = False
TOUCH = 0
CODEPF = 1
QPRE = -1
MAP2 = 0
XP, WP, GP = '', '', ' nt'
ROTC = (4, 4, 1)
PREW = 1
CLR_AT = 9
ROT = 1
WALK = 0

def bf_round(a, dst, src):
    a(f'v_cvt_pk_bf16_f32 v{dst}, v{src}, v{src}\nv_and_b32 v{dst}, 0xffff0000, v{dst}')

def rot_next(a, s, step, lim):
    a(f's_add_u32 s{s}, s{s}, {step}\ns_cmp_ge_u32 s{s}, {lim}\ns_cselect_b32 s{s}, 0, s{s}')

def mf16(d, x, y, first): return f'v_mfma_f32_16x16x32_bf16 v[{d}:{d+3}], {x}, {y}, ' + ('0' if first else f'v[{d}:{d+3}]')
def smf16(d, x, y, idx): return f'v_smfmac_f32_16x16x64_bf16 v[{d}:{d+3}], {x}, {y}, v{idx}'

BARS = [0, 1, 2, 3, 4, 5, 6, 7, 8]
def kloop(a, vm, reads, mfmas, issue, extra=None, walk=None):
    L = Lgkm(a)
    nxt = [2]
    def capture(upto):
        keep, a.l = a.l, []
        while nxt[0] <= upto:
            issue(nxt[0]); nxt[0] += 1
        got, a.l = a.l, keep
        chunks, cur, masked, seen = [], [], False, False
        for l in got:
            cur.append(l); w = l.strip()
            if w == 's_mov_b64 exec, -1': masked = False
            elif 'saveexec' in w or w.split()[1].startswith('exec'): masked = True
            if w.startswith('buffer_'): seen = True
            if seen and not masked: chunks.append(cur); cur, seen = [], False
        assert not masked
        if cur:
            if chunks: chunks[-1] += cur
            else: chunks.append(cur)
        return ['\n'.join(c) for c in chunks]
    def stage(t):
        if t % 2 == 0 and t // 2 in BARS:
            u = t // 2
            last = ([b for b in BARS if b > u] + [9])[0] - 1
            vm.need(*range(u, last + 1))
            a('s_barrier')
            STAMP(a, f'u{u}')
            return last
    for c in capture(([b for b in BARS if b > 0])[0] - 1 + LA - 1): a(c)
    if walk and WALK: a(walk)
    for t in range(LOOK):
        last = stage(t)
        for tag, ins in reads(t): L.issue(tag, ins)
        if last is not None:
            for c in capture(last + LA): a(c)
    for t in range(18):
        R = []
        if t + LOOK < 18:
            last = stage(t + LOOK)
            R = [('r', x) for x in reads(t + LOOK)]
            if last is not None: R += [('e', c) for c in capture(last + LA)]
        if extra: R += [('e', x) for x in extra(t)]
        for kind, x in weave([('m', x) for x in mfmas(t)], R):
            if kind == 'r': L.issue(*x)
            elif kind == 'e': a(x)
            else:
                L.need(*x[0]); a(x[1])

def stats_raw(GR, SX, V, M, T0):
    return f'''
    v_cndmask_b32 v{V}, 0, v{GR}, s[36:37]
    v_cndmask_b32 v{V}, v{V}, v{GR+1}, s[38:39]
    v_cndmask_b32 v{V}, v{V}, v{GR+2}, s[40:41]
    v_cndmask_b32 v{V}, v{V}, v{GR+3}, s[42:43]
    v_mov_b32 v{M}, v{SX}
    v_mov_b32 v{T0}, v{V}
    s_nop 1
    v_permlane32_swap_b32 v{SX}, v{M}
    v_permlane32_swap_b32 v{V}, v{T0}
    v_add_f32 v{M}, v{SX}, v{M}
    v_add_f32 v{V}, v{V}, v{T0}
    v_mov_b32 v{T0}, v{V}
    v_mul_f32 v{M}, {hx(f32(1.0/D))}, v{M}
    s_nop 0
    v_permlane16_swap_b32 v{V}, v{T0}
    v_add_f32 v{V}, v{V}, v{T0}
    '''

def stats_fin(V, M, T0, mul):
    r = lambda x: f'v_cvt_pk_bf16_f32 v{x}, v{x}, v{x}\nv_and_b32 v{x}, 0xffff0000, v{x}\n'
    return (f'v_mul_f32 v{T0}, v{M}, v{M}\nv_fma_f32 v{V}, v{V}, s58, -v{T0}\nv_max_f32 v{V}, 0, v{V}\n' + r(V)
            + f'v_add_f32 v{V}, {hx(f32(1e-5))}, v{V}\n' + r(V) + f'v_sqrt_f32 v{V}, v{V}\n' + r(M) + r(V)
            + f'v_rcp_f32 v{V}, v{V}\ns_nop 0\n' + (f'v_mul_f32 v{V}, {hx(f32(mul))}, v{V}\n' if mul != 1.0 else ''))
def lines(t): return [l.strip() for l in t.split('\n') if l.strip()]

def stat_consts(a, ONE, IDX, sx):
    for i in range(4): a(f'v_mov_b32 v{ONE+i}, {hx(ONES)}')
    for r in sx:
        for i in range(4): a(f'v_mov_b32 v{r+i}, 0')
    a(f'''
    v_mov_b32 v{IDX}, 0x4444
    v_mov_b32 v12, 0xeeee
    v_cmp_lt_u32 vcc, 7, v2
    s_mov_b32 s36, 0x00100001
    s_mov_b32 s37, 0x10000100
    v_cndmask_b32 v{IDX}, v{IDX}, v12, vcc
    s_lshl_b64 s[38:39], s[36:37], 1
    s_lshl_b64 s[40:41], s[36:37], 2
    s_lshl_b64 s[42:43], s[36:37], 3
    s_mov_b32 s58, {hx(f32(1.0/D))}
    ''')

def x_read_addr(a, XRA, base):
    a(f'''
    v_lshrrev_b32 v11, 1, v2
    v_xor_b32 v11, v11, v3
    v_lshlrev_b32 v11, 4, v11
    v_lshl_add_u32 v11, v2, 7, v11
    v_add_u32 v{XRA}, s{base}, v11
    v_xor_b32 v{XRA+1}, 64, v{XRA}
    ''')

def clears(vm, hs, R, flagw):
    a = vm.a
    a(f'''
    v_mov_b32 v{R}, -1
    v_mov_b32 v{R+1}, -1
    v_mov_b32 v{R+2}, -1
    v_mov_b32 v{R+3}, -1
    s_lshl_b32 s46, s{hs}, 11
    s_cmp_lt_u32 s{hs}, 2
    s_cselect_b32 s46, s46, 0x7f000000
    v_lshl_add_u32 v{R+5}, v1, 4, s46
    s_mul_i32 s47, s2, 3600
    s_add_u32 s47, s47, {WS_ROWS}
    ''')
    vm.issue('c', f'buffer_store_dwordx4 v[{R}:{R+3}], v{R+5}, s[32:35], s47 offen{ST}')
    a(f'v_cmp_gt_u32 vcc, {3600 - 1024}, v{R+5}\nv_mov_b32 v{R+4}, 0x7f000000\nv_lshrrev_b32 v{R+6}, 3, v1\nv_cndmask_b32 v{R+5}, v{R+4}, v{R+5}, vcc')
    vm.issue('c', f'buffer_store_dwordx4 v[{R}:{R+3}], v{R+5}, s[32:35], s47 offen offset:1024{ST}')
    a(f'''
    s_mov_b32 s50, {GRAN_REP}
    v_mul_lo_u32 v{R+6}, s50, v{R+6}
    v_and_b32 v{R+7}, 7, v1
    s_cmp_eq_u32 s{hs}, {flagw}
    s_cselect_b32 s46, 0, 0x7f000000
    v_lshl_add_u32 v{R+7}, v{R+7}, 4, s46
    v_add_u32 v{R+6}, v{R+7}, v{R+6}
    s_lshl_b32 s47, s26, 7
    s_add_u32 s47, s47, {WS_GRAN}
    ''')
    vm.issue('c', f'buffer_store_dwordx4 v[{R}:{R+3}], v{R+6}, s[32:35], s47 offen{ST}')

def q_common(a):
    a(f'''
    v_lshrrev_b32 v9, 3, v1
    v_and_b32 v10, 7, v1
    v_mul_u32_u24 v5, {ROWB}, v9
    s_and_b32 s24, s16, 1
    s_lshl_b32 s25, s24, 2
    v_and_b32 v11, 2, v9
    v_xor_b32 v11, v11, v10
    v_xor_b32 v11, s25, v11
    v_lshl_add_u32 v6, v11, 4, v5
    v_lshrrev_b32 v11, 1, v9
    v_xor_b32 v11, v11, v10
    v_xor_b32 v11, s25, v11
    v_lshl_add_u32 v7, v11, 4, v5
    s_mul_i32 s20, s17, {TQ}
    s_lshl_b32 s23, s16, 3
    s_add_u32 s23, s23, s20
    s_add_u32 s23, s23, 1
    s_mul_i32 s23, s23, {ROWB}
    s_mul_i32 s27, s16, {8*ROWB}
    s_lshl_b32 s44, s18, 7
    s_add_u32 s27, s27, s44
    s_lshl_b32 s21, s16, 10
    s_lshr_b32 s56, s16, 1
    s_mul_i32 s56, s56, 18432
    s_lshl_b32 s24, s24, 10
    s_add_u32 s56, s56, s24
    s_add_u32 s56, s56, {XOFF['q']}
    ''')
    if ROT:
        a(f'''
        s_mul_i32 s57, s18, {ROTC[0]}
        s_lshr_b32 s57, s57, 4
        s_mul_i32 s57, s57, {ROTC[1]}
        s_mul_i32 s19, s17, {ROTC[2]}
        s_add_u32 s19, s19, s57
        s_mul_i32 s57, s19, 57
        s_lshr_b32 s57, s57, 9
        s_mul_i32 s57, s57, 9
        s_sub_u32 s19, s19, s57
        s_lshl_b32 s57, s19, 7
        s_add_u32 s23, s23, s57
        s_mul_i32 s22, s19, {64*ROWB}
        s_add_u32 s27, s27, s22
        s_sub_u32 s19, 9, s19
        ''')

XG = {0: [0], 1: [1, 2], 2: [3, 4], 3: [5], 4: [6], 5: [7], 6: [8]}
LEAD = {0: [0, 1], 1: [], 2: [2, 3, 4], 3: [5], 4: [6, 7, 8]}
def q_issue(vm, u, small):
    a = vm.a
    if u > 8: return
    def xs(w):
        if ROT and w:
            a(f's_cmp_eq_u32 s19, {w}\ns_cselect_b32 s22, {ROWB}, 0\ns_sub_u32 s23, s23, s22' + ('\ns_sub_u32 s24, s24, s22' if small else ''))
        a(f's_add_u32 m0, s56, {w*2048 - w*128}\ns_nop 0')
        vm.issue(u, f'buffer_load_dwordx4 v7, s[28:31], s23 offen offset:{w*128}{XP} lds')
        if small:
            a(f's_add_u32 m0, s25, {w*2048 - w*128}\ns_mov_b64 exec, s[64:65]')
            vm.issue(u, f'buffer_load_dwordx4 v8, s[28:31], s24 offen offset:{w*128}{XP} lds')
            a('s_mov_b64 exec, -1')
    g = XG.get(u, [])
    if u == 0: xs(g[0]); g = g[1:]
    a(f's_add_u32 m0, s21, {(u % 8) * 8192}\ns_nop 0')
    vm.issue(u, f'buffer_load_dwordx4 v6, s[60:63], s27 offen{WP} lds')
    if u < 8:
        a(f's_add_u32 s27, s27, {64*ROWB}')
        if ROT: a(f's_cmp_eq_u32 s19, {u+1}\ns_cselect_b32 s22, {D*ROWB}, 0\ns_sub_u32 s27, s27, s22')
    for w in g: xs(w)

PFN = [0]
def code_pf(a):
    PFN[0] += 1; k = PFN[0]
    a(f'''
    s_cmp_lg_u32 s16, 0
    s_cbranch_scc1 L_nopf{k}
    s_getpc_b64 s[36:37]
L_pf{k}:
    s_sub_u32 s36, s36, L_pf{k} - L_entry
    s_subb_u32 s37, s37, 0
    s_lshr_b32 s38, s2, 3
    s_mul_i32 s38, s38, ((L_slow - L_entry + 4095) / 4096) * 128
    v_lshl_add_u32 v2, v1, 7, s38
    s_bfm_b64 exec, (L_slow - L_entry + 4095) / 4096, 0
    global_load_dword v83, v2, s[36:37]
    s_mov_b64 exec, -1
L_nopf{k}:
    ''')

def q_first(a, vm, small):
    STAMP(a, 'pre')
    a(f's_setprio 3\ns_waitcnt lgkmcnt(0)\ns_sub_u32 s28, s28, {ROWB}\ns_subb_u32 s29, s29, 0')
    STAMP(a, 'karg')
    q_issue(vm, 0, small)
    if CODEPF and not small: code_pf(a)
    a('s_setprio 2')
    q_issue(vm, 1, small)
    a('s_setprio 0')

def q_tra(a, TRA):
    a(f'''
    v_bfe_u32 v12, v1, 2, 2
    v_and_b32 v13, 3, v1
    v_lshl_add_u32 v9, v3, 3, v12
    v_lshlrev_b32 v9, 7, v9
    v_lshl_add_u32 v9, v13, 3, v9
    v_lshrrev_b32 v10, 1, v12
    v_and_b32 v11, 1, v3
    v_lshl_add_u32 v10, v11, 1, v10
    v_lshl_add_u32 v{TRA}, v10, 5, v9
    v_xor_b32 v{TRA}, s45, v{TRA}
    ''')

def q_big(a, stamp, done):
    ACC, WB, XB, TRA, XRA = 16, 0, 24, 32, 34
    vm = Vm(a)
    q_first(a, vm, False)
    stamp(a, 'issued')
    a(f'''
    v_and_b32 v2, 15, v1
    v_lshrrev_b32 v3, 4, v1
    s_lshr_b32 s46, s16, 1
    s_mul_i32 s47, s46, {2*18432}
    s_add_u32 s47, s47, {XOFF['q']}
    s_and_b32 s45, s16, 1
    s_lshl_b32 s45, s45, 6
    ''')
    x_read_addr(a, XRA, 47)
    q_tra(a, TRA)
    a(f'''
    v_xor_b32 v{TRA+1}, 32, v{TRA}
    s_lshl_b32 s46, s46, 5
    v_add_u32 v4, s46, v2
    v_mul_u32_u24 v5, {QROW}, v4
    v_lshl_add_u32 v5, v3, 3, v5
    v_add_u32 v5, s45, v5
    s_lshl_b32 s45, s45, 1
    s_add_u32 s45, s45, {EX_OFF}
    v_lshl_add_u32 v14, v3, 4, s45
    s_lshl_b32 s46, s46, 3
    s_add_u32 s46, s46, {EX_OFF + 256}
    v_lshl_add_u32 v15, v2, 3, s46
    ''')
    def reads(t):
        w, x, o = WB + 8 * (t % 3), XB + 8 * (t % 3), (t % 16) * 4096
        r = []
        for j in range(2):
            r.append(((t, 'x', j), f'ds_read_b128 a[{x+4*j}:{x+4*j+3}], v{XRA + t % 2} offset:{(t // 2) * 2048 + 18432 * j}'))
            r.append(((t, 'w', j), f'ds_read_b64_tr_b16 a[{w+4*j}:{w+4*j+1}], v{TRA+j} offset:{o}'))
            r.append(((t, 'w', j), f'ds_read_b64_tr_b16 a[{w+4*j+2}:{w+4*j+3}], v{TRA+j} offset:{o+512}'))
        return r
    def mfmas(t):
        w, x = WB + 8 * (t % 3), XB + 8 * (t % 3)
        return [([(t, 'x', i), (t, 'w', j)], mf16(ACC + 8 * i + 4 * j, ar(w + 4 * j, 4), ar(x + 4 * i, 4), t == 0)) for i, j in ((0, 0), (1, 0), (0, 1), (1, 1))]
    def issue(u):
        if u == QPRE:
            for l in q_out_addr(): a(l)
            a(f'v_add_u32 v36, {32*ROWB}, v12')
            vm.issue('p', f'buffer_store_dwordx4 v[4:7], v12, s[52:55], 0 offen{ST}')
            vm.issue('p', f'buffer_store_dwordx4 v[4:7], v36, s[52:55], 0 offen{ST}')
            a('v_cmp_gt_u32 vcc, 15, v9\nv_mov_b32 v36, 0x7f000000\ns_nop 0\nv_cndmask_b32 v36, v36, v13, vcc')
            vm.issue('p', f'buffer_store_dwordx4 v[4:7], v36, s[52:55], 0 offen{ST}')
        q_issue(vm, u, False)
    kloop(a, vm, reads, mfmas, issue, lambda t: q_out_addr() if t == 16 and QPRE < 0 else [], walk=';WALK p 4 s16 0')
    a(';PAD p')
    stamp(a, 'loop')
    CS, SS, P = 36, 44, 48
    a(f'''
    s_barrier
    ds_read_b128 v[{CS}:{CS+3}], v14
    ds_read_b128 v[{CS+4}:{CS+7}], v14 offset:64
    ds_read_b64 v[{SS}:{SS+1}], v15
    ds_read_b64 v[{SS+2}:{SS+3}], v15 offset:128
    s_waitcnt lgkmcnt(1)
    ''')
    for i in range(2):
        if i: a('s_waitcnt lgkmcnt(0)')
        for r in range(8): a(f'v_fma_f32 v{ACC+8*i+r}, -v{SS+2*i}, v{CS+r}, v{ACC+8*i+r}')
        for r in range(8): a(f'v_mul_f32 v{ACC+8*i+r}, v{SS+2*i+1}, v{ACC+8*i+r}')
        for r in range(4): a(f'v_cvt_pk_bf16_f32 v{P+4*i+r}, v{ACC+8*i+2*r}, v{ACC+8*i+2*r+1}')
        a(f'ds_write_b64 v5, v[{P+4*i}:{P+4*i+1}] offset:{16*QROW*i}\nds_write_b64 v5, v[{P+4*i+2}:{P+4*i+3}] offset:{16*QROW*i+32}')
    a('s_branch L_q_out\n;PAD -')

def q_out_addr():
    return lines(f'''
    v_lshrrev_b32 v9, 3, v1
    v_and_b32 v10, 7, v1
    s_lshl_b32 s46, s16, 3
    v_add_u32 v9, s46, v9
    v_mul_u32_u24 v11, {QROW}, v9
    v_lshl_add_u32 v11, v10, 4, v11
    v_mul_u32_u24 v12, {ROWB}, v9
    v_lshl_add_u32 v12, v10, 4, v12
    s_mul_i32 s46, s20, {ROWB}
    s_lshl_b32 s47, s18, 7
    s_add_u32 s46, s46, s47
    v_add_u32 v12, s46, v12
    v_add_u32 v13, {64*ROWB}, v12
    s_mov_b32 s52, s6
    s_mov_b32 s53, s7
    s_mov_b32 s54, {SZ_Q}
    s_mov_b32 s55, 0x20000
    ''')

def q_out(a, done):
    a(f'''
L_q_out:
    ''')
    a(f'''
    s_waitcnt lgkmcnt(0)
    ''')
    STAMP(a, 'qw')
    a(f'''
    s_barrier
    ds_read_b128 v[4:7], v11
    ds_read_b128 v[16:19], v11 offset:{64*QROW}
    v_cmp_gt_u32 vcc, 15, v9
    s_waitcnt lgkmcnt(1)
    buffer_store_dwordx4 v[4:7], v12, s[52:55], 0 offen{ST}
    s_and_b64 exec, exec, vcc
    s_cbranch_execz L_q_out2
    s_waitcnt lgkmcnt(0)
    buffer_store_dwordx4 v[16:19], v13, s[52:55], 0 offen{ST}
L_q_out2:
    s_mov_b64 exec, -1
    v_mov_b32 v29, 0
    ''')
    done(a)
    a(';PAD -')

def q_small(a, stamp, done):
    ACC, GJ, G4, SJ, S4, ONE, IDX, TRA, XRA, XR4, WG = 16, 20, 24, 28, 32, 36, 40, 41, 42, 44, 56
    WB, XJ, X4 = 0, 12, 44
    vm = Vm(a)
    a(f'''
    s_sub_u32 s59, s16, 4
    s_lshl_b32 s24, s59, 1
    v_lshrrev_b32 v11, 1, v9
    v_add_u32 v11, s24, v11
    v_xor_b32 v11, v11, v10
    v_lshl_add_u32 v8, v11, 4, v5
    s_lshl_b32 s24, s59, 2
    s_add_u32 s24, s24, s20
    s_add_u32 s24, s24, 65
    s_mul_i32 s24, s24, {ROWB}
    {'s_add_u32 s24, s24, s57' if ROT else ''}
    s_lshl_b32 s25, s59, 9
    s_add_u32 s25, s25, {XOFF['q'] + 4*18432}
    s_cmp_eq_u32 s59, 3
    s_cselect_b32 s64, 0x00ffffff, -1
    s_mov_b32 s65, 0
    ''')
    q_first(a, vm, True)
    stamp(a, 'issued')
    a('v_and_b32 v2, 15, v1\nv_lshrrev_b32 v3, 4, v1')
    stat_consts(a, ONE, IDX, (SJ, S4))
    a(f'''
    s_mov_b32 s47, {XOFF["q"] + 4*18432}
    s_cmp_eq_u32 s59, 3
    s_cbranch_scc0 L_qs_noones
    v_lshlrev_b32 v12, 4, v10
    v_add_u32 v12, s47, v12
    v_lshl_add_u32 v13, v9, 11, v12
    ds_write_b128 v13, v[{ONE}:{ONE+3}] offset:1920
    ds_write_b128 v12, v[{ONE}:{ONE+3}] offset:{8*2048+1920}
    ''')
    a(f'''
    s_waitcnt lgkmcnt(0)
L_qs_noones:
    ''')
    x_read_addr(a, XR4, 47)
    a(f's_mul_i32 s47, s59, 18432\ns_add_u32 s47, s47, {XOFF["q"]}\ns_lshl_b32 s45, s59, 5')
    x_read_addr(a, XRA, 47)
    q_tra(a, TRA)
    a(f'''
    v_add_u32 v4, 64, v2
    v_mul_u32_u24 v5, {QROW}, v4
    v_lshl_add_u32 v5, v3, 3, v5
    v_add_u32 v5, s45, v5
    s_lshl_b32 s45, s59, 6
    s_add_u32 s45, s45, {EX_OFF}
    v_lshl_add_u32 v14, v3, 4, s45
    s_lshl_b32 s46, s59, 7
    s_add_u32 s46, s46, {EX_OFF + 256}
    v_lshl_add_u32 v15, v2, 3, s46
    ''')
    srd(a, 32, 6, 0, WS_USED)
    srd(a, 8, 12, 0, D * ROWB)
    def chores():
        a(f'''
        s_lshl_b32 s66, s26, 2
        s_add_u32 s66, s66, s59
        s_and_b32 s51, s66, 1
        s_lshr_b32 s54, s66, 1
        s_mul_i32 s55, s54, 57
        s_lshr_b32 s55, s55, 11
        s_mul_i32 s45, s55, 36
        s_sub_u32 s54, s54, s45
        s_cmp_ge_u32 s55, 8
        s_cselect_b32 s45, 144, 18
        s_cselect_b32 s46, 36, 4
        s_cselect_b32 s52, 288, 36
        s_cselect_b32 s53, 18, 2
        s_mul_i32 s52, s52, {ROWB}
        s_mul_i32 s53, s53, {ROWB}
        s_mul_i32 s47, s55, 72
        s_cselect_b32 s47, 16, s47
        s_mul_i32 s45, s45, s51
        s_add_u32 s47, s47, s45
        v_mul_u32_u24 v9, s46, v3
        v_add_u32 v9, s47, v9
        v_mul_u32_u24 v9, {ROWB}, v9
        v_lshl_add_u32 v9, v2, 1, v9
        s_lshl_b32 s54, s54, 5
        s_cmp_ge_u32 s66, 648
        s_cselect_b32 s54, 0x7f000000, s54
        v_add_u32 v9, s54, v9
        s_add_u32 s54, s52, s53
        ''')
        for j in range(2):
            for q, so in enumerate(('0', 's52', 's53', 's54')):
                vm.issue('g', f'buffer_load_ushort v{WG+4*j+q}, v9, s[8:11], {so} offen offset:{ROWB*j}{GP}')
    chores()
    def issue(u):
        q_issue(vm, u, True)
        if u == CLR_AT:
            for q in range(4): a(f'v_lshl_or_b32 v{WG+q}, v{WG+4+q}, 16, v{WG+q}')
            a(f's_lshl_b32 s45, s66, 10\ns_add_u32 s45, s45, {WS_WO}\ns_cmp_ge_u32 s66, 648\ns_cselect_b32 s45, 0x7f000000, s45\nv_lshl_add_u32 v72, v1, 4, s45')
            vm.issue('c', f'buffer_store_dwordx4 v[{WG}:{WG+3}], v72, s[32:35], 0 offen{ST}')
            clears(vm, 59, 64, 2)
            if TOUCH:
                a(f's_mul_i32 s46, s20, {ROWB}\nv_mov_b32 v72, 0\ns_mov_b32 s8, s4\ns_mov_b32 s9, s5\ns_mov_b32 s10, 4\ns_mov_b32 s11, 0x20000')
                vm.issue('c', 'buffer_load_dword v73, v72, s[32:35], s46 offen sc1')
                vm.issue('c', 'buffer_load_dword v74, v72, s[8:11], 0 offen sc1')
    lead = lambda t: [u for u in LEAD.get(t, [t + 4]) if u < 18]
    q0 = list(vm.q)
    def loop(both):
        vm.q = list(q0)
        def reads(t):
            w, o = WB + 4 * (t % 3), (t % 16) * 4096
            r4 = lambda u: ((u, '4'), f'ds_read_b128 a[{X4+4*(u%10)}:{X4+4*(u%10)+3}], v{XR4 + u % 2} offset:{(u // 2) * 2048}')
            r = []
            for u in lead(t):
                r.append(((u, 'j'), f'ds_read_b128 a[{XJ+4*(u%8)}:{XJ+4*(u%8)+3}], v{XRA + u % 2} offset:{(u // 2) * 2048}'))
                if both: r.append(r4(u))
            if not both: r.append(r4(t))
            return r + [((t, 'w'), f'ds_read_b64_tr_b16 a[{w}:{w+1}], v{TRA} offset:{o}'),
                        ((t, 'w'), f'ds_read_b64_tr_b16 a[{w+2}:{w+3}], v{TRA} offset:{o+512}')]
        def mfmas(t):
            m = []
            for u in lead(t):
                xj, x4 = XJ + 4 * (u % 8), X4 + 4 * (u % 10)
                if u % 2:
                    m.append(([(u, 'j')], smf16(SJ, vr(ONE, 4), ar(xj - 4, 8), IDX)))
                    if both: m.append(([(u, '4')], smf16(S4, vr(ONE, 4), ar(x4 - 4, 8), IDX)))
                m.append(([(u, 'j')], mf16(GJ, ar(xj, 4), ar(xj, 4), u == 0)))
                if both: m.append(([(u, '4')], mf16(G4, ar(x4, 4), ar(x4, 4), u == 0)))
            return m + [([(t, '4'), (t, 'w')], mf16(ACC, ar(WB + 4 * (t % 3), 4), ar(X4 + 4 * (t % 10), 4), t == 0))]
        if both:
            zip2 = lambda x, y: [z for p in zip(lines(x), lines(y)) for z in p if not z.startswith('s_nop')]
            f1, f2 = zip2(stats_raw(GJ, SJ, 47, 46, 48), stats_raw(G4, S4, 51, 50, 52)), zip2(stats_fin(47, 46, 48, CQ), stats_fin(51, 50, 52, CQ))
        else: f1, f2 = lines(stats_raw(GJ, SJ, 47, 46, 48)), lines(stats_fin(47, 46, 48, CQ))
        h = len(f2) // 2
        fin = {14: ['s_nop 6'] + f1, 15: f2[:h], 16: f2[h:]}
        fin[17] = ['s_mov_b64 exec, 0xffff\nds_write_b64 v15, v[46:47]\n' + ('ds_write_b64 v15, v[50:51] offset:128\n' if both else '') + 's_mov_b64 exec, -1']
        kloop(a, vm, reads, mfmas, issue, lambda t: fin.get(t, []))
    a('s_cmp_eq_u32 s59, 3\ns_cbranch_scc1 L_qs_both')
    loop(False)
    a('s_branch L_qs_join\nL_qs_both:')
    loop(True)
    a('L_qs_join:\n;PAD p')
    stamp(a, 'loop')
    a(f'''
    s_mov_b32 s48, 0x80008000
    s_mov_b32 s49, 0x80008000
    s_mov_b64 exec, s[48:49]
    s_nop 1
    ds_write_b128 v14, v[{ACC}:{ACC+3}]
    s_mov_b64 exec, -1
    s_mov_b32 s46, {EX_OFF + 256 + 512}
    v_lshl_add_u32 v15, v2, 3, s46
    s_waitcnt lgkmcnt(0)
    s_barrier
    ds_read_b64 v[50:51], v15
    ''')
    for l in q_out_addr(): a(l)
    for r in range(4): a(f'v_mov_b32_dpp v{52+r}, v{ACC+r} row_newbcast:15 row_mask:0xf bank_mask:0xf')
    a('s_waitcnt lgkmcnt(0)')
    for r in range(4): a(f'v_fma_f32 v{ACC+r}, -v50, v{52+r}, v{ACC+r}')
    for r in range(4): a(f'v_mul_f32 v{ACC+r}, v51, v{ACC+r}')
    a(f'''
    v_cvt_pk_bf16_f32 v52, v{ACC}, v{ACC+1}
    v_cvt_pk_bf16_f32 v53, v{ACC+2}, v{ACC+3}
    ds_write_b64 v5, v[52:53]
    ''')
    q_out(a, done)

def kv_tra(a, TRA):
    a(f'''
    v_bfe_u32 v12, v1, 2, 2
    v_and_b32 v13, 3, v1
    v_lshrrev_b32 v9, 1, v3
    v_lshlrev_b32 v9, 4, v9
    v_and_b32 v10, 1, v3
    v_lshl_add_u32 v9, v10, 2, v9
    v_add_u32 v9, v9, v12
    v_lshlrev_b32 v9, 5, v9
    v_lshl_add_u32 v{TRA}, v13, 3, v9
    v_lshl_add_u32 v9, v3, 3, v12
    v_lshlrev_b32 v9, 4, v9
    v_and_b32 v10, 1, v13
    v_lshl_add_u32 v9, v10, 3, v9
    v_lshrrev_b32 v10, 1, v13
    v_mul_u32_u24 v10, {KV_VE-KV_KE}, v10
    v_add_u32 v{TRA+1}, v9, v10
    ''')

def kv_out(a, done):
    a(f'''
    s_lshl_b32 s46, s16, 10
    v_lshl_add_u32 v8, v1, 4, s46
    s_mul_i32 s47, s17, {3*KVREC}
    v_add_u32 v9, s47, v8
    s_waitcnt lgkmcnt(0)
    s_barrier
    ds_read_b128 v[4:7], v8
    v_mov_b32 v10, {EX_OFF + 256}
    ds_read_b128 v[12:15], v10
    ds_read_b64 v[16:17], v10 offset:16
    s_mov_b32 s34, {64*KVREC}
    v_cmp_gt_u32 vcc, {3*KVREC}, v8
    s_and_b64 exec, exec, vcc
    s_cbranch_execz L_kv_out2
    s_waitcnt lgkmcnt(2)
    buffer_store_dwordx4 v[4:7], v9, s[32:35], 0 offen{ST}
L_kv_out2:
    s_mov_b64 exec, -1
    s_waitcnt lgkmcnt(0)
    v_max3_f32 v29, v12, v13, v14
    v_max3_f32 v29, v29, v15, v16
    v_max_f32 v29, v29, v17
    ''')
    done(a)

def kv_main(a, stamp, done):
    ACC, GR, SX, ONE, IDX, TRA, XRA = 16, 32, 36, 40, 44, 46, 48
    WB, XB = 0, 36
    vm = Vm(a)
    a(f'''
    v_lshrrev_b32 v9, 3, v1
    v_and_b32 v10, 7, v1
    v_lshrrev_b32 v11, 1, v9
    v_xor_b32 v11, v11, v10
    v_mul_u32_u24 v6, {ROWB}, v9
    v_lshl_add_u32 v6, v11, 4, v6
    v_xor_b32 v7, 64, v6
    v_add_u32 v7, {8*ROWB}, v7
    s_mul_i32 s20, s17, {TKV}
    s_lshl_b32 s21, s16, 4
    s_add_u32 s20, s20, s21
    s_add_u32 s23, s20, 1
    s_mul_i32 s23, s23, {ROWB}
    {"s_lshl_b32 s22, s18, 7" if ROT else ""}
    {"s_add_u32 s23, s23, s22" if ROT else ""}
    s_mul_i32 s21, s16, 18432
    s_add_u32 s21, s21, {XOFF['kv']}
    s_setprio 3
    s_waitcnt lgkmcnt(0)
    s_sub_u32 s28, s28, {ROWB}
    s_subb_u32 s29, s29, 0
    ''')
    def issue(u):
        if u > 8: return
        if ROT and u: a(f's_cmp_eq_u32 s19, {u}\ns_cselect_b32 s22, {ROWB}, 0\ns_sub_u32 s23, s23, s22')
        a(f's_add_u32 m0, s21, {u*2048 - u*128}\ns_nop 0')
        vm.issue(u, f'buffer_load_dwordx4 v6, s[28:31], s23 offen offset:{u*128}{XP} lds')
        a(f's_add_u32 m0, s21, {u*2048 + 1024 - u*128}\ns_nop 0')
        vm.issue(u, f'buffer_load_dwordx4 v7, s[28:31], s23 offen offset:{u*128}{XP} lds')
    issue(0)
    if CODEPF: code_pf(a)
    a('s_setprio 2'); issue(1); a('s_setprio 0')
    stamp(a, 'issued')
    a('v_and_b32 v2, 15, v1\nv_lshrrev_b32 v3, 4, v1')
    stat_consts(a, ONE, IDX, (SX,))
    x_read_addr(a, XRA, 21)
    kv_tra(a, TRA)
    srd(a, 32, 6, WS_KV, WS_WO - WS_KV)
    a(f'''
    s_mov_b32 s47, {EX_OFF}
    v_lshl_add_u32 v51, v3, 4, s47
    s_lshr_b32 s46, s16, 1
    s_mul_i32 s46, s46, {KVREC}
    s_and_b32 s47, s16, 1
    s_lshl_b32 s47, s47, 4
    v_add_u32 v4, s47, v2
    v_lshl_add_u32 v54, v4, 4, s46
    v_lshrrev_b32 v55, 1, v3
    v_lshl_add_u32 v54, v55, 9, v54
    v_and_b32 v55, 1, v3
    v_lshl_add_u32 v54, v55, 3, v54
    v_lshrrev_b32 v55, 3, v4
    v_mul_u32_u24 v55, {VG}, v55
    v_add_u32 v55, s46, v55
    v_and_b32 v56, 7, v4
    v_lshl_add_u32 v55, v56, 1, v55
    v_lshl_add_u32 v57, v3, 6, v55
    v_lshl_add_u32 v58, v4, 2, s46
    ''')
    def reads(t):
        w, o = WB + 12 * (t % 3), (t % 16) * 1024
        return [((t, 'x'), f'ds_read_b128 a[{XB+4*(t%4)}:{XB+4*(t%4)+3}], v{XRA + t % 2} offset:{(t // 2) * 2048}'),
                ((t, 0), f'ds_read_b64_tr_b16 a[{w}:{w+1}], v{TRA} offset:{o}'),
                ((t, 0), f'ds_read_b64_tr_b16 a[{w+2}:{w+3}], v{TRA} offset:{o+256}'),
                ((t, 1), f'ds_read_b64_tr_b16 a[{w+4}:{w+5}], v{TRA} offset:{KV_VM+o}'),
                ((t, 1), f'ds_read_b64_tr_b16 a[{w+6}:{w+7}], v{TRA} offset:{KV_VM+o+256}'),
                ((t, 2), f'ds_read_b64_tr_b16 a[{w+8}:{w+9}], v{TRA+1} offset:{KV_KE+t*512}'),
                ((t, 2), f'ds_read_b64_tr_b16 a[{w+10}:{w+11}], v{TRA+1} offset:{KV_KE+t*512+64}')]
    def mfmas(t):
        w, x = WB + 12 * (t % 3), XB + 4 * (t % 4)
        m = [([(t, 'x')], smf16(SX, vr(ONE, 4), ar(x - 4, 8), IDX))] if t % 2 else []
        m += [([(t, 'x')], mf16(GR, ar(x, 4), ar(x, 4), t == 0))]
        return m + [([(t, 'x'), (t, j)], mf16(ACC + 4 * j, ar(w + 4 * j, 4), ar(x, 4), t == 0)) for j in range(3)]
    kloop(a, vm, reads, mfmas, issue, walk=';WALK k 4 s16 0')
    a(';PAD k')
    stamp(a, 'loop')
    a('s_nop 4')
    a(stats_raw(GR, SX, 48, 50, 49))
    a(stats_fin(48, 50, 49, 1.0))
    a('s_barrier')
    CS, P = 60, 72
    for j in range(3): a(f'ds_read_b128 v[{CS+4*j}:{CS+4*j+3}], v51 offset:{64*j}')
    a('s_mov_b32 s48, 0xffff0000\ns_mov_b32 s49, 0\ns_mov_b32 s50, 0\ns_mov_b32 s51, 0xffff0000')
    for j in range(3):
        a(f's_waitcnt lgkmcnt({2-j})')
        for i in range(4 * j, 4 * j + 4): a(f'v_fma_f32 v{ACC+i}, -v50, v{CS+i}, v{ACC+i}')
    for i in range(12): a(f'v_mul_f32 v{ACC+i}, v48, v{ACC+i}')
    for i in range(6): a(f'v_cvt_pk_bf16_f32 v{P+i}, v{ACC+2*i}, v{ACC+2*i+1}')
    a(f'''
    ds_write_b64 v54, v[{P}:{P+1}]
    ds_write_b16 v57, v{P+2} offset:{KV_V}
    ds_write_b16_d16_hi v57, v{P+2} offset:{KV_V+16}
    ds_write_b16 v57, v{P+3} offset:{KV_V+32}
    ds_write_b16_d16_hi v57, v{P+3} offset:{KV_V+48}
    s_mov_b64 exec, s[48:49]
    ds_write_b32 v58, v{P+5} offset:{KV_X}
    s_mov_b64 exec, s[50:51]
    ds_write_b16 v55, v{P+5} offset:{KV_V+256}
    ds_write_b16_d16_hi v55, v{P+5} offset:{KV_V+272}
    s_mov_b64 exec, -1
    v_cndmask_b32 v60, 0, v{P+5}, s[48:49]
    v_mov_b32 v61, 0
    v_dot2c_f32_bf16 v61, v{P}, v{P}
    v_dot2c_f32_bf16 v61, v{P+1}, v{P+1}
    v_dot2c_f32_bf16 v61, v60, v60
    s_nop 2
    v_mov_b32 v62, v61
    s_nop 1
    v_permlane32_swap_b32 v61, v62
    v_add_f32 v61, v61, v62
    v_mov_b32 v62, v61
    s_nop 1
    v_permlane16_swap_b32 v61, v62
    v_add_f32 v61, v61, v62
    s_nop 1
    v_max_f32_dpp v61, v61, v61 row_ror:8 row_mask:0xf bank_mask:0xf
    s_nop 1
    v_max_f32_dpp v61, v61, v61 row_ror:4 row_mask:0xf bank_mask:0xf
    s_nop 1
    v_max_f32_dpp v61, v61, v61 row_ror:2 row_mask:0xf bank_mask:0xf
    s_nop 1
    v_max_f32_dpp v61, v61, v61 row_ror:1 row_mask:0xf bank_mask:0xf
    s_lshl_b32 s46, s16, 2
    s_add_u32 s46, s46, {EX_OFF + 256}
    v_mov_b32 v62, s46
    ds_write_b32 v62, v61
    s_branch L_kv_out
;PAD -
    ''')

def kv_helper(a, stamp, done):
    ACC, ONE, TRA, WB = 16, 24, 28, 0
    vm = Vm(a)
    a(f'''
    s_sub_u32 s23, s16, 6
    v_lshrrev_b32 v2, 1, v1
    v_and_b32 v3, 0x13, v2
    v_bfe_u32 v4, v2, 2, 1
    v_bfe_u32 v5, v2, 3, 1
    v_lshl_add_u32 v3, v4, 3, v3
    v_lshl_add_u32 v3, v5, 2, v3
    v_mul_u32_u24 v3, 36, v3
    v_and_b32 v4, 1, v1
    v_lshl_add_u32 v6, v4, 4, v3
    v_mul_u32_u24 v7, 36, v1
    v_add_u32 v7, 20, v7
    {f's_mul_i32 s22, s18, {2*ROWB}' if ROT else 's_mov_b32 s22, 0'}
    s_mul_i32 s20, s23, {KV_VM}
    s_mul_i32 s21, s23, {KV_VE-KV_KE}
    s_add_u32 s21, s21, {KV_KE}
    s_setprio 3
    s_waitcnt lgkmcnt(0)
    s_cmp_eq_u32 s23, 0
    s_cselect_b32 s28, s8, s10
    s_cselect_b32 s29, s9, s11
    s_mov_b32 s30, {D*36}
    s_mov_b32 s31, 0x20000
    ''')
    def issue(u):
        if u == CLR_AT:
            clears(vm, 23, 32, 0)
            if TOUCH:
                a(f'v_mov_b32 v40, 0\ns_mov_b32 s8, s4\ns_mov_b32 s9, s5\ns_mov_b32 s10, 4\ns_mov_b32 s11, 0x20000\ns_mov_b32 s46, {WS_KV}')
                vm.issue('c', 'buffer_load_dword v41, v40, s[32:35], s46 offen sc1')
                vm.issue('c', 'buffer_load_dword v42, v40, s[8:11], 0 offen sc1')
        if u > 8: return
        a(f's_add_u32 m0, s21, {u*1024}\ns_nop 0')
        vm.issue(u, 'buffer_load_dwordx4 v7, s[28:31], s22 offen lds')
        a(f's_add_u32 m0, s20, {(u%8)*2048}\ns_nop 0')
        vm.issue(u, 'buffer_load_dwordx4 v6, s[28:31], s22 offen lds')
        a(f's_add_u32 m0, s20, {(u%8)*2048+1024}\ns_add_u32 s22, s22, {ROWB}')
        vm.issue(u, f'buffer_load_dwordx4 v6, s[28:31], s22 offen lds')
        if u < 8:
            a(f's_add_u32 s22, s22, {ROWB}')
            if ROT: a(f's_cmp_eq_u32 s19, {u+1}\ns_cselect_b32 s22, 0, s22')
    issue(0); a('s_setprio 2'); issue(1); a('s_setprio 0')
    a(f'''
    s_cmp_eq_u32 s26, 255
    s_cselect_b32 s46, s23, 0
    s_cmp_eq_u32 s46, 1
    s_cbranch_scc0 L_notag
    s_add_u32 s32, s6, {WS_NONCE}
    s_addc_u32 s33, s7, 0
    s_load_dword s46, s[32:33], 0
    s_mov_b32 s34, 4
    s_mov_b32 s35, 0x20000
    s_mov_b32 s8, s4
    s_mov_b32 s9, s5
    s_mov_b32 s10, 4
    s_mov_b32 s11, 0x20000
    v_mov_b32 v13, 0
    s_waitcnt lgkmcnt(0)
    s_add_u32 s46, s46, 1
    s_add_u32 s47, s46, 1
    s_cmp_lt_u32 s47, 2
    s_cselect_b32 s46, 1, s46
    v_mov_b32 v12, s46
    s_mov_b64 exec, 1
    buffer_store_dword v12, v13, s[8:11], 0 offen sc1
    buffer_store_dword v12, v13, s[32:35], 0 offen sc1
    s_mov_b64 exec, -1
L_notag:
    ''')
    srd(a, 32, 6, 0, WS_USED)
    a('v_lshrrev_b32 v3, 4, v1')
    kv_tra(a, TRA)
    a(f'v_add_u32 v{TRA}, s20, v{TRA}')
    for i in range(4): a(f'v_mov_b32 v{ONE+i}, {hx(ONES)}')
    def reads(t):
        w, o = WB + 8 * (t % 3), (t % 16) * 1024
        return [((t, 0), f'ds_read_b64_tr_b16 a[{w}:{w+1}], v{TRA} offset:{o}'),
                ((t, 0), f'ds_read_b64_tr_b16 a[{w+2}:{w+3}], v{TRA} offset:{o+256}'),
                ((t, 1), f'ds_read_b64_tr_b16 a[{w+4}:{w+5}], v{TRA+1} offset:{KV_KE+t*512}'),
                ((t, 1), f'ds_read_b64_tr_b16 a[{w+6}:{w+7}], v{TRA+1} offset:{KV_KE+t*512+64}')]
    def mfmas(t):
        w = WB + 8 * (t % 3)
        return [([(t, j)], mf16(ACC + 4 * j, ar(w + 4 * j, 4), vr(ONE, 4), t == 0)) for j in range(2)]
    kloop(a, vm, reads, mfmas, issue)
    a(f'''
    s_lshl_b32 s46, s23, 6
    s_add_u32 s46, s46, {EX_OFF}
    v_lshl_add_u32 v8, v3, 4, s46
    s_mov_b32 s46, {EX_OFF + 128}
    v_lshl_add_u32 v9, v3, 4, s46
    s_mov_b32 s48, 0x00010001
    s_mov_b32 s49, 0x00010001
    s_mov_b64 exec, s[48:49]
    s_nop 1
    ds_write_b128 v8, v[{ACC}:{ACC+3}]
    ds_write_b128 v9, v[{ACC+4}:{ACC+7}]
    s_mov_b64 exec, -1
    s_waitcnt lgkmcnt(0)
    s_barrier
    ''')
    srd(a, 32, 6, WS_KV, WS_WO - WS_KV)
    a('L_kv_out:\n;PAD k')
    kv_out(a, done)
    a(';PAD -')

def decode(a, rotate):
    a(f'''
    v_lshrrev_b32 v2, 6, v0
    v_and_b32 v1, 63, v0
    s_and_b32 s20, s2, 7
    v_readfirstlane_b32 s16, v2
    s_lshr_b32 s21, s2, 3
    s_cmp_lt_u32 s16, 4
    s_cbranch_scc1 L_older
    s_setprio 1
L_older:
    s_mul_i32 s22, s20, 29
    s_mul_i32 s23, s20, 3
    s_cmp_eq_u32 s20, 7
    s_cselect_b32 s24, 1, 0
    s_add_u32 s22, s22, s24
    s_sub_u32 s23, s23, s24
    s_cmp_ge_u32 s20, 6
    s_cselect_b32 s24, 30, 29
    s_cmp_ge_u32 s21, s24
    s_cbranch_scc1 L_k1_kv
    ''')
    if MAP2:
        a('''
        s_lshr_b32 s22, s20, 1
        s_mul_i32 s22, s22, 29
        s_add_u32 s22, s22, s21
        s_and_b32 s20, s20, 1
        s_mul_i32 s26, s20, 117
        s_add_u32 s26, s26, s22
        s_mul_i32 s17, s22, 57
        s_lshr_b32 s17, s17, 9
        s_mul_i32 s18, s17, 9
        s_sub_u32 s18, s22, s18
        s_lshl_b32 s17, s17, 1
        s_sub_u32 s22, 5, s20
        s_cmp_ge_u32 s18, s22
        s_addc_u32 s17, s17, 0
        s_cmp_ge_u32 s18, s22
        s_cselect_b32 s22, -5, 0
        s_mul_i32 s20, s20, 5
        s_add_u32 s18, s18, s22
        s_add_u32 s18, s18, s20
        ''')
    else:
        a('''
        s_add_u32 s26, s22, s21
        s_mul_i32 s17, s26, 57
        s_lshr_b32 s17, s17, 9
        s_mul_i32 s18, s17, 9
        s_sub_u32 s18, s26, s18
        ''')

def phase1(a, rotate, stamp, done):
    global STAMP
    STAMP = stamp
    decode(a, rotate)
    q_common(a)
    a('s_cmp_ge_u32 s16, 4\ns_cbranch_scc1 L_k1_qs')
    q_big(a, stamp, done)
    a('L_k1_qs:')
    q_small(a, stamp, done)
    a('L_k1_kv:\ns_sub_u32 s17, s21, s24\ns_add_u32 s17, s17, s23\ns_add_u32 s26, s17, 234')
    a('s_sub_u32 s19, s21, s24\ns_mul_i32 s18, s19, 3\ns_sub_u32 s19, 9, s18')
    a('s_cmp_ge_u32 s16, 6\ns_cbranch_scc1 L_k1_hkv')
    kv_main(a, stamp, done)
    a('L_k1_hkv:')
    kv_helper(a, stamp, done)

def entry(a, stamp, exit_label):
    PFN[0] = 0
    a(f'''
L_entry:
    s_cmp_ge_u32 s2, 256
    s_cbranch_scc1 {exit_label}
    s_load_dwordx2 s[28:29], s[0:1], {KA_X}
    s_load_dwordx2 s[60:61], s[0:1], {KA_WQ}
    s_load_dwordx4 s[8:11], s[0:1], {KA_WK}
    s_load_dwordx2 s[12:13], s[0:1], {KA_WO}
    s_load_dwordx4 s[4:7], s[0:1], {KA_DBG}
    s_mov_b32 s30, {(S+1)*ROWB}
    s_mov_b32 s31, 0x20000
    s_mov_b32 s62, {D*ROWB}
    s_mov_b32 s63, 0x20000
    ''')
    stamp(a, 'start')

def diag(t):
    out = []
    for l in t.split('\n'):
        s = l.strip()
        if 'nomfma' in DIAG and 'mfma' in s: continue
        if 'nostat' in DIAG and ('smfmac_f32_16' in s and s.endswith(('v40', 'v44')) or ('mfma_f32_16x16x32' in s and s.split(', ')[1] == s.split(', ')[2])): continue
        if 'nostat4' in DIAG and (s.startswith('v_smfmac_f32_16x16x64_bf16 v[32:35], v[36') or s.startswith('v_mfma_f32_16x16x32_bf16 v[24:27], a[') and s.split(', ')[1] == s.split(', ')[2]): continue
        if 'nolgkm' in DIAG and s.startswith('s_waitcnt lgkmcnt') and not s.endswith('(0)'): continue
        if 'nord' in DIAG and s.startswith('ds_read') and ' a[' in s: continue
        if 'nodma' in DIAG and s.endswith('lds'): continue
        out.append(l)
    return '\n'.join(out)

def k1(name, rotate=True, stamp=nomark):
    a = Asm()
    a(f'.globl {name}\n.p2align 8\n.type {name},@function\n{name}:')
    entry(a, stamp, 'L_k1_exit')
    def done(a):
        stamp(a, 'end'); a('s_endpgm')
    phase1(a, rotate, stamp, done)
    a('L_k1_exit:\ns_endpgm')
    return diag(a.text())
```

```python
from common import *

LG, LU, LD = 0, 36864, 73728
LP = 110592
LO = LP + 20480
LQ = LO + 9 * 1152
LDUM = LQ + 8 * 2048
LX = LDUM + 1024
X_FLAG, X_KEY, X_WIN, X_G, X_ACT, X_MAX, X_PMAX = LX, LX + 32, LX + 64, LX + 128, LX + 640, LX + 1152, LP
K2_LDS = LX + 2304
HROW = 2560
LQR = LP
ONES = 0x3f803f80
M_LIMIT = 48.0
SHIFT16 = 0xc240
SPIN = 40000
POLL_SLEEP, FIN_SLEEP, FIN_SLEEP2 = 3, 28, 2

SA, SB, OACC, T = 0, 16, 32, 52
IDXA, IDXB, WAD, RAD, OAD, OST, AAD, L16, QAD, GUV, MV, LANE, WAD3, QXAD = 68, 69, 70, 71, 72, 73, 74, 75, 76, 77, 78, 79, 80, 81
NV = 84
KM, KX, VV, OO, WO, QM, QX, AF = 0, 32, 40, 104, 120, 160, 164, 168
NA = 172
S_WS, S_G, S_U, S_D, S_X, S_OUT, S_WR = 20, 24, 28, 32, 36, 40, 44
WAVE, S_FS, S_WOC, S_MG, S_MU, S_MD, S_MST, S_GOFF, S_DOFF, S_CNT, S_NT0 = 18, 19, 48, 49, 50, 51, 52, 53, 54, 55, 56
S_DST = 57
DIAG = set()
LDP = ' sc1'
FUSED = False
WOP = ' sc1'
QKORD = 0
PRIO = (3, 1, 0, 3, 3, 2, 1, 1)
MIDP5 = {1: (8, 2), 0: (10, 0)}
PRIO4, MIDP4 = (3, 2, 1, 3, 3, 2, 1, 1), {3: (12, 0), 0: (10, 0)}
SPEC = 0
DEFER = 0
KVS = {-1: [2], 0: [3], 1: [4], 2: [5], 3: [6], 4: [7]}
F0AT = ((5, 12), (6, 1), (6, 8), (7, 1), (7, 15))
KVPOS = (1, 5, 9, 13)
QTOUCH = 0
POLL_AT = 0
RED4 = 1
WARMN = 0
RPOS, APOS, NPOS = (1, 5, 8, 12), (1, 3, 5, 7, 9, 11, 13), (0, 2, 4, 5, 7)
RTOUCH = 0
FPOLL_FIRST, KPOLL_F2, POLL_FIRST = 5, 6, 0
FFP = (' nt', ' nt', ' nt')
DMAT = ((0, 14), (1, 14), (2, 14))
SPLIT = 1
WALK = 0
TOUCH = 0
OUTP = ''
LATE = 0
ALIGN = 3
KPOLL_SLEEP, KPOLL_FIRST, FPOLL_SLEEP = 3, 8, 4
ROTF = 0x30003
PRE = (2, 1, 1)

def qk8(Y, slot, c): return f'v_mfma_f32_32x32x8bf16_1k v[{Y}:{Y+15}], a[{KX+(slot&~1)}:{KX+(slot&~1)+1}], a[{QX+2*(slot&1)}:{QX+2*(slot&1)+1}], {c}'
def qk16(Y, slot, c): return f'v_mfma_f32_32x32x16_bf16 v[{Y}:{Y+15}], a[{KM+4*slot}:{KM+4*slot+3}], a[{QM}:{QM+3}], {c}'
def qkx(Y, slot): return (qk16 if QKORD else qk8)(Y, slot, '0')
def qkm(Y, slot): return (qk8 if QKORD else qk16)(Y, slot, f'v[{Y}:{Y+15}]')
def pv(X, slot, s): return f'v_smfmac_f32_32x32x32_bf16 a[{OO}:{OO+15}], a[{VV+8*slot+4*s}:{VV+8*slot+4*s+3}], v[{X+8*s}:{X+8*s+7}], v{IDXA}'
def zero_o(): return f'v_mfma_f32_32x32x8bf16_1k a[{OO}:{OO+15}], a[{QX}:{QX+1}], a[{QX+2}:{QX+3}], 0'
def oproj(f, af, w): return f'v_smfmac_f32_16x16x64_bf16 v[{OACC+4*f}:{OACC+4*f+3}], a[{af}:{af+3}], a[{w}:{w+7}], v{IDXB}'
W_PART = [f'ds_write_b128 v{WAD}, a[{OO}:{OO+3}]', f'ds_write_b128 v{WAD}, a[{OO+4}:{OO+7}] offset:32', f'ds_write_b64 v{WAD3}, a[{OO+8}:{OO+9}]']
R_PART = [f'ds_read2st64_b64 v[{T+4*i}:{T+4*i+3}], v{RAD} offset0:{10*i} offset1:{10*i+5}' for i in range(4)]
def pka(d, x, y): return f'v_add_f32 v{T+d}, v{T+x}, v{T+y}\nv_add_f32 v{T+d+1}, v{T+x+1}, v{T+y+1}'
ADDS = [pka(0, 0, 2), pka(4, 4, 6), pka(8, 8, 10), pka(12, 12, 14), pka(0, 0, 4), pka(8, 8, 12), pka(0, 0, 8)]
NORM = [f'v_rcp_f32_dpp v{T+2}, v{T} row_newbcast:9 row_mask:0xf bank_mask:0xf',
        f'v_mul_f32 v{T}, v{T}, v{T+2}\nv_mul_f32 v{T+1}, v{T+1}, v{T+2}',
        f'v_cvt_pk_bf16_f32 v{T+4}, v{T}, v{T+1}',
        f'ds_write_b32 v{OAD}, v{T+4}',
        f'v_add_u32 v{OAD}, v{OST}, v{OAD}']

RA2, RAX, OA2, OAX, XS_, XR_ = OACC + 16, OACC + 17, OACC + 18, OACC + 19, QXAD, OST
def red4():
    ad = lambda d, x, y: f'v_add_f32 v{d}, v{x}, v{y}'
    rx = lambda i: f'ds_read2st64_b32 v[{T+2*i}:{T+2*i+1}], v{RAX} offset0:{20*i} offset1:{20*i+10}'
    rm = lambda r, i: f'ds_read2st64_b64 v[{r}:{r+3}], v{RA2} offset0:{10*i} offset1:{10*i+5}'
    pa = lambda d, x, y: ad(d, x, y) + '\n' + ad(d + 1, x + 1, y + 1)
    return {1: {1: rx(0), 3: rx(1), 5: rx(2), 7: rx(3), 9: rm(T + 8, 0), 11: rm(T + 12, 1),
                13: 's_waitcnt lgkmcnt(2)\n' + ad(T, T, T + 1) + '\n' + ad(T + 2, T + 2, T + 3), 14: ad(T + 4, T + 4, T + 5) + '\n' + ad(T + 6, T + 6, T + 7),
                15: ad(T, T, T + 2) + '\n' + ad(T + 4, T + 4, T + 6)},
            2: {1: ad(XS_, T, T + 4), 2: rm(T, 2), 3: rm(T + 4, 3), 4: f'v_rcp_f32_dpp v{XR_}, v{XS_} quad_perm:[2,2,2,2] row_mask:0xf bank_mask:0xf',
                5: 's_waitcnt lgkmcnt(2)\n' + pa(T + 8, T + 8, T + 10), 7: pa(T + 12, T + 12, T + 14), 8: f'v_mul_f32 v{XS_}, v{XS_}, v{XR_}',
                9: pa(T + 8, T + 8, T + 12), 11: f'v_cvt_pk_bf16_f32 v{XS_}, v{XS_}, v{XS_}', 12: 's_waitcnt lgkmcnt(0)\n' + pa(T, T, T + 2),
                13: f'ds_write_b16 v{OAX}, v{XS_}', 15: pa(T + 4, T + 4, T + 6)},
            3: {0: pa(T, T, T + 4), 2: pa(T, T, T + 8), 4: f'v_mul_f32 v{T}, v{T}, v{XR_}\nv_mul_f32 v{T+1}, v{T+1}, v{XR_}',
                5: f'v_cvt_pk_bf16_f32 v{T+4}, v{T}, v{T+1}', 7: f'ds_write_b32 v{OA2}, v{T+4}', 8: f'v_add_u32 v{OAX}, 16, v{OAX}', 9: f'v_add_u32 v{OA2}, 1152, v{OA2}'}}

def tile(a, t, ex, slow, prev=True, nxt=True, kind='std', x16=None, x16b=None):
    X, Y = (SA, SB) if t % 2 == 0 else (SB, SA)
    m = {}
    def put(p, s): m.setdefault(p, []).append(s)
    p_pvb, p_x, p_qx, p_qm, p_pva = 2, 5, 6, 10, 14
    if kind == 'first': p_qx, p_qm, p_pva = 5, 9, 16
    if kind == 'second':
        p_pvb = 3
        if x16: p_x, p_qx, p_qm = 6, 7, 11
    if prev: put(p_pvb, pv(Y, (t - 1) % 8, 1))
    if x16:
        for s in x16: put(p_x, s)
    if x16b:
        for s in x16b: put(13, s)
    if nxt:
        put(p_qx, ('qx', qkx(Y, (t + 1) % 8))); put(p_qm, qkm(Y, (t + 1) % 8))
    if kind == 'first':
        for s in W_PART: put(p_qm, s)
        put(12, zero_o())
    put(p_pva, ('pa', pv(X, t, 0)))
    for p in range(17):
        for s in m.get(p, []):
            if isinstance(s, tuple):
                for e in ex.get(s[0], []): e() if callable(e) else a(e)
                s = s[1]
            s() if callable(s) else a(s)
        for e in ex.get(p, []): e() if callable(e) else a(e)
        if p < 16:
            if slow: a(f'v_sub_f32 v{X+p}, v{X+p}, v{MV}')
            a(f'v_exp_f32 v{X+p}, v{X+p}')

def wo_load(vm, tag, reg, soff_add):
    def th():
        vm.a(f's_add_u32 s58, s{S_WOC}, {soff_add}')
        vm.issue(tag, f'buffer_load_dwordx4 a[{reg}:{reg+3}], v{L16}, s[{S_WS}:{S_WS+3}], s58 offen{WOP}')
        vm.issue(tag, f'buffer_load_dwordx4 a[{reg+4}:{reg+7}], v{L16}, s[{S_WS}:{S_WS+3}], s58 offen offset:1024{WOP}')
    return th

def q_reads(slow):
    r = [f'ds_read_b128 a[{QM}:{QM+3}], v{QAD}', f'ds_read_b128 a[{QX}:{QX+3}], v{QAD} offset:1024', f'v_add_u32 v{QAD}, 2048, v{QAD}']
    return r

STEP = 36 * 2048
def attention(a, n, slow, lab, vm, stamp, pre):
    prio = dict(zip((1, 2, 3, 4, 5, 6, 7, 0), PRIO if n == 5 or not PRIO4 else PRIO4))
    MIDP = MIDP5 if n == 5 or not PRIO4 else MIDP4
    def mload():
        return [f'ds_read_b32 v{T+15}, v82', 's_waitcnt lgkmcnt(0)', 'v_add_u32 v82, 128, v82'] if slow else []
    a('s_waitcnt lgkmcnt(0)')
    vm.need('km0')
    a(qkx(SA, 0)); a(qkm(SA, 0)); a(zero_o())
    if slow:
        a(f'ds_read_b32 v{MV}, v82\nv_add_u32 v82, 128, v82\ns_waitcnt lgkmcnt(0)')
    a('s_nop 3')
    for t in range(8):
        ex = {0: [f's_setprio {prio[t]}']}
        if t < 7: ex['qx'] = [lambda t=t: vm.need(f'km{t+1}')]
        ex['pa'] = [lambda t=t: vm.need(f'v{t}')]
        if not slow:
            sl = [(u, q) for u in KVS.get(t, []) for q in range(4)]
            for k, (u, q) in enumerate(sl): ex.setdefault(1 + k * 15 // len(sl), []).append(lambda u=u, q=q: kv_load(vm, u, q))
        if t == 5:
            for q in range(WARMN): ex[1 + 3 * q] = [lambda q=q: warm(vm, q)]
            def touch():
                a(f's_lshl_b32 s58, s2, 3\ns_mul_i32 s58, s58, {ROWB}')
                vm.issue('t', f'buffer_load_dword a{WO+4}, v{T+14}, s[{S_WR}:{S_WR+3}], 0 offen')
                vm.issue('t', f'buffer_load_dword a{WO+5}, v{T+14}, s[{S_OUT}:{S_OUT+3}], s58 offen')
            if TOUCH: ex[10] = [touch]
        for f, (tt, pp) in enumerate(F0AT[:n]):
            if tt == t: ex.setdefault(pp, []).append(wo_load(vm, 'f', WO + 8 * f, f * 2048))
        if not slow:
            for p, x in own_slice().get(t, {}).items(): ex.setdefault(p, []).append(x)
        if t == 6: ex[11] = q_reads(slow)
        if t == 7:
            ex['qx'] = ['s_waitcnt lgkmcnt(0)']
            ex[11] = mload()
            ex[16] = [f's_add_u32 s{S_WOC}, s{S_WOC}, {STEP}']
            for q in range(len([x for x in DMAT if x[0] > 4])): ex[16].append(lambda: vm.issue('pad', f'buffer_load_dword a{AF}, v{T+14}, s[{S_WR}:{S_WR+3}], 0 offen'))
        tile(a, t, ex, slow, prev=t > 0)
        if t == 7 and slow: a(f'v_mov_b32 v{MV}, v{T+15}')
    stamp(a, 's0')
    def dma(q):
        srdr, off, vo, so = ((S_G, LG, GUV, S_GOFF), (S_U, LU, GUV, S_GOFF), (S_D, LD, L16, S_DOFF))[q]
        r = [f's_add_u32 m0, s{S_MG}, {off}', 's_nop 0', f'buffer_load_dwordx4 v{vo}, s[{srdr}:{srdr+3}], s{so} offen{FFP[q]} lds']
        return r + [[], [f's_add_u32 s{S_GOFF}, s{S_GOFF}, {6*16*F*2}'], [f's_add_u32 s{S_MG}, s{S_MG}, 6144', f's_add_u32 s{S_DOFF}, s{S_DOFF}, 6144']][q]
    use = {4: [0], 5: [1], 6: [2], 7: [3, 4][:n - 3]}
    def body(last, xfer=False):
        lv = Vm(a)
        nvm = 2 * n - 2 + (3 if xfer else 0)
        if last:
            lv.q = [f'f{f}' for f in range(n) for _ in range(2)]
            free = {1: [KM, VV], 2: [VV + 8], 3: [KM + 8, VV + 16]}
            todo = [(8, f) for f in range(n)]
            where = {}
        for t in range(8):
            ex = {0: [f's_setprio {prio[t]}']}
            if t in MIDP: ex[MIDP[t][0]] = [f's_setprio {MIDP[t][1]}']
            x16, x16b = None, None
            for q, f in enumerate(use.get(t, [])):
                wait = (lambda f=f: lv.need(f'f{f}')) if last else f's_waitcnt vmcnt({nvm})'
                item = [wait, oproj(f, AF, WO + 8 * f)]
                if t == 4: item = ['s_waitcnt lgkmcnt(0)'] + item
                if q == 0 and t != 4: x16 = item
                else: x16b = item
                ex.setdefault(8 if (q == 0 and t != 4) else 15, []).append(wo_load(lv, f'f{f}', WO + 8 * f, f * 2048))
            if t == 0:
                ex[16] = ['s_waitcnt lgkmcnt(0)', 's_barrier']
            if RED4:
                if n == 4:
                    for p, x in red4().get(t, {}).items(): ex.setdefault(p, []).append(x)
            elif t == 1:
                for i, p in enumerate(RPOS): ex.setdefault(p, []).append(R_PART[i])
            elif t == 2:
                ex.setdefault(1, []).append('s_waitcnt lgkmcnt(0)')
                for i, p in enumerate(APOS): ex.setdefault(p, []).append(ADDS[i])
            elif t == 3:
                for i, p in enumerate(NPOS): ex.setdefault(p, []).append(NORM[i])
            if t == 3:
                ex[16] = ['s_waitcnt lgkmcnt(0)', 's_barrier']
            for q, (tt, pp) in enumerate(DMAT):
                if xfer and t == tt: ex.setdefault(pp, []).extend(dma(q))
            if t == 4:
                ex.setdefault(1, []).extend([f'ds_read_b128 a[{AF}:{AF+3}], v{AAD}', f'v_add_u32 v{AAD}, 1152, v{AAD}'])
            if t == 6 and not last: ex[11] = q_reads(slow)
            if t == 7 and not last:
                ex['qx'] = ['s_waitcnt lgkmcnt(0)']
                ex[11] = mload()
                ex[16] = [f's_add_u32 s{S_WOC}, s{S_WOC}, {STEP}', f's_sub_u32 s{S_CNT}, s{S_CNT}, 1', f's_cmp_lg_u32 s{S_CNT}, 0']
            if last:
                for i, reg in enumerate(free.get(t, [])):
                    if todo:
                        st, f = todo.pop(0); where[(st, f)] = reg
                        ex.setdefault(11 + 3 * i, []).append(wo_load(lv, f's{st}f{f}', reg, f * 2048 + STEP))
                if t == 7:
                    def rows():
                        lv.issue('x', f'buffer_load_dwordx4 v[0:3], v{L16}, s[{S_X}:{S_X+3}], s59 offen')
                        lv.issue('x', f'buffer_load_dword v4, v82, s[{S_X}:{S_X+3}], s59 offen offset:1024')
                        lv.issue('w', f'buffer_load_dwordx4 v[6:9], v{L16}, s[{S_WR}:{S_WR+3}], 0 offen')
                        lv.issue('w', f'buffer_load_dword v10, v82, s[{S_WR}:{S_WR+3}], 0 offen offset:1024')
                    ex[3] = [f'v_lshlrev_b32 v82, 2, v{LANE}', f's_lshl_b32 s59, s2, 3', f's_add_u32 s59, s59, s{WAVE}', f's_mul_i32 s59, s59, {ROWB}', rows]
            tile(a, t, ex, slow, nxt=not (last and t == 7), kind={0: 'first', 1: 'second'}.get(t, 'std'), x16=x16, x16b=x16b)
            if t == 7 and slow and not last: a(f'v_mov_b32 v{MV}, v{T+15}')
        if last:
            assert not todo
            return lv, where
    a(f's_mov_b32 s{S_CNT}, 6\ns_cmp_eq_u32 s{S_MST}, 0\ns_cbranch_scc1 {lab}n_loop\n.p2align {ALIGN}\n{lab}x_loop:')
    body(False, True)
    a(f's_cbranch_scc1 {lab}x_loop\ns_branch {lab}_last\n.p2align {ALIGN}\n{lab}n_loop:')
    body(False, False)
    a(f's_cbranch_scc1 {lab}n_loop\n{lab}_last:')
    stamp(a, 's6')
    lv, where = body(True)
    if not slow: a(';PAD t')
    a('s_setprio 0\ns_nop 0')
    a(pv(SB, 7, 1))
    stamp(a, 's7')
    a('s_nop 9')
    for s in W_PART: a(s)
    a('s_waitcnt lgkmcnt(0)\ns_barrier')
    stamp(a, 'b1')
    for s in R_PART: a(s)
    a(f'''
    v_and_b32 v22, 15, v{LANE}
    v_bfe_u32 v23, v{LANE}, 4, 1
    v_mul_u32_u24 v23, {4*HROW + 64}, v23
    v_lshl_add_u32 v22, v22, 2, v23
    s_lshl_b32 s58, s{S_NT0}, 6
    s_add_u32 s58, s58, {LP}
    v_add_u32 v22, s58, v22
    v_lshrrev_b32 v23, 5, v{LANE}
    v_lshl_add_u32 v23, v23, 6, v22
    v_add_u32 v24, 128, v23
    ''')
    a('s_waitcnt lgkmcnt(2)'); a(ADDS[0]); a(ADDS[1]); a(ADDS[4]); a('s_waitcnt lgkmcnt(0)')
    for q in (2, 3, 5, 6): a(ADDS[q])
    a('s_nop 0'); a(NORM[0]); a('s_nop 0')
    for s in NORM[1:4]: a(s)
    lv.need('x', 'w')
    for i in range(5): unpack(a, 12 + 2 * i, i)
    a(f'''
    s_waitcnt lgkmcnt(0)
    s_barrier
    ds_read_b128 a[{QM}:{QM+3}], v{AAD} offset:1152
    ds_read_b128 a[{AF}:{AF+3}], v{AAD}
    v_mov_b32 v{T+8}, 0
    v_mov_b32 v{T+9}, {hx(ONES)}
    s_mul_i32 s58, s{WAVE}, {HROW}
    s_lshr_b32 s59, s{WAVE}, 2
    s_lshl_b32 s59, s59, 6
    s_add_u32 s58, s58, s59
    s_add_u32 s58, s58, {LP}
    v_lshl_add_u32 v{T+10}, v{LANE}, 5, s58
    v_lshl_add_u32 v{T+11}, v{LANE}, 3, s58
    ''')
    for i in range(5): a(f'v_dot2c_f32_bf16 v{T+8}, v{6+i}, v{T+9}')
    stamp(a, 'b2')
    a('s_waitcnt lgkmcnt(1)')
    for f in range(n):
        lv.need(f's8f{f}'); a(oproj(f, QM, where[(8, f)]))
    a('s_waitcnt lgkmcnt(0)')
    for f in range(n):
        lv.need(f'f{f}'); a(oproj(f, AF, WO + 8 * f))
    stamp(a, 'op')
    a(f's_nop {9 - n}')
    R = HROW // 256
    for p in range(2):
        A, B = OACC + 8 * p, OACC + 8 * p + 4
        for r in range(4): a(f'v_permlane32_swap_b32 v{A+r}, v{B+r}')
        for r in range(4): a(f'v_add_f32 v{A+r}, v{A+r}, v{B+r}')
        for r in (0, 2): a(f'ds_write2st64_b32 v{23+p}, v{A+r}, v{A+r+1} offset0:{r*R} offset1:{(r+1)*R}')
    if n == 5:
        A = OACC + 16
        for r in range(4): a(f'v_mov_b32 v{T+4+r}, v{A+r}')
        for r in range(4): a(f'v_permlane32_swap_b32 v{A+r}, v{T+4+r}')
        for r in range(4): a(f'v_add_f32 v{A+r}, v{A+r}, v{T+4+r}')
        for r in (0, 2): a(f'ds_write2st64_b32 v22, v{A+r}, v{A+r+1} offset0:{r*R+1} offset1:{(r+1)*R+1}')
    a(f's_branch L_tail\n;PAD -')

def warm(vm, i):
    vm.a(f's_add_u32 s58, s60, {i*8192}')
    vm.issue('warm', f'buffer_load_dwordx4 a[{WO+8*i}:{WO+3+8*i}], v{L16}, s[{S_WS}:{S_WS+3}], s58 offen{LDP}')

def dpp_reduce(a, op, regs):
    for c in ('row_shr:1', 'row_shr:2', 'row_shr:4', 'row_shr:8', 'row_bcast:15 row_mask:0xa', 'row_bcast:31 row_mask:0xc'):
        if len(regs) < 3: a(f's_nop {2 - len(regs)}')
        for r in regs:
            mask = '' if 'row_mask' in c else ' row_mask:0xf'
            a(f'{op}_dpp v{r}, v{r}, v{r} {c}{mask} bank_mask:0xf')

def bf_round(a, dst, src):
    a(f'v_cvt_pk_bf16_f32 v{dst}, v{src}, v{src}\nv_and_b32 v{dst}, 0xffff0000, v{dst}')
def unpack(a, lo, src):
    a(f'v_lshlrev_b32 v{lo}, 16, v{src}\nv_and_b32 v{lo+1}, 0xffff0000, v{src}')

def tail(a, stamp):
    XP, WP, XF, AT, HP, LN, OU = 0, 6, 12, 22, 32, 38, 60
    a(f'''
L_tail:
;PAD t
    v_mov_b32 v46, 0
    v_mov_b32 v47, 0
    s_waitcnt lgkmcnt(0)
    v_mov_b32 v48, 0
    v_mov_b32 v49, v{T+8}
    v_mov_b32 v51, v{T+9}
    s_barrier
    ''')
    a(f'ds_read_b128 v[{AT}:{AT+3}], v{T+10}\nds_read_b128 v[{AT+4}:{AT+7}], v{T+10} offset:16\nds_read_b64 v[{AT+8}:{AT+9}], v{T+11} offset:2048')
    stamp(a, 'attn')
    a(f'''
    s_mov_b32 s62, -1
    s_mov_b32 s63, 0
    s_lshl_b32 s59, s2, 3
    s_add_u32 s59, s59, s{WAVE}
    s_sub_u32 s69, 2047, s59
    s_lshl_b32 s58, s{WAVE}, 2
    s_add_u32 s58, s58, {X_KEY}
    v_mov_b32 v57, s58
    v_and_b32 v55, 7, v{LANE}
    s_mov_b32 s58, {X_KEY}
    v_lshl_add_u32 v55, v55, 2, s58
    s_mov_b32 s60, {GRAN_REP}
    v_mul_lo_u32 v56, s60, v{LANE}
    v_mov_b32 v52, {hx(f32(1.0/D))}
    ''')
    for i in range(5):
        if i % 2 == 0: a(f's_waitcnt lgkmcnt({2 - i // 2})')
        a(f'v_pk_add_f32 v[{AT+2*i}:{AT+2*i+1}], v[{AT+2*i}:{AT+2*i+1}], v[{XF+2*i}:{XF+2*i+1}]')
        a(f'v_cvt_pk_bf16_f32 v{HP+i}, v{AT+2*i}, v{AT+2*i+1}')
        if i == 4: a(f'v_cndmask_b32 v{HP+4}, 0, v{HP+4}, s[62:63]')
        a(f'v_dot2c_f32_bf16 v46, v{HP+i}, v51\nv_dot2c_f32_bf16 v47, v{HP+i}, v{HP+i}\nv_dot2c_f32_bf16 v48, v{HP+i}, v{WP+i}')
    a(f'''
    s_lshl_b32 s60, s2, 7
    s_add_u32 s60, s60, {WS_GRAN}
    s_nop 0
    v_permlane32_swap_b32 v46, v47
    v_permlane32_swap_b32 v48, v49
    v_add_f32 v46, v46, v47
    v_add_f32 v48, v48, v49
    s_nop 1
    v_permlane16_swap_b32 v46, v48
    v_add_f32 v46, v46, v48
    ''')
    for c in (8, 4, 2, 1): a(f's_nop 1\nv_add_f32_dpp v46, v46, v46 row_ror:{c} row_mask:0xf bank_mask:0xf')
    a(f'''
    s_nop 0
    v_readlane_b32 s64, v46, 0
    v_readlane_b32 s65, v46, 32
    v_readlane_b32 s66, v46, 16
    v_readlane_b32 s67, v46, 48
    v_mul_f32 v46, s64, v52
    v_mul_f32 v47, s65, v52
    v_fma_f32 v47, -v46, v46, v47
    v_max_f32 v47, 0, v47
    ''')
    bf_round(a, 47, 47)
    a(f'v_add_f32 v47, {hx(f32(1e-5))}, v47')
    bf_round(a, 47, 47)
    a('v_sqrt_f32 v47, v47')
    bf_round(a, 46, 46)
    bf_round(a, 47, 47)
    a(f'''
    v_rcp_f32 v48, v47
    v_mov_b32 v53, s66
    v_fma_f32 v53, -v46, s67, v53
    v_mul_f32 v53, v53, v48
    v_cvt_pk_bf16_f32 v53, v53, v53
    v_ashrrev_i32 v54, 31, v53
    v_or_b32 v54, 0x80000000, v54
    v_xor_b32 v53, v53, v54
    v_lshrrev_b32 v53, 16, v53
    v_lshl_or_b32 v53, v53, 11, s69
    ds_write_b32 v57, v53
    s_getreg_b32 s58, hwreg(HW_REG_XCC_ID)
    s_and_b32 s58, s58, 7
    s_mul_i32 s58, s58, {GRAN_REP}
    s_and_b32 s64, s{WAVE}, 3
    s_lshl_b32 s64, s64, 13
    s_add_u32 s58, s58, s64
    s_add_u32 s64, s58, {WS_GRAN}
    v_lshlrev_b32 v65, 7, v{LANE}
    s_waitcnt lgkmcnt(0)
    s_barrier
    ds_read_b32 v54, v55
    s_mov_b32 s61, 0
    s_waitcnt lgkmcnt(0)
    v_cmp_gt_u32 vcc, v54, v53
    s_cbranch_vccnz L_notbest
    s_mov_b64 exec, 0xff
    buffer_store_dword v53, v56, s[{S_WS}:{S_WS+3}], s60 offen sc1
    s_mov_b64 exec, -1
    s_mov_b32 s61, 1
L_notbest:
    ''')
    stamp(a, 'gran')
    for c in (4, 2, 1): a(f'v_max_u32_dpp v54, v54, v54 row_ror:{c} row_mask:0xf bank_mask:0xf\ns_nop 1')
    a(f'v_readfirstlane_b32 s65, v54\ns_xor_b32 s65, s65, s{WAVE}\ns_and_b32 s65, s65, 4')
    def first_poll(k):
        if POLL_AT == k: a(f's_cmp_lg_u32 s65, 0\ns_cbranch_scc1 L_nofirst\nbuffer_load_dword v66, v65, s[{S_WS}:{S_WS+3}], s64 offen sc1\nL_nofirst:')
    a('v_sub_f32 v56, 0, v46\nv_mov_b32 v57, v56\nv_mov_b32 v49, v48')
    for i in range(5): unpack(a, XF + 2 * i, HP + i)
    for i in range(5): a(f'v_pk_add_f32 v[{AT+2*i}:{AT+2*i+1}], v[{XF+2*i}:{XF+2*i+1}], v[56:57]')
    for i in range(5): a(f'v_cvt_pk_bf16_f32 v{LN+i}, v{AT+2*i}, v{AT+2*i+1}')
    first_poll(1)
    for i in range(5): unpack(a, AT + 2 * i, LN + i)
    for i in range(5): a(f'v_pk_mul_f32 v[{AT+2*i}:{AT+2*i+1}], v[{AT+2*i}:{AT+2*i+1}], v[48:49]')
    for i in range(5): a(f'v_cvt_pk_bf16_f32 v{LN+i}, v{AT+2*i}, v{AT+2*i+1}')
    a(f'''
    v_lshlrev_b32 v58, 2, v{LANE}
    s_cmp_eq_u32 s61, 1
    s_cbranch_scc0 L_norow
    s_mul_i32 s58, s2, 2304
    s_add_u32 s58, s58, {WS_ROWS}
    ''')
    a(f'''
    buffer_store_dwordx4 v[{LN}:{LN+3}], v{L16}, s[{S_WS}:{S_WS+3}], s58 offen sc1
    buffer_store_dwordx4 v[{HP}:{HP+3}], v{L16}, s[{S_WS}:{S_WS+3}], s58 offen offset:1152 sc1
    s_mov_b32 exec_hi, 0
    buffer_store_dword v{LN+4}, v58, s[{S_WS}:{S_WS+3}], s58 offen offset:1024 sc1
    buffer_store_dword v{HP+4}, v58, s[{S_WS}:{S_WS+3}], s58 offen offset:{1152+1024} sc1
    s_mov_b32 exec_hi, -1
L_norow:
    ''')
    first_poll(2)
    for i in range(5): unpack(a, AT + 2 * i, LN + i)
    for i in range(5): a(f'v_pk_add_f32 v[{AT+2*i}:{AT+2*i+1}], v[{AT+2*i}:{AT+2*i+1}], v[{XF+2*i}:{XF+2*i+1}]')
    for i in range(5): a(f'v_cvt_pk_bf16_f32 v{OU+i}, v{AT+2*i}, v{AT+2*i+1}')
    def out_row():
        a(f'buffer_store_dwordx4 v[{OU}:{OU+3}], v{L16}, s[{S_OUT}:{S_OUT+3}], s68 offen{OUTP}')
        a(f's_mov_b32 exec_hi, 0\nbuffer_store_dword v{OU+4}, v58, s[{S_OUT}:{S_OUT+3}], s68 offen offset:1024{OUTP}\ns_mov_b32 exec_hi, -1')
    first_poll(3)
    a(f's_mul_i32 s68, s59, {ROWB}')
    if not DEFER:
        a('s_cmp_eq_u32 s61, 1\ns_cbranch_scc1 L_defer')
        out_row()
        a('L_defer:')
    elif DEFER == 2:
        a('s_cmp_eq_u32 s61, 1\ns_cbranch_scc1 L_defer\ns_cmp_eq_u32 s65, 0\ns_cbranch_scc1 L_defer')
        out_row()
        a('s_mov_b32 s61, 2\nL_defer:')
    stamp(a, 'rows')
    GW, DW = 0, 60
    a(f'''
    v_lshrrev_b32 v1, 4, v{LANE}
    v_bfe_u32 v2, v{LANE}, 2, 2
    v_and_b32 v3, 3, v{LANE}
    v_lshl_add_u32 v2, v1, 3, v2
    s_cmp_ge_u32 s{S_FS}, 144
    s_cbranch_scc1 L_nopre
    s_and_b32 s58, s{WAVE}, 1
    v_and_b32 v4, 1, v1
    v_xor_b32 v4, s58, v4
    v_lshlrev_b32 v4, 5, v4
    v_lshl_add_u32 v4, v2, 6, v4
    v_lshl_add_u32 v4, v3, 3, v4
    s_bfe_u32 s58, s{WAVE}, 0x10001
    s_mul_i32 s58, s58, {LU}
    s_lshr_b32 s60, s{WAVE}, 2
    s_mul_i32 s69, s60, {9*2048}
    s_add_u32 s58, s58, s69
    v_add_u32 v4, s58, v4
    v_mul_u32_u24 v5, {ROWB}, v2
    v_lshl_add_u32 v5, v3, 3, v5
    s_lshl_b32 s58, s{S_NT0}, 5
    s_add_u32 s58, s58, {LD}
    v_add_u32 v5, s58, v5
    ''')
    for i in range(9):
        a(f'ds_read_b64_tr_b16 a[{GW+4*i}:{GW+4*i+1}], v4 offset:{2048*i}\nds_read_b64_tr_b16 a[{GW+4*i+2}:{GW+4*i+3}], v4 offset:{2048*i+256}')
    for f in range(5):
        a(f'ds_read_b64_tr_b16 a[{DW+4*f}:{DW+4*f+1}], v5 offset:{32*f}\nds_read_b64_tr_b16 a[{DW+4*f+2}:{DW+4*f+3}], v5 offset:{32*f+4*ROWB}')
    a(f'''
L_nopre:
    s_cmp_lg_u32 s65, 0
    s_cbranch_scc1 {'L_touch' if RTOUCH else 'L_polled'}
    s_mov_b32 s60, 0
    {f's_sleep {POLL_FIRST}' if POLL_FIRST else ''}
    {'s_waitcnt vmcnt(2)' if POLL_AT else ''}
    {'s_branch L_pollchk' if POLL_AT else ''}
L_poll:
    buffer_load_dword v66, v65, s[{S_WS}:{S_WS+3}], s64 offen sc1
    s_add_u32 s60, s60, 1
    s_waitcnt vmcnt(0)
L_pollchk:
    v_cmp_eq_u32 vcc, -1, v66
    s_and_b64 exec, exec, vcc
    s_cbranch_execz L_polldone
    s_cmp_gt_u32 s60, {SPIN}
    s_cbranch_scc1 L_polldone
    ''')
    if SPEC:
        a(f'''
        s_cmp_gt_u32 s60, {SPEC}
        s_cbranch_scc1 L_nospec
        s_mov_b64 s[66:67], exec
        s_mov_b64 exec, -1
        v_cndmask_b32 v67, v66, 0, s[66:67]
        ''')
        dpp_reduce(a, 'v_max_u32', [67])
        a(f'''
        s_nop 0
        v_readlane_b32 s62, v67, 63
        s_andn2_b32 s62, 2047, s62
        s_lshr_b32 s62, s62, 3
        s_mul_i32 s62, s62, 2304
        s_add_u32 s62, s62, {WS_ROWS}
        s_mov_b64 exec, 0x1ff
        buffer_load_dword v67, v65, s[{S_WS}:{S_WS+3}], s62 offen sc1
        s_mov_b64 exec, s[66:67]
        s_branch L_poll
L_nospec:
        ''')
    a(f'''
    s_sleep {POLL_SLEEP}
    s_branch L_poll
L_polldone:
    s_mov_b64 exec, -1
    s_nop 1
    ''')
    dpp_reduce(a, 'v_max_u32', [66])
    a(f'''
    s_and_b32 s58, s{WAVE}, 3
    s_lshl_b32 s58, s58, 2
    s_add_u32 s58, s58, {X_WIN}
    v_mov_b32 v8, s58
    s_mov_b32 exec_lo, 0
    s_mov_b32 exec_hi, 0x80000000
    ds_write_b32 v8, v66
    s_mov_b64 exec, -1
    ''')
    if QTOUCH:
        a(f'''
        v_readlane_b32 s62, v66, 63
        s_andn2_b32 s62, 2047, s62
        s_lshr_b32 s62, s62, 3
        s_mul_i32 s62, s62, 2304
        s_add_u32 s62, s62, {WS_ROWS}
        s_mov_b64 exec, 0x1ff
        buffer_load_dword v67, v65, s[{S_WS}:{S_WS+3}], s62 offen sc1
        s_mov_b64 exec, -1
        ''')
    if RTOUCH:
        a(f'''
        s_branch L_polled
L_touch:
        s_and_b32 s58, s{WAVE}, 3
        s_lshl_b32 s58, s58, 1
        s_and_b32 s60, s2, 0xf8
        s_add_u32 s58, s58, s60
        s_mul_i32 s58, s58, 2304
        s_add_u32 s58, s58, {WS_ROWS}
        v_add_u32 v67, {2304 - 9*128}, v65
        v_cmp_lt_u32 vcc, 8, v{LANE}
        s_nop 1
        v_cndmask_b32 v67, v65, v67, vcc
        s_mov_b64 exec, 0x3ffff
        buffer_load_dword v66, v67, s[{S_WS}:{S_WS+3}], s58 offen sc1
        s_mov_b64 exec, -1
        ''')
    a(f'''
L_polled:
    v_mov_b32 v8, {X_WIN}
    s_waitcnt lgkmcnt(0)
    s_barrier
    ds_read_b128 v[10:13], v8
    s_waitcnt lgkmcnt(0)
    v_max_u32 v10, v10, v11
    v_max3_u32 v10, v10, v12, v13
    s_nop 0
    v_readfirstlane_b32 s62, v10
    s_and_b32 s63, s62, 2047
    s_sub_u32 s63, 2047, s63
    s_lshr_b32 s64, s63, 3
    s_mul_i32 s64, s64, 2304
    s_add_u32 s64, s64, {WS_ROWS}
    ''')
    stamp(a, 'win')
    a(f'''
    s_cmp_ge_u32 s{S_FS}, 144
    s_cbranch_scc1 L_noffn
    s_lshr_b32 s60, s{WAVE}, 2
    s_mul_i32 s60, s60, 576
    s_add_u32 s60, s60, s64
    s_mul_i32 s68, s{WAVE}, 576
    s_add_u32 m0, s68, {LP}
    s_mov_b32 s66, -1
    s_mov_b32 s67, 0xf
    v_lshlrev_b32 v6, 4, v1
    s_mov_b32 s65, 0
L_xsel:
    s_mov_b64 exec, s[66:67]
    buffer_load_dwordx4 v{L16}, s[{S_WS}:{S_WS+3}], s60 offen sc1 lds
    ''')
    XS = 10
    a(f'''
    s_mov_b64 exec, -1
    s_add_u32 s65, s65, 1
    s_lshl_b32 s58, s{WAVE}, 6
    s_add_u32 s58, s58, {X_G}
    v_add_u32 v7, s58, v6
    v_and_b32 v8, 31, v{LANE}
    s_mov_b32 s58, {X_G}
    v_lshl_add_u32 v9, v8, 2, s58
    s_lshl_b32 s58, s{WAVE}, 6
    s_add_u32 s58, s58, {X_ACT}
    v_lshl_add_u32 v8, v8, 1, s58
    v_add_u32 v51, s58, v6
    v_lshrrev_b32 v2, 3, v{LANE}
    v_mul_u32_u24 v2, 4608, v2
    v_and_b32 v3, 7, v{LANE}
    v_lshl_add_u32 v2, v3, 2, v2
    s_mul_i32 s58, s{S_NT0}, 9216
    s_lshl_b32 s69, s{S_FS}, 5
    s_add_u32 s58, s58, s69
    s_add_u32 s58, s58, {WS_PART}
    s_add_u32 s69, s68, {LP}
    v_add_u32 v52, s69, v6
    s_waitcnt vmcnt(0)
    ''')
    for i in range(9): a(f'ds_read_b128 v[{XS+4*i}:{XS+4*i+3}], v52 offset:{64*i}')
    for i in range(9):
        a(f's_waitcnt lgkmcnt({8-i})')
        a(f'v_mfma_f32_16x16x32_bf16 v[46:49], a[{GW+4*i}:{GW+4*i+3}], v[{XS+4*i}:{XS+4*i+3}], ' + ('0' if i == 0 else 'v[46:49]'))
        if i == 0: a(f'v_max_u32 v50, v{XS}, v{XS+1}\nv_max3_u32 v50, v50, v{XS+2}, v{XS+3}')
        else: a(f'v_max3_u32 v50, v50, v{XS+4*i}, v{XS+4*i+1}\nv_max3_u32 v50, v50, v{XS+4*i+2}, v{XS+4*i+3}')
    a(f'''
    v_cmp_eq_u32 vcc, -1, v50
    s_cbranch_vccz L_xok
    s_cmp_gt_u32 s65, {SPIN}
    s_cbranch_scc0 L_xsel
L_xok:
    ''')
    stamp(a, 'xin')
    a(f'''
    s_mul_i32 s68, s59, {ROWB}
    s_mov_b32 s66, 0x00010001
    s_mov_b32 s67, 0x00010001
    s_mov_b64 exec, s[66:67]
    ds_write_b128 v7, v[46:49]
    s_mov_b64 exec, -1
    s_waitcnt lgkmcnt(0)
    s_barrier
    ds_read2_b32 v[10:11], v9 offset0:0 offset1:64
    ds_read2_b32 v[12:13], v9 offset0:32 offset1:96
    s_waitcnt lgkmcnt(1)
    v_add_f32 v10, v10, v11
    ''')
    bf_round(a, 10, 10)
    a(f'''
    v_mul_f32 v11, {hx(f32(-math.log2(math.e)))}, v10
    v_exp_f32 v11, v11
    s_waitcnt lgkmcnt(0)
    v_add_f32 v12, v12, v13
    v_add_f32 v11, 1.0, v11
    v_rcp_f32 v11, v11
    ''')
    bf_round(a, 12, 12)
    a('v_mul_f32 v10, v10, v11')
    bf_round(a, 10, 10)
    a(f'''
    v_mul_f32 v10, v10, v12
    v_cvt_pk_bf16_f32 v10, v10, v10
    ds_write_b16 v8, v10
    s_waitcnt lgkmcnt(0)
    ds_read_b128 v[12:15], v51
    s_waitcnt lgkmcnt(0)
    ''')
    stamp(a, 'act')
    for f in range(5): a(f'v_mfma_f32_16x16x32_bf16 v[{16+4*f}:{19+4*f}], v[12:15], a[{DW+4*f}:{DW+4*f+3}], 0')
    a(f'''
    s_mov_b32 s64, 0xffff0000
    s_mov_b32 s65, 0
    s_mov_b32 s66, 0
    s_mov_b32 s67, 0xffff
    s_nop 0
    v_cndmask_b32 v16, v16, v20, s[64:65]
    s_mov_b32 s65, 0xffff0000
    s_mov_b32 s64, 0
    v_cndmask_b32 v16, v16, v24, s[66:67]
    s_add_u32 s69, s58, {4*9216}
    s_cmp_ge_u32 s{WAVE}, 4
    v_cndmask_b32 v16, v16, v28, s[64:65]
    buffer_store_dword v16, v2, s[{S_WS}:{S_WS+3}], s58 offen sc1
    s_cbranch_scc1 L_ffndone
    s_mov_b64 exec, 0xffff
    buffer_store_dword v32, v2, s[{S_WS}:{S_WS+3}], s69 offen sc1
L_ffndone:
    s_mov_b64 exec, -1
    s_branch L_last
L_noffn:
    s_sub_u32 s69, s{S_FS}, 144
    s_cmp_ge_u32 s69, 72
    s_cbranch_scc1 L_last
    s_cmp_lg_u32 s{WAVE}, 0
    s_cbranch_scc1 L_last
    s_cmp_eq_u32 s61, {[0, 2, 2][DEFER]}
    s_cbranch_scc1 L_finrow
    s_cmp_eq_u32 s63, s59
    s_cbranch_scc1 L_finrow
    ''')
    out_row()
    a(f'''
L_finrow:
    s_mov_b32 s61, {[0, 2, 2][DEFER]}
    s_lshl_b32 s58, s69, 4
    s_add_u32 s58, s58, s64
    v_and_b32 v1, 1, v{LANE}
    v_lshlrev_b32 v2, 3, v1
    v_bfe_u32 v1, v{LANE}, 4, 1
    v_lshl_add_u32 v2, v1, 2, v2
    v_lshrrev_b32 v1, 5, v{LANE}
    v_lshl_add_u32 v2, v1, 1, v2
    s_lshr_b32 s65, s62, 11
    s_lshl_b32 s65, s65, 16
    s_not_b32 s66, s65
    s_ashr_i32 s66, s66, 31
    s_or_b32 s66, s66, 0x80000000
    s_xor_b32 s65, s65, s66
    s_and_b32 s65, s65, 0xffff0000
    v_mov_b32 v3, s65
    v_mul_f32 v3, {hx(f32(-math.log2(math.e)))}, v3
    v_exp_f32 v3, v3
    s_mul_i32 s60, s69, 4608
    s_add_u32 s60, s60, {WS_PART}
    v_add_f32 v3, 1.0, v3
    v_rcp_f32 v3, v3
    s_mov_b32 s65, 0
    v_mov_b32 v26, 0
    v_mov_b32 v27, 0
    v_mov_b32 v28, 0
    v_mov_b32 v29, 0
    v_mov_b32 v30, 0
    ''')
    bf_round(a, 3, 3)
    a(f'''
L_fin0:
    buffer_load_dwordx4 v[10:13], v30, s[{S_WS}:{S_WS+3}], s58 offen sc1
    buffer_load_dwordx4 v[14:17], v30, s[{S_WS}:{S_WS+3}], s58 offen offset:1152 sc1
    s_add_u32 s65, s65, 1
    s_waitcnt vmcnt(0)
    v_max3_u32 v8, v10, v11, v12
    v_max3_u32 v8, v8, v13, v14
    v_max3_u32 v8, v8, v15, v16
    v_max_u32 v8, v8, v17
    v_cmp_eq_u32 vcc, -1, v8
    s_cbranch_vccz L_fin1
    s_cmp_gt_u32 s65, {SPIN}
    s_cbranch_scc0 L_fin0
L_fin1:
    buffer_load_ushort v4, v2, s[{S_WS}:{S_WS+3}], s58 offen sc1
    buffer_load_ushort v5, v2, s[{S_WS}:{S_WS+3}], s58 offen offset:1152 sc1
    s_mul_i32 s59, s63, {ROWB}
    s_lshl_b32 s64, s69, 4
    s_add_u32 s59, s59, s64
    s_sleep {FIN_SLEEP}
L_fin:
    ''')
    for i in range(4): a(f'buffer_load_dwordx4 v[{10+4*i}:{13+4*i}], v{L16}, s[{S_WS}:{S_WS+3}], s60 offen offset:{1024*i} sc1')
    a(f'''
    s_add_u32 s66, s60, 4096
    s_mov_b32 s67, exec_hi
    s_mov_b32 exec_hi, 0
    buffer_load_dwordx4 v[26:29], v{L16}, s[{S_WS}:{S_WS+3}], s66 offen sc1
    s_mov_b32 exec_hi, s67
    s_add_u32 s65, s65, 1
    s_waitcnt vmcnt(0)
    v_mov_b32 v8, v10
    ''')
    for i in range(11, 29, 2): a(f'v_max3_u32 v8, v8, v{i}, v{i+1}')
    a(f'''
    v_max_u32 v8, v8, v29
    v_cmp_eq_u32 vcc, -1, v8
    s_and_b64 exec, exec, vcc
    s_cbranch_execz L_finok
    s_cmp_gt_u32 s65, {SPIN}
    s_cbranch_scc1 L_finok
    s_sleep {FIN_SLEEP2}
    s_branch L_fin
L_finok:
    s_mov_b64 exec, -1
    ''')
    stamp(a, 'fin')
    a(f'''
    v_pk_add_f32 v[10:11], v[10:11], v[14:15]
    v_pk_add_f32 v[12:13], v[12:13], v[16:17]
    v_pk_add_f32 v[18:19], v[18:19], v[22:23]
    v_pk_add_f32 v[20:21], v[20:21], v[24:25]
    v_pk_add_f32 v[10:11], v[10:11], v[26:27]
    v_pk_add_f32 v[12:13], v[12:13], v[28:29]
    v_pk_add_f32 v[10:11], v[10:11], v[18:19]
    v_pk_add_f32 v[12:13], v[12:13], v[20:21]
    v_lshlrev_b32 v4, 16, v4
    v_lshlrev_b32 v5, 16, v5
    v_permlane32_swap_b32 v10, v11
    v_permlane32_swap_b32 v12, v13
    v_add_f32 v10, v10, v11
    v_add_f32 v12, v12, v13
    s_mov_b32 s64, 0x00030003
    s_mov_b32 s65, 0x00030003
    v_permlane16_swap_b32 v10, v12
    v_add_f32 v10, v10, v12
    ''')
    for c in (8, 4, 2): a(f's_nop 1\nv_add_f32_dpp v10, v10, v10 row_ror:{c} row_mask:0xf bank_mask:0xf')
    bf_round(a, 10, 10)
    a('v_mul_f32 v10, v3, v10')
    bf_round(a, 10, 10)
    a('v_add_f32 v10, v4, v10')
    bf_round(a, 10, 10)
    a(f'''
    v_add_f32 v10, v5, v10
    v_cvt_pk_bf16_f32 v10, v10, v10
    s_mov_b64 exec, s[64:65]
    buffer_store_short v10, v2, s[{S_OUT}:{S_OUT+3}], s59 offen{OUTP}
    s_branch L_end
L_last:
    s_cmp_eq_u32 s61, {[0, 2, 2][DEFER]}
    s_cbranch_scc1 L_end
    s_cmp_eq_u32 s63, s59
    s_cbranch_scc1 L_end
    ''')
    out_row()
    a(';PAD -\nL_end:')
    stamp(a, 'end')
    a('s_endpgm')

def kv_load(vm, t, part=None):
    ws = f's[{S_WS}:{S_WS+3}]'
    if part in (None, 0): vm.issue(f'km{t}', f'buffer_load_dwordx4 a[{KM+4*t}:{KM+4*t+3}], v{L16}, {ws}, s67 offen{LDP}')
    if part in (None, 1):
        vm.a('s_mov_b32 exec_hi, 0')
        vm.issue(f'km{t}', f'buffer_load_dword a{KX+t}, v{T+14}, {ws}, s67 offen offset:{KV_X}{LDP}')
        if part == 1: vm.a('s_mov_b32 exec_hi, -1')
    if part in (None, 2):
        vm.a('s_mov_b64 exec, s[64:65]')
        vm.issue(f'v{t}', f'buffer_load_dwordx4 a[{VV+8*t}:{VV+8*t+3}], v83, {ws}, s67 offen offset:{KV_V}{LDP}')
        if part == 2: vm.a('s_mov_b64 exec, -1')
    if part in (None, 3):
        if part == 3: vm.a('s_mov_b64 exec, s[64:65]')
        vm.issue(f'v{t}', f'buffer_load_dwordx4 a[{VV+8*t+4}:{VV+8*t+7}], v83, {ws}, s67 offen offset:{KV_V+2*VG}{LDP}')
        vm.a('s_mov_b64 exec, -1')
        if t < 7: vm.a(f's_add_u32 s67, s67, {KVREC}\ns_cmp_ge_u32 s67, s63\ns_cselect_b32 s67, s62, s67')

def qprep(a, vm, stamp):
    a(f's_cmp_ge_u32 s{WAVE}, 4\ns_cbranch_scc1 L_nokmax')
    dpp_reduce(a, 'v_max_f32', [21])
    a(f'''
    s_lshl_b32 s58, s{WAVE}, 2
    s_add_u32 s58, s58, {X_WIN}
    v_mov_b32 v22, s58
    s_mov_b32 exec_lo, 0
    s_mov_b32 exec_hi, 0x80000000
    ds_write_b32 v22, v21
    s_mov_b64 exec, -1
L_nokmax:
    s_mov_b32 s68, -1
    s_mov_b32 s69, 0
    v_mov_b32 v81, v7
    v_mov_b32 v82, v8
    s_mul_i32 s58, s{WAVE}, 144
    v_subrev_u32 v7, s58, v7
    v_subrev_u32 v8, s58, v8
    v_mov_b32 v9, {hx(SHIFT16)}
    v_accvgpr_write_b32 a{QX}, v9
    v_accvgpr_write_b32 a{QX+1}, 0
    v_accvgpr_write_b32 a{QX+2}, 0
    v_accvgpr_write_b32 a{QX+3}, v9
    s_waitcnt lgkmcnt(0)
    ''')
    if SPLIT:
        n = vm.count('q')
        a(f's_cmp_lt_u32 s{WAVE}, 4\ns_cbranch_scc1 L_qlow\ns_waitcnt vmcnt(0)\nL_qlow:\ns_waitcnt vmcnt({n})')
    else: vm.need('q')
    stamp(a, 'qin')
    a(f'''
    s_barrier
    ds_read2_b32 a[{QM}:{QM+1}], v8 offset0:0 offset1:1
    ds_read2_b32 a[{QM+2}:{QM+3}], v8 offset0:2 offset1:3
    s_mov_b32 exec_hi, 0
    ds_read_b32 a{QX}, v7 offset:32
    ds_read_b32 a{QX+3}, v7 offset:32
    s_mov_b32 exec_hi, -1
    ''')
    for t in KVS.get(-1, []): kv_load(vm, t)

def own_slice():
    d2 = lambda x: f'v_dot2c_f32_bf16 v{T+12}, v{x}, v{x}'
    return {0: {3: f'ds_read2_b32 v[{T}:{T+1}], v82 offset0:0 offset1:1', 7: f'ds_read2_b32 v[{T+2}:{T+3}], v82 offset0:2 offset1:3',
                11: f'ds_read_b32 v{T+4}, v81 offset:32\nv_mov_b32 v{OST}, {X_WIN}', 15: f'ds_read_b128 v[{T+8}:{T+11}], v{OST}\nv_mov_b32 v{T+12}, 0'},
            1: {3: f's_waitcnt lgkmcnt(0)\nv_cndmask_b32 v{T+13}, 0, v{T+4}, s[68:69]\n' + d2(T), 4: d2(T + 1), 7: d2(T + 2), 8: d2(T + 3), 11: d2(T + 13),
                12: f'v_max3_f32 v{T+8}, v{T+8}, v{T+9}, v{T+10}', 14: f'v_max_f32 v{T+8}, v{T+8}, v{T+11}\nv_mov_b32 v{T+9}, {hx(SHIFT16)}',
                15: f'v_mov_b32 v{T+13}, v{T+12}\nv_cndmask_b32 v{T+4}, v{T+9}, v{T+4}, s[68:69]'},
            2: {2: f'v_permlane32_swap_b32 v{T+12}, v{T+13}\ns_lshl_b32 s59, s{WAVE}, 11\ns_add_u32 s59, s59, {LQ}', 3: f'v_add_f32 v{T+12}, v{T+12}, v{T+13}\nv_add_u32 v{MV}, s59, v{L16}',
                4: f'v_mul_f32 v{T+12}, v{T+8}, v{T+12}\nv_mov_b32 v{T+5}, 0', 7: f'ds_write_b128 v{MV}, v[{T}:{T+3}]\nv_mov_b32 v{T+6}, 0',
                8: f'v_cmp_nge_f32 vcc, {hx(f32((M_LIMIT / 1.01) ** 2))}, v{T+12}\nv_mov_b32 v{T+7}, v{T+4}', 11: f'ds_write_b128 v{MV}, v[{T+4}:{T+7}] offset:1024',
                12: f's_cmp_lg_u64 vcc, 0\ns_cselect_b32 s58, 1, 0\ns_lshl_b32 s59, s{WAVE}, 2\ns_add_u32 s59, s59, {X_FLAG}\nv_mov_b32 v{T+8}, s59',
                15: f'v_mov_b32 v{T+9}, s58'},
            3: {2: f'ds_write_b32 v{T+8}, v{T+9}', 8: f'v_and_b32 v{T+10}, 7, v{LANE}\ns_mov_b32 s58, {X_FLAG}', 12: f'v_lshl_add_u32 v{T+10}, v{T+10}, 2, s58',
                16: 's_waitcnt lgkmcnt(0)\ns_barrier'},
            4: {1: f'ds_read_b32 v{T+11}, v{T+10}', 12: f's_waitcnt lgkmcnt(0)\nv_cmp_ne_u32 vcc, 0, v{T+11}', 16: 's_cbranch_vccnz L_slow'}}

def prologue(a, stamp):
    if FUSED:
        a(f'''
L_p1done:
;PAD p
        ''')
        stamp(a, 'qst')
        a(f'''
        s_lshl_b32 s57, s26, 7
        s_add_u32 s57, s57, {WS_GRAN}
        s_mov_b32 s96, s4
        s_mov_b32 s97, s5
        s_mov_b32 s98, 4
        s_mov_b32 s99, 0x20000
        v_mov_b32 v64, 0
        buffer_load_dword v61, v64, s[96:99], 0 offen sc1
        s_mov_b32 s{S_WS}, s6
        s_mov_b32 s{S_WS+1}, s7
        s_mov_b32 s{S_WS+2}, {WS_USED}
        s_mov_b32 s{S_WS+3}, 0x20000
        s_mov_b32 s59, {GRAN_REP}
        v_mul_lo_u32 v63, s59, v1
        v_mov_b32 v60, -1
        v_mov_b32 v62, v29
        ''')
    else:
        a('s_cmp_ge_u32 s2, 256\ns_cbranch_scc1 L_k2_exit')
    a(f'''
    s_load_dwordx2 s[16:17], s[0:1], {KA_WS}
    s_load_dwordx2 s[4:5], s[0:1], {KA_X}
    s_load_dwordx8 s[8:15], s[0:1], {KA_WR}
    s_load_dwordx2 s[6:7], s[0:1], {KA_OUT}
    ''')
    if not FUSED: stamp(a, 'start')
    a(f'''
    s_setprio 3
    v_lshrrev_b32 v1, 6, v0
    v_and_b32 v{LANE}, 63, v0
    v_and_b32 v5, 7, v0
    v_readfirstlane_b32 s{WAVE}, v1
    v_bfe_u32 v6, v0, 3, 2
    s_lshl_b32 s58, s2, 3
    s_add_u32 s61, s58, s{WAVE}
    s_mul_i32 s61, s61, {ROWB}
    v_mul_u32_u24 v7, 1168, v5
    v_mad_u32_u24 v7, v6, 36, v7
    s_mul_i32 s58, s{WAVE}, 144
    s_add_u32 s58, s58, {LQR}
    v_add_u32 v7, s58, v7
    v_lshrrev_b32 v4, 5, v{LANE}
    v_lshl_add_u32 v8, v4, 4, v7
    s_mul_i32 s68, s{WAVE}, 1168
    s_add_u32 s68, s68, {LQR}
    v_lshlrev_b32 v{L16}, 4, v{LANE}
    v_lshlrev_b32 v{T+14}, 2, v{LANE}
    v_and_b32 v3, 31, v{LANE}
    v_lshlrev_b32 v10, 4, v3
    s_movk_i32 s62, {VG}
    v_mad_u32_u24 v83, v4, s62, v10
    s_mov_b32 s64, 0x0003ffff
    s_mov_b32 s65, 0x0003ffff
    v_mul_u32_u24 v2, 0x3f80, v4
    v_mov_b32 v10, {hx(ONES)}
    v_cmp_eq_u32 vcc, 20, v3
    s_bfe_u32 s60, s2, {ROTF}
    s_mul_i32 s62, s{WAVE}, {8*KVREC}
    s_add_u32 s62, s62, {WS_KV}
    s_mul_i32 s67, s60, {KVREC}
    s_add_u32 s67, s67, s62
    s_add_u32 s63, s62, {8*KVREC}
    ''')
    a('v_cndmask_b32 v10, 0, v10, vcc')
    for i in range(8): a(f'v_accvgpr_write_b32 a{KX+i}, v2')
    def v_preset(lo, hi):
        for i in range(lo, hi): a(f'v_accvgpr_write_b32 a{VV+i}, v10')
    v_preset(0, 16)
    if not FUSED: a('s_waitcnt lgkmcnt(0)')
    vm = Vm(a)
    def first_loads():
        qdma()
        a('s_setprio 0')
    def qdma():
        ws = f's[{S_WS}:{S_WS+3}]'
        a('s_mov_b32 m0, s68\ns_mov_b64 exec, 0xff')
        vm.issue('q', f'buffer_load_dwordx4 v{L16}, {ws}, s61 offen offset:1024{LDP} lds')
        a('s_mov_b64 exec, -1')
        vm.issue('q', f'buffer_load_dwordx4 v{L16}, {ws}, s61 offen{LDP} lds')
    if not FUSED:
        srd(a, S_WS, 16, 0, WS_USED)
        first_loads()
    def late_setup():
        a(f'''
        s_and_b32 s58, s2, 7
        s_lshr_b32 s59, s2, 3
        s_mul_i32 s{S_FS}, s58, 18
        s_add_u32 s{S_FS}, s{S_FS}, s59
        s_cmp_lt_u32 s59, 18
        s_cselect_b32 s{S_FS}, s{S_FS}, s2
        s_cselect_b32 s69, {D*F*2}, 0
        ''')
        for d, b in ((S_G, 10), (S_U, 12), (S_D, 14)):
            a(f's_mov_b32 s{d}, s{b}\ns_mov_b32 s{d+1}, s{b+1}\ns_mov_b32 s{d+2}, s69\ns_mov_b32 s{d+3}, 0x20000')
        srd(a, S_X, 4, 0, S * ROWB); srd(a, S_OUT, 6, 0, S * ROWB); srd(a, S_WR, 8, 0, ROWB)
        a(f'''
        s_mul_i32 s{S_GOFF}, s{WAVE}, {16*F*2}
        s_lshl_b32 s58, s{S_FS}, 6
        s_add_u32 s{S_GOFF}, s{S_GOFF}, s58
        s_mul_i32 s{S_DOFF}, s{S_FS}, 36864
        s_lshl_b32 s58, s{WAVE}, 10
        s_add_u32 s{S_DOFF}, s{S_DOFF}, s58
        s_mov_b32 s{S_MG}, s58
        s_cmp_lt_u32 s{WAVE}, 6
        s_cselect_b32 s{S_MST}, s69, 0
        s_mul_i32 s{S_NT0}, s{WAVE}, 5
        s_lshl_b32 s58, s{WAVE}, 2
        s_add_u32 s58, s58, 4
        s_cmp_lt_u32 s{WAVE}, 4
        s_cselect_b32 s{S_NT0}, s{S_NT0}, s58
        s_lshl_b32 s{S_WOC}, s{S_NT0}, 11
        s_add_u32 s{S_WOC}, s{S_WOC}, {WS_WO}
        s_mul_i32 s60, s59, 20736
        s_lshl_b32 s58, s{WAVE}, 10
        s_add_u32 s60, s60, s58
        s_add_u32 s60, s60, {WS_WO}
        v_lshrrev_b32 v24, 2, v{LANE}
        v_mul_u32_u24 v25, {F*2}, v24
        v_lshrrev_b32 v24, 4, v{LANE}
        v_and_b32 v26, 2, v24
        v_and_b32 v27, 3, v{LANE}
        v_xor_b32 v26, v26, v27
        v_lshl_add_u32 v{GUV}, v26, 4, v25
        v_mov_b32 v{IDXA}, 0xdddd
        v_mov_b32 v{IDXB}, 0x4444
        v_mov_b32 v25, 0xeeee
        v_and_b32 v26, 15, v{LANE}
        v_cmp_lt_u32 vcc, 7, v26
        v_mul_u32_u24 v27, 80, v3
        s_mul_i32 s58, s{WAVE}, 2560
        v_cndmask_b32 v{IDXB}, v{IDXB}, v25, vcc
        s_add_u32 s58, s58, {LP}
        v_add_u32 v27, s58, v27
        v_lshl_add_u32 v{WAD}, v4, 4, v27
        v_lshl_add_u32 v{WAD3}, v4, 3, v27
        v_add_u32 v{WAD3}, 64, v{WAD3}
        v_min_u32 v25, 9, v26
        v_mul_u32_u24 v27, 640, v24
        v_lshl_add_u32 v27, v25, 3, v27
        s_mul_i32 s58, s{WAVE}, 80
        s_add_u32 s58, s58, {LP}
        v_add_u32 v{RAD}, s58, v27
        s_mul_i32 s58, s{WAVE}, 144
        s_add_u32 s58, s58, {LO}
        v_lshlrev_b32 v27, 5, v24
        v_lshl_add_u32 v27, v26, 2, v27
        v_add_u32 v{OAD}, s58, v27
        v_mov_b32 v{OST}, 1152
        s_add_u32 s58, s58, {8*1152}
        v_lshl_add_u32 v27, v24, 2, s58
        v_cmp_eq_u32 vcc, 8, v26
        s_mov_b32 s58, {LDUM}
        v_lshl_add_u32 v28, v{LANE}, 2, s58
        v_cndmask_b32 v{OAD}, v{OAD}, v27, vcc
        v_cndmask_b32 v{OST}, v{OST}, 16, vcc
        v_cmp_lt_u32 vcc, 8, v26
        v_mul_u32_u24 v27, 144, v5
        v_bfe_u32 v25, v{LANE}, 3, 1
        v_cndmask_b32 v{OAD}, v{OAD}, v28, vcc
        v_cndmask_b32 v{OST}, v{OST}, 0, vcc
        v_lshl_add_u32 v27, v25, 6, v27
        v_lshl_add_u32 v27, v24, 4, v27
        v_add_u32 v{AAD}, {LO}, v27
        v_add_u32 v{QAD}, {LQ + 2048}, v{L16}
        ''')
        for i in range(OACC, OACC + 20): a(f'v_mov_b32 v{i}, 0')
        if RED4:
            a(f'''
            v_mad_u32_u24 v{OAD}, v{OST}, 7, v{OAD}
            s_cmp_lt_u32 s{WAVE}, 4
            s_cbranch_scc1 L_nored4
            s_sub_u32 s58, s{WAVE}, 4
            v_lshrrev_b32 v25, 3, v{LANE}
            s_mul_i32 s59, s58, 640
            s_add_u32 s59, s59, {LP}
            v_mul_u32_u24 v27, 80, v25
            v_add_u32 v27, s59, v27
            v_lshl_add_u32 v{RA2}, v5, 3, v27
            v_and_b32 v28, 3, v{LANE}
            v_lshl_add_u32 v{RAX}, v28, 2, v27
            v_add_u32 v{RAX}, 64, v{RAX}
            v_mul_u32_u24 v27, 144, v25
            s_lshl_b32 s59, s58, 5
            s_add_u32 s59, s59, {LO}
            v_add_u32 v28, s59, v27
            v_lshl_add_u32 v{OA2}, v5, 2, v28
            s_lshl_b32 s59, s58, 2
            s_add_u32 s59, s59, {LO + 8*1152}
            v_add_u32 v28, s59, v27
            v_lshl_add_u32 v28, v5, 1, v28
            s_mov_b32 s59, {LDUM}
            v_lshl_add_u32 v27, v{LANE}, 1, s59
            v_cmp_gt_u32 vcc, 2, v5
            s_nop 1
            v_cndmask_b32 v{OAX}, v27, v28, vcc
L_nored4:
            ''')
    if not FUSED: late_setup()
    if FUSED:
        a(f'''
        s_getreg_b32 s58, hwreg(HW_REG_XCC_ID)
        s_and_b32 s58, s58, 7
        s_mul_i32 s58, s58, {GRAN_REP}
        s_add_u32 s58, s58, {WS_GRAN + 4}
        s_mul_i32 s59, s{WAVE}, {8 * 43}
        s_lshr_b32 s59, s59, 7
        v_add_u32 v24, s59, v{LANE}
        v_min_u32 v24, 21, v24
        v_add_u32 v24, 234, v24
        v_lshlrev_b32 v24, 7, v24
        s_mov_b32 s59, 0
        s_waitcnt vmcnt(0)
L_tag:
        v_cmp_ne_u32 vcc, 0, v61
        s_cbranch_vccnz L_tagok
        buffer_load_dword v61, v64, s[96:99], 0 offen sc1
        s_add_u32 s59, s59, 1
        s_cmp_gt_u32 s59, {SPIN}
        s_waitcnt vmcnt(0)
        s_cbranch_scc0 L_tag
L_tagok:
        ''')
        stamp(a, 'drain')
        a(f'''
        s_barrier
        s_cmp_lg_u32 s{WAVE}, 7
        s_cbranch_scc1 L_noflag
        s_mov_b64 exec, 0xff
        buffer_store_dwordx3 v[60:62], v63, s[{S_WS}:{S_WS+3}], s57 offen sc1
        s_mov_b64 exec, -1
L_noflag:
        ''')
        if LATE == 0:
            a('s_mov_b32 s57, s58\nv_mov_b32 v21, v24\ns_waitcnt lgkmcnt(0)')
            late_setup()
            a('s_mov_b32 s58, s57\nv_mov_b32 v24, v21')
            preset_rest = True
            if WALK & 2: a(f';WALK t 8 s{WAVE} 0')
        else: a(f's_sleep {KPOLL_FIRST}')
        a(f'''
        ''')
        def kpoll():
            a(f'''
            s_mov_b32 s59, 0
            s_mov_b64 exec, 15
            {f's_sleep {KPOLL_F2}' if KPOLL_F2 else ''}
L_kpoll:
            buffer_load_dword v20, v24, s[{S_WS}:{S_WS+3}], s58 offen sc1
            s_add_u32 s59, s59, 1
            s_waitcnt vmcnt(0)
            v_cmp_ne_u32 vcc, v20, v61
            s_and_b64 exec, exec, vcc
            s_cbranch_execz L_kdone
            s_cmp_gt_u32 s59, {SPIN}
            s_cbranch_scc1 L_kdone
            s_sleep {KPOLL_SLEEP}
            s_branch L_kpoll
L_kdone:
            s_mov_b64 exec, -1
            ''')
            stamp(a, 'kin')
        def kfirst(top=3):
            q = list(vm.q)
            for t in range(PRE[0]):
                a(f's_setprio {max(top - t, 0)}'); kv_load(vm, t)
            a('s_setprio 3')
            return q
        def fpoll():
            a(f'''
            s_lshl_b32 s59, s{WAVE}, 13
            s_add_u32 s58, s58, s59
            v_lshlrev_b32 v24, 7, v{LANE}
            s_mov_b32 s59, 0
            {f's_sleep {FPOLL_FIRST}' if FPOLL_FIRST else ''}
L_fpoll:
            buffer_load_dwordx2 v[20:21], v24, s[{S_WS}:{S_WS+3}], s58 offen sc1
            s_add_u32 s59, s59, 1
            s_waitcnt vmcnt(0)
            v_cmp_ne_u32 vcc, v20, v61
            s_and_b64 exec, exec, vcc
            s_cbranch_execz L_fdone
            s_cmp_gt_u32 s59, {SPIN}
            s_cbranch_scc1 L_fdone
            s_sleep {FPOLL_SLEEP}
            s_branch L_fpoll
L_fdone:
            s_mov_b64 exec, -1
            ''')
        if SPLIT:
            a(f's_cmp_lt_u32 s{WAVE}, 4\ns_cbranch_scc1 L_allflags')
            kpoll(); vm.q = kfirst(); v_preset(16, 64)
            a('s_barrier')
            qdma()
            a('s_branch L_synced\nL_allflags:')
            vm.q = []
            v_preset(16, 64)
            fpoll()
            a('s_barrier')
            qdma(); kfirst(2)
            a('L_synced:\ns_setprio 0')
        else:
            kpoll(); kfirst()
            a(f's_cmp_ge_u32 s{WAVE}, 4\ns_cbranch_scc1 L_flagsin')
            fpoll()
            a('L_flagsin:\ns_barrier')
        stamp(a, 'sync')
        if not SPLIT: first_loads()
        if LATE == 2:
            a('s_waitcnt lgkmcnt(0)'); late_setup()
    qprep(a, vm, stamp)
    return vm

def true_max(a, vm):
    a('L_slow:')
    assert max(KVS) <= 4 and F0AT[0][0] >= 5
    a(f'''
    s_setprio 0
    v_and_b32 v{T}, 31, v{LANE}
    v_add_u32 v{QAD}, {LQ}, v{L16}
    s_lshl_b32 s58, s{WAVE}, 7
    s_add_u32 s58, s58, {X_PMAX}
    v_lshl_add_u32 v{T+1}, v{T}, 2, s58
    s_mov_b32 s{S_CNT}, 8
    s_waitcnt vmcnt(0) lgkmcnt(0)
    s_nop 15
    s_nop 15
L_mx:
    ''')
    vm.q = []
    for r in q_reads(True): a(r)
    a(f'v_mov_b32 v{MV}, 0xff800000\ns_waitcnt lgkmcnt(0)')
    for t in range(8):
        a(qkx(SA, t)); a(qkm(SA, t)); a('s_nop 11')
        for r in range(0, 16, 2): a(f'v_max3_f32 v{MV}, v{MV}, v{SA+r}, v{SA+r+1}')
        a('s_nop 7')
    a(f'''
    v_mov_b32 v26, v{MV}
    s_nop 1
    v_permlane32_swap_b32 v{MV}, v26
    v_max_f32 v{MV}, v{MV}, v26
    ds_write_b32 v{T+1}, v{MV}
    v_add_u32 v{T+1}, 1024, v{T+1}
    s_sub_u32 s{S_CNT}, s{S_CNT}, 1
    s_cmp_lg_u32 s{S_CNT}, 0
    s_cbranch_scc1 L_mx
    v_and_b32 v3, 31, v{LANE}
    s_lshl_b32 s58, s{WAVE}, 10
    s_add_u32 s58, s58, {X_PMAX}
    v_lshl_add_u32 v25, v3, 2, s58
    s_waitcnt lgkmcnt(0)
    s_barrier
    ''')
    for i in range(4): a(f'ds_read2_b32 v[{2*i+8}:{2*i+9}], v25 offset0:{64*i} offset1:{64*i+32}')
    a(f'''
    s_mov_b32 s58, {X_MAX}
    v_lshl_add_u32 v82, v3, 2, s58
    s_lshl_b32 s58, s{WAVE}, 7
    v_add_u32 v25, s58, v82
    s_waitcnt lgkmcnt(0)
    v_max3_f32 v8, v8, v9, v10
    v_max3_f32 v8, v8, v11, v12
    v_max3_f32 v8, v8, v13, v14
    v_max_f32 v8, v8, v15
    ds_write_b32 v25, v8
    ''')
    if 'dumpm' in DIAG:
        a(f's_lshl_b32 s58, s2, 3\ns_add_u32 s58, s58, s{WAVE}\ns_lshl_b32 s58, s58, 7\ns_add_u32 s58, s58, {WS_STAMP}\nv_lshlrev_b32 v9, 2, v3\nbuffer_store_dword v8, v9, s[{S_WS}:{S_WS+3}], s58 offen\ns_waitcnt vmcnt(0)')
    a(f'''
    v_add_u32 v{QAD}, {LQ}, v{L16}
    s_waitcnt lgkmcnt(0)
    s_barrier
    ''')
    for r in q_reads(True): a(r)

def k2(name, stamp=nomark):
    import pads
    t = pads.apply(k2_(name, stamp))
    if 'jitter' in DIAG:
        L, n = [], 0
        def jit():
            nonlocal n; n += 1
            return [f'    s_mul_i32 s100, s100, 1664525', '    s_add_u32 s100, s100, 1013904223', '    s_lshr_b32 s101, s100, 26', f'    s_cmp_gt_u32 s101, 15', f'    s_cbranch_scc1 L_jd{n}',
                    f'L_j{n}:', '    s_sleep 2', '    s_sub_u32 s101, s101, 1', '    s_cmp_gt_i32 s101, 0', f'    s_cbranch_scc1 L_j{n}', f'L_jd{n}:']
        for l in t.split('\n'):
            w = l.strip()
            if w == 's_barrier': L += jit() + [l] + jit()
            elif w.startswith('s_load_dwordx2 s[28:29]'): L += ['    s_memtime s[100:101]', '    s_waitcnt lgkmcnt(0)', l]
            elif w.startswith('buffer_store') and 'sc1' in w and 'dwordx3' not in w and False: L += jit() + [l]
            else: L.append(l)
        t = '\n'.join(L)
    out, inloop = [], False
    for l in t.split('\n'):
        s = l.strip()
        if s.endswith('_loop:'): inloop = True
        if inloop:
            if 'nowo' in DIAG and s.startswith('buffer_load') and 'lds' not in s: continue
            if 'nodma' in DIAG and s.startswith('buffer_load') and 'lds' in s: continue
            if 'noop' in DIAG and '16x16x64' in s: continue
            if 'novm' in DIAG and 'vmcnt' in s: continue
            if 'nobar' in DIAG and s == 's_barrier': continue
            if 'nods' in DIAG and (s.startswith('ds_') or 'lgkmcnt' in s): continue
            if 'novalu' in DIAG and (s.startswith('v_pk') or s.startswith('v_add') or s.startswith('v_rcp') or s.startswith('v_cvt')): continue
            if 'nopv' in DIAG and '32x32x32' in s: continue
            if 'noqk' in DIAG and ('32x32x16' in s or ('32x32x8' in s and ' v[' in s[:32])): continue
            if 'noqx' in DIAG and ('32x32x8' in s and ' v[' in s[:32]): continue
            if 'noexp' in DIAG and s.startswith('v_exp'): l = l.replace('v_exp_f32', 'v_nop ;')
            if 'noprio' in DIAG and s.startswith('s_setprio'): continue
        if s.startswith('s_cbranch_scc1') and s.endswith('_loop'): inloop = False
        out.append(l)
    return '\n'.join(out)

def k2_(name, stamp=nomark):
    a = Asm()
    a(f'.globl {name}\n.p2align 8\n.type {name},@function\n{name}:')
    if FUSED:
        import k1
        k1.entry(a, stamp, 'L_k2_exit')
        def done(a): a('s_branch L_p1done')
        k1.phase1(a, True, stamp, done)
        a.l = k1.diag(a.text()).rstrip('\n').split('\n')
    vm = prologue(a, stamp)
    a(';PAD -')
    stamp(a, 'prol')
    a(f's_cmp_ge_u32 s{WAVE}, 4\ns_cbranch_scc1 L_f4')
    q0 = list(vm.q)
    attention(a, 5, False, 'L_a5', vm, stamp, sum(PRE))
    a('L_f4:')
    vm.q = list(q0)
    attention(a, 4, False, 'L_a4', vm, stamp, sum(PRE))
    tail(a, stamp)
    vm.q = list(q0)
    true_max(a, vm)
    a(f's_cmp_ge_u32 s{WAVE}, 4\ns_cbranch_scc1 L_s4')
    attention(a, 5, True, 'L_b5', vm, nomark, 8)
    a('L_s4:')
    vm.q = []
    attention(a, 4, True, 'L_b4', vm, nomark, 8)
    a('L_k2_exit:\ns_endpgm')
    return a.text()
```
